```python
import torch

def _softmax(x, axis=-1):
    return torch.softmax(x, dim=axis)
def _gelu(x):
    return torch.nn.functional.gelu(x, approximate="tanh")
def _silu(x):
    return torch.nn.functional.silu(x)
def _sigmoid(x):
    return torch.sigmoid(x)
def _layernorm(x, axis=-1, eps=1e-5):
    m = x.mean(dim=axis, keepdim=True)
    v = x.var(dim=axis, keepdim=True, unbiased=False)
    return (x - m) / torch.sqrt(v + eps)
def _scatter_add(tgt, idx, src, axis=0):
    return tgt.clone().index_add_(axis, idx, src)
def _segment_sum(src, seg, n):
    out = torch.zeros((n,) + src.shape[1:], dtype=src.dtype)
    return out.index_add_(0, seg, src)
def _pad(x, pw):
    flat = tuple(v for pair in reversed(pw) for v in pair)
    return torch.nn.functional.pad(x, flat)

kernel_name = 'interleave_layers__ssm_conv_s4__linear_attn_block__prompt'

def setup_inputs():

    _w = (lambda a: (lambda t: t.to(torch.bfloat16) if t.is_floating_point() else t)(torch.as_tensor(a)))
    def _A_setup():
        B, L, D, N = 1, 2048, 512, 128
        A_re = -(lambda _x: torch.exp(torch.as_tensor(_x)))((lambda *s: torch.randn(*s, dtype=torch.bfloat16) * 1.6)(D, N))
        A_im = torch.pi * (lambda *s: torch.randn(*s, dtype=torch.bfloat16) * 0.05)(D, N)
        B_re = (lambda *s: torch.randn(*s, dtype=torch.bfloat16) * 0.05)(D, N)
        B_im = (lambda *s: torch.randn(*s, dtype=torch.bfloat16) * 0.05)(D, N)
        C_re = (lambda *s: torch.randn(*s, dtype=torch.bfloat16) * 0.05)(D, N)
        C_im = (lambda *s: torch.randn(*s, dtype=torch.bfloat16) * 0.05)(D, N)
        log_dt = (lambda *s: torch.randn(*s, dtype=torch.bfloat16) * 0.05)(D) * 0.5 - 4.0
        Dskip = (lambda *s: torch.randn(*s, dtype=torch.bfloat16) * 0.05)(D)
        return {
            "u": _w((lambda *s: torch.randn(*s, dtype=torch.bfloat16) * 0.05)(B, L, D)),
            "A_re": _w(A_re),
            "A_im": _w(A_im),
            "B_re": _w(B_re),
            "B_im": _w(B_im),
            "C_re": _w(C_re),
            "C_im": _w(C_im),
            "log_dt": _w(log_dt),
            "Dskip": _w(Dskip),
        }
    _A_in = _A_setup()

    def _B_setup():
        B, S, D = 1, 2048, 512
        return {
            "x": _w((lambda *s: torch.randn(*s, dtype=torch.bfloat16) * 0.05)(B, S, D)),
            "wqkv": _w((lambda *s: torch.randn(*s, dtype=torch.bfloat16) * 0.1)(D, 3 * D)),
            "wo": _w((lambda *s: torch.randn(*s, dtype=torch.bfloat16) * 0.05)(D, D)),
        }
    _B_in = _B_setup()

    return {
        "A_u": _A_in["u"],
        "A_A_re": _A_in["A_re"],
        "A_A_im": _A_in["A_im"],
        "A_B_re": _A_in["B_re"],
        "A_B_im": _A_in["B_im"],
        "A_C_re": _A_in["C_re"],
        "A_C_im": _A_in["C_im"],
        "A_log_dt": _A_in["log_dt"],
        "A_Dskip": _A_in["Dskip"],
        "B_x": _B_in["x"],
        "B_wqkv": _B_in["wqkv"],
        "B_wo": _B_in["wo"],
    }

def reference(A_u, A_A_re, A_A_im, A_B_re, A_B_im, A_C_re, A_C_im, A_log_dt, A_Dskip, B_x, B_wqkv, B_wo):
    def _A_ref(u, A_re, A_im, B_re, B_im, C_re, C_im, log_dt, Dskip):
        Bsz, L, D = u.shape
        dt = torch.exp(log_dt)[:, None]
        A = A_re + 1j * A_im
        Bc = B_re + 1j * B_im
        Cc = C_re + 1j * C_im
        logdA = dt * A
        dB = dt * Bc
        l = (lambda x, dt: x.to(dt))(torch.arange(L), A_re.dtype)
        P = torch.exp(logdA[:, :, None] * l[None, None, :])
        K = torch.einsum("dn,dnl,dn->dl", Cc, P, dB).real
        L2 = 2 * L
        Kp = _pad(K, ((0, 0), (0, L)))
        up = (lambda x, *d: x.permute(*d))(u, 0, 2, 1)
        up = _pad(up, ((0, 0), (0, 0), (0, L)))
        Kf = (lambda x, axes=(-2,-1): torch.fft.rfft2(x.float(), dim=axes))(Kp[:, None, :], axes=(-2, -1))
        Uf = (lambda x, axes=(-2,-1): torch.fft.rfft2(x.float(), dim=axes))(up[:, :, None, :], axes=(-2, -1))
        Yf = Uf * Kf[None, :, :, :]
        y = (lambda x, s, axes=(-2,-1): torch.fft.irfft2(x, s=s, dim=axes).to(torch.bfloat16))(Yf, (1, L2), axes=(-2, -1))[:, :, 0, :L]
        y = (lambda x, *d: x.permute(*d))(y, 0, 2, 1) + u * Dskip[None, None, :]
        return y

    def _B_ref(x, wqkv, wo):
        B, S, D = x.shape
        H = 32; Dh = D // H
        qkv = (lambda x, *d: x.permute(*d))((x @ wqkv).reshape(B, S, 3, H, Dh), 2, 0, 3, 1, 4)
        q, k, v = qkv[0], qkv[1], qkv[2]
        phi = lambda t: torch.where(t > 0, t + 1, torch.exp(t)) + 1e-6
        pq, pk = phi(q), phi(k)
        kv = torch.einsum("bhsd,bhse->bhde", pk, v)
        z = torch.einsum("bhsd->bhd", pk)
        num = torch.einsum("bhqd,bhde->bhqe", pq, kv)
        den = torch.einsum("bhqd,bhd->bhq", pq, z)[..., None] + 1e-6
        o = num / den
        return (lambda x, *d: x.permute(*d))(o, 0, 2, 1, 3).reshape(B, S, D) @ wo

    x = A_u
    x = x + _A_ref(_layernorm(x, axis=-1), A_A_re, A_A_im, A_B_re, A_B_im, A_C_re, A_C_im, A_log_dt, A_Dskip)
    x = x + _B_ref(_layernorm(x, axis=-1), B_wqkv, B_wo)
    x = x + _A_ref(_layernorm(x, axis=-1), A_A_re, A_A_im, A_B_re, A_B_im, A_C_re, A_C_im, A_log_dt, A_Dskip)
    x = x + _B_ref(_layernorm(x, axis=-1), B_wqkv, B_wo)
    return x
```

```python
import re

REG_RE = re.compile(r'(?<![\w.])([vas])(?:(\d+)|\[(\d+):(\d+)\])(?![\w])')
TRANS = ('v_exp_f32', 'v_log_f32', 'v_rcp_f32', 'v_rsq_f32', 'v_sqrt_f32', 'v_sin_f32', 'v_cos_f32')


def regs_of(op):
    out = set()
    for m in REG_RE.finditer(op):
        f = m.group(1)
        if m.group(2) is not None:
            out.add((f, int(m.group(2))))
        else:
            for i in range(int(m.group(3)), int(m.group(4)) + 1):
                out.add((f, i))
    if re.search(r'\bvcc\b', op):
        out.add(('s', 'vcc'))
    if re.search(r'\bexec\b', op):
        out.add(('s', 'exec'))
    if re.search(r'\bm0\b', op):
        out.add(('s', 'm0'))
    return out


def split_ops(s):
    ops, depth, cur = [], 0, ''
    for ch in s:
        if ch == '[':
            depth += 1
        if ch == ']':
            depth -= 1
        if ch == ',' and depth == 0:
            ops.append(cur.strip())
            cur = ''
        else:
            cur += ch
    if cur.strip():
        ops.append(cur.strip())
    return ops


class Ins:
    def __init__(self, text):
        self.text = text
        t = text.split(';')[0].strip()
        parts = t.split(None, 1)
        self.mn = parts[0]
        self.ops = split_ops(parts[1]) if len(parts) > 1 else []
        mn = self.mn
        self.defs, self.uses = set(), set()
        self.kind = 'other'
        self.srcA = self.srcB = self.srcC = set()
        self.passes = 0
        self.storedata = set()
        ops = self.ops
        R = [regs_of(o) for o in ops]
        if mn.startswith('v_mfma'):
            self.kind = 'mfma'
            self.defs = R[0]
            self.srcA, self.srcB, self.srcC = R[1], R[2], R[3]
            self.uses = R[1] | R[2] | R[3]
            self.passes = 8 if '32x32' in mn else 4
        elif mn.startswith('v_'):
            self.kind = 'valu'
            if mn.startswith('v_cmp'):
                self.defs = R[0]
                self.uses = set().union(*R[1:])
            elif mn.startswith('v_permlane'):
                self.defs = R[0] | R[1]
                self.uses = R[0] | R[1]
            elif mn.startswith('v_nop'):
                pass
            else:
                self.defs = set(R[0])
                rest = R[1:]
                if mn.startswith(('v_add_co', 'v_sub_co', 'v_addc_co', 'v_subb_co')):
                    self.defs |= R[1]
                    rest = R[2:]
                self.uses = set().union(*rest) if rest else set()
                if mn.startswith(('v_fmac', 'v_dot2c', 'v_writelane')) or '_dpp' in mn or 'sdwa' in mn:
                    self.uses |= R[0]
        elif mn.startswith('ds_'):
            self.kind = 'ds'
            if mn.startswith(('ds_read', 'ds_bpermute', 'ds_swizzle', 'ds_permute')):
                self.defs = R[0]
                self.uses = set().union(*R[1:])
            else:
                self.uses = set().union(*R)
                if 'addtid' in mn:
                    self.uses.add(('s', 'm0'))
        elif mn.startswith(('buffer_', 'global_')):
            self.kind = 'vmem'
            islds = bool(re.search(r'\blds\b', t)) or '_lds_' in mn
            if 'load' in mn and not islds:
                self.defs = R[0]
                self.uses = set().union(*R[1:])
            else:
                self.uses = set().union(*R)
                if islds:
                    self.uses.add(('s', 'm0'))
                if 'atomic' in mn and re.search(r'\bsc0\b', t):
                    self.defs = R[0]
                if 'store' in mn and ('x4' in mn or 'x3' in mn):
                    self.storedata = R[0] if mn.startswith('buffer_') else R[1]
            self.islds = islds
        elif mn.startswith(('s_load', 's_memtime', 's_memrealtime')):
            self.kind = 'smem'
            self.defs = R[0]
            self.uses = set().union(*R[1:]) if len(R) > 1 else set()
        elif mn.startswith('s_'):
            self.kind = 'salu'
            if mn.startswith(('s_cmp', 's_cbranch', 's_branch', 's_waitcnt', 's_nop', 's_barrier', 's_endpgm', 's_sleep',
                              's_setprio', 's_setpc', 's_bitcmp')):
                self.uses = set().union(*R) if R else set()
            else:
                self.defs = set(R[0]) if R else set()
                self.uses = set().union(*R[1:]) if len(R) > 1 else set()
                if 'saveexec' in mn:
                    self.defs.add(('s', 'exec'))
        self.trans = mn.replace('_e64', '').replace('_e32', '') in TRANS
        self.dot = mn.startswith('v_dot')
        self.ws = 1
        if mn == 's_nop':
            self.ws = int(ops[0]) + 1


def vonly(s):
    return {r for r in s if r[0] in 'va'}


def sonly(s):
    return {r for r in s if r[0] == 's'}


def need_ws(p, c):
    n = 0
    if p.kind == 'valu':
        pv = vonly(p.defs)
        ps = sonly(p.defs)
        if c.kind == 'mfma' and pv & c.uses:
            n = max(n, 3 if p.dot else 2)
        if c.kind == 'valu':
            if pv & c.uses:
                if c.mn.startswith('v_permlane') or '_dpp' in c.mn:
                    n = max(n, 2)
                if c.mn.startswith(('v_readlane', 'v_readfirstlane')):
                    n = max(n, 1)
                if p.trans and not c.trans:
                    n = max(n, 1)
                if p.trans and c.trans:
                    n = max(n, 1)
            if p.dot and pv & (c.uses | c.defs):
                if c.mn == p.mn:
                    ab = regs_of(c.ops[1]) | regs_of(c.ops[2])
                    if pv & ab:
                        n = max(n, 3)
                else:
                    n = max(n, 3)
            if ps & c.uses:
                n = max(n, 4 if c.mn.startswith(('v_readlane', 'v_writelane')) else 2)
        if p.dot and c.kind in ('vmem', 'ds') and pv & c.uses:
            n = max(n, 3)
        if p.trans and c.kind in ('vmem', 'ds') and pv & c.uses:
            n = max(n, 1)
        if c.kind == 'vmem' and ps & c.uses:
            n = max(n, 5)
        if c.kind in ('salu', 'smem') and ps & c.uses:
            n = max(n, 1)
    if p.kind == 'mfma':
        big = p.passes == 8
        if c.kind == 'mfma':
            if p.defs & (c.srcA | c.srcB):
                n = max(n, 12 if big else 8)
            if p.defs & c.srcC:
                if not (p.defs == c.srcC and p.passes == c.passes):
                    n = max(n, 10 if big else 6)
            if p.defs & c.defs and not (p.defs == c.srcC):
                n = max(n, 10 if big else 6)
        elif c.kind in ('valu', 'vmem', 'ds'):
            if p.defs & (c.uses | c.defs):
                n = max(n, 12 if big else 8)
            if c.kind == 'valu' and p.srcC & c.defs:
                n = max(n, 7 if big else 3)
    if p.kind == 'vmem' and p.storedata:
        if p.storedata & c.defs:
            n = max(n, 2)
    if p.kind == 'salu' and ('s', 'm0') in p.defs and ('s', 'm0') in c.uses and c.kind in ('vmem', 'ds'):
        n = max(n, 1)
    return n


class Asm:
    def __init__(self):
        self.out = []
        self.hist = []
        self.vm = []
        self.lg = []
        self.nnop = 0
        self.cond = False
        self.ninstr = 0

    def raw(self, text):
        self.out.append(text)

    def comment(self, text):
        self.out.append('    ; ' + text)

    def label(self, name):
        self.out.append(name + ':')

    def _emit(self, ins):
        need = 0
        dist = 0
        for p in reversed(self.hist):
            n = need_ws(p, ins)
            if n - dist > need:
                need = n - dist
            dist += p.ws
            if dist >= 14:
                break
        if need > 0:
            nop = Ins(f's_nop {need - 1}')
            self.out.append('    ' + nop.text)
            self.hist.append(nop)
            self.nnop += need
        self.out.append('    ' + ins.text)
        self.hist.append(ins)
        self.hist = self.hist[-20:]
        self.ninstr += 1

    def _count_after(self, q, idx):
        return sum(1 for e in q[idx + 1:] if not e['cond'])

    def _wait(self, vm=None, lg=None):
        s = []
        if vm is not None:
            s.append(f'vmcnt({min(vm, 63)})')
        if lg is not None:
            s.append(f'lgkmcnt({min(lg, 15)})')
        self._emit(Ins('s_waitcnt ' + ' '.join(s)))

    def _retire(self, q, n):
        k = 0
        for i in range(len(q)):
            if self._count_after(q, i) >= n:
                k = i + 1
        del q[:k]

    def I(self, text, tag=None):
        ins = Ins(text)
        touched = vonly(ins.uses | ins.defs)
        wv = wl = None
        for q, name in ((self.vm, 'vm'), (self.lg, 'lg')):
            last = -1
            for i, e in enumerate(q):
                if e['defs'] & touched:
                    last = i
            if last >= 0:
                n = self._count_after(q, last)
                if name == 'vm':
                    wv = n
                else:
                    wl = n
                del q[:last + 1]
        if wv is not None or wl is not None:
            self._wait(wv, wl)
            if wv is not None:
                self._retire(self.vm, min(wv, 63))
            if wl is not None:
                self._retire(self.lg, min(wl, 15))
        self._emit(ins)
        if ins.kind == 'vmem':
            self.vm.append(dict(defs=vonly(ins.defs), tag=tag, cond=self.cond))
        elif ins.kind == 'ds':
            self.lg.append(dict(defs=vonly(ins.defs), tag=tag, cond=self.cond))
        return ins

    def wait_vm(self, tag=None):
        if tag is None:
            self._wait(vm=0)
            del self.vm[:]
            return
        last = -1
        for i, e in enumerate(self.vm):
            if e['tag'] == tag:
                last = i
        if last < 0:
            return
        n = self._count_after(self.vm, last)
        del self.vm[:last + 1]
        self._wait(vm=n)
        self._retire(self.vm, min(n, 63))

    def wait_lg(self, tag=None):
        if tag is None:
            self._wait(lg=0)
            del self.lg[:]
            return
        last = -1
        for i, e in enumerate(self.lg):
            if e['tag'] == tag:
                last = i
        if last < 0:
            return
        n = self._count_after(self.lg, last)
        del self.lg[:last + 1]
        self._wait(lg=n)
        self._retire(self.lg, min(n, 15))

    def wait_all(self):
        self._wait(vm=0, lg=0)
        del self.vm[:]
        del self.lg[:]

    def barrier(self, lg=True):
        if lg and self.lg:
            self.wait_lg()
        self._emit(Ins('s_barrier'))

    def text(self):
        return '\n'.join(self.out) + '\n'


class Pool:
    def __init__(self, lo, hi):
        self.lo, self.hi = lo, hi
        self.used = set()
        self.peak = lo

    def alloc(self, n=1, align=None):
        if align is None:
            align = 1 if n == 1 else 2
        b = self.lo
        while b + n <= self.hi:
            if b % align == 0 and all((b + i) not in self.used for i in range(n)):
                for i in range(n):
                    self.used.add(b + i)
                self.peak = max(self.peak, b + n)
                return b
            b += 1
        raise RuntimeError(f'out of registers allocating {n} (used {len(self.used)})')

    def free(self, b, n=1):
        for i in range(n):
            assert (b + i) in self.used, f'double free v{b + i}'
            self.used.remove(b + i)


def v(b, n=1):
    return f'v{b}' if n == 1 else f'v[{b}:{b + n - 1}]'


def a(b, n=1):
    return f'a{b}' if n == 1 else f'a[{b}:{b + n - 1}]'


def s(b, n=1):
    return f's{b}' if n == 1 else f's[{b}:{b + n - 1}]'
```

```python
import sys, struct, math
from emit import *

NAME = 'interleave_layers__ssm_conv_s4__linear_attn_block__prompt'
DIAG = '--diag' in sys.argv


def f32(x):
    return '0x%08x' % struct.unpack('<I', struct.pack('<f', x))[0]


WS_CNT = 0x0
WS_ZERO = 0x10000
WS_KV = [WS_ZERO, WS_ZERO + 0xC000]
WS_ST = [0x30000, WS_ZERO + 0x18000]
WS_DIAG = 0x40000
WS_X2 = [0x200000, 0x400000]
WS_XT = [0x600000, 0x800000]
WS_PQ = [0xA00000, 0xC00000]
WS_SIZE = 0xE00000

L_A = 0
L_B = 65536
L_RK = 131072
L_H = L_RK + 4 * 4160
L_STAT = L_H + 2 * 4608
L_END = L_STAT + 512
KG_ROW = 544
KG_CH = 53 * KG_ROW

S_U, S_ARE, S_AIM, S_BRE, S_BIM, S_CRE, S_CIM, S_LDT, S_DSK = 4, 6, 8, 10, 12, 14, 16, 18, 20
S_WQKV, S_WO, S_OUT, S_DBG, S_WS = 24, 26, 28, 30, 32
R_WS, R_WQ, R_WO = 36, 40, 44
S_W, S_RB, S_CG, S_NB, S_TH = 48, 49, 50, 51, 52
S_T0, S_T1, S_T2 = 53, 54, 55
S_D = 56
S_MASK = 58
S_ONES = 60
S_SPIN = 61
S_LN = 62
S_EXP = 64
S_E6 = 66
S_T3, S_T4 = 68, 69
S_STAMP = 70

A = Asm()
I = A.I
P = Pool(1, 192)
WS = s(R_WS, 4)
nstamp = [0]
stamp_names = []


def stamp(name):
    if not DIAG:
        return
    k = nstamp[0]
    assert k < 30
    A.wait_lg()
    I('s_memrealtime s[100:101]')
    A._wait(lg=0)
    I(f's_mov_b32 s{S_STAMP + k}, s100')
    stamp_names.append(name)
    nstamp[0] += 1


def pk(op, dst, *srcs):
    sel, selhi, nlo, nhi, txt = [], [], [], [], []
    for sr in srcs:
        t, m = sr[0], sr[1]
        ng = sr[2] if len(sr) > 2 else ''
        txt.append(t)
        sel.append(1 if m in 'hx' else 0)
        selhi.append(1 if m in 'ph' else 0)
        nlo.append(1 if ng in ('l', 'b') else 0)
        nhi.append(1 if ng in ('h', 'b') else 0)
    f = lambda l: '[' + ','.join(map(str, l)) + ']'
    line = f'v_pk_{op}_f32 {dst}, ' + ', '.join(txt) + f' op_sel:{f(sel)} op_sel_hi:{f(selhi)}'
    if any(nlo):
        line += f' neg_lo:{f(nlo)}'
    if any(nhi):
        line += f' neg_hi:{f(nhi)}'
    I(line)


def bc(r):
    return (v(r & ~1, 2), 'h' if r & 1 else 'l')


def cmul(d, x, y, tmp):
    pk('mul', v(tmp, 2), (v(x, 2), 'l'), (v(y, 2), 'p'))
    pk('fma', v(d, 2), (v(x, 2), 'h', 'l'), (v(y, 2), 'x'), (v(tmp, 2), 'p'))


def wq_reg(y, st):
    return a((y * 16 + st) * 4, 4)


def wo_reg(h, n=4, off=0):
    if h < 16:
        return a(192 + 4 * h + off, n)
    return v(192 + 4 * (h - 16) + off, n)


V_L = P.alloc()
V_L16 = P.alloc()
V_XT = [P.alloc() for _ in range(4)]
V_TILE = P.alloc()
V_X2ST = P.alloc()
V_STAT = P.alloc()
V_CVL = P.alloc()
V_HW = P.alloc()
V_CA = [P.alloc() for _ in range(4)]
V_CB = P.alloc()
V_EXW = P.alloc()
V_EXR = P.alloc()
V_OFR = P.alloc()
V_XTST = P.alloc()
V_XTLD = P.alloc()
V_PQST = P.alloc()
V_KVST = P.alloc()
V_PQLD = P.alloc()
V_KVLD = P.alloc()
V_ZLD = P.alloc()
V_RES = [P.alloc(), P.alloc()]
V_SW = P.alloc()
V_SR4 = P.alloc()
V_SR1 = P.alloc()
V_ARR = P.alloc()
V_POLL = P.alloc()
V_CSKV = P.alloc(2)
V_CSQ = P.alloc(4)
V_ONES = P.alloc(4)


def global_arrive(first=False):
    A.barrier()
    lab = f'L_arr{global_arrive.n}'
    global_arrive.n += 1
    I(f's_cmp_lg_u32 s{S_W}, 0')
    I(f's_cbranch_scc1 {lab}')
    t = P.alloc()
    if first:
        I(f's_mov_b32 s{S_SPIN}, 0x200000')
        I(f'v_mov_b32 {v(t)}, 0')
        A.label(lab + '_init')
        t2 = P.alloc()
        A.cond = True
        I(f'global_load_dword {v(t2)}, {v(t)}, {s(S_DBG, 2)} sc1')
        A.cond = False
        A._wait(vm=0)
        A.vm.pop()
        I(f'v_readfirstlane_b32 s{S_T0}, {v(t2)}')
        I(f's_sub_u32 s{S_SPIN}, s{S_SPIN}, 1')
        I(f's_cbranch_scc1 {lab}_go')
        I(f's_cmp_eq_u32 s{S_T0}, 0')
        I(f's_cbranch_scc1 {lab}_init')
        A.label(lab + '_go')
        P.free(t2)
    I(f'v_mov_b32 {v(t)}, 1')
    I('s_mov_b64 exec, 15')
    A.cond = True
    I(f'buffer_atomic_add {v(t)}, {v(V_ARR)}, {WS}, 0 offen sc1')
    A.cond = False
    I('s_mov_b64 exec, -1')
    P.free(t)
    A.label(lab)


global_arrive.n = 0


def global_wait(k):
    lab = f'L_wait{k}'
    I(f's_cmp_lg_u32 s{S_W}, 0')
    I(f's_cbranch_scc1 {lab}')
    t = P.alloc()
    I(f's_mov_b32 s{S_SPIN}, 0x200000')
    I(f's_mov_b32 s{S_T0}, {16 * k}')
    I('s_mov_b64 exec, 0xffff')
    A.label(lab + '_poll')
    A.cond = True
    I(f'buffer_load_dword {v(t)}, {v(V_POLL)}, {WS}, 0 offen sc1')
    A.cond = False
    I(f's_sub_u32 s{S_SPIN}, s{S_SPIN}, 1')
    I(f's_cbranch_scc1 {lab}_done')
    A._wait(vm=0)
    A.vm.pop()
    I(f'v_cmp_gt_u32 vcc, s{S_T0}, {v(t)}')
    I(f's_cbranch_vccnz {lab}_poll')
    A.label(lab + '_done')
    I('s_mov_b64 exec, -1')
    P.free(t)
    A.label(lab)
    A.barrier()


def dma_w(y, region, vaddr):
    th = []

    def first():
        I(f's_mul_i32 s{S_T3}, s{S_W}, {128 * 3072}')
        I(f's_add_u32 s{S_T3}, s{S_T3}, {y * 1024}')
        I(f's_lshl_b32 s{S_T4}, s{S_W}, 14')
        I(f's_add_u32 m0, s{S_T4}, {region}')
        I(f'buffer_load_dwordx4 {v(vaddr)}, {s(R_WQ, 4)}, s{S_T3} offen lds', tag='wdma')

    def nxt():
        I(f's_add_u32 s{S_T3}, s{S_T3}, {8 * 3072}')
        I(f's_add_u32 m0, m0, 1024')
        I(f'buffer_load_dwordx4 {v(vaddr)}, {s(R_WQ, 4)}, s{S_T3} offen lds', tag='wdma')
    return [first] + [nxt] * 15


def dma_wo(kh, region, vaddr):
    def first():
        I(f's_lshl_b32 s{S_T3}, s{S_W}, 16')
        I(f's_add_u32 s{S_T3}, s{S_T3}, {kh * 256 * 1024}')
        I(f's_lshl_b32 s{S_T4}, s{S_W}, 14')
        I(f's_add_u32 m0, s{S_T4}, {region}')
        I(f'buffer_load_dwordx4 {v(vaddr)}, {s(R_WO, 4)}, s{S_T3} offen lds', tag='wdma')

    def nxt():
        I(f's_add_u32 s{S_T3}, s{S_T3}, 4096')
        I(f's_add_u32 m0, m0, 1024')
        I(f'buffer_load_dwordx4 {v(vaddr)}, {s(R_WO, 4)}, s{S_T3} offen lds', tag='wdma')
    return [first] + [nxt] * 15


def consume_w(y):
    for st in range(16):
        b = (y * 16 + st) * 4
        for z in range(2):
            I(f'ds_read_b64_tr_b16 {a(b + 2 * z, 2)}, {v(V_XT[0])} offset:{4096 * st + 2048 * z}')
    d = V_CSQ if y == 0 else P.alloc(4, 2)
    for st in range(16):
        c = '0' if st == 0 else v(d, 4)
        if y == 0:
            I(f'v_mfma_f32_16x16x32_bf16 {v(d, 4)}, {wq_reg(y, st)}, {v(V_ONES, 4)}, {c}')
        else:
            I(f'v_mfma_f32_16x16x32_bf16 {v(d, 4)}, {v(V_ONES, 4)}, {wq_reg(y, st)}, {c}')
    if y:
        I(f'v_mov_b32 {v(V_CSKV + y - 1)}, {v(d)}')
        P.free(d, 4)


def consume_wo(kh, vaddr):
    for hh in range(16):
        for z in range(2):
            I(f'ds_read_b64_tr_b16 {wo_reg(16 * kh + hh, 2, 2 * z)}, {v(vaddr)} offset:{4096 * hh + 1024 * z}')


def stream(mf, loader, nslots, look, fill=None, gate=None, rate=2, maxout=12):
    fill = fill or {}
    gate = gate or {}
    first, last, order = {}, {}, []
    for m, (_, keys) in enumerate(mf):
        for k in keys:
            if k not in first:
                first[k] = m
                order.append(k)
            last[k] = m
    slots = [P.alloc(4, 2) for _ in range(nslots)]
    free = list(slots)
    reg = {}
    pend = []
    nxt = [0]

    def start_key():
        k = order[nxt[0]]
        nxt[0] += 1
        if k in gate:
            gate[k]()
        reg[k] = free.pop(0)
        pend.extend(loader(k, reg[k]))

    def issue(n, m, force=False):
        while n > 0:
            if not pend:
                if nxt[0] >= len(order) or not free:
                    return
                if first[order[nxt[0]]] > m + look:
                    return
                start_key()
            if len(A.lg) >= maxout and not force:
                return
            I(pend.pop(0))
            n -= 1

    issue(maxout, -1)
    for m, (em, keys) in enumerate(mf):
        while any(k not in reg for k in keys) or (pend and order[nxt[0] - 1] in keys):
            assert pend or free, 'no free slot'
            if not pend:
                start_key()
            I(pend.pop(0))
        em(reg)
        for k in keys:
            if last[k] == m:
                free.append(reg[k])
        for th in fill.get(m, []):
            th(reg)
        issue(rate, m)
    for r in slots:
        P.free(r, 4)


def prologue():
    I('s_cmp_ge_u32 s2, 256')
    I('s_cbranch_scc1 L_end')
    I('s_load_dwordx16 s[4:19], s[0:1], 0')
    I('s_load_dwordx8 s[20:27], s[0:1], 64')
    I('s_load_dwordx4 s[28:31], s[0:1], 96')
    I('s_load_dwordx2 s[32:33], s[0:1], 112')
    if DIAG:
        I('s_memrealtime s[100:101]')
    t = [P.alloc() for _ in range(8)]
    I(f'v_lshrrev_b32 {v(t[0])}, 6, v0')
    I(f'v_and_b32 {v(V_L)}, 63, v0')
    I(f'v_readfirstlane_b32 s{S_W}, {v(t[0])}')
    I(f's_and_b32 s{S_T0}, s2, 7')
    I(f's_lshr_b32 s{S_T1}, s2, 3')
    I(f's_and_b32 s{S_T2}, s{S_T1}, 3')
    I(f's_lshl_b32 s{S_RB}, s{S_T0}, 2')
    I(f's_add_u32 s{S_RB}, s{S_RB}, s{S_T2}')
    I(f's_lshr_b32 s{S_CG}, s{S_T1}, 2')
    I(f's_lshr_b32 s{S_NB}, s{S_CG}, 1')
    I(f's_and_b32 s{S_TH}, s{S_CG}, 1')
    I(f'v_lshlrev_b32 {v(V_L16)}, 4, {v(V_L)}')
    vsr = P.alloc()
    I(f's_lshl_b32 s{S_T0}, s{S_RB}, 6')
    I(f's_lshl_b32 s{S_T1}, s{S_CG}, 3')
    I(f's_add_u32 s{S_T1}, s{S_T1}, s{S_T0}')
    I(f's_lshl_b32 s{S_T2}, s{S_W}, 1')
    I(f's_add_u32 s{S_T3}, s{S_T1}, s{S_T2}')
    I(f's_lshl_b32 s{S_T1}, s{S_T3}, 10')
    I(f'v_add_u32 {v(vsr)}, s{S_T1}, {v(V_L16)}')
    vt, vhi = t[1], t[2]
    I(f's_lshl_b32 s{S_T1}, s{S_TH}, 5')
    I(f's_add_u32 s{S_T0}, s{S_T0}, s{S_T1}')
    I(f'v_and_b32 {v(vt)}, 31, {v(V_L)}')
    I(f'v_add_u32 {v(vt)}, s{S_T0}, {v(vt)}')
    I(f'v_lshrrev_b32 {v(vhi)}, 5, {v(V_L)}')
    I(f's_lshl_b32 s{S_T0}, s{S_NB}, 8')
    I(f's_lshl_b32 s{S_T1}, s{S_W}, 6')
    I(f's_add_u32 s{S_T0}, s{S_T0}, s{S_T1}')
    I(f'v_lshl_add_u32 {v(V_TILE)}, {v(vt)}, 10, s{S_T0}')
    I(f'v_lshl_add_u32 {v(V_TILE)}, {v(vhi)}, 5, {v(V_TILE)}')
    vpo = P.alloc()
    I(f's_lshl_b32 s{S_T1}, s2, 9')
    I(f'v_lshl_add_u32 {v(vpo)}, v0, 1, s{S_T1}')
    vdo = P.alloc()
    I(f's_lshl_b32 s{S_T1}, s2, 2')
    I(f'v_mov_b32 {v(vdo)}, s{S_T1}')
    vwd = P.alloc()
    I(f'v_lshrrev_b32 {v(t[3])}, 3, {v(V_L)}')
    I(f'v_mul_u32_u24 {v(vwd)}, 3072, {v(t[3])}')
    I(f'v_bfe_u32 {v(t[3])}, {v(V_L)}, 1, 2')
    I(f'v_lshrrev_b32 {v(t[4])}, 4, {v(V_L)}')
    I(f'v_xor_b32 {v(t[3])}, {v(t[3])}, {v(t[4])}')
    I(f'v_lshl_add_u32 {v(vwd)}, {v(t[3])}, 5, {v(vwd)}')
    I(f'v_and_b32 {v(t[3])}, 1, {v(V_L)}')
    I(f'v_lshl_add_u32 {v(vwd)}, {v(t[3])}, 4, {v(vwd)}')
    I(f's_lshl_b32 s{S_T1}, s{S_CG}, 7')
    I(f'v_add_u32 {v(vwd)}, s{S_T1}, {v(vwd)}')
    A._wait(lg=0)
    if DIAG:
        I(f's_mov_b32 s{S_STAMP}, s100')
        stamp_names.append('entry')
        nstamp[0] = 1
    for r, p, n in ((R_WS, S_WS, WS_SIZE), (R_WQ, S_WQKV, 512 * 3072), (R_WO, S_WO, 512 * 1024)):
        I(f's_mov_b32 s{r}, s{p}')
        I(f's_mov_b32 s{r + 1}, s{p + 1}')
        I(f's_mov_b32 s{r + 2}, {hex(n)}')
        I(f's_mov_b32 s{r + 3}, 0x20000')
    zero4 = P.alloc(4, 2)
    for i in range(4):
        I(f'v_mov_b32 {v(zero4 + i)}, 0')
    I(f's_lshl_b32 s{S_T1}, s2, 2')
    I(f's_add_u32 s{S_T4}, s{S_T1}, s{S_W}')
    I(f's_cmp_lg_u32 s{S_T4}, 3')
    I('s_cbranch_scc1 L_noinit')
    I(f'v_lshlrev_b32 {v(t[3])}, 8, {v(V_L)}')
    A.cond = True
    I(f'buffer_store_dword {v(zero4)}, {v(t[3])}, {WS}, 0 offen sc1')
    I(f'global_load_dword {v(t[5])}, {v(zero4)}, {s(S_DBG, 2)} sc1')
    A.cond = False
    A.label('L_noinit')
    xs = P.alloc(8, 2)
    xt = P.alloc(8, 2)
    I(f'global_load_dwordx4 {v(xs, 4)}, {v(vsr)}, {s(S_U, 2)}')
    I(f'global_load_dwordx4 {v(xs + 4, 4)}, {v(vsr)}, {s(S_U, 2)} offset:1024')
    I(f'global_load_dwordx4 {v(xt, 4)}, {v(V_TILE)}, {s(S_U, 2)}')
    I(f'global_load_dwordx4 {v(xt + 4, 4)}, {v(V_TILE)}, {s(S_U, 2)} offset:16')
    par = P.alloc(8, 2)
    for i, sp in enumerate((S_ARE, S_AIM, S_BRE, S_BIM, S_CRE, S_CIM)):
        I(f'global_load_ushort {v(par + i)}, {v(vpo)}, {s(sp, 2)}')
    I(f'global_load_dword {v(par + 6)}, {v(vdo)}, {s(S_LDT, 2)}')
    I(f'global_load_dword {v(par + 7)}, {v(vdo)}, {s(S_DSK, 2)}')
    srow = S_T2
    I(f's_mov_b32 s{srow}, s{S_T3}')
    sinit = S_SPIN
    I(f's_mov_b32 s{sinit}, s{S_T4}')
    for th in dma_w(0, L_A, vwd):
        th()
    P.free(vsr), P.free(vpo), P.free(vdo)

    I(f's_mov_b32 s{S_MASK}, 0xffff0000')
    I(f's_mov_b32 s{S_MASK + 1}, 0xffff0000')
    I(f's_mov_b32 s{S_ONES}, 0x3f803f80')
    I(f's_mov_b32 s{S_LN}, {f32(1 / 512)}')
    I(f's_mov_b32 s{S_LN + 1}, {f32(1e-5)}')
    I(f's_mov_b32 s{S_EXP}, {f32(math.log2(math.e))}')
    I(f's_mov_b32 s{S_EXP + 1}, {f32(-1e-6 * math.log2(math.e))}')
    I(f's_mov_b32 s{S_E6}, {f32(1e-6)}')
    I(f's_mov_b32 s{S_E6 + 1}, {f32(1e-6)}')
    for i in range(4):
        I(f'v_mov_b32 {v(V_ONES + i)}, s{S_ONES}')
    vg, va_, x0, x1 = t[4], t[6], t[3], t[7]
    I(f'v_and_b32 {v(va_)}, 15, {v(V_L)}')
    I(f's_lshl_b32 s{S_T0}, s{S_NB}, 19')
    I(f's_lshl_b32 s{S_T1}, s{S_W}, 17')
    I(f's_add_u32 s{S_T0}, s{S_T0}, s{S_T1}')
    I(f'v_lshl_add_u32 {v(V_X2ST)}, {v(vt)}, 2, s{S_T0}')
    I(f'v_lshl_add_u32 {v(V_X2ST)}, {v(vhi)}, 16, {v(V_X2ST)}')
    I(f'v_lshlrev_b32 {v(V_STAT)}, 2, {v(vt)}')
    I(f'v_lshl_add_u32 {v(V_STAT)}, {v(vhi)}, 13, {v(V_STAT)}')
    I(f's_lshl_b32 s{S_T0}, s{S_W}, 11')
    I(f'v_lshl_add_u32 {v(V_CVL)}, {v(va_)}, 6, s{S_T0}')
    I(f'v_lshl_add_u32 {v(V_CVL)}, {v(vg)}, 4, {v(V_CVL)}')
    I(f'v_lshrrev_b32 {v(V_HW)}, 1, {v(V_CVL)}')
    I(f'v_add_u32 {v(V_HW)}, {L_H + 512}, {v(V_HW)}')
    I(f's_lshr_b32 s{S_T0}, s{S_W}, 1')
    I(f's_and_b32 s{S_T1}, s{S_W}, 1')
    I(f's_mul_i32 s{S_T3}, s{S_T0}, 4608')
    I(f's_lshl_b32 s{S_T4}, s{S_T1}, 8')
    I(f's_sub_u32 s{S_T3}, s{S_T3}, s{S_T4}')
    I(f's_add_u32 s{S_T3}, s{S_T3}, {L_H + 512 - 32 - 192}')
    I(f'v_lshl_add_u32 {v(V_CB)}, {v(va_)}, 5, s{S_T3}')
    I(f'v_lshl_add_u32 {v(V_CB)}, {v(vg)}, 4, {v(V_CB)}')
    I(f's_mul_i32 s{S_T3}, s{S_T0}, 8320')
    I(f's_sub_u32 s{S_T3}, s{S_T3}, s{S_T4}')
    I(f's_add_u32 s{S_T3}, s{S_T3}, {L_RK + 4160 + 4 * (1015 - 176)}')
    I(f'v_and_b32 {v(x0)}, 1, {v(va_)}')
    I(f'v_mul_u32_u24 {v(x0)}, 4160, {v(x0)}')
    I(f'v_lshrrev_b32 {v(x1)}, 1, {v(va_)}')
    I(f'v_lshl_add_u32 {v(x0)}, {v(x1)}, 2, {v(x0)}')
    I(f'v_lshl_add_u32 {v(x1)}, {v(vg)}, 4, s{S_T3}')
    I(f'v_sub_u32 {v(V_CA[0])}, {v(x1)}, {v(x0)}')
    for i in range(1, 4):
        I(f'v_subrev_u32 {v(V_CA[i])}, {1024 * i}, {v(V_CA[0])}')
    I(f'v_add_u32 {v(V_OFR)}, {L_B}, {v(V_L16)}')
    I(f's_lshl_b32 s{S_T3}, s{S_W}, 13')
    I(f'v_add_u32 {v(V_EXW)}, s{S_T3}, {v(V_OFR)}')
    I(f's_lshl_b32 s{S_T3}, s{S_W}, 11')
    I(f'v_add_u32 {v(V_EXR)}, s{S_T3}, {v(V_OFR)}')
    I(f's_lshl_b32 s{S_T3}, s{S_W}, 19')
    I(f's_lshl_b32 s{S_T4}, s2, 8')
    I(f's_add_u32 s{S_T3}, s{S_T3}, s{S_T4}')
    I(f'v_lshrrev_b32 {v(x0)}, 2, {v(va_)}')
    I(f'v_lshl_add_u32 {v(V_XTST)}, {v(x0)}, 16, s{S_T3}')
    I(f'v_xor_b32 {v(x0)}, s2, {v(va_)}')
    I(f'v_and_b32 {v(x0)}, 3, {v(x0)}')
    I(f'v_lshl_add_u32 {v(V_XTST)}, {v(x0)}, 5, {v(V_XTST)}')
    I(f'v_lshl_add_u32 {v(V_XTST)}, {v(vg)}, 3, {v(V_XTST)}')
    I(f's_lshl_b32 s{S_T3}, s{S_RB}, 16')
    I(f's_lshl_b32 s{S_T4}, s{S_W}, 12')
    I(f's_add_u32 s{S_T3}, s{S_T3}, s{S_T4}')
    I(f'v_add_u32 {v(V_XTLD)}, s{S_T3}, {v(V_L16)}')
    I(f'v_lshrrev_b32 {v(x0)}, 2, {v(V_L)}')
    I(f'v_lshlrev_b32 {v(V_XT[0])}, 7, {v(x0)}')
    I(f'v_bfe_u32 {v(x0)}, {v(V_L)}, 3, 2')
    I(f'v_xor_b32 {v(x0)}, s{S_W}, {v(x0)}')
    I(f'v_lshl_add_u32 {v(V_XT[0])}, {v(x0)}, 5, {v(V_XT[0])}')
    I(f'v_and_b32 {v(x0)}, 3, {v(V_L)}')
    I(f'v_lshl_add_u32 {v(V_XT[0])}, {v(x0)}, 3, {v(V_XT[0])}')
    for i in range(1, 4):
        I(f'v_xor_b32 {v(V_XT[i])}, {32 * i}, {v(V_XT[0])}')
    I(f's_lshl_b32 s{S_T4}, s{S_CG}, 2')
    I(f's_add_u32 s{S_T4}, s{S_T4}, s{S_W}')
    I(f's_lshl_b32 s{S_T4}, s{S_T4}, 10')
    I(f's_lshl_b32 s{S_T3}, s{S_RB}, 16')
    I(f's_add_u32 s{S_T3}, s{S_T3}, s{S_T4}')
    I(f'v_lshl_add_u32 {v(V_PQST)}, {v(va_)}, 5, s{S_T3}')
    I(f'v_lshl_add_u32 {v(V_PQST)}, {v(vg)}, 3, {v(V_PQST)}')
    I(f'v_lshl_add_u32 {v(V_KVST)}, {v(V_L)}, 2, s{S_T4}')
    I(f's_lshl_b32 s{S_T3}, s{S_RB}, 1')
    I(f's_add_u32 s{S_T3}, s{S_T3}, s{S_TH}')
    I(f's_lshl_b32 s{S_T3}, s{S_T3}, 15')
    I(f's_lshl_b32 s{S_T4}, s{S_W}, 13')
    I(f's_add_u32 s{S_T3}, s{S_T3}, s{S_T4}')
    I(f'v_and_b32 {v(x0)}, 31, {v(V_L)}')
    I(f'v_lshl_add_u32 {v(V_PQLD)}, {v(x0)}, 5, s{S_T3}')
    I(f'v_lshl_add_u32 {v(V_PQLD)}, {v(vhi)}, 4, {v(V_PQLD)}')
    I(f'v_and_b32 {v(x0)}, 1, {v(vg)}')
    I(f'v_lshl_add_u32 {v(V_KVLD)}, {v(x0)}, 10, s{S_T4}')
    I(f'v_lshl_add_u32 {v(V_KVLD)}, {v(vhi)}, 5, {v(V_KVLD)}')
    I(f'v_and_b32 {v(x0)}, 3, {v(va_)}')
    I(f'v_lshl_add_u32 {v(V_KVLD)}, {v(x0)}, 8, {v(V_KVLD)}')
    I(f'v_bfe_u32 {v(x1)}, {v(va_)}, 2, 1')
    I(f'v_lshl_add_u32 {v(V_KVLD)}, {v(x1)}, 7, {v(V_KVLD)}')
    I(f'v_lshrrev_b32 {v(x1)}, 3, {v(va_)}')
    I(f'v_lshl_add_u32 {v(V_KVLD)}, {v(x1)}, 6, {v(V_KVLD)}')
    I(f's_lshl_b32 s{S_T3}, s{S_W}, 9')
    I(f'v_lshl_add_u32 {v(V_ZLD)}, {v(x1)}, 8, s{S_T3}')
    I(f'v_lshl_add_u32 {v(V_ZLD)}, {v(x0)}, 6, {v(V_ZLD)}')
    I(f'v_lshl_add_u32 {v(V_ZLD)}, {v(vhi)}, 5, {v(V_ZLD)}')
    I(f's_lshl_b32 s{S_T3}, s{S_NB}, 14')
    I(f's_lshl_b32 s{S_T4}, s{S_W}, 12')
    I(f's_add_u32 s{S_T3}, s{S_T3}, s{S_T4}')
    I(f's_lshl_b32 s{S_T4}, s{S_TH}, 6')
    I(f's_add_u32 s{S_T3}, s{S_T3}, s{S_T4}')
    I(f'v_lshl_add_u32 {v(V_RES[0])}, {v(vhi)}, 11, s{S_T3}')
    I(f'v_lshl_add_u32 {v(V_RES[0])}, {v(x0)}, 3, {v(V_RES[0])}')
    I(f'v_lshrrev_b32 {v(x0)}, 2, {v(va_)}')
    I(f'v_lshl_add_u32 {v(V_RES[0])}, {v(x0)}, 7, {v(V_RES[0])}')
    I(f'v_xor_b32 {v(x1)}, {v(x1)}, {v(vg)}')
    I(f'v_and_b32 {v(x1)}, 1, {v(x1)}')
    I(f'v_lshl_add_u32 {v(V_RES[0])}, {v(x1)}, 5, {v(V_RES[0])}')
    I(f'v_xor_b32 {v(V_RES[1])}, 64, {v(V_RES[0])}')
    I(f's_lshl_b32 s{S_T3}, s{S_W}, 6')
    I(f's_add_u32 s{S_T3}, s{S_T3}, {L_STAT}')
    I(f'v_lshl_add_u32 {v(V_SW)}, {v(va_)}, 2, s{S_T3}')
    I(f'v_lshl_add_u32 {v(V_SR4)}, {v(vg)}, 4, s{S_T3}')
    I(f'v_mov_b32 {v(V_SR1)}, {v(V_SW)}')
    I(f's_and_b32 s{S_T3}, s2, 15')
    I(f's_lshl_b32 s{S_T3}, s{S_T3}, 8')
    I(f'v_lshl_add_u32 {v(V_ARR)}, {v(V_L)}, 12, s{S_T3}')
    I(f's_and_b32 s{S_T3}, s2, 3')
    I(f's_lshl_b32 s{S_T3}, s{S_T3}, 12')
    I(f'v_lshl_add_u32 {v(V_POLL)}, {v(va_)}, 8, s{S_T3}')
    vod, vor = P.alloc(), P.alloc()
    I(f's_lshl_b32 s{S_T3}, s{S_NB}, 8')
    I(f'v_lshl_add_u32 {v(vod)}, {v(vg)}, 10, s{S_T3}')
    I(f'v_xor_b32 {v(x1)}, {v(x0)}, {v(vg)}')
    I(f'v_lshl_add_u32 {v(vod)}, {v(x1)}, 6, {v(vod)}')
    I(f'v_and_b32 {v(x1)}, 3, {v(V_L)}')
    I(f'v_lshl_add_u32 {v(vod)}, {v(x1)}, 4, {v(vod)}')
    I(f'v_lshlrev_b32 {v(vor)}, 11, {v(vhi)}')
    I(f'v_lshl_add_u32 {v(vor)}, {v(x0)}, 8, {v(vor)}')
    I(f'v_xor_b32 {v(x0)}, s{S_W}, {v(x0)}')
    I(f'v_lshl_add_u32 {v(vor)}, {v(x0)}, 6, {v(vor)}')
    I(f'v_and_b32 {v(x0)}, 1, {v(V_L)}')
    I(f'v_lshl_add_u32 {v(vor)}, {v(x0)}, 5, {v(vor)}')
    I(f'v_and_b32 {v(x0)}, 1, {v(vg)}')
    I(f'v_lshl_add_u32 {v(vor)}, {v(x0)}, 4, {v(vor)}')
    I(f'v_bfe_u32 {v(x0)}, {v(V_L)}, 1, 1')
    I(f'v_lshl_add_u32 {v(vor)}, {v(x0)}, 3, {v(vor)}')
    I(f'v_add_u32 {v(vor)}, {L_B}, {v(vor)}')
    kg = dict(w=P.alloc(), a0=P.alloc(), a1=P.alloc(), g=P.alloc(), t1=P.alloc(), t2=P.alloc(), t3=P.alloc(), rk=P.alloc())
    I(f's_mul_i32 s{S_T3}, s{S_T0}, {KG_CH}')
    I(f's_add_u32 s{S_T3}, s{S_T3}, {L_B}')
    I(f'v_and_b32 {v(x0)}, 127, v0')
    I(f'v_lshl_add_u32 {v(kg["w"])}, {v(x0)}, 2, s{S_T3}')
    I(f'v_lshl_add_u32 {v(x1)}, {v(vg)}, 4, s{S_T3}')
    I(f'v_mul_u32_u24 {v(kg["a0"])}, {KG_ROW}, {v(va_)}')
    I(f'v_add_u32 {v(kg["a0"])}, {v(kg["a0"])}, {v(x1)}')
    I(f's_mul_i32 s{S_T4}, s{S_T1}, {16 * KG_ROW}')
    I(f'v_add_u32 {v(kg["g"])}, s{S_T4}, {v(kg["a0"])}')
    I(f'v_min_u32 {v(kg["a1"])}, 4, {v(va_)}')
    I(f'v_mul_u32_u24 {v(kg["a1"])}, {KG_ROW}, {v(kg["a1"])}')
    I(f'v_add_u32 {v(kg["a1"])}, {v(kg["a1"])}, {v(x1)}')
    I(f's_mul_i32 s{S_T3}, s{S_T0}, 4608')
    I(f's_add_u32 s{S_T3}, s{S_T3}, {L_H + 512}')
    vj = t[5]
    I(f's_lshl_b32 s{S_T4}, s{S_T1}, 4')
    vj = P.alloc()
    I(f'v_add_u32 {v(vj)}, s{S_T4}, {v(va_)}')
    I(f'v_lshl_add_u32 {v(kg["t3"])}, {v(vg)}, 7, {v(vj)}')
    I(f'v_lshl_add_u32 {v(kg["t3"])}, {v(kg["t3"])}, 2, s{S_T3}')
    I(f'v_max_u32 {v(x1)}, 1, {v(vg)}')
    I(f'v_sub_u32 {v(x1)}, 6, {v(x1)}')
    I(f'v_lshlrev_b32 {v(kg["t1"])}, {v(x1)}, {v(vj)}')
    I(f'v_lshlrev_b32 {v(x1)}, 4, {v(vg)}')
    I(f'v_lshlrev_b32 {v(vj)}, 9, {v(vg)}')
    I(f'v_cmp_lt_u32 vcc, 1, {v(vg)}')
    I(f'v_cndmask_b32 {v(x1)}, {v(x1)}, {v(vj)}, vcc')
    I(f'v_add3_u32 {v(kg["t1"])}, {v(kg["t1"])}, {v(x1)}, s{S_T3}')
    I(f'v_cmp_eq_u32 vcc, 3, {v(vg)}')
    I(f'v_mov_b32 {v(vj)}, 256')
    I(f'v_cndmask_b32 {v(x1)}, 8, {v(vj)}, vcc')
    I(f'v_add_u32 {v(kg["t2"])}, {v(kg["t1"])}, {v(x1)}')
    gi = P.alloc(18, 2)
    I(f'v_lshlrev_b32 {v(x1)}, 4, {v(x0)}')
    I(f'v_sub_u32 {v(x1)}, 2047, {v(x1)}')
    fl = P.alloc(2, 2)
    lg_ = P.alloc(2, 2)
    I(f's_movk_i32 s{S_T4}, 128')
    for u in range(0, 18, 2):
        n = 2 if u < 16 else 1
        for q in range(n):
            I(f'v_subrev_u32 {v(lg_ + q)}, {u + q}, {v(x1)}')
            I(f'v_cvt_f32_i32 {v(fl + q)}, {v(lg_ + q)}')
        I(f'v_cvt_pk_bf16_f32 {v(vj)}, {v(fl)}, {v(fl + 1)}')
        for q in range(n):
            I(f'v_bfe_i32 {v(fl + q)}, {v(vj)}, {16 * q}, 16')
            I(f'v_subrev_u32 {v(fl + q)}, {0x4280}, {v(fl + q)}')
            I(f'v_med3_i32 {v(fl + q)}, {v(fl + q)}, {v(lg_ + q)}, s{S_T4}')
            I(f'v_lshl_add_u32 {v(gi + u + q)}, {v(fl + q)}, 2, s{S_T3}')
    P.free(fl, 2), P.free(lg_, 2), P.free(vj)
    I(f's_mul_i32 s{S_T3}, s{S_T0}, 8320')
    I(f's_add_u32 s{S_T3}, s{S_T3}, {L_RK}')
    I(f'v_lshl_add_u32 {v(kg["rk"])}, {v(x0)}, 5, s{S_T3}')
    I(f's_mul_i32 s{S_T3}, s{S_T0}, 4608')
    I(f's_add_u32 s{S_T3}, s{S_T3}, {L_H}')
    I(f'v_lshl_add_u32 {v(x1)}, {v(x0)}, 2, s{S_T3}')
    I(f'ds_write_b32 {v(x1)}, {v(zero4)}')
    I(f's_mul_i32 s{S_T3}, s{S_W}, 4160')
    I(f's_add_u32 s{S_T3}, s{S_T3}, {L_RK + 4096}')
    I(f'v_lshl_add_u32 {v(x1)}, {v(va_)}, 2, s{S_T3}')
    I(f'ds_write_b32 {v(x1)}, {v(zero4)}')

    st = P.alloc(4, 2)
    for r in range(2):
        for i in range(4):
            c = '0' if i == 0 else v(st + r)
            I(f'v_dot2_f32_bf16 {v(st + r)}, {v(xs + 4 * r + i)}, s{S_ONES}, {c}')
            c = '0' if i == 0 else v(st + 2 + r)
            I(f'v_dot2_f32_bf16 {v(st + 2 + r)}, {v(xs + 4 * r + i)}, {v(xs + 4 * r + i)}, {c}')
    I(f's_cmp_lg_u32 s{sinit}, 3')
    I('s_cbranch_scc1 L_noflag')
    I(f'v_mov_b32 {v(x1)}, 1')
    A.cond = True
    I(f'global_store_dword {v(zero4)}, {v(x1)}, {s(S_DBG, 2)} sc1')
    A.cond = False
    A.label('L_noflag')
    I('s_nop 1')
    I(f'v_permlane32_swap_b32 {v(st)}, {v(st + 2)}')
    I(f'v_permlane32_swap_b32 {v(st + 1)}, {v(st + 3)}')
    I(f'v_add_f32 {v(st)}, {v(st)}, {v(st + 2)}')
    I(f'v_add_f32 {v(st + 1)}, {v(st + 1)}, {v(st + 3)}')
    I(f'v_permlane16_swap_b32 {v(st)}, {v(st + 1)}')
    I(f'v_add_f32 {v(st)}, {v(st)}, {v(st + 1)}')
    for sh in (8, 4, 2, 1):
        I(f'v_add_f32_dpp {v(st)}, {v(st)}, {v(st)} row_ror:{sh} row_mask:0xf bank_mask:0xf')
    I(f'v_and_b32 {v(x0)}, 1, {v(vg)}')
    I(f'v_add_u32 {v(x0)}, s{srow}, {v(x0)}')
    I(f'v_lshlrev_b32 {v(x0)}, 2, {v(x0)}')
    I(f'v_lshl_add_u32 {v(x0)}, {v(vhi)}, 13, {v(x0)}')
    I(f's_mov_b32 s{S_T0}, {hex(WS_ST[0])}')
    I('s_mov_b32 exec_lo, 0x00010001')
    I('s_mov_b32 exec_hi, 0x00010001')
    I(f'buffer_store_dword {v(st)}, {v(x0)}, {WS}, s{S_T0} offen sc1')
    I('s_mov_b64 exec, -1')
    x2store(0, xt)
    I(f's_lshl_b32 s{S_T0}, s{sinit}, 7')
    I(f's_add_u32 s{S_T0}, s{S_T0}, {hex(WS_ZERO)}')
    I('s_mov_b64 exec, 0xff')
    I(f'buffer_store_dwordx4 {v(zero4, 4)}, {v(V_L16)}, {WS}, s{S_T0} offen sc1')
    I('s_mov_b64 exec, -1')
    P.free(st, 4), P.free(xs, 8), P.free(xt, 8)
    for r in t:
        P.free(r)
    stamp('p1_stored')
    A.wait_vm()
    global_arrive(first=True)
    P.free(zero4, 4)
    stamp('arr1')
    consume_w(0)
    A.barrier()
    for th in dma_w(1, L_A, vwd):
        th()
    stamp('wq_done')
    kgen(par, kg, gi)
    stamp('kgen_done')
    A.wait_vm()
    A.barrier()
    consume_w(1)
    return vwd, vod, vor


def x2store(layer, d):
    I(f's_mov_b32 s{S_T0}, {hex(WS_X2[layer])}')
    for i in range(8):
        I(f'buffer_store_dword {v(d + i)}, {v(V_X2ST)}, {WS}, s{S_T0} offen sc1')
        if i < 7:
            I(f's_add_u32 s{S_T0}, s{S_T0}, 8192')


def kgen(par, kg, gi):
    LOG2E = math.log2(math.e)
    I(f'v_readfirstlane_b32 s{S_T0}, {v(par + 7)}')
    I(f'v_readfirstlane_b32 s{S_T1}, {v(par + 6)}')
    I(f's_lshl_b32 s{S_D}, s{S_T0}, 16')
    I(f's_and_b32 s{S_D + 1}, s{S_T0}, 0xffff0000')
    I(f's_lshl_b32 s{S_T0}, s{S_T1}, 16')
    I(f's_and_b32 s{S_T1}, s{S_T1}, 0xffff0000')
    I(f's_cmp_ge_u32 s{S_W}, 2')
    I(f's_cselect_b32 s{S_T0}, s{S_T1}, s{S_T0}')
    dt = par + 6
    I(f'v_mov_b32 {v(dt)}, s{S_T0}')
    I(f'v_mul_f32 {v(dt)}, s{S_EXP}, {v(dt)}')
    I(f'v_exp_f32 {v(dt)}, {v(dt)}')
    for i in range(6):
        I(f'v_lshlrev_b32 {v(par + i)}, 16, {v(par + i)}')
    I(f'v_cvt_pk_bf16_f32 {v(dt)}, {v(dt)}, {v(dt)}')
    I(f'v_and_b32 {v(dt)}, 0xffff0000, {v(dt)}')
    z, Bc, Cc = par, par + 2, par + 4
    pk('mul', v(z, 2), (v(z, 2), 'p'), bc(dt))
    pk('mul', v(Bc, 2), (v(Bc, 2), 'p'), bc(dt))
    tmp = P.alloc(2, 2)
    CB = P.alloc(2, 2)
    cmul(CB, Cc, Bc, tmp)
    E = {}
    for rho in (1, 8, 64, 256):
        e = P.alloc(2, 2)
        E[rho] = e
        I(f'v_mul_f32 {v(tmp)}, {f32(rho * LOG2E)}, {v(z)}')
        I(f'v_mul_f32 {v(tmp + 1)}, {f32(rho / (2 * math.pi))}, {v(z + 1)}')
        I(f'v_exp_f32 {v(tmp)}, {v(tmp)}')
        I(f'v_fract_f32 {v(tmp + 1)}, {v(tmp + 1)}')
        I(f'v_cos_f32 {v(e)}, {v(tmp + 1)}')
        I(f'v_sin_f32 {v(e + 1)}, {v(tmp + 1)}')
        pk('mul', v(e, 2), (v(e, 2), 'p'), bc(tmp))
    pkr = [P.alloc(), P.alloc()]
    cnt = [0]

    def put(row, r, neg):
        d = pkr[cnt[0] & 1]
        cnt[0] += 1
        I(f'v_cvt_pk_bf16_f32 {v(d)}, {v(r)}, {"-" if neg else ""}{v(r + 1)}')
        I(f'ds_write_b32 {v(kg["w"])}, {v(d)} offset:{row * KG_ROW}')
    for rho, x, y in ((128, 64, 64), (192, 128, 64), (2, 1, 1), (4, 2, 2)):
        E[rho] = P.alloc(2, 2)
        cmul(E[rho], E[x], E[y], tmp)
    cur = P.alloc(2, 2)
    o = P.alloc(2, 2)
    I(f'v_mov_b32 {v(pkr[0])}, 0x3f80')
    I(f'ds_write_b32 {v(kg["w"])}, {v(pkr[0])}')
    cnt[0] = 1
    for m in (1, 2, 3):
        put(8 * m, E[64 * m], False)
    for j in range(1, 8):
        if j == 1:
            g = E[8]
        elif j == 2:
            cmul(cur, E[8], E[8], tmp)
            g = cur
        else:
            cmul(cur, cur, E[8], tmp)
        put(j, g, False)
        for m in (1, 2, 3):
            cmul(o, g, E[64 * m], tmp)
            put(8 * m + j, o, False)
    put(32, CB, True)
    for j in range(1, 8):
        cmul(cur, CB if j == 1 else cur, E[1], tmp)
        put(32 + j, cur, True)
    U = CB
    cmul(U, U, E[256], tmp)
    put(40, U, True)
    for j in range(1, 4):
        cmul(cur, U if j == 1 else cur, E[2], tmp)
        put(40 + j, cur, True)
    for j in range(2):
        cmul(U, U, E[256], tmp)
        put(44 + 2 * j, U, True)
        cmul(cur, U, E[4], tmp)
        put(45 + 2 * j, cur, True)
    for j in range(5):
        cmul(U, U, E[256], tmp)
        put(48 + j, U, True)
    for r in list(E.values()) + [tmp, CB, cur, o]:
        P.free(r, 2)
    P.free(pkr[0]), P.free(pkr[1])
    P.free(par, 8)
    A.barrier()
    d0, d1 = P.alloc(4, 2), P.alloc(4, 2)
    mf = []
    for st in range(8):
        for tl, d in ((0, d0), (1, d1)):
            def em(reg, st=st, tl=tl, d=d):
                c = '0' if st == 0 else v(d, 4)
                I(f'v_mfma_f32_16x16x32_bf16 {v(d, 4)}, {v(reg[("a", tl, st)], 4)}, {v(reg[("g", st)], 4)}, {c}')
            mf.append((em, [('a', tl, st), ('g', st)]))

    def loader(k, r):
        if k[0] == 'g':
            return [f'ds_read_b128 {v(r, 4)}, {v(kg["g"])} offset:{64 * k[1]}']
        base = kg['a0'] if k[1] == 0 else kg['a1']
        return [f'ds_read_b128 {v(r, 4)}, {v(base)} offset:{(32 + 16 * k[1]) * KG_ROW + 64 * k[2]}']
    stream(mf, loader, 12, 8)
    I(f'ds_write_b64 {v(kg["t1"])}, {v(d0, 2)}')
    I(f'ds_write_b64 {v(kg["t2"])}, {v(d0 + 2, 2)}')
    for r in range(4):
        I(f'ds_write_b32 {v(kg["t3"])}, {v(d1 + r)} offset:{2048 + 128 * r}')
    P.free(d0, 4), P.free(d1, 4)
    A.barrier()
    for u in range(17):
        I(f'ds_read_b32 {v(gi + u)}, {v(gi + u)}')
    c = P.alloc(16, 2)
    for cp in range(2):
        for m in range(8):
            I(f'v_cvt_pk_bf16_f32 {v(c + 8 * cp + m)}, {v(gi + 2 * m + cp)}, {v(gi + 2 * m + cp + 1)}')
        for hq in range(2):
            I(f'ds_write_b128 {v(kg["rk"])}, {v(c + 8 * cp + 4 * hq, 4)} offset:{4160 * cp + 16 * hq}')
    P.free(c, 16), P.free(gi, 18)
    for r in kg.values():
        P.free(r)


def conv(layer, fillers):
    xd = P.alloc(8, 2)
    sm = P.alloc(8, 2)
    sq = P.alloc(8, 2)
    I(f's_lshl_b32 s{S_T0}, s2, 13')
    I(f's_add_u32 s{S_T0}, s{S_T0}, {hex(WS_X2[layer])}')
    I(f's_mov_b32 s{S_T1}, {hex(WS_ST[layer])}')
    I(f's_mov_b32 s{S_T2}, {hex(WS_ST[layer] + 8192)}')
    for i in range(2):
        I(f'buffer_load_dwordx4 {v(sm + 4 * i, 4)}, {v(V_CVL)}, {WS}, s{S_T1} offen offset:{1024 * i} sc1')
        I(f'buffer_load_dwordx4 {v(sq + 4 * i, 4)}, {v(V_CVL)}, {WS}, s{S_T2} offen offset:{1024 * i} sc1')
        I(f'buffer_load_dwordx4 {v(xd + 4 * i, 4)}, {v(V_CVL)}, {WS}, s{S_T0} offen offset:{1024 * i} sc1')
    base = P.alloc(16, 2)
    hh = P.alloc(4, 2)
    hp = P.alloc(4, 2)
    LN = s(S_LN, 2)
    for i in range(2):
        m, q, x = sm + 4 * i, sq + 4 * i, xd + 4 * i
        for j in (0, 2):
            pk('mul', v(m + j, 2), (v(m + j, 2), 'p'), (LN, 'l'))
        for j in (0, 2):
            pk('fma', v(q + j, 2), (v(q + j, 2), 'p'), (LN, 'l'), (LN, 'h'))
        for j in (0, 2):
            pk('fma', v(q + j, 2), (v(m + j, 2), 'p', 'b'), (v(m + j, 2), 'p'), (v(q + j, 2), 'p'))
        for j in range(4):
            I(f'v_max_f32 {v(q + j)}, s{S_LN + 1}, {v(q + j)}')
        for j in range(4):
            I(f'v_rsq_f32 {v(q + j)}, {v(q + j)}')
        for c in range(2):
            b = base + 8 * i + 4 * c
            for j in range(4):
                if c == 0:
                    I(f'v_lshlrev_b32 {v(b + j)}, 16, {v(x + j)}')
                else:
                    I(f'v_and_b32 {v(b + j)}, 0xffff0000, {v(x + j)}')
            for j in (0, 2):
                pk('add', v(hh + j, 2), (v(b + j, 2), 'p'), (v(m + j, 2), 'p', 'b'))
            for j in (0, 2):
                pk('mul', v(hh + j, 2), (v(hh + j, 2), 'p'), (v(q + j, 2), 'p'))
            for j in (0, 2):
                I(f'v_cvt_pk_bf16_f32 {v(hp + 2 * c + j // 2)}, {v(hh + j)}, {v(hh + j + 1)}')
            I(f'ds_write_b64 {v(V_HW)}, {v(hp + 2 * c, 2)} offset:{4608 * c + 512 * i}')
            for j in (0, 2):
                pk('fma', v(b + j, 2), (v(hh + j, 2), 'p'), (s(S_D, 2), 'h' if c else 'l'), (v(b + j, 2), 'p'))
    P.free(xd, 8), P.free(sm, 8), P.free(sq, 8), P.free(hh, 4), P.free(hp, 4)
    A.barrier()
    stamp(f'conv{layer}_h')
    acc = P.alloc(32, 2)
    mf = []
    seen = set()
    fin = {}
    for cc in range(4):
        if cc < 3:
            seq = [(p, n) for p in range(7, -1, -1) for n in range(p, 8)]
        else:
            seq = [(p, n) for n in range(8) for p in range(n + 1)]
        for (p, n) in seq:
            def em(reg, cc=cc, p=p, n=n, fst=(n not in seen)):
                d = v(acc + 4 * n, 4)
                I(f'v_mfma_f32_16x16x32_bf16 {d}, {v(reg[("A", cc, p)], 4)}, {v(reg[("B", cc, n - p)], 4)}, {"0" if fst else d}')
            seen.add(n)
            mf.append((em, [('A', cc, p), ('B', cc, n - p)]))
            fin[n] = len(mf) - 1

    def loader(k, r):
        _, cc, x = k
        if k[0] == 'B':
            return [f'ds_read_b128 {v(r, 4)}, {v(V_CB)} offset:{512 * x + 64 * (3 - cc)}']
        o = 128 * (1 - (x & 1)) + 16 * (3 - cc)
        return [f'ds_read2_b32 {v(r, 2)}, {v(V_CA[x >> 1])} offset0:{o} offset1:{o + 1}',
                f'ds_read2_b32 {v(r + 2, 2)}, {v(V_CA[x >> 1])} offset0:{o + 2} offset1:{o + 3}']
    fill = {}
    for n in range(8):
        at = min(fin[n] + 7, len(mf) - 1)
        fill.setdefault(at, []).append(lambda reg, n=n: I(f'ds_write_b128 {v(V_EXW)}, {v(acc + 4 * n, 4)} offset:{1024 * n}'))
    for i, th in enumerate(fillers):
        fill.setdefault(4 + 6 * i, []).append(lambda reg, th=th: th())
    stream(mf, loader, 20, 14, fill=fill)
    P.free(acc, 32)
    A.barrier()
    stamp(f'conv{layer}_mm')
    ex = P.alloc(32, 2)
    for i in range(2):
        for u in range(4):
            I(f'ds_read_b128 {v(ex + 16 * i + 4 * u, 4)}, {v(V_EXR)} offset:{8192 * u + 1024 * i}')
    I(f's_mov_b32 s{S_T0}, {hex(WS_XT[layer])}')
    I(f's_mov_b32 s{S_T1}, {hex(WS_XT[layer] + 262144)}')
    for i in range(2):
        for c in range(2):
            b = base + 8 * i + 4 * c
            e = ex + 16 * i + 8 * c
            for j in (0, 2):
                pk('add', v(b + j, 2), (v(b + j, 2), 'p'), (v(e + j, 2), 'p'))
            for j in (0, 2):
                pk('add', v(b + j, 2), (v(b + j, 2), 'p'), (v(e + 4 + j, 2), 'p'))
            for j in (0, 2):
                I(f'v_cvt_pk_bf16_f32 {v(e + j // 2)}, {v(b + j)}, {v(b + j + 1)}')
            I(f'buffer_store_dwordx2 {v(e, 2)}, {v(V_XTST)}, {WS}, s{S_T0 + i} offen offset:{128 * c} sc1')
    P.free(ex, 32), P.free(base, 16)


def phi(x, tmp):
    EX = s(S_EXP, 2)
    for j in (0, 2):
        pk('fma', v(tmp + j, 2), (v(x + j, 2), 'p'), (EX, 'l'), (EX, 'h'))
    for j in range(4):
        I(f'v_exp_f32_e64 {v(tmp + j)}, {v(tmp + j)} clamp')
    for j in range(4):
        I(f'v_max_f32 {v(x + j)}, s{S_E6}, {v(x + j)}')
    for j in (0, 2):
        pk('add', v(x + j, 2), (v(x + j, 2), 'p'), (v(tmp + j, 2), 'p'))


def p3(layer, after_dma, fillers):
    for ck in range(4):
        I(f's_mov_b32 s{S_T0}, {hex(WS_XT[layer] + ck * 16384)}')
        if ck == 0:
            I(f's_lshl_b32 m0, s{S_W}, 12')
        else:
            I('s_add_u32 m0, m0, 16384')
        for j in range(4):
            I(f'buffer_load_dwordx4 {v(V_XTLD)}, {WS}, s{S_T0} offen offset:{1024 * j} sc1 lds', tag=f'xt{ck}')
    after_dma()
    acc = P.alloc(48, 2)
    ss = P.alloc(4, 2)
    mf = []
    fill = {}
    for st in range(16):
        for i in range(4):
            for y in range(3):
                def em(reg, st=st, i=i, y=y):
                    d = v(acc + 16 * y + 4 * i, 4)
                    c = '0' if st == 0 else d
                    x = v(reg[(st, i)], 4)
                    if y == 0:
                        I(f'v_mfma_f32_16x16x32_bf16 {d}, {wq_reg(y, st)}, {x}, {c}')
                    else:
                        I(f'v_mfma_f32_16x16x32_bf16 {d}, {x}, {wq_reg(y, st)}, {c}')
                keys = [(st, i)]
                if i in (1, 2):
                    keys.append((st, 0))
                mf.append((em, keys))
        for j in range(8):
            def dot(reg, st=st, j=j):
                x = v(reg[(st, 0)] + j // 2)
                d = v(ss + (j & 1))
                c = '0' if (st == 0 and j < 2) else d
                I(f'v_dot2_f32_bf16 {d}, {x}, {x if j & 1 else s(S_ONES)}, {c}')
            fill.setdefault(12 * st + j, []).append(dot)
    for i, th in enumerate(fillers):
        fill.setdefault(60 + 8 * i, []).append(lambda reg, th=th: th())

    def loader(k, r):
        st, i = k
        return [f'ds_read_b64_tr_b16 {v(r + 2 * z, 2)}, {v(V_XT[i])} offset:{4096 * st + 2048 * z}' for z in range(2)]

    def mkgate(ck):
        def g():
            A.wait_vm(f'xt{ck}')
            A.barrier(lg=(ck == 0))
            if ck == 0:
                stamp(f'p3_{layer}_c0')
        return g
    gate = {(4 * ck, 0): mkgate(ck) for ck in range(4)}
    stream(mf, loader, 10, 14, fill=fill, gate=gate, rate=1)
    stamp(f'p3_{layer}_mm')
    for r in (0, 1):
        I(f'v_mov_b32 {v(ss + 2 + r)}, {v(ss + r)}')
    for r in (0, 1):
        I(f'v_permlane32_swap_b32 {v(ss + r)}, {v(ss + 2 + r)}')
    pk('add', v(ss, 2), (v(ss, 2), 'p'), (v(ss + 2, 2), 'p'))
    for r in (0, 1):
        I(f'v_mov_b32 {v(ss + 2 + r)}, {v(ss + r)}')
    for r in (0, 1):
        I(f'v_permlane16_swap_b32 {v(ss + r)}, {v(ss + 2 + r)}')
    pk('add', v(ss, 2), (v(ss, 2), 'p'), (v(ss + 2, 2), 'p'))
    pk('mul', v(ss, 2), (v(ss, 2), 'p'), (s(S_LN, 2), 'l'))
    I(f'v_fma_f32 {v(ss + 1)}, -{v(ss)}, {v(ss)}, {v(ss + 1)}')
    I(f'v_max_f32 {v(ss + 1)}, 0, {v(ss + 1)}')
    I(f'v_add_f32 {v(ss + 1)}, s{S_LN + 1}, {v(ss + 1)}')
    I(f'v_rsq_f32 {v(ss + 1)}, {v(ss + 1)}')
    I(f'v_mul_f32 {v(ss)}, {v(ss)}, {v(ss + 1)}')
    I(f'ds_write2st64_b32 {v(V_SW)}, {v(ss + 1)}, {v(ss)} offset0:0 offset1:1')
    A.barrier()
    P.free(ss, 4)
    r4 = P.alloc(32, 2)
    r1 = P.alloc(8, 2)
    ta = P.alloc(2)
    for i in range(4):
        if i:
            I(f'v_xor_b32 {v(ta)}, {64 * i}, {v(V_SR4)}')
            I(f'v_xor_b32 {v(ta + 1)}, {64 * i}, {v(V_SR1)}')
        a4 = ta if i else V_SR4
        a1 = ta + 1 if i else V_SR1
        I(f'ds_read_b128 {v(r4 + 8 * i, 4)}, {v(a4)}')
        I(f'ds_read_b128 {v(r4 + 8 * i + 4, 4)}, {v(a4)} offset:256')
        I(f'ds_read2st64_b32 {v(r1 + 2 * i, 2)}, {v(a1)} offset0:0 offset1:1')
    P.free(ta, 2)
    tmp = P.alloc(4, 2)
    fk = P.alloc(8, 2)
    fv = P.alloc(8, 2)
    E6 = s(S_E6, 2)
    for i in range(4):
        r, rm = r4 + 8 * i, r4 + 8 * i + 4
        k_, v_ = acc + 16 + 4 * i, acc + 32 + 4 * i
        for j in (0, 2):
            pk('fma', v(tmp + j, 2), (v(rm + j, 2), 'p', 'b'), bc(V_CSKV), (E6, 'p'))
        for j in (0, 2):
            pk('fma', v(k_ + j, 2), (v(k_ + j, 2), 'p'), (v(r + j, 2), 'p'), (v(tmp + j, 2), 'p'))
        for j in (0, 2):
            pk('mul', v(v_ + j, 2), (v(v_ + j, 2), 'p'), (v(r + j, 2), 'p'))
        for j in (0, 2):
            pk('fma', v(v_ + j, 2), (v(rm + j, 2), 'p', 'b'), bc(V_CSKV + 1), (v(v_ + j, 2), 'p'))
        phi(k_, tmp)
        for j in (0, 2):
            I(f'v_cvt_pk_bf16_f32 {v(fk + 2 * i + j // 2)}, {v(k_ + j)}, {v(k_ + j + 1)}')
            I(f'v_cvt_pk_bf16_f32 {v(fv + 2 * i + j // 2)}, {v(v_ + j)}, {v(v_ + j + 1)}')
    dkv, dz = r4, r4 + 4
    for hf in range(2):
        I(f'v_mfma_f32_16x16x32_bf16 {v(dkv, 4)}, {v(fv + 4 * hf, 4)}, {v(fk + 4 * hf, 4)}, {v(dkv, 4) if hf else 0}')
        I(f'v_mfma_f32_16x16x32_bf16 {v(dz, 4)}, {v(V_ONES, 4)}, {v(fk + 4 * hf, 4)}, {v(dz, 4) if hf else 0}')

    def qtile(i):
        q_ = acc + 4 * i
        rr = v(r1 + 2 * i, 2)
        for j in (0, 2):
            pk('fma', v(tmp + j, 2), (rr, 'h', 'b'), (v(V_CSQ + j, 2), 'p'), (E6, 'p'))
        for j in (0, 2):
            pk('fma', v(q_ + j, 2), (v(q_ + j, 2), 'p'), (rr, 'l'), (v(tmp + j, 2), 'p'))
        phi(q_, tmp)
        for j in (0, 2):
            I(f'v_cvt_pk_bf16_f32 {v(q_ + j // 2)}, {v(q_ + j)}, {v(q_ + j + 1)}')
        I(f's_xor_b32 s{S_T0}, s{S_W}, {i}')
        I(f's_lshr_b32 s{S_T1}, s{S_T0}, 1')
        I(f's_lshl_b32 s{S_T1}, s{S_T1}, 15')
        I(f's_and_b32 s{S_T0}, s{S_T0}, 1')
        I(f's_lshl_b32 s{S_T0}, s{S_T0}, 9')
        I(f's_add_u32 s{S_T0}, s{S_T0}, s{S_T1}')
        I(f's_add_u32 s{S_T0}, s{S_T0}, {hex(WS_PQ[layer])}')
        I(f'buffer_store_dwordx2 {v(q_, 2)}, {v(V_PQST)}, {WS}, s{S_T0} offen sc1')
    qtile(0)
    I(f's_mov_b32 s{S_T2}, {hex(WS_KV[layer])}')
    for r in range(4):
        I(f'buffer_atomic_add_f32 {v(dkv + r)}, {v(V_KVST)}, {WS}, s{S_T2} offen offset:{256 * r}')
    I(f's_lshl_b32 s{S_T0}, s{S_CG}, 2')
    I(f's_add_u32 s{S_T0}, s{S_T0}, s{S_W}')
    I(f's_mul_i32 s{S_T0}, s{S_T0}, 960')
    I(f's_sub_u32 s{S_T0}, {hex(WS_KV[layer] + 32768)}, s{S_T0}')
    I('s_mov_b64 exec, 0xffff')
    I(f'buffer_atomic_add_f32 {v(dz)}, {v(V_KVST)}, {WS}, s{S_T0} offen')
    I('s_mov_b64 exec, -1')
    for i in range(1, 4):
        qtile(i)
    P.free(r4, 32), P.free(r1, 8), P.free(tmp, 4), P.free(fk, 8), P.free(fv, 8), P.free(acc, 48)


def p4_pre():
    acc = P.alloc(16, 2)
    res = P.alloc(8, 2)
    for j in range(4):
        I(f'ds_read_b64_tr_b16 {v(res + 2 * j, 2)}, {v(V_RES[j & 1])} offset:{512 * j}')
    for j in range(8):
        I(f'v_lshlrev_b32 {v(acc + 2 * j)}, 16, {v(res + j)}')
        I(f'v_and_b32 {v(acc + 2 * j + 1)}, 0xffff0000, {v(res + j)}')
    P.free(res, 8)
    return acc


def p4(layer, acc):
    zf = P.alloc(8, 2)
    kv = P.alloc(32, 2)
    pq = P.alloc(32, 2)
    I(f's_mov_b32 s{S_T0}, {hex(WS_KV[layer] + 32768)}')
    for j in range(2):
        I(f'buffer_load_dwordx4 {v(zf + 4 * j, 4)}, {v(V_ZLD)}, {WS}, s{S_T0} offen offset:{16 * j} sc1')
    for pp in range(4):
        if pp % 2 == 0:
            I(f's_mov_b32 s{S_T0}, {hex(WS_KV[layer] + 2048 * pp)}')
            I(f's_mov_b32 s{S_T1}, {hex(WS_PQ[layer] + 2048 * pp)}')
        for j in range(2):
            I(f'buffer_load_dwordx4 {v(kv + 8 * pp + 4 * j, 4)}, {v(V_KVLD)}, {WS}, s{S_T0} offen offset:{2048 * (pp & 1) + 16 * j} sc1')
        for j in range(2):
            I(f'buffer_load_dwordx4 {v(pq + 8 * pp + 4 * j, 4)}, {v(V_PQLD)}, {WS}, s{S_T1} offen offset:{2048 * (pp & 1) + 1024 * j} sc1')
    for j in range(4):
        I(f'v_cvt_pk_bf16_f32 {v(zf + j)}, {v(zf + 2 * j)}, {v(zf + 2 * j + 1)}')
    D = [P.alloc(16, 2), P.alloc(16, 2)]
    MK = s(S_MASK, 2)

    def prep(pp):
        x = kv + 8 * pp
        for j in range(4):
            I(f'v_cvt_pk_bf16_f32 {v(x + j)}, {v(x + 2 * j)}, {v(x + 2 * j + 1)}')
        for j in range(4):
            I(f'v_cndmask_b32 {v(x + 4 + j)}, {v(zf + j)}, {v(x + j)}, {MK}')
        for j in range(4):
            I(f'v_cndmask_b32 {v(x + j)}, {v(x + j)}, {v(zf + j)}, {MK}')

    def mm(hh):
        I(f'v_mfma_f32_32x32x16_bf16 {v(D[hh & 1], 16)}, {v(kv + 4 * hh, 4)}, {v(pq + 4 * hh, 4)}, 0')

    def norm(hh):
        d = D[hh & 1]
        num = d + 8 * (hh & 1)
        den = d + 8 * (1 - (hh & 1)) + hh
        I(f'v_add_f32 {v(den)}, s{S_E6}, {v(den)}')
        I(f'v_rcp_f32 {v(den)}, {v(den)}')
        for j in range(0, 8, 2):
            pk('mul', v(num + j, 2), (v(num + j, 2), 'p'), bc(den))
        o = pq + 4 * hh
        for j in range(4):
            I(f'v_cvt_pk_bf16_f32 {v(o + j)}, {v(num + 2 * j)}, {v(num + 2 * j + 1)}')
        I(f'ds_write_b128 {v(V_EXW)}, {v(o, 4)} offset:{1024 * hh}')
    prep(0)
    for pp in range(4):
        mm(2 * pp)
        mm(2 * pp + 1)
        if pp < 3:
            prep(pp + 1)
        norm(2 * pp)
        norm(2 * pp + 1)
    P.free(zf, 8), P.free(kv, 32), P.free(pq, 32), P.free(D[0], 16), P.free(D[1], 16)
    A.barrier()
    stamp(f'p4_{layer}_o')
    mf = []
    for h in range(32):
        def em(reg, h=h):
            I(f'v_mfma_f32_32x32x16_bf16 {v(acc, 16)}, {wo_reg(h)}, {v(reg[h], 4)}, {v(acc, 16)}')
        mf.append((em, [h]))
    stream(mf, lambda k, r: [f'ds_read_b128 {v(r, 4)}, {v(V_OFR)} offset:{1024 * k}'], 8, 7)
    stamp(f'p4_{layer}_mm')
    o = P.alloc(8, 2)
    for j in range(8):
        I(f'v_cvt_pk_bf16_f32 {v(o + j)}, {v(acc + 2 * j)}, {v(acc + 2 * j + 1)}')
    if layer == 0:
        x2store(1, o)
        ss = P.alloc(2, 2)
        for j in range(8):
            I(f'v_dot2_f32_bf16 {v(ss)}, {v(o + j)}, s{S_ONES}, {v(ss) if j else 0}')
            I(f'v_dot2_f32_bf16 {v(ss + 1)}, {v(o + j)}, {v(o + j)}, {v(ss + 1) if j else 0}')
        I(f'v_permlane32_swap_b32 {v(ss)}, {v(ss + 1)}')
        I(f'v_add_f32 {v(ss)}, {v(ss)}, {v(ss + 1)}')
        I(f's_mov_b32 s{S_T0}, {hex(WS_ST[1])}')
        I(f'buffer_atomic_add_f32 {v(ss)}, {v(V_STAT)}, {WS}, s{S_T0} offen')
        P.free(ss, 2)
    else:
        for j in range(2):
            I(f'global_store_dwordx4 {v(V_TILE)}, {v(o + 4 * j, 4)}, {s(S_OUT, 2)} offset:{16 * j}')
    P.free(o, 8), P.free(acc, 16)


def main():
    vwd, vod, vor = prologue()
    bar = 1
    for layer in range(2):
        stamp(f'pre_wait{bar}')
        global_wait(bar)
        stamp(f'wait{bar}')
        conv(layer, dma_w(2, L_A, vwd) if layer == 0 else [])
        A.wait_vm()
        global_arrive()
        bar += 1
        stamp(f'arr{bar}')
        if layer == 0:
            for th in dma_wo(0, L_B, vod):
                th()
            consume_w(2)
            A.wait_vm()
            P.free(vwd)
        global_wait(bar)
        stamp(f'wait{bar}')
        if layer == 0:
            p3(layer, lambda: consume_wo(0, vor), dma_wo(1, L_B, vod))
        else:
            p3(layer, lambda: None, [])
        A.wait_vm()
        global_arrive()
        bar += 1
        stamp(f'arr{bar}')
        if layer == 0:
            consume_wo(1, vor)
            P.free(vod), P.free(vor)
        acc = p4_pre()
        global_wait(bar)
        stamp(f'wait{bar}')
        p4(layer, acc)
        if layer == 0:
            A.wait_vm()
            global_arrive()
            bar += 1
    if DIAG:
        A.wait_vm()
        stamp('end')
        t = P.alloc(2)
        I(f's_lshl_b32 s{S_T0}, s2, 2')
        I(f's_add_u32 s{S_T0}, s{S_T0}, s{S_W}')
        I(f's_lshl_b32 s{S_T0}, s{S_T0}, 7')
        I(f's_add_u32 s{S_T0}, s{S_T0}, {hex(WS_DIAG)}')
        I(f'v_mov_b32 {v(t + 1)}, 0')
        I('s_mov_b64 exec, 1')
        for k in range(nstamp[0]):
            I(f'v_mov_b32 {v(t)}, s{S_STAMP + k}')
            I(f'buffer_store_dword {v(t)}, {v(t + 1)}, {WS}, s{S_T0} offen offset:{4 * k}')
        P.free(t, 2)
    A.label('L_end')
    A.raw('    s_endpgm')

    ref = open(f'cdna_kernels/{NAME}.s.ref').read().splitlines()
    head = []
    for ln in ref:
        if ln.startswith('; @launch'):
            head.append(f'; @launch grid=(256,1,1) block=(256,1,1) lds={L_END}')
            break
        head.append(ln)
    txt = '\n'.join(head) + f'''
.amdgcn_target "amdgcn-amd-amdhsa--gfx950"
.text
.globl {NAME}_kernel
.p2align 8
.type {NAME}_kernel,@function
{NAME}_kernel:
''' + A.text() + f'''.section .rodata,"a"
.p2align 6
.amdhsa_kernel {NAME}_kernel
  .amdhsa_next_free_vgpr 512
  .amdhsa_next_free_sgpr 102
  .amdhsa_accum_offset 256
  .amdhsa_group_segment_fixed_size 0
  .amdhsa_kernarg_size 120
  .amdhsa_user_sgpr_count 2
  .amdhsa_user_sgpr_kernarg_segment_ptr 1
  .amdhsa_system_sgpr_workgroup_id_x 1
.end_amdhsa_kernel
'''
    out = [x for x in sys.argv[1:] if not x.startswith('--')]
    path = out[0] if out else f'cdna_kernels/{NAME}.s'
    open(path, 'w').write(txt)
    if DIAG:
        open(path + '.stamps', 'w').write('\n'.join(stamp_names))
    print(f'wrote {path}: {A.ninstr} instrs, {A.nnop} nop states, vgpr peak {P.peak}, lds {L_END}', file=sys.stderr)


main()
```

```python
import sys, struct, math
from emit import *

NAME = 'interleave_layers__ssm_conv_s4__linear_attn_block__prompt'
DIAG = '--diag' in sys.argv


def f32(x):
    return '0x%08x' % struct.unpack('<I', struct.pack('<f', x))[0]


WS_CNT = 0x0
WS_ZERO = 0x10000
WS_KV = [WS_ZERO, WS_ZERO + 0xC000]
WS_ST = [0x30000, WS_ZERO + 0x18000]
WS_DIAG = 0x40000
WS_X2 = [0x200000, 0x400000]
WS_XT = [0x600000, 0x800000]
WS_PQ = [0xA00000, 0xC00000]
WS_SIZE = 0xE00000

L_A = 0
L_B = 65536
L_RK = 131072
L_H = L_RK + 4 * 4160
L_STAT = L_H + 2 * 4608
L_END = L_STAT + 512
KG_ROW = 544
KG_CH = 53 * KG_ROW

S_U, S_ARE, S_AIM, S_BRE, S_BIM, S_CRE, S_CIM, S_LDT, S_DSK = 4, 6, 8, 10, 12, 14, 16, 18, 20
S_WQKV, S_WO, S_OUT, S_DBG, S_WS = 24, 26, 28, 30, 32
R_WS, R_WQ, R_WO = 36, 40, 44
S_W, S_RB, S_CG, S_NB, S_TH = 48, 49, 50, 51, 52
S_T0, S_T1, S_T2 = 53, 54, 55
S_D = 56
S_MASK = 58
S_ONES = 60
S_SPIN = 61
S_LN = 62
S_EXP = 64
S_E6 = 66
S_T3, S_T4 = 68, 69
S_STAMP = 70

A = Asm()
I = A.I
P = Pool(1, 192)
WS = s(R_WS, 4)
nstamp = [0]
stamp_names = []


def stamp(name):
    if not DIAG:
        return
    k = nstamp[0]
    assert k < 30
    A.wait_lg()
    I('s_memrealtime s[100:101]')
    A._wait(lg=0)
    I(f's_mov_b32 s{S_STAMP + k}, s100')
    stamp_names.append(name)
    nstamp[0] += 1


def pk(op, dst, *srcs):
    sel, selhi, nlo, nhi, txt = [], [], [], [], []
    for sr in srcs:
        t, m = sr[0], sr[1]
        ng = sr[2] if len(sr) > 2 else ''
        txt.append(t)
        sel.append(1 if m in 'hx' else 0)
        selhi.append(1 if m in 'ph' else 0)
        nlo.append(1 if ng in ('l', 'b') else 0)
        nhi.append(1 if ng in ('h', 'b') else 0)
    f = lambda l: '[' + ','.join(map(str, l)) + ']'
    line = f'v_pk_{op}_f32 {dst}, ' + ', '.join(txt) + f' op_sel:{f(sel)} op_sel_hi:{f(selhi)}'
    if any(nlo):
        line += f' neg_lo:{f(nlo)}'
    if any(nhi):
        line += f' neg_hi:{f(nhi)}'
    I(line)


def bc(r):
    return (v(r & ~1, 2), 'h' if r & 1 else 'l')


def cmul(d, x, y, tmp):
    pk('mul', v(tmp, 2), (v(x, 2), 'l'), (v(y, 2), 'p'))
    pk('fma', v(d, 2), (v(x, 2), 'h', 'l'), (v(y, 2), 'x'), (v(tmp, 2), 'p'))


def wq_reg(y, st):
    return a((y * 16 + st) * 4, 4)


def wo_reg(h, n=4, off=0):
    if h < 16:
        return a(192 + 4 * h + off, n)
    return v(192 + 4 * (h - 16) + off, n)


V_L = P.alloc()
V_L16 = P.alloc()
V_XT = [P.alloc() for _ in range(4)]
V_TILE = P.alloc()
V_X2ST = P.alloc()
V_STAT = P.alloc()
V_CVL = P.alloc()
V_HW = P.alloc()
V_CA = [P.alloc() for _ in range(4)]
V_CB = P.alloc()
V_EXW = P.alloc()
V_EXR = P.alloc()
V_OFR = P.alloc()
V_XTST = P.alloc()
V_XTLD = P.alloc()
V_PQST = P.alloc()
V_KVST = P.alloc()
V_PQLD = P.alloc()
V_KVLD = P.alloc()
V_ZLD = P.alloc()
V_RES = [P.alloc(), P.alloc()]
V_SW = P.alloc()
V_SR4 = P.alloc()
V_SR1 = P.alloc()
V_ARR = P.alloc()
V_POLL = P.alloc()
V_CSKV = P.alloc(2)
V_CSQ = P.alloc(4)
V_ONES = P.alloc(4)


def global_arrive(first=False):
    A.barrier()
    lab = f'L_arr{global_arrive.n}'
    global_arrive.n += 1
    I(f's_cmp_lg_u32 s{S_W}, 0')
    I(f's_cbranch_scc1 {lab}')
    t = P.alloc()
    if first:
        I(f's_mov_b32 s{S_SPIN}, 0x200000')
        I(f'v_mov_b32 {v(t)}, 0')
        A.label(lab + '_init')
        t2 = P.alloc()
        A.cond = True
        I(f'global_load_dword {v(t2)}, {v(t)}, {s(S_DBG, 2)} sc1')
        A.cond = False
        A._wait(vm=0)
        A.vm.pop()
        I(f'v_readfirstlane_b32 s{S_T0}, {v(t2)}')
        I(f's_sub_u32 s{S_SPIN}, s{S_SPIN}, 1')
        I(f's_cbranch_scc1 {lab}_go')
        I(f's_cmp_eq_u32 s{S_T0}, 0')
        I(f's_cbranch_scc1 {lab}_init')
        A.label(lab + '_go')
        P.free(t2)
    I(f'v_mov_b32 {v(t)}, 1')
    I('s_mov_b64 exec, 15')
    A.cond = True
    I(f'buffer_atomic_add {v(t)}, {v(V_ARR)}, {WS}, 0 offen sc1')
    A.cond = False
    I('s_mov_b64 exec, -1')
    P.free(t)
    A.label(lab)


global_arrive.n = 0


def global_wait(k):
    lab = f'L_wait{k}'
    I(f's_cmp_lg_u32 s{S_W}, 0')
    I(f's_cbranch_scc1 {lab}')
    t = P.alloc()
    I(f's_mov_b32 s{S_SPIN}, 0x200000')
    I(f's_mov_b32 s{S_T0}, {16 * k}')
    I('s_mov_b64 exec, 0xffff')
    A.label(lab + '_poll')
    A.cond = True
    I(f'buffer_load_dword {v(t)}, {v(V_POLL)}, {WS}, 0 offen sc1')
    A.cond = False
    I(f's_sub_u32 s{S_SPIN}, s{S_SPIN}, 1')
    I(f's_cbranch_scc1 {lab}_done')
    A._wait(vm=0)
    A.vm.pop()
    I(f'v_cmp_gt_u32 vcc, s{S_T0}, {v(t)}')
    I(f's_cbranch_vccnz {lab}_poll')
    A.label(lab + '_done')
    I('s_mov_b64 exec, -1')
    P.free(t)
    A.label(lab)
    A.barrier()


def dma_w(y, region, vaddr):
    th = []

    def first():
        I(f's_mul_i32 s{S_T3}, s{S_W}, {128 * 3072}')
        I(f's_add_u32 s{S_T3}, s{S_T3}, {y * 1024}')
        I(f's_lshl_b32 s{S_T4}, s{S_W}, 14')
        I(f's_add_u32 m0, s{S_T4}, {region}')
        I(f'buffer_load_dwordx4 {v(vaddr)}, {s(R_WQ, 4)}, s{S_T3} offen lds', tag='wdma')

    def nxt():
        I(f's_add_u32 s{S_T3}, s{S_T3}, {8 * 3072}')
        I(f's_add_u32 m0, m0, 1024')
        I(f'buffer_load_dwordx4 {v(vaddr)}, {s(R_WQ, 4)}, s{S_T3} offen lds', tag='wdma')
    return [first] + [nxt] * 15


def dma_wo(kh, region, vaddr):
    def first():
        I(f's_lshl_b32 s{S_T3}, s{S_W}, 16')
        I(f's_add_u32 s{S_T3}, s{S_T3}, {kh * 256 * 1024}')
        I(f's_lshl_b32 s{S_T4}, s{S_W}, 14')
        I(f's_add_u32 m0, s{S_T4}, {region}')
        I(f'buffer_load_dwordx4 {v(vaddr)}, {s(R_WO, 4)}, s{S_T3} offen lds', tag='wdma')

    def nxt():
        I(f's_add_u32 s{S_T3}, s{S_T3}, 4096')
        I(f's_add_u32 m0, m0, 1024')
        I(f'buffer_load_dwordx4 {v(vaddr)}, {s(R_WO, 4)}, s{S_T3} offen lds', tag='wdma')
    return [first] + [nxt] * 15


def consume_w(y):
    for st in range(16):
        b = (y * 16 + st) * 4
        for z in range(2):
            I(f'ds_read_b64_tr_b16 {a(b + 2 * z, 2)}, {v(V_XT[0])} offset:{4096 * st + 2048 * z}')
    d = V_CSQ if y == 0 else P.alloc(4, 2)
    for st in range(16):
        c = '0' if st == 0 else v(d, 4)
        if y == 0:
            I(f'v_mfma_f32_16x16x32_bf16 {v(d, 4)}, {wq_reg(y, st)}, {v(V_ONES, 4)}, {c}')
        else:
            I(f'v_mfma_f32_16x16x32_bf16 {v(d, 4)}, {v(V_ONES, 4)}, {wq_reg(y, st)}, {c}')
    if y:
        I(f'v_mov_b32 {v(V_CSKV + y - 1)}, {v(d)}')
        P.free(d, 4)


def consume_wo(kh, vaddr):
    for hh in range(16):
        for z in range(2):
            I(f'ds_read_b64_tr_b16 {wo_reg(16 * kh + hh, 2, 2 * z)}, {v(vaddr)} offset:{4096 * hh + 1024 * z}')


def stream(mf, loader, nslots, look, fill=None, gate=None, rate=2, maxout=12):
    fill = fill or {}
    gate = gate or {}
    first, last, order = {}, {}, []
    for m, (_, keys) in enumerate(mf):
        for k in keys:
            if k not in first:
                first[k] = m
                order.append(k)
            last[k] = m
    slots = [P.alloc(4, 2) for _ in range(nslots)]
    free = list(slots)
    reg = {}
    pend = []
    nxt = [0]

    def start_key():
        k = order[nxt[0]]
        nxt[0] += 1
        if k in gate:
            gate[k]()
        reg[k] = free.pop(0)
        pend.extend(loader(k, reg[k]))

    def issue(n, m, force=False):
        while n > 0:
            if not pend:
                if nxt[0] >= len(order) or not free:
                    return
                if first[order[nxt[0]]] > m + look:
                    return
                start_key()
            if len(A.lg) >= maxout and not force:
                return
            I(pend.pop(0))
            n -= 1

    issue(maxout, -1)
    for m, (em, keys) in enumerate(mf):
        while any(k not in reg for k in keys) or (pend and order[nxt[0] - 1] in keys):
            assert pend or free, 'no free slot'
            if not pend:
                start_key()
            I(pend.pop(0))
        em(reg)
        for k in keys:
            if last[k] == m:
                free.append(reg[k])
        for th in fill.get(m, []):
            th(reg)
        issue(rate, m)
    for r in slots:
        P.free(r, 4)


def prologue():
    I('s_cmp_ge_u32 s2, 256')
    I('s_cbranch_scc1 L_end')
    I('s_load_dwordx16 s[4:19], s[0:1], 0')
    I('s_load_dwordx8 s[20:27], s[0:1], 64')
    I('s_load_dwordx4 s[28:31], s[0:1], 96')
    I('s_load_dwordx2 s[32:33], s[0:1], 112')
    if DIAG:
        I('s_memrealtime s[100:101]')
    t = [P.alloc() for _ in range(8)]
    I(f'v_lshrrev_b32 {v(t[0])}, 6, v0')
    I(f'v_and_b32 {v(V_L)}, 63, v0')
    I(f'v_readfirstlane_b32 s{S_W}, {v(t[0])}')
    I(f's_and_b32 s{S_T0}, s2, 7')
    I(f's_lshr_b32 s{S_T1}, s2, 3')
    I(f's_and_b32 s{S_T2}, s{S_T1}, 3')
    I(f's_lshl_b32 s{S_RB}, s{S_T0}, 2')
    I(f's_add_u32 s{S_RB}, s{S_RB}, s{S_T2}')
    I(f's_lshr_b32 s{S_CG}, s{S_T1}, 2')
    I(f's_lshr_b32 s{S_NB}, s{S_CG}, 1')
    I(f's_and_b32 s{S_TH}, s{S_CG}, 1')
    I(f'v_lshlrev_b32 {v(V_L16)}, 4, {v(V_L)}')
    vsr = P.alloc()
    I(f's_lshl_b32 s{S_T0}, s{S_RB}, 6')
    I(f's_lshl_b32 s{S_T1}, s{S_CG}, 3')
    I(f's_add_u32 s{S_T1}, s{S_T1}, s{S_T0}')
    I(f's_lshl_b32 s{S_T2}, s{S_W}, 1')
    I(f's_add_u32 s{S_T3}, s{S_T1}, s{S_T2}')
    I(f's_lshl_b32 s{S_T1}, s{S_T3}, 10')
    I(f'v_add_u32 {v(vsr)}, s{S_T1}, {v(V_L16)}')
    vt, vhi = t[1], t[2]
    I(f's_lshl_b32 s{S_T1}, s{S_TH}, 5')
    I(f's_add_u32 s{S_T0}, s{S_T0}, s{S_T1}')
    I(f'v_and_b32 {v(vt)}, 31, {v(V_L)}')
    I(f'v_add_u32 {v(vt)}, s{S_T0}, {v(vt)}')
    I(f'v_lshrrev_b32 {v(vhi)}, 5, {v(V_L)}')
    I(f's_lshl_b32 s{S_T0}, s{S_NB}, 8')
    I(f's_lshl_b32 s{S_T1}, s{S_W}, 6')
    I(f's_add_u32 s{S_T0}, s{S_T0}, s{S_T1}')
    I(f'v_lshl_add_u32 {v(V_TILE)}, {v(vt)}, 10, s{S_T0}')
    I(f'v_lshl_add_u32 {v(V_TILE)}, {v(vhi)}, 5, {v(V_TILE)}')
    vpo = P.alloc()
    I(f's_lshl_b32 s{S_T1}, s2, 9')
    I(f'v_lshl_add_u32 {v(vpo)}, v0, 1, s{S_T1}')
    vdo = P.alloc()
    I(f's_lshl_b32 s{S_T1}, s2, 2')
    I(f'v_mov_b32 {v(vdo)}, s{S_T1}')
    vwd = P.alloc()
    I(f'v_lshrrev_b32 {v(t[3])}, 3, {v(V_L)}')
    I(f'v_mul_u32_u24 {v(vwd)}, 3072, {v(t[3])}')
    I(f'v_bfe_u32 {v(t[3])}, {v(V_L)}, 1, 2')
    I(f'v_lshrrev_b32 {v(t[4])}, 4, {v(V_L)}')
    I(f'v_xor_b32 {v(t[3])}, {v(t[3])}, {v(t[4])}')
    I(f'v_lshl_add_u32 {v(vwd)}, {v(t[3])}, 5, {v(vwd)}')
    I(f'v_and_b32 {v(t[3])}, 1, {v(V_L)}')
    I(f'v_lshl_add_u32 {v(vwd)}, {v(t[3])}, 4, {v(vwd)}')
    I(f's_lshl_b32 s{S_T1}, s{S_CG}, 7')
    I(f'v_add_u32 {v(vwd)}, s{S_T1}, {v(vwd)}')
    A._wait(lg=0)
    if DIAG:
        I(f's_mov_b32 s{S_STAMP}, s100')
        stamp_names.append('entry')
        nstamp[0] = 1
    for r, p, n in ((R_WS, S_WS, WS_SIZE), (R_WQ, S_WQKV, 512 * 3072), (R_WO, S_WO, 512 * 1024)):
        I(f's_mov_b32 s{r}, s{p}')
        I(f's_mov_b32 s{r + 1}, s{p + 1}')
        I(f's_mov_b32 s{r + 2}, {hex(n)}')
        I(f's_mov_b32 s{r + 3}, 0x20000')
    zero4 = P.alloc(4, 2)
    for i in range(4):
        I(f'v_mov_b32 {v(zero4 + i)}, 0')
    I(f's_lshl_b32 s{S_T1}, s2, 2')
    I(f's_add_u32 s{S_T4}, s{S_T1}, s{S_W}')
    I(f's_cmp_lg_u32 s{S_T4}, 3')
    I('s_cbranch_scc1 L_noinit')
    I(f'v_lshlrev_b32 {v(t[3])}, 8, {v(V_L)}')
    A.cond = True
    I(f'buffer_store_dword {v(zero4)}, {v(t[3])}, {WS}, 0 offen sc1')
    I(f'global_load_dword {v(t[5])}, {v(zero4)}, {s(S_DBG, 2)} sc1')
    A.cond = False
    A.label('L_noinit')
    xs = P.alloc(8, 2)
    xt = P.alloc(8, 2)
    I(f'global_load_dwordx4 {v(xs, 4)}, {v(vsr)}, {s(S_U, 2)}')
    I(f'global_load_dwordx4 {v(xs + 4, 4)}, {v(vsr)}, {s(S_U, 2)} offset:1024')
    I(f'global_load_dwordx4 {v(xt, 4)}, {v(V_TILE)}, {s(S_U, 2)}')
    I(f'global_load_dwordx4 {v(xt + 4, 4)}, {v(V_TILE)}, {s(S_U, 2)} offset:16')
    par = P.alloc(8, 2)
    for i, sp in enumerate((S_ARE, S_AIM, S_BRE, S_BIM, S_CRE, S_CIM)):
        I(f'global_load_ushort {v(par + i)}, {v(vpo)}, {s(sp, 2)}')
    I(f'global_load_dword {v(par + 6)}, {v(vdo)}, {s(S_LDT, 2)}')
    I(f'global_load_dword {v(par + 7)}, {v(vdo)}, {s(S_DSK, 2)}')
    srow = S_T2
    I(f's_mov_b32 s{srow}, s{S_T3}')
    sinit = S_SPIN
    I(f's_mov_b32 s{sinit}, s{S_T4}')
    for th in dma_w(0, L_A, vwd):
        th()
    P.free(vsr), P.free(vpo), P.free(vdo)

    I(f's_mov_b32 s{S_MASK}, 0xffff0000')
    I(f's_mov_b32 s{S_MASK + 1}, 0xffff0000')
    I(f's_mov_b32 s{S_ONES}, 0x3f803f80')
    I(f's_mov_b32 s{S_LN}, {f32(1 / 512)}')
    I(f's_mov_b32 s{S_LN + 1}, {f32(1e-5)}')
    I(f's_mov_b32 s{S_EXP}, {f32(math.log2(math.e))}')
    I(f's_mov_b32 s{S_EXP + 1}, {f32(-1e-6 * math.log2(math.e))}')
    I(f's_mov_b32 s{S_E6}, {f32(1e-6)}')
    I(f's_mov_b32 s{S_E6 + 1}, {f32(1e-6)}')
    for i in range(4):
        I(f'v_mov_b32 {v(V_ONES + i)}, s{S_ONES}')
    vg, va_, x0, x1 = t[4], t[6], t[3], t[7]
    I(f'v_and_b32 {v(va_)}, 15, {v(V_L)}')
    I(f's_lshl_b32 s{S_T0}, s{S_NB}, 19')
    I(f's_lshl_b32 s{S_T1}, s{S_W}, 17')
    I(f's_add_u32 s{S_T0}, s{S_T0}, s{S_T1}')
    I(f'v_lshl_add_u32 {v(V_X2ST)}, {v(vt)}, 2, s{S_T0}')
    I(f'v_lshl_add_u32 {v(V_X2ST)}, {v(vhi)}, 16, {v(V_X2ST)}')
    I(f'v_lshlrev_b32 {v(V_STAT)}, 2, {v(vt)}')
    I(f'v_lshl_add_u32 {v(V_STAT)}, {v(vhi)}, 13, {v(V_STAT)}')
    I(f's_lshl_b32 s{S_T0}, s{S_W}, 11')
    I(f'v_lshl_add_u32 {v(V_CVL)}, {v(va_)}, 6, s{S_T0}')
    I(f'v_lshl_add_u32 {v(V_CVL)}, {v(vg)}, 4, {v(V_CVL)}')
    I(f'v_lshrrev_b32 {v(V_HW)}, 1, {v(V_CVL)}')
    I(f'v_add_u32 {v(V_HW)}, {L_H + 512}, {v(V_HW)}')
    I(f's_lshr_b32 s{S_T0}, s{S_W}, 1')
    I(f's_and_b32 s{S_T1}, s{S_W}, 1')
    I(f's_mul_i32 s{S_T3}, s{S_T0}, 4608')
    I(f's_lshl_b32 s{S_T4}, s{S_T1}, 8')
    I(f's_sub_u32 s{S_T3}, s{S_T3}, s{S_T4}')
    I(f's_add_u32 s{S_T3}, s{S_T3}, {L_H + 512 - 32 - 192}')
    I(f'v_lshl_add_u32 {v(V_CB)}, {v(va_)}, 5, s{S_T3}')
    I(f'v_lshl_add_u32 {v(V_CB)}, {v(vg)}, 4, {v(V_CB)}')
    I(f's_mul_i32 s{S_T3}, s{S_T0}, 8320')
    I(f's_sub_u32 s{S_T3}, s{S_T3}, s{S_T4}')
    I(f's_add_u32 s{S_T3}, s{S_T3}, {L_RK + 4160 + 4 * (1015 - 176)}')
    I(f'v_and_b32 {v(x0)}, 1, {v(va_)}')
    I(f'v_mul_u32_u24 {v(x0)}, 4160, {v(x0)}')
    I(f'v_lshrrev_b32 {v(x1)}, 1, {v(va_)}')
    I(f'v_lshl_add_u32 {v(x0)}, {v(x1)}, 2, {v(x0)}')
    I(f'v_lshl_add_u32 {v(x1)}, {v(vg)}, 4, s{S_T3}')
    I(f'v_sub_u32 {v(V_CA[0])}, {v(x1)}, {v(x0)}')
    for i in range(1, 4):
        I(f'v_subrev_u32 {v(V_CA[i])}, {1024 * i}, {v(V_CA[0])}')
    I(f'v_add_u32 {v(V_OFR)}, {L_B}, {v(V_L16)}')
    I(f's_lshl_b32 s{S_T3}, s{S_W}, 13')
    I(f'v_add_u32 {v(V_EXW)}, s{S_T3}, {v(V_OFR)}')
    I(f's_lshl_b32 s{S_T3}, s{S_W}, 11')
    I(f'v_add_u32 {v(V_EXR)}, s{S_T3}, {v(V_OFR)}')
    I(f's_lshl_b32 s{S_T3}, s{S_W}, 19')
    I(f's_lshl_b32 s{S_T4}, s2, 8')
    I(f's_add_u32 s{S_T3}, s{S_T3}, s{S_T4}')
    I(f'v_lshrrev_b32 {v(x0)}, 2, {v(va_)}')
    I(f'v_lshl_add_u32 {v(V_XTST)}, {v(x0)}, 16, s{S_T3}')
    I(f'v_xor_b32 {v(x0)}, s2, {v(va_)}')
    I(f'v_and_b32 {v(x0)}, 3, {v(x0)}')
    I(f'v_lshl_add_u32 {v(V_XTST)}, {v(x0)}, 5, {v(V_XTST)}')
    I(f'v_lshl_add_u32 {v(V_XTST)}, {v(vg)}, 3, {v(V_XTST)}')
    I(f's_lshl_b32 s{S_T3}, s{S_RB}, 16')
    I(f's_lshl_b32 s{S_T4}, s{S_W}, 12')
    I(f's_add_u32 s{S_T3}, s{S_T3}, s{S_T4}')
    I(f'v_add_u32 {v(V_XTLD)}, s{S_T3}, {v(V_L16)}')
    I(f'v_lshrrev_b32 {v(x0)}, 2, {v(V_L)}')
    I(f'v_lshlrev_b32 {v(V_XT[0])}, 7, {v(x0)}')
    I(f'v_bfe_u32 {v(x0)}, {v(V_L)}, 3, 2')
    I(f'v_xor_b32 {v(x0)}, s{S_W}, {v(x0)}')
    I(f'v_lshl_add_u32 {v(V_XT[0])}, {v(x0)}, 5, {v(V_XT[0])}')
    I(f'v_and_b32 {v(x0)}, 3, {v(V_L)}')
    I(f'v_lshl_add_u32 {v(V_XT[0])}, {v(x0)}, 3, {v(V_XT[0])}')
    for i in range(1, 4):
        I(f'v_xor_b32 {v(V_XT[i])}, {32 * i}, {v(V_XT[0])}')
    I(f's_lshl_b32 s{S_T4}, s{S_CG}, 2')
    I(f's_add_u32 s{S_T4}, s{S_T4}, s{S_W}')
    I(f's_lshl_b32 s{S_T4}, s{S_T4}, 10')
    I(f's_lshl_b32 s{S_T3}, s{S_RB}, 16')
    I(f's_add_u32 s{S_T3}, s{S_T3}, s{S_T4}')
    I(f'v_lshl_add_u32 {v(V_PQST)}, {v(va_)}, 5, s{S_T3}')
    I(f'v_lshl_add_u32 {v(V_PQST)}, {v(vg)}, 3, {v(V_PQST)}')
    I(f'v_lshl_add_u32 {v(V_KVST)}, {v(V_L)}, 2, s{S_T4}')
    I(f's_lshl_b32 s{S_T3}, s{S_RB}, 1')
    I(f's_add_u32 s{S_T3}, s{S_T3}, s{S_TH}')
    I(f's_lshl_b32 s{S_T3}, s{S_T3}, 15')
    I(f's_lshl_b32 s{S_T4}, s{S_W}, 13')
    I(f's_add_u32 s{S_T3}, s{S_T3}, s{S_T4}')
    I(f'v_and_b32 {v(x0)}, 31, {v(V_L)}')
    I(f'v_lshl_add_u32 {v(V_PQLD)}, {v(x0)}, 5, s{S_T3}')
    I(f'v_lshl_add_u32 {v(V_PQLD)}, {v(vhi)}, 4, {v(V_PQLD)}')
    I(f'v_and_b32 {v(x0)}, 1, {v(vg)}')
    I(f'v_lshl_add_u32 {v(V_KVLD)}, {v(x0)}, 10, s{S_T4}')
    I(f'v_lshl_add_u32 {v(V_KVLD)}, {v(vhi)}, 5, {v(V_KVLD)}')
    I(f'v_and_b32 {v(x0)}, 3, {v(va_)}')
    I(f'v_lshl_add_u32 {v(V_KVLD)}, {v(x0)}, 8, {v(V_KVLD)}')
    I(f'v_bfe_u32 {v(x1)}, {v(va_)}, 2, 1')
    I(f'v_lshl_add_u32 {v(V_KVLD)}, {v(x1)}, 7, {v(V_KVLD)}')
    I(f'v_lshrrev_b32 {v(x1)}, 3, {v(va_)}')
    I(f'v_lshl_add_u32 {v(V_KVLD)}, {v(x1)}, 6, {v(V_KVLD)}')
    I(f's_lshl_b32 s{S_T3}, s{S_W}, 9')
    I(f'v_lshl_add_u32 {v(V_ZLD)}, {v(x1)}, 8, s{S_T3}')
    I(f'v_lshl_add_u32 {v(V_ZLD)}, {v(x0)}, 6, {v(V_ZLD)}')
    I(f'v_lshl_add_u32 {v(V_ZLD)}, {v(vhi)}, 5, {v(V_ZLD)}')
    I(f's_lshl_b32 s{S_T3}, s{S_NB}, 14')
    I(f's_lshl_b32 s{S_T4}, s{S_W}, 12')
    I(f's_add_u32 s{S_T3}, s{S_T3}, s{S_T4}')
    I(f's_lshl_b32 s{S_T4}, s{S_TH}, 6')
    I(f's_add_u32 s{S_T3}, s{S_T3}, s{S_T4}')
    I(f'v_lshl_add_u32 {v(V_RES[0])}, {v(vhi)}, 11, s{S_T3}')
    I(f'v_lshl_add_u32 {v(V_RES[0])}, {v(x0)}, 3, {v(V_RES[0])}')
    I(f'v_lshrrev_b32 {v(x0)}, 2, {v(va_)}')
    I(f'v_lshl_add_u32 {v(V_RES[0])}, {v(x0)}, 7, {v(V_RES[0])}')
    I(f'v_xor_b32 {v(x1)}, {v(x1)}, {v(vg)}')
    I(f'v_and_b32 {v(x1)}, 1, {v(x1)}')
    I(f'v_lshl_add_u32 {v(V_RES[0])}, {v(x1)}, 5, {v(V_RES[0])}')
    I(f'v_xor_b32 {v(V_RES[1])}, 64, {v(V_RES[0])}')
    I(f's_lshl_b32 s{S_T3}, s{S_W}, 6')
    I(f's_add_u32 s{S_T3}, s{S_T3}, {L_STAT}')
    I(f'v_lshl_add_u32 {v(V_SW)}, {v(va_)}, 2, s{S_T3}')
    I(f'v_lshl_add_u32 {v(V_SR4)}, {v(vg)}, 4, s{S_T3}')
    I(f'v_mov_b32 {v(V_SR1)}, {v(V_SW)}')
    I(f's_and_b32 s{S_T3}, s2, 15')
    I(f's_lshl_b32 s{S_T3}, s{S_T3}, 8')
    I(f'v_lshl_add_u32 {v(V_ARR)}, {v(V_L)}, 12, s{S_T3}')
    I(f's_and_b32 s{S_T3}, s2, 3')
    I(f's_lshl_b32 s{S_T3}, s{S_T3}, 12')
    I(f'v_lshl_add_u32 {v(V_POLL)}, {v(va_)}, 8, s{S_T3}')
    vod, vor = P.alloc(), P.alloc()
    I(f's_lshl_b32 s{S_T3}, s{S_NB}, 8')
    I(f'v_lshl_add_u32 {v(vod)}, {v(vg)}, 10, s{S_T3}')
    I(f'v_xor_b32 {v(x1)}, {v(x0)}, {v(vg)}')
    I(f'v_lshl_add_u32 {v(vod)}, {v(x1)}, 6, {v(vod)}')
    I(f'v_and_b32 {v(x1)}, 3, {v(V_L)}')
    I(f'v_lshl_add_u32 {v(vod)}, {v(x1)}, 4, {v(vod)}')
    I(f'v_lshlrev_b32 {v(vor)}, 11, {v(vhi)}')
    I(f'v_lshl_add_u32 {v(vor)}, {v(x0)}, 8, {v(vor)}')
    I(f'v_xor_b32 {v(x0)}, s{S_W}, {v(x0)}')
    I(f'v_lshl_add_u32 {v(vor)}, {v(x0)}, 6, {v(vor)}')
    I(f'v_and_b32 {v(x0)}, 1, {v(V_L)}')
    I(f'v_lshl_add_u32 {v(vor)}, {v(x0)}, 5, {v(vor)}')
    I(f'v_and_b32 {v(x0)}, 1, {v(vg)}')
    I(f'v_lshl_add_u32 {v(vor)}, {v(x0)}, 4, {v(vor)}')
    I(f'v_bfe_u32 {v(x0)}, {v(V_L)}, 1, 1')
    I(f'v_lshl_add_u32 {v(vor)}, {v(x0)}, 3, {v(vor)}')
    I(f'v_add_u32 {v(vor)}, {L_B}, {v(vor)}')
    kg = dict(w=P.alloc(), a0=P.alloc(), a1=P.alloc(), g=P.alloc(), t1=P.alloc(), t2=P.alloc(), t3=P.alloc(), rk=P.alloc())
    I(f's_mul_i32 s{S_T3}, s{S_T0}, {KG_CH}')
    I(f's_add_u32 s{S_T3}, s{S_T3}, {L_B}')
    I(f'v_and_b32 {v(x0)}, 127, v0')
    I(f'v_lshl_add_u32 {v(kg["w"])}, {v(x0)}, 2, s{S_T3}')
    I(f'v_lshl_add_u32 {v(x1)}, {v(vg)}, 4, s{S_T3}')
    I(f'v_mul_u32_u24 {v(kg["a0"])}, {KG_ROW}, {v(va_)}')
    I(f'v_add_u32 {v(kg["a0"])}, {v(kg["a0"])}, {v(x1)}')
    I(f's_mul_i32 s{S_T4}, s{S_T1}, {16 * KG_ROW}')
    I(f'v_add_u32 {v(kg["g"])}, s{S_T4}, {v(kg["a0"])}')
    I(f'v_min_u32 {v(kg["a1"])}, 4, {v(va_)}')
    I(f'v_mul_u32_u24 {v(kg["a1"])}, {KG_ROW}, {v(kg["a1"])}')
    I(f'v_add_u32 {v(kg["a1"])}, {v(kg["a1"])}, {v(x1)}')
    I(f's_mul_i32 s{S_T3}, s{S_T0}, 4608')
    I(f's_add_u32 s{S_T3}, s{S_T3}, {L_H + 512}')
    vj = t[5]
    I(f's_lshl_b32 s{S_T4}, s{S_T1}, 4')
    vj = P.alloc()
    I(f'v_add_u32 {v(vj)}, s{S_T4}, {v(va_)}')
    I(f'v_lshl_add_u32 {v(kg["t3"])}, {v(vg)}, 7, {v(vj)}')
    I(f'v_lshl_add_u32 {v(kg["t3"])}, {v(kg["t3"])}, 2, s{S_T3}')
    I(f'v_max_u32 {v(x1)}, 1, {v(vg)}')
    I(f'v_sub_u32 {v(x1)}, 6, {v(x1)}')
    I(f'v_lshlrev_b32 {v(kg["t1"])}, {v(x1)}, {v(vj)}')
    I(f'v_lshlrev_b32 {v(x1)}, 4, {v(vg)}')
    I(f'v_lshlrev_b32 {v(vj)}, 9, {v(vg)}')
    I(f'v_cmp_lt_u32 vcc, 1, {v(vg)}')
    I(f'v_cndmask_b32 {v(x1)}, {v(x1)}, {v(vj)}, vcc')
    I(f'v_add3_u32 {v(kg["t1"])}, {v(kg["t1"])}, {v(x1)}, s{S_T3}')
    I(f'v_cmp_eq_u32 vcc, 3, {v(vg)}')
    I(f'v_mov_b32 {v(vj)}, 256')
    I(f'v_cndmask_b32 {v(x1)}, 8, {v(vj)}, vcc')
    I(f'v_add_u32 {v(kg["t2"])}, {v(kg["t1"])}, {v(x1)}')
    gi = P.alloc(18, 2)
    I(f'v_lshlrev_b32 {v(x1)}, 4, {v(x0)}')
    I(f'v_sub_u32 {v(x1)}, 2047, {v(x1)}')
    fl = P.alloc(2, 2)
    lg_ = P.alloc(2, 2)
    I(f's_movk_i32 s{S_T4}, 128')
    for u in range(0, 18, 2):
        n = 2 if u < 16 else 1
        for q in range(n):
            I(f'v_subrev_u32 {v(lg_ + q)}, {u + q}, {v(x1)}')
            I(f'v_cvt_f32_i32 {v(fl + q)}, {v(lg_ + q)}')
        I(f'v_cvt_pk_bf16_f32 {v(vj)}, {v(fl)}, {v(fl + 1)}')
        for q in range(n):
            I(f'v_bfe_i32 {v(fl + q)}, {v(vj)}, {16 * q}, 16')
            I(f'v_subrev_u32 {v(fl + q)}, {0x4280}, {v(fl + q)}')
            I(f'v_med3_i32 {v(fl + q)}, {v(fl + q)}, {v(lg_ + q)}, s{S_T4}')
            I(f'v_lshl_add_u32 {v(gi + u + q)}, {v(fl + q)}, 2, s{S_T3}')
    P.free(fl, 2), P.free(lg_, 2), P.free(vj)
    I(f's_mul_i32 s{S_T3}, s{S_T0}, 8320')
    I(f's_add_u32 s{S_T3}, s{S_T3}, {L_RK}')
    I(f'v_lshl_add_u32 {v(kg["rk"])}, {v(x0)}, 5, s{S_T3}')
    I(f's_mul_i32 s{S_T3}, s{S_T0}, 4608')
    I(f's_add_u32 s{S_T3}, s{S_T3}, {L_H}')
    I(f'v_lshl_add_u32 {v(x1)}, {v(x0)}, 2, s{S_T3}')
    I(f'ds_write_b32 {v(x1)}, {v(zero4)}')
    I(f's_mul_i32 s{S_T3}, s{S_W}, 4160')
    I(f's_add_u32 s{S_T3}, s{S_T3}, {L_RK + 4096}')
    I(f'v_lshl_add_u32 {v(x1)}, {v(va_)}, 2, s{S_T3}')
    I(f'ds_write_b32 {v(x1)}, {v(zero4)}')

    st = P.alloc(4, 2)
    for r in range(2):
        for i in range(4):
            c = '0' if i == 0 else v(st + r)
            I(f'v_dot2_f32_bf16 {v(st + r)}, {v(xs + 4 * r + i)}, s{S_ONES}, {c}')
            c = '0' if i == 0 else v(st + 2 + r)
            I(f'v_dot2_f32_bf16 {v(st + 2 + r)}, {v(xs + 4 * r + i)}, {v(xs + 4 * r + i)}, {c}')
    I(f's_cmp_lg_u32 s{sinit}, 3')
    I('s_cbranch_scc1 L_noflag')
    I(f'v_mov_b32 {v(x1)}, 1')
    A.cond = True
    I(f'global_store_dword {v(zero4)}, {v(x1)}, {s(S_DBG, 2)} sc1')
    A.cond = False
    A.label('L_noflag')
    I('s_nop 1')
    I(f'v_permlane32_swap_b32 {v(st)}, {v(st + 2)}')
    I(f'v_permlane32_swap_b32 {v(st + 1)}, {v(st + 3)}')
    I(f'v_add_f32 {v(st)}, {v(st)}, {v(st + 2)}')
    I(f'v_add_f32 {v(st + 1)}, {v(st + 1)}, {v(st + 3)}')
    I(f'v_permlane16_swap_b32 {v(st)}, {v(st + 1)}')
    I(f'v_add_f32 {v(st)}, {v(st)}, {v(st + 1)}')
    for sh in (8, 4, 2, 1):
        I(f'v_add_f32_dpp {v(st)}, {v(st)}, {v(st)} row_ror:{sh} row_mask:0xf bank_mask:0xf')
    I(f'v_and_b32 {v(x0)}, 1, {v(vg)}')
    I(f'v_add_u32 {v(x0)}, s{srow}, {v(x0)}')
    I(f'v_lshlrev_b32 {v(x0)}, 2, {v(x0)}')
    I(f'v_lshl_add_u32 {v(x0)}, {v(vhi)}, 13, {v(x0)}')
    I(f's_mov_b32 s{S_T0}, {hex(WS_ST[0])}')
    I('s_mov_b32 exec_lo, 0x00010001')
    I('s_mov_b32 exec_hi, 0x00010001')
    I(f'buffer_store_dword {v(st)}, {v(x0)}, {WS}, s{S_T0} offen sc1')
    I('s_mov_b64 exec, -1')
    x2store(0, xt)
    I(f's_lshl_b32 s{S_T0}, s{sinit}, 7')
    I(f's_add_u32 s{S_T0}, s{S_T0}, {hex(WS_ZERO)}')
    I('s_mov_b64 exec, 0xff')
    I(f'buffer_store_dwordx4 {v(zero4, 4)}, {v(V_L16)}, {WS}, s{S_T0} offen sc1')
    I('s_mov_b64 exec, -1')
    P.free(st, 4), P.free(xs, 8), P.free(xt, 8)
    for r in t:
        P.free(r)
    stamp('p1_stored')
    A.wait_vm()
    global_arrive(first=True)
    P.free(zero4, 4)
    stamp('arr1')
    consume_w(0)
    A.barrier()
    for th in dma_w(1, L_A, vwd):
        th()
    stamp('wq_done')
    kgen(par, kg, gi)
    stamp('kgen_done')
    A.wait_vm()
    A.barrier()
    consume_w(1)
    return vwd, vod, vor


def x2store(layer, d):
    I(f's_mov_b32 s{S_T0}, {hex(WS_X2[layer])}')
    for i in range(8):
        I(f'buffer_store_dword {v(d + i)}, {v(V_X2ST)}, {WS}, s{S_T0} offen sc1')
        if i < 7:
            I(f's_add_u32 s{S_T0}, s{S_T0}, 8192')


def kgen(par, kg, gi):
    LOG2E = math.log2(math.e)
    I(f'v_readfirstlane_b32 s{S_T0}, {v(par + 7)}')
    I(f'v_readfirstlane_b32 s{S_T1}, {v(par + 6)}')
    I(f's_lshl_b32 s{S_D}, s{S_T0}, 16')
    I(f's_and_b32 s{S_D + 1}, s{S_T0}, 0xffff0000')
    I(f's_lshl_b32 s{S_T0}, s{S_T1}, 16')
    I(f's_and_b32 s{S_T1}, s{S_T1}, 0xffff0000')
    I(f's_cmp_ge_u32 s{S_W}, 2')
    I(f's_cselect_b32 s{S_T0}, s{S_T1}, s{S_T0}')
    dt = par + 6
    I(f'v_mov_b32 {v(dt)}, s{S_T0}')
    I(f'v_mul_f32 {v(dt)}, s{S_EXP}, {v(dt)}')
    I(f'v_exp_f32 {v(dt)}, {v(dt)}')
    for i in range(6):
        I(f'v_lshlrev_b32 {v(par + i)}, 16, {v(par + i)}')
    I(f'v_cvt_pk_bf16_f32 {v(dt)}, {v(dt)}, {v(dt)}')
    I(f'v_and_b32 {v(dt)}, 0xffff0000, {v(dt)}')
    z, Bc, Cc = par, par + 2, par + 4
    pk('mul', v(z, 2), (v(z, 2), 'p'), bc(dt))
    pk('mul', v(Bc, 2), (v(Bc, 2), 'p'), bc(dt))
    tmp = P.alloc(2, 2)
    CB = P.alloc(2, 2)
    cmul(CB, Cc, Bc, tmp)
    E = {}
    for rho in (1, 8, 64, 256):
        e = P.alloc(2, 2)
        E[rho] = e
        I(f'v_mul_f32 {v(tmp)}, {f32(rho * LOG2E)}, {v(z)}')
        I(f'v_mul_f32 {v(tmp + 1)}, {f32(rho / (2 * math.pi))}, {v(z + 1)}')
        I(f'v_exp_f32 {v(tmp)}, {v(tmp)}')
        I(f'v_fract_f32 {v(tmp + 1)}, {v(tmp + 1)}')
        I(f'v_cos_f32 {v(e)}, {v(tmp + 1)}')
        I(f'v_sin_f32 {v(e + 1)}, {v(tmp + 1)}')
        pk('mul', v(e, 2), (v(e, 2), 'p'), bc(tmp))
    pkr = [P.alloc(), P.alloc()]
    cnt = [0]

    def put(row, r, neg):
        d = pkr[cnt[0] & 1]
        cnt[0] += 1
        I(f'v_cvt_pk_bf16_f32 {v(d)}, {v(r)}, {"-" if neg else ""}{v(r + 1)}')
        I(f'ds_write_b32 {v(kg["w"])}, {v(d)} offset:{row * KG_ROW}')
    for rho, x, y in ((128, 64, 64), (192, 128, 64), (2, 1, 1), (4, 2, 2)):
        E[rho] = P.alloc(2, 2)
        cmul(E[rho], E[x], E[y], tmp)
    cur = P.alloc(2, 2)
    o = P.alloc(2, 2)
    I(f'v_mov_b32 {v(pkr[0])}, 0x3f80')
    I(f'ds_write_b32 {v(kg["w"])}, {v(pkr[0])}')
    cnt[0] = 1
    for m in (1, 2, 3):
        put(8 * m, E[64 * m], False)
    for j in range(1, 8):
        if j == 1:
            g = E[8]
        elif j == 2:
            cmul(cur, E[8], E[8], tmp)
            g = cur
        else:
            cmul(cur, cur, E[8], tmp)
        put(j, g, False)
        for m in (1, 2, 3):
            cmul(o, g, E[64 * m], tmp)
            put(8 * m + j, o, False)
    put(32, CB, True)
    for j in range(1, 8):
        cmul(cur, CB if j == 1 else cur, E[1], tmp)
        put(32 + j, cur, True)
    U = CB
    cmul(U, U, E[256], tmp)
    put(40, U, True)
    for j in range(1, 4):
        cmul(cur, U if j == 1 else cur, E[2], tmp)
        put(40 + j, cur, True)
    for j in range(2):
        cmul(U, U, E[256], tmp)
        put(44 + 2 * j, U, True)
        cmul(cur, U, E[4], tmp)
        put(45 + 2 * j, cur, True)
    for j in range(5):
        cmul(U, U, E[256], tmp)
        put(48 + j, U, True)
    for r in list(E.values()) + [tmp, CB, cur, o]:
        P.free(r, 2)
    P.free(pkr[0]), P.free(pkr[1])
    P.free(par, 8)
    A.barrier()
    d0, d1 = P.alloc(4, 2), P.alloc(4, 2)
    mf = []
    for st in range(8):
        for tl, d in ((0, d0), (1, d1)):
            def em(reg, st=st, tl=tl, d=d):
                c = '0' if st == 0 else v(d, 4)
                I(f'v_mfma_f32_16x16x32_bf16 {v(d, 4)}, {v(reg[("a", tl, st)], 4)}, {v(reg[("g", st)], 4)}, {c}')
            mf.append((em, [('a', tl, st), ('g', st)]))

    def loader(k, r):
        if k[0] == 'g':
            return [f'ds_read_b128 {v(r, 4)}, {v(kg["g"])} offset:{64 * k[1]}']
        base = kg['a0'] if k[1] == 0 else kg['a1']
        return [f'ds_read_b128 {v(r, 4)}, {v(base)} offset:{(32 + 16 * k[1]) * KG_ROW + 64 * k[2]}']
    stream(mf, loader, 12, 8)
    I(f'ds_write_b64 {v(kg["t1"])}, {v(d0, 2)}')
    I(f'ds_write_b64 {v(kg["t2"])}, {v(d0 + 2, 2)}')
    for r in range(4):
        I(f'ds_write_b32 {v(kg["t3"])}, {v(d1 + r)} offset:{2048 + 128 * r}')
    P.free(d0, 4), P.free(d1, 4)
    A.barrier()
    for u in range(17):
        I(f'ds_read_b32 {v(gi + u)}, {v(gi + u)}')
    c = P.alloc(16, 2)
    for cp in range(2):
        for m in range(8):
            I(f'v_cvt_pk_bf16_f32 {v(c + 8 * cp + m)}, {v(gi + 2 * m + cp)}, {v(gi + 2 * m + cp + 1)}')
        for hq in range(2):
            I(f'ds_write_b128 {v(kg["rk"])}, {v(c + 8 * cp + 4 * hq, 4)} offset:{4160 * cp + 16 * hq}')
    P.free(c, 16), P.free(gi, 18)
    for r in kg.values():
        P.free(r)


def conv(layer, fillers):
    xd = P.alloc(8, 2)
    sm = P.alloc(8, 2)
    sq = P.alloc(8, 2)
    I(f's_lshl_b32 s{S_T0}, s2, 13')
    I(f's_add_u32 s{S_T0}, s{S_T0}, {hex(WS_X2[layer])}')
    I(f's_mov_b32 s{S_T1}, {hex(WS_ST[layer])}')
    I(f's_mov_b32 s{S_T2}, {hex(WS_ST[layer] + 8192)}')
    for i in range(2):
        I(f'buffer_load_dwordx4 {v(sm + 4 * i, 4)}, {v(V_CVL)}, {WS}, s{S_T1} offen offset:{1024 * i} sc1')
        I(f'buffer_load_dwordx4 {v(sq + 4 * i, 4)}, {v(V_CVL)}, {WS}, s{S_T2} offen offset:{1024 * i} sc1')
        I(f'buffer_load_dwordx4 {v(xd + 4 * i, 4)}, {v(V_CVL)}, {WS}, s{S_T0} offen offset:{1024 * i} sc1')
    base = P.alloc(16, 2)
    hh = P.alloc(4, 2)
    hp = P.alloc(4, 2)
    LN = s(S_LN, 2)
    for i in range(2):
        m, q, x = sm + 4 * i, sq + 4 * i, xd + 4 * i
        for j in (0, 2):
            pk('mul', v(m + j, 2), (v(m + j, 2), 'p'), (LN, 'l'))
        for j in (0, 2):
            pk('fma', v(q + j, 2), (v(q + j, 2), 'p'), (LN, 'l'), (LN, 'h'))
        for j in (0, 2):
            pk('fma', v(q + j, 2), (v(m + j, 2), 'p', 'b'), (v(m + j, 2), 'p'), (v(q + j, 2), 'p'))
        for j in range(4):
            I(f'v_max_f32 {v(q + j)}, s{S_LN + 1}, {v(q + j)}')
        for j in range(4):
            I(f'v_rsq_f32 {v(q + j)}, {v(q + j)}')
        for c in range(2):
            b = base + 8 * i + 4 * c
            for j in range(4):
                if c == 0:
                    I(f'v_lshlrev_b32 {v(b + j)}, 16, {v(x + j)}')
                else:
                    I(f'v_and_b32 {v(b + j)}, 0xffff0000, {v(x + j)}')
            for j in (0, 2):
                pk('add', v(hh + j, 2), (v(b + j, 2), 'p'), (v(m + j, 2), 'p', 'b'))
            for j in (0, 2):
                pk('mul', v(hh + j, 2), (v(hh + j, 2), 'p'), (v(q + j, 2), 'p'))
            for j in (0, 2):
                I(f'v_cvt_pk_bf16_f32 {v(hp + 2 * c + j // 2)}, {v(hh + j)}, {v(hh + j + 1)}')
            I(f'ds_write_b64 {v(V_HW)}, {v(hp + 2 * c, 2)} offset:{4608 * c + 512 * i}')
            for j in (0, 2):
                pk('fma', v(b + j, 2), (v(hh + j, 2), 'p'), (s(S_D, 2), 'h' if c else 'l'), (v(b + j, 2), 'p'))
    P.free(xd, 8), P.free(sm, 8), P.free(sq, 8), P.free(hh, 4), P.free(hp, 4)
    A.barrier()
    stamp(f'conv{layer}_h')
    acc = P.alloc(32, 2)
    mf = []
    seen = set()
    fin = {}
    for cc in range(4):
        if cc < 3:
            seq = [(p, n) for p in range(7, -1, -1) for n in range(p, 8)]
        else:
            seq = [(p, n) for n in range(8) for p in range(n + 1)]
        for (p, n) in seq:
            def em(reg, cc=cc, p=p, n=n, fst=(n not in seen)):
                d = v(acc + 4 * n, 4)
                I(f'v_mfma_f32_16x16x32_bf16 {d}, {v(reg[("A", cc, p)], 4)}, {v(reg[("B", cc, n - p)], 4)}, {"0" if fst else d}')
            seen.add(n)
            mf.append((em, [('A', cc, p), ('B', cc, n - p)]))
            fin[n] = len(mf) - 1

    def loader(k, r):
        _, cc, x = k
        if k[0] == 'B':
            return [f'ds_read_b128 {v(r, 4)}, {v(V_CB)} offset:{512 * x + 64 * (3 - cc)}']
        o = 128 * (1 - (x & 1)) + 16 * (3 - cc)
        return [f'ds_read2_b32 {v(r, 2)}, {v(V_CA[x >> 1])} offset0:{o} offset1:{o + 1}',
                f'ds_read2_b32 {v(r + 2, 2)}, {v(V_CA[x >> 1])} offset0:{o + 2} offset1:{o + 3}']
    fill = {}
    for n in range(8):
        at = min(fin[n] + 7, len(mf) - 1)
        fill.setdefault(at, []).append(lambda reg, n=n: I(f'ds_write_b128 {v(V_EXW)}, {v(acc + 4 * n, 4)} offset:{1024 * n}'))
    for i, th in enumerate(fillers):
        fill.setdefault(4 + 6 * i, []).append(lambda reg, th=th: th())
    stream(mf, loader, 20, 14, fill=fill)
    P.free(acc, 32)
    A.barrier()
    stamp(f'conv{layer}_mm')
    ex = P.alloc(32, 2)
    for i in range(2):
        for u in range(4):
            I(f'ds_read_b128 {v(ex + 16 * i + 4 * u, 4)}, {v(V_EXR)} offset:{8192 * u + 1024 * i}')
    I(f's_mov_b32 s{S_T0}, {hex(WS_XT[layer])}')
    I(f's_mov_b32 s{S_T1}, {hex(WS_XT[layer] + 262144)}')
    for i in range(2):
        for c in range(2):
            b = base + 8 * i + 4 * c
            e = ex + 16 * i + 8 * c
            for j in (0, 2):
                pk('add', v(b + j, 2), (v(b + j, 2), 'p'), (v(e + j, 2), 'p'))
            for j in (0, 2):
                pk('add', v(b + j, 2), (v(b + j, 2), 'p'), (v(e + 4 + j, 2), 'p'))
            for j in (0, 2):
                I(f'v_cvt_pk_bf16_f32 {v(e + j // 2)}, {v(b + j)}, {v(b + j + 1)}')
            I(f'buffer_store_dwordx2 {v(e, 2)}, {v(V_XTST)}, {WS}, s{S_T0 + i} offen offset:{128 * c} sc1')
    P.free(ex, 32), P.free(base, 16)


def phi(x, tmp):
    EX = s(S_EXP, 2)
    for j in (0, 2):
        pk('fma', v(tmp + j, 2), (v(x + j, 2), 'p'), (EX, 'l'), (EX, 'h'))
    for j in range(4):
        I(f'v_exp_f32_e64 {v(tmp + j)}, {v(tmp + j)} clamp')
    for j in range(4):
        I(f'v_max_f32 {v(x + j)}, s{S_E6}, {v(x + j)}')
    for j in (0, 2):
        pk('add', v(x + j, 2), (v(x + j, 2), 'p'), (v(tmp + j, 2), 'p'))


def p3(layer, after_dma, fillers):
    for ck in range(4):
        I(f's_mov_b32 s{S_T0}, {hex(WS_XT[layer] + ck * 16384)}')
        if ck == 0:
            I(f's_lshl_b32 m0, s{S_W}, 12')
        else:
            I('s_add_u32 m0, m0, 16384')
        for j in range(4):
            I(f'buffer_load_dwordx4 {v(V_XTLD)}, {WS}, s{S_T0} offen offset:{1024 * j} sc1 lds', tag=f'xt{ck}')
    after_dma()
    acc = P.alloc(48, 2)
    ss = P.alloc(4, 2)
    mf = []
    fill = {}
    for st in range(16):
        for i in range(4):
            for y in range(3):
                def em(reg, st=st, i=i, y=y):
                    d = v(acc + 16 * y + 4 * i, 4)
                    c = '0' if st == 0 else d
                    x = v(reg[(st, i)], 4)
                    if y == 0:
                        I(f'v_mfma_f32_16x16x32_bf16 {d}, {wq_reg(y, st)}, {x}, {c}')
                    else:
                        I(f'v_mfma_f32_16x16x32_bf16 {d}, {x}, {wq_reg(y, st)}, {c}')
                keys = [(st, i)]
                if i in (1, 2):
                    keys.append((st, 0))
                mf.append((em, keys))
        for j in range(8):
            def dot(reg, st=st, j=j):
                x = v(reg[(st, 0)] + j // 2)
                d = v(ss + (j & 1))
                c = '0' if (st == 0 and j < 2) else d
                I(f'v_dot2_f32_bf16 {d}, {x}, {x if j & 1 else s(S_ONES)}, {c}')
            fill.setdefault(12 * st + j, []).append(dot)
    for i, th in enumerate(fillers):
        fill.setdefault(60 + 8 * i, []).append(lambda reg, th=th: th())

    def loader(k, r):
        st, i = k
        return [f'ds_read_b64_tr_b16 {v(r + 2 * z, 2)}, {v(V_XT[i])} offset:{4096 * st + 2048 * z}' for z in range(2)]

    def mkgate(ck):
        def g():
            A.wait_vm(f'xt{ck}')
            A.barrier(lg=(ck == 0))
            if ck == 0:
                stamp(f'p3_{layer}_c0')
        return g
    gate = {(4 * ck, 0): mkgate(ck) for ck in range(4)}
    stream(mf, loader, 10, 14, fill=fill, gate=gate, rate=1)
    stamp(f'p3_{layer}_mm')
    for r in (0, 1):
        I(f'v_mov_b32 {v(ss + 2 + r)}, {v(ss + r)}')
    for r in (0, 1):
        I(f'v_permlane32_swap_b32 {v(ss + r)}, {v(ss + 2 + r)}')
    pk('add', v(ss, 2), (v(ss, 2), 'p'), (v(ss + 2, 2), 'p'))
    for r in (0, 1):
        I(f'v_mov_b32 {v(ss + 2 + r)}, {v(ss + r)}')
    for r in (0, 1):
        I(f'v_permlane16_swap_b32 {v(ss + r)}, {v(ss + 2 + r)}')
    pk('add', v(ss, 2), (v(ss, 2), 'p'), (v(ss + 2, 2), 'p'))
    pk('mul', v(ss, 2), (v(ss, 2), 'p'), (s(S_LN, 2), 'l'))
    I(f'v_fma_f32 {v(ss + 1)}, -{v(ss)}, {v(ss)}, {v(ss + 1)}')
    I(f'v_max_f32 {v(ss + 1)}, 0, {v(ss + 1)}')
    I(f'v_add_f32 {v(ss + 1)}, s{S_LN + 1}, {v(ss + 1)}')
    I(f'v_rsq_f32 {v(ss + 1)}, {v(ss + 1)}')
    I(f'v_mul_f32 {v(ss)}, {v(ss)}, {v(ss + 1)}')
    I(f'ds_write2st64_b32 {v(V_SW)}, {v(ss + 1)}, {v(ss)} offset0:0 offset1:1')
    A.barrier()
    P.free(ss, 4)
    r4 = P.alloc(32, 2)
    r1 = P.alloc(8, 2)
    ta = P.alloc(2)
    for i in range(4):
        if i:
            I(f'v_xor_b32 {v(ta)}, {64 * i}, {v(V_SR4)}')
            I(f'v_xor_b32 {v(ta + 1)}, {64 * i}, {v(V_SR1)}')
        a4 = ta if i else V_SR4
        a1 = ta + 1 if i else V_SR1
        I(f'ds_read_b128 {v(r4 + 8 * i, 4)}, {v(a4)}')
        I(f'ds_read_b128 {v(r4 + 8 * i + 4, 4)}, {v(a4)} offset:256')
        I(f'ds_read2st64_b32 {v(r1 + 2 * i, 2)}, {v(a1)} offset0:0 offset1:1')
    P.free(ta, 2)
    tmp = P.alloc(4, 2)
    fk = P.alloc(8, 2)
    fv = P.alloc(8, 2)
    E6 = s(S_E6, 2)
    for i in range(4):
        r, rm = r4 + 8 * i, r4 + 8 * i + 4
        k_, v_ = acc + 16 + 4 * i, acc + 32 + 4 * i
        for j in (0, 2):
            pk('fma', v(tmp + j, 2), (v(rm + j, 2), 'p', 'b'), bc(V_CSKV), (E6, 'p'))
        for j in (0, 2):
            pk('fma', v(k_ + j, 2), (v(k_ + j, 2), 'p'), (v(r + j, 2), 'p'), (v(tmp + j, 2), 'p'))
        for j in (0, 2):
            pk('mul', v(v_ + j, 2), (v(v_ + j, 2), 'p'), (v(r + j, 2), 'p'))
        for j in (0, 2):
            pk('fma', v(v_ + j, 2), (v(rm + j, 2), 'p', 'b'), bc(V_CSKV + 1), (v(v_ + j, 2), 'p'))
        phi(k_, tmp)
        for j in (0, 2):
            I(f'v_cvt_pk_bf16_f32 {v(fk + 2 * i + j // 2)}, {v(k_ + j)}, {v(k_ + j + 1)}')
            I(f'v_cvt_pk_bf16_f32 {v(fv + 2 * i + j // 2)}, {v(v_ + j)}, {v(v_ + j + 1)}')
    dkv, dz = r4, r4 + 4
    for hf in range(2):
        I(f'v_mfma_f32_16x16x32_bf16 {v(dkv, 4)}, {v(fv + 4 * hf, 4)}, {v(fk + 4 * hf, 4)}, {v(dkv, 4) if hf else 0}')
        I(f'v_mfma_f32_16x16x32_bf16 {v(dz, 4)}, {v(V_ONES, 4)}, {v(fk + 4 * hf, 4)}, {v(dz, 4) if hf else 0}')

    def qtile(i):
        q_ = acc + 4 * i
        rr = v(r1 + 2 * i, 2)
        for j in (0, 2):
            pk('fma', v(tmp + j, 2), (rr, 'h', 'b'), (v(V_CSQ + j, 2), 'p'), (E6, 'p'))
        for j in (0, 2):
            pk('fma', v(q_ + j, 2), (v(q_ + j, 2), 'p'), (rr, 'l'), (v(tmp + j, 2), 'p'))
        phi(q_, tmp)
        for j in (0, 2):
            I(f'v_cvt_pk_bf16_f32 {v(q_ + j // 2)}, {v(q_ + j)}, {v(q_ + j + 1)}')
        I(f's_xor_b32 s{S_T0}, s{S_W}, {i}')
        I(f's_lshr_b32 s{S_T1}, s{S_T0}, 1')
        I(f's_lshl_b32 s{S_T1}, s{S_T1}, 15')
        I(f's_and_b32 s{S_T0}, s{S_T0}, 1')
        I(f's_lshl_b32 s{S_T0}, s{S_T0}, 9')
        I(f's_add_u32 s{S_T0}, s{S_T0}, s{S_T1}')
        I(f's_add_u32 s{S_T0}, s{S_T0}, {hex(WS_PQ[layer])}')
        I(f'buffer_store_dwordx2 {v(q_, 2)}, {v(V_PQST)}, {WS}, s{S_T0} offen sc1')
    qtile(0)
    I(f's_mov_b32 s{S_T2}, {hex(WS_KV[layer])}')
    for r in range(4):
        I(f'buffer_atomic_add_f32 {v(dkv + r)}, {v(V_KVST)}, {WS}, s{S_T2} offen offset:{256 * r}')
    I(f's_lshl_b32 s{S_T0}, s{S_CG}, 2')
    I(f's_add_u32 s{S_T0}, s{S_T0}, s{S_W}')
    I(f's_mul_i32 s{S_T0}, s{S_T0}, 960')
    I(f's_sub_u32 s{S_T0}, {hex(WS_KV[layer] + 32768)}, s{S_T0}')
    I('s_mov_b64 exec, 0xffff')
    I(f'buffer_atomic_add_f32 {v(dz)}, {v(V_KVST)}, {WS}, s{S_T0} offen')
    I('s_mov_b64 exec, -1')
    for i in range(1, 4):
        qtile(i)
    P.free(r4, 32), P.free(r1, 8), P.free(tmp, 4), P.free(fk, 8), P.free(fv, 8), P.free(acc, 48)


def p4_pre():
    acc = P.alloc(16, 2)
    res = P.alloc(8, 2)
    for j in range(4):
        I(f'ds_read_b64_tr_b16 {v(res + 2 * j, 2)}, {v(V_RES[j & 1])} offset:{512 * j}')
    for j in range(8):
        I(f'v_lshlrev_b32 {v(acc + 2 * j)}, 16, {v(res + j)}')
        I(f'v_and_b32 {v(acc + 2 * j + 1)}, 0xffff0000, {v(res + j)}')
    P.free(res, 8)
    return acc


def p4(layer, acc):
    zf = P.alloc(8, 2)
    kv = P.alloc(32, 2)
    pq = P.alloc(32, 2)
    I(f's_mov_b32 s{S_T0}, {hex(WS_KV[layer] + 32768)}')
    for j in range(2):
        I(f'buffer_load_dwordx4 {v(zf + 4 * j, 4)}, {v(V_ZLD)}, {WS}, s{S_T0} offen offset:{16 * j} sc1')
    for pp in range(4):
        if pp % 2 == 0:
            I(f's_mov_b32 s{S_T0}, {hex(WS_KV[layer] + 2048 * pp)}')
            I(f's_mov_b32 s{S_T1}, {hex(WS_PQ[layer] + 2048 * pp)}')
        for j in range(2):
            I(f'buffer_load_dwordx4 {v(kv + 8 * pp + 4 * j, 4)}, {v(V_KVLD)}, {WS}, s{S_T0} offen offset:{2048 * (pp & 1) + 16 * j} sc1')
        for j in range(2):
            I(f'buffer_load_dwordx4 {v(pq + 8 * pp + 4 * j, 4)}, {v(V_PQLD)}, {WS}, s{S_T1} offen offset:{2048 * (pp & 1) + 1024 * j} sc1')
    for j in range(4):
        I(f'v_cvt_pk_bf16_f32 {v(zf + j)}, {v(zf + 2 * j)}, {v(zf + 2 * j + 1)}')
    D = [P.alloc(16, 2), P.alloc(16, 2)]
    MK = s(S_MASK, 2)

    def prep(pp):
        x = kv + 8 * pp
        for j in range(4):
            I(f'v_cvt_pk_bf16_f32 {v(x + j)}, {v(x + 2 * j)}, {v(x + 2 * j + 1)}')
        for j in range(4):
            I(f'v_cndmask_b32 {v(x + 4 + j)}, {v(zf + j)}, {v(x + j)}, {MK}')
        for j in range(4):
            I(f'v_cndmask_b32 {v(x + j)}, {v(x + j)}, {v(zf + j)}, {MK}')

    def mm(hh):
        I(f'v_mfma_f32_32x32x16_bf16 {v(D[hh & 1], 16)}, {v(kv + 4 * hh, 4)}, {v(pq + 4 * hh, 4)}, 0')

    def norm(hh):
        d = D[hh & 1]
        num = d + 8 * (hh & 1)
        den = d + 8 * (1 - (hh & 1)) + hh
        I(f'v_add_f32 {v(den)}, s{S_E6}, {v(den)}')
        I(f'v_rcp_f32 {v(den)}, {v(den)}')
        for j in range(0, 8, 2):
            pk('mul', v(num + j, 2), (v(num + j, 2), 'p'), bc(den))
        o = pq + 4 * hh
        for j in range(4):
            I(f'v_cvt_pk_bf16_f32 {v(o + j)}, {v(num + 2 * j)}, {v(num + 2 * j + 1)}')
        I(f'ds_write_b128 {v(V_EXW)}, {v(o, 4)} offset:{1024 * hh}')
    prep(0)
    for pp in range(4):
        mm(2 * pp)
        mm(2 * pp + 1)
        if pp < 3:
            prep(pp + 1)
        norm(2 * pp)
        norm(2 * pp + 1)
    P.free(zf, 8), P.free(kv, 32), P.free(pq, 32), P.free(D[0], 16), P.free(D[1], 16)
    A.barrier()
    stamp(f'p4_{layer}_o')
    mf = []
    for h in range(32):
        def em(reg, h=h):
            I(f'v_mfma_f32_32x32x16_bf16 {v(acc, 16)}, {wo_reg(h)}, {v(reg[h], 4)}, {v(acc, 16)}')
        mf.append((em, [h]))
    stream(mf, lambda k, r: [f'ds_read_b128 {v(r, 4)}, {v(V_OFR)} offset:{1024 * k}'], 8, 7)
    stamp(f'p4_{layer}_mm')
    o = P.alloc(8, 2)
    for j in range(8):
        I(f'v_cvt_pk_bf16_f32 {v(o + j)}, {v(acc + 2 * j)}, {v(acc + 2 * j + 1)}')
    if layer == 0:
        x2store(1, o)
        ss = P.alloc(2, 2)
        for j in range(8):
            I(f'v_dot2_f32_bf16 {v(ss)}, {v(o + j)}, s{S_ONES}, {v(ss) if j else 0}')
            I(f'v_dot2_f32_bf16 {v(ss + 1)}, {v(o + j)}, {v(o + j)}, {v(ss + 1) if j else 0}')
        I(f'v_permlane32_swap_b32 {v(ss)}, {v(ss + 1)}')
        I(f'v_add_f32 {v(ss)}, {v(ss)}, {v(ss + 1)}')
        I(f's_mov_b32 s{S_T0}, {hex(WS_ST[1])}')
        I(f'buffer_atomic_add_f32 {v(ss)}, {v(V_STAT)}, {WS}, s{S_T0} offen')
        P.free(ss, 2)
    else:
        for j in range(2):
            I(f'global_store_dwordx4 {v(V_TILE)}, {v(o + 4 * j, 4)}, {s(S_OUT, 2)} offset:{16 * j}')
    P.free(o, 8), P.free(acc, 16)


def main():
    vwd, vod, vor = prologue()
    bar = 1
    for layer in range(2):
        stamp(f'pre_wait{bar}')
        global_wait(bar)
        stamp(f'wait{bar}')
        conv(layer, dma_w(2, L_A, vwd) if layer == 0 else [])
        A.wait_vm()
        global_arrive()
        bar += 1
        stamp(f'arr{bar}')
        if layer == 0:
            for th in dma_wo(0, L_B, vod):
                th()
            consume_w(2)
            A.wait_vm()
            P.free(vwd)
        global_wait(bar)
        stamp(f'wait{bar}')
        if layer == 0:
            p3(layer, lambda: consume_wo(0, vor), dma_wo(1, L_B, vod))
        else:
            p3(layer, lambda: None, [])
        A.wait_vm()
        global_arrive()
        bar += 1
        stamp(f'arr{bar}')
        if layer == 0:
            consume_wo(1, vor)
            P.free(vod), P.free(vor)
        acc = p4_pre()
        global_wait(bar)
        stamp(f'wait{bar}')
        p4(layer, acc)
        if layer == 0:
            A.wait_vm()
            global_arrive()
            bar += 1
    if DIAG:
        A.wait_vm()
        stamp('end')
        t = P.alloc(2)
        I(f's_lshl_b32 s{S_T0}, s2, 2')
        I(f's_add_u32 s{S_T0}, s{S_T0}, s{S_W}')
        I(f's_lshl_b32 s{S_T0}, s{S_T0}, 7')
        I(f's_add_u32 s{S_T0}, s{S_T0}, {hex(WS_DIAG)}')
        I(f'v_mov_b32 {v(t + 1)}, 0')
        I('s_mov_b64 exec, 1')
        for k in range(nstamp[0]):
            I(f'v_mov_b32 {v(t)}, s{S_STAMP + k}')
            I(f'buffer_store_dword {v(t)}, {v(t + 1)}, {WS}, s{S_T0} offen offset:{4 * k}')
        I(f's_lshl_b32 s{S_T0}, s2, 2')
        I(f's_add_u32 s{S_T0}, s{S_T0}, s{S_W}')
        I(f's_cmp_lg_u32 s{S_T0}, 400')
        I('s_cbranch_scc1 L_end')
        sel = [k for k in range(1, nstamp[0]) if k % 2 == 1 or k == nstamp[0] - 1][-15:]
        for j, k in enumerate(sel):
            I(f's_sub_u32 s{S_T0}, s{S_STAMP + k}, s{S_STAMP}')
            I(f'v_mov_b32 {v(t)}, s{S_T0}')
            I(f'global_store_dword {v(t + 1)}, {v(t)}, {s(S_DBG, 2)} offset:{4 * (j + 1)}')
        print('debug stamps:', [stamp_names[k] for k in sel], file=sys.stderr)
        P.free(t, 2)
    A.label('L_end')
    A.raw('    s_endpgm')

    ref = open(f'cdna_kernels/{NAME}.s.ref').read().splitlines()
    head = []
    for ln in ref:
        if ln.startswith('; @launch'):
            head.append(f'; @launch grid=(256,1,1) block=(256,1,1) lds={L_END}')
            break
        head.append(ln)
    txt = '\n'.join(head) + f'''
.amdgcn_target "amdgcn-amd-amdhsa--gfx950"
.text
.globl {NAME}_kernel
.p2align 8
.type {NAME}_kernel,@function
{NAME}_kernel:
''' + A.text() + f'''.section .rodata,"a"
.p2align 6
.amdhsa_kernel {NAME}_kernel
  .amdhsa_next_free_vgpr 512
  .amdhsa_next_free_sgpr 102
  .amdhsa_accum_offset 256
  .amdhsa_group_segment_fixed_size 0
  .amdhsa_kernarg_size 120
  .amdhsa_user_sgpr_count 2
  .amdhsa_user_sgpr_kernarg_segment_ptr 1
  .amdhsa_system_sgpr_workgroup_id_x 1
.end_amdhsa_kernel
'''
    out = [x for x in sys.argv[1:] if not x.startswith('--')]
    path = out[0] if out else f'cdna_kernels/{NAME}.s'
    open(path, 'w').write(txt)
    if DIAG:
        open(path + '.stamps', 'w').write('\n'.join(stamp_names))
    print(f'wrote {path}: {A.ninstr} instrs, {A.nnop} nop states, vgpr peak {P.peak}, lds {L_END}', file=sys.stderr)


main()
```

```python
import sys, struct, math
from emit import *

NAME = 'interleave_layers__ssm_conv_s4__linear_attn_block__prompt'
DIAG = '--diag' in sys.argv


def f32(x):
    return '0x%08x' % struct.unpack('<I', struct.pack('<f', x))[0]


WS_CNT = 0x0
WS_ZERO = 0x10000
WS_KV = [WS_ZERO, WS_ZERO + 0xC000]
WS_ST = [0x30000, WS_ZERO + 0x18000]
WS_DIAG = 0x40000
WS_X2 = [0x200000, 0x400000]
WS_XT = [0x600000, 0x800000]
WS_PQ = [0xA00000, 0xC00000]
WS_SIZE = 0xE00000

L_A = 0
L_B = 65536
L_RK = 131072
L_H = L_RK + 4 * 4160
L_STAT = L_H + 2 * 4608
L_END = L_STAT + 512
KG_ROW = 544
KG_CH = 53 * KG_ROW

S_U, S_ARE, S_AIM, S_BRE, S_BIM, S_CRE, S_CIM, S_LDT, S_DSK = 4, 6, 8, 10, 12, 14, 16, 18, 20
S_WQKV, S_WO, S_OUT, S_DBG, S_WS = 24, 26, 28, 30, 32
R_WS, R_WQ, R_WO = 36, 40, 44
S_W, S_RB, S_CG, S_NB, S_TH = 48, 49, 50, 51, 52
S_T0, S_T1, S_T2 = 53, 54, 55
S_D = 56
S_MASK = 58
S_ONES = 60
S_SPIN = 61
S_LN = 62
S_EXP = 64
S_E6 = 66
S_T3, S_T4 = 68, 69
S_STAMP = 70

A = Asm()
I = A.I
P = Pool(1, 192)
WS = s(R_WS, 4)
nstamp = [0]
stamp_names = []


def stamp(name):
    if not DIAG:
        return
    k = nstamp[0]
    assert k < 30
    A.wait_lg()
    I('s_memrealtime s[100:101]')
    A._wait(lg=0)
    I(f's_mov_b32 s{S_STAMP + k}, s100')
    stamp_names.append(name)
    nstamp[0] += 1


def pk(op, dst, *srcs):
    sel, selhi, nlo, nhi, txt = [], [], [], [], []
    for sr in srcs:
        t, m = sr[0], sr[1]
        ng = sr[2] if len(sr) > 2 else ''
        txt.append(t)
        sel.append(1 if m in 'hx' else 0)
        selhi.append(1 if m in 'ph' else 0)
        nlo.append(1 if ng in ('l', 'b') else 0)
        nhi.append(1 if ng in ('h', 'b') else 0)
    f = lambda l: '[' + ','.join(map(str, l)) + ']'
    line = f'v_pk_{op}_f32 {dst}, ' + ', '.join(txt) + f' op_sel:{f(sel)} op_sel_hi:{f(selhi)}'
    if any(nlo):
        line += f' neg_lo:{f(nlo)}'
    if any(nhi):
        line += f' neg_hi:{f(nhi)}'
    I(line)


def bc(r):
    return (v(r & ~1, 2), 'h' if r & 1 else 'l')


def cmul(d, x, y, tmp):
    pk('mul', v(tmp, 2), (v(x, 2), 'l'), (v(y, 2), 'p'))
    pk('fma', v(d, 2), (v(x, 2), 'h', 'l'), (v(y, 2), 'x'), (v(tmp, 2), 'p'))


def wq_reg(y, st):
    return a((y * 16 + st) * 4, 4)


def wo_reg(h, n=4, off=0):
    if h < 16:
        return a(192 + 4 * h + off, n)
    return v(192 + 4 * (h - 16) + off, n)


V_L = P.alloc()
V_L16 = P.alloc()
V_XT = [P.alloc() for _ in range(4)]
V_TILE = P.alloc()
V_X2ST = P.alloc()
V_STAT = P.alloc()
V_CVL = P.alloc()
V_HW = P.alloc()
V_CA = [P.alloc() for _ in range(4)]
V_CB = P.alloc()
V_EXW = P.alloc()
V_EXR = P.alloc()
V_OFR = P.alloc()
V_XTST = P.alloc()
V_XTLD = P.alloc()
V_PQST = P.alloc()
V_KVST = P.alloc()
V_PQLD = P.alloc()
V_KVLD = P.alloc()
V_ZLD = P.alloc()
V_RES = [P.alloc(), P.alloc()]
V_SW = P.alloc()
V_SR4 = P.alloc()
V_SR1 = P.alloc()
V_ARR = P.alloc()
V_POLL = P.alloc()
V_CSKV = P.alloc(2)
V_CSQ = P.alloc(4)
V_ONES = P.alloc(4)


def global_arrive(first=False):
    A.barrier()
    lab = f'L_arr{global_arrive.n}'
    global_arrive.n += 1
    I(f's_cmp_lg_u32 s{S_W}, 0')
    I(f's_cbranch_scc1 {lab}')
    t = P.alloc()
    if first:
        I(f's_mov_b32 s{S_SPIN}, 0x200000')
        I(f'v_mov_b32 {v(t)}, 0')
        A.label(lab + '_init')
        t2 = P.alloc()
        A.cond = True
        I(f'global_load_dword {v(t2)}, {v(t)}, {s(S_DBG, 2)} sc1')
        A.cond = False
        A._wait(vm=0)
        A.vm.pop()
        I(f'v_readfirstlane_b32 s{S_T0}, {v(t2)}')
        I(f's_sub_u32 s{S_SPIN}, s{S_SPIN}, 1')
        I(f's_cbranch_scc1 {lab}_go')
        I(f's_cmp_eq_u32 s{S_T0}, 0')
        I(f's_cbranch_scc1 {lab}_init')
        A.label(lab + '_go')
        P.free(t2)
    I(f'v_mov_b32 {v(t)}, 1')
    I('s_mov_b64 exec, 15')
    A.cond = True
    I(f'buffer_atomic_add {v(t)}, {v(V_ARR)}, {WS}, 0 offen sc1')
    A.cond = False
    I('s_mov_b64 exec, -1')
    P.free(t)
    A.label(lab)


global_arrive.n = 0


def global_wait(k):
    lab = f'L_wait{k}'
    I(f's_cmp_lg_u32 s{S_W}, 0')
    I(f's_cbranch_scc1 {lab}')
    t = P.alloc()
    I(f's_mov_b32 s{S_SPIN}, 0x200000')
    I(f's_mov_b32 s{S_T0}, {16 * k}')
    I('s_mov_b64 exec, 0xffff')
    A.label(lab + '_poll')
    A.cond = True
    I(f'buffer_load_dword {v(t)}, {v(V_POLL)}, {WS}, 0 offen sc1')
    A.cond = False
    I(f's_sub_u32 s{S_SPIN}, s{S_SPIN}, 1')
    I(f's_cbranch_scc1 {lab}_done')
    A._wait(vm=0)
    A.vm.pop()
    I(f'v_cmp_gt_u32 vcc, s{S_T0}, {v(t)}')
    I(f's_cbranch_vccnz {lab}_poll')
    A.label(lab + '_done')
    I('s_mov_b64 exec, -1')
    P.free(t)
    A.label(lab)
    A.barrier()


def dma_w(y, region, vaddr):
    th = []

    def first():
        I(f's_mul_i32 s{S_T3}, s{S_W}, {128 * 3072}')
        I(f's_add_u32 s{S_T3}, s{S_T3}, {y * 1024}')
        I(f's_lshl_b32 s{S_T4}, s{S_W}, 14')
        I(f's_add_u32 m0, s{S_T4}, {region}')
        I(f'buffer_load_dwordx4 {v(vaddr)}, {s(R_WQ, 4)}, s{S_T3} offen lds', tag='wdma')

    def nxt():
        I(f's_add_u32 s{S_T3}, s{S_T3}, {8 * 3072}')
        I(f's_add_u32 m0, m0, 1024')
        I(f'buffer_load_dwordx4 {v(vaddr)}, {s(R_WQ, 4)}, s{S_T3} offen lds', tag='wdma')
    return [first] + [nxt] * 15


def dma_wo(kh, region, vaddr):
    def first():
        I(f's_lshl_b32 s{S_T3}, s{S_W}, 16')
        I(f's_add_u32 s{S_T3}, s{S_T3}, {kh * 256 * 1024}')
        I(f's_lshl_b32 s{S_T4}, s{S_W}, 14')
        I(f's_add_u32 m0, s{S_T4}, {region}')
        I(f'buffer_load_dwordx4 {v(vaddr)}, {s(R_WO, 4)}, s{S_T3} offen lds', tag='wdma')

    def nxt():
        I(f's_add_u32 s{S_T3}, s{S_T3}, 4096')
        I(f's_add_u32 m0, m0, 1024')
        I(f'buffer_load_dwordx4 {v(vaddr)}, {s(R_WO, 4)}, s{S_T3} offen lds', tag='wdma')
    return [first] + [nxt] * 15


def consume_w(y):
    for st in range(16):
        b = (y * 16 + st) * 4
        for z in range(2):
            I(f'ds_read_b64_tr_b16 {a(b + 2 * z, 2)}, {v(V_XT[0])} offset:{4096 * st + 2048 * z}')
    d = V_CSQ if y == 0 else P.alloc(4, 2)
    for st in range(16):
        c = '0' if st == 0 else v(d, 4)
        if y == 0:
            I(f'v_mfma_f32_16x16x32_bf16 {v(d, 4)}, {wq_reg(y, st)}, {v(V_ONES, 4)}, {c}')
        else:
            I(f'v_mfma_f32_16x16x32_bf16 {v(d, 4)}, {v(V_ONES, 4)}, {wq_reg(y, st)}, {c}')
    if y:
        I(f'v_mov_b32 {v(V_CSKV + y - 1)}, {v(d)}')
        P.free(d, 4)


def consume_wo(kh, vaddr):
    for hh in range(16):
        for z in range(2):
            I(f'ds_read_b64_tr_b16 {wo_reg(16 * kh + hh, 2, 2 * z)}, {v(vaddr)} offset:{4096 * hh + 1024 * z}')


def stream(mf, loader, nslots, look, fill=None, gate=None, rate=2, maxout=12):
    fill = fill or {}
    gate = gate or {}
    first, last, order = {}, {}, []
    for m, (_, keys) in enumerate(mf):
        for k in keys:
            if k not in first:
                first[k] = m
                order.append(k)
            last[k] = m
    slots = [P.alloc(4, 2) for _ in range(nslots)]
    free = list(slots)
    reg = {}
    pend = []
    nxt = [0]

    def start_key():
        k = order[nxt[0]]
        nxt[0] += 1
        if k in gate:
            gate[k]()
        reg[k] = free.pop(0)
        pend.extend(loader(k, reg[k]))

    def issue(n, m, force=False):
        while n > 0:
            if not pend:
                if nxt[0] >= len(order) or not free:
                    return
                if first[order[nxt[0]]] > m + look:
                    return
                start_key()
            if len(A.lg) >= maxout and not force:
                return
            I(pend.pop(0))
            n -= 1

    issue(maxout, -1)
    for m, (em, keys) in enumerate(mf):
        while any(k not in reg for k in keys) or (pend and order[nxt[0] - 1] in keys):
            assert pend or free, 'no free slot'
            if not pend:
                start_key()
            I(pend.pop(0))
        em(reg)
        for k in keys:
            if last[k] == m:
                free.append(reg[k])
        for th in fill.get(m, []):
            th(reg)
        issue(rate, m)
    for r in slots:
        P.free(r, 4)


def prologue():
    I('s_cmp_ge_u32 s2, 256')
    I('s_cbranch_scc1 L_end')
    I('s_load_dwordx16 s[4:19], s[0:1], 0')
    I('s_load_dwordx8 s[20:27], s[0:1], 64')
    I('s_load_dwordx4 s[28:31], s[0:1], 96')
    I('s_load_dwordx2 s[32:33], s[0:1], 112')
    if DIAG:
        I('s_memrealtime s[100:101]')
    t = [P.alloc() for _ in range(8)]
    I(f'v_lshrrev_b32 {v(t[0])}, 6, v0')
    I(f'v_and_b32 {v(V_L)}, 63, v0')
    I(f'v_readfirstlane_b32 s{S_W}, {v(t[0])}')
    I(f's_and_b32 s{S_T0}, s2, 7')
    I(f's_lshr_b32 s{S_T1}, s2, 3')
    I(f's_and_b32 s{S_T2}, s{S_T1}, 3')
    I(f's_lshl_b32 s{S_RB}, s{S_T0}, 2')
    I(f's_add_u32 s{S_RB}, s{S_RB}, s{S_T2}')
    I(f's_lshr_b32 s{S_CG}, s{S_T1}, 2')
    I(f's_lshr_b32 s{S_NB}, s{S_CG}, 1')
    I(f's_and_b32 s{S_TH}, s{S_CG}, 1')
    I(f'v_lshlrev_b32 {v(V_L16)}, 4, {v(V_L)}')
    vsr = P.alloc()
    I(f's_lshl_b32 s{S_T0}, s{S_RB}, 6')
    I(f's_lshl_b32 s{S_T1}, s{S_CG}, 3')
    I(f's_add_u32 s{S_T1}, s{S_T1}, s{S_T0}')
    I(f's_lshl_b32 s{S_T2}, s{S_W}, 1')
    I(f's_add_u32 s{S_T3}, s{S_T1}, s{S_T2}')
    I(f's_lshl_b32 s{S_T1}, s{S_T3}, 10')
    I(f'v_add_u32 {v(vsr)}, s{S_T1}, {v(V_L16)}')
    vt, vhi = t[1], t[2]
    I(f's_lshl_b32 s{S_T1}, s{S_TH}, 5')
    I(f's_add_u32 s{S_T0}, s{S_T0}, s{S_T1}')
    I(f'v_and_b32 {v(vt)}, 31, {v(V_L)}')
    I(f'v_add_u32 {v(vt)}, s{S_T0}, {v(vt)}')
    I(f'v_lshrrev_b32 {v(vhi)}, 5, {v(V_L)}')
    I(f's_lshl_b32 s{S_T0}, s{S_NB}, 8')
    I(f's_lshl_b32 s{S_T1}, s{S_W}, 6')
    I(f's_add_u32 s{S_T0}, s{S_T0}, s{S_T1}')
    I(f'v_lshl_add_u32 {v(V_TILE)}, {v(vt)}, 10, s{S_T0}')
    I(f'v_lshl_add_u32 {v(V_TILE)}, {v(vhi)}, 5, {v(V_TILE)}')
    vpo = P.alloc()
    I(f's_lshl_b32 s{S_T1}, s2, 9')
    I(f'v_lshl_add_u32 {v(vpo)}, v0, 1, s{S_T1}')
    vdo = P.alloc()
    I(f's_lshl_b32 s{S_T1}, s2, 2')
    I(f'v_mov_b32 {v(vdo)}, s{S_T1}')
    vwd = P.alloc()
    I(f'v_lshrrev_b32 {v(t[3])}, 3, {v(V_L)}')
    I(f'v_mul_u32_u24 {v(vwd)}, 3072, {v(t[3])}')
    I(f'v_bfe_u32 {v(t[3])}, {v(V_L)}, 1, 2')
    I(f'v_lshrrev_b32 {v(t[4])}, 4, {v(V_L)}')
    I(f'v_xor_b32 {v(t[3])}, {v(t[3])}, {v(t[4])}')
    I(f'v_lshl_add_u32 {v(vwd)}, {v(t[3])}, 5, {v(vwd)}')
    I(f'v_and_b32 {v(t[3])}, 1, {v(V_L)}')
    I(f'v_lshl_add_u32 {v(vwd)}, {v(t[3])}, 4, {v(vwd)}')
    I(f's_lshl_b32 s{S_T1}, s{S_CG}, 7')
    I(f'v_add_u32 {v(vwd)}, s{S_T1}, {v(vwd)}')
    A._wait(lg=0)
    if DIAG:
        I(f's_mov_b32 s{S_STAMP}, s100')
        stamp_names.append('entry')
        nstamp[0] = 1
    for r, p, n in ((R_WS, S_WS, WS_SIZE), (R_WQ, S_WQKV, 512 * 3072), (R_WO, S_WO, 512 * 1024)):
        I(f's_mov_b32 s{r}, s{p}')
        I(f's_mov_b32 s{r + 1}, s{p + 1}')
        I(f's_mov_b32 s{r + 2}, {hex(n)}')
        I(f's_mov_b32 s{r + 3}, 0x20000')
    zero4 = P.alloc(4, 2)
    for i in range(4):
        I(f'v_mov_b32 {v(zero4 + i)}, 0')
    I(f's_lshl_b32 s{S_T1}, s2, 2')
    I(f's_add_u32 s{S_T4}, s{S_T1}, s{S_W}')
    I(f's_cmp_lg_u32 s{S_T4}, 3')
    I('s_cbranch_scc1 L_noinit')
    I(f'v_lshlrev_b32 {v(t[3])}, 8, {v(V_L)}')
    A.cond = True
    I(f'buffer_store_dword {v(zero4)}, {v(t[3])}, {WS}, 0 offen sc1')
    I(f'global_load_dword {v(t[5])}, {v(zero4)}, {s(S_DBG, 2)} sc1')
    A.cond = False
    A.label('L_noinit')
    xs = P.alloc(8, 2)
    xt = P.alloc(8, 2)
    I(f'global_load_dwordx4 {v(xs, 4)}, {v(vsr)}, {s(S_U, 2)}')
    I(f'global_load_dwordx4 {v(xs + 4, 4)}, {v(vsr)}, {s(S_U, 2)} offset:1024')
    I(f'global_load_dwordx4 {v(xt, 4)}, {v(V_TILE)}, {s(S_U, 2)}')
    I(f'global_load_dwordx4 {v(xt + 4, 4)}, {v(V_TILE)}, {s(S_U, 2)} offset:16')
    par = P.alloc(8, 2)
    for i, sp in enumerate((S_ARE, S_AIM, S_BRE, S_BIM, S_CRE, S_CIM)):
        I(f'global_load_ushort {v(par + i)}, {v(vpo)}, {s(sp, 2)}')
    I(f'global_load_dword {v(par + 6)}, {v(vdo)}, {s(S_LDT, 2)}')
    I(f'global_load_dword {v(par + 7)}, {v(vdo)}, {s(S_DSK, 2)}')
    srow = S_T2
    I(f's_mov_b32 s{srow}, s{S_T3}')
    sinit = S_SPIN
    I(f's_mov_b32 s{sinit}, s{S_T4}')
    for th in dma_w(0, L_A, vwd):
        th()
    P.free(vsr), P.free(vpo), P.free(vdo)

    I(f's_mov_b32 s{S_MASK}, 0xffff0000')
    I(f's_mov_b32 s{S_MASK + 1}, 0xffff0000')
    I(f's_mov_b32 s{S_ONES}, 0x3f803f80')
    I(f's_mov_b32 s{S_LN}, {f32(1 / 512)}')
    I(f's_mov_b32 s{S_LN + 1}, {f32(1e-5)}')
    I(f's_mov_b32 s{S_EXP}, {f32(math.log2(math.e))}')
    I(f's_mov_b32 s{S_EXP + 1}, {f32(-1e-6 * math.log2(math.e))}')
    I(f's_mov_b32 s{S_E6}, {f32(1e-6)}')
    I(f's_mov_b32 s{S_E6 + 1}, {f32(1e-6)}')
    for i in range(4):
        I(f'v_mov_b32 {v(V_ONES + i)}, s{S_ONES}')
    vg, va_, x0, x1 = t[4], t[6], t[3], t[7]
    I(f'v_and_b32 {v(va_)}, 15, {v(V_L)}')
    I(f's_lshl_b32 s{S_T0}, s{S_NB}, 19')
    I(f's_lshl_b32 s{S_T1}, s{S_W}, 17')
    I(f's_add_u32 s{S_T0}, s{S_T0}, s{S_T1}')
    I(f'v_lshl_add_u32 {v(V_X2ST)}, {v(vt)}, 2, s{S_T0}')
    I(f'v_lshl_add_u32 {v(V_X2ST)}, {v(vhi)}, 16, {v(V_X2ST)}')
    I(f'v_lshlrev_b32 {v(V_STAT)}, 2, {v(vt)}')
    I(f'v_lshl_add_u32 {v(V_STAT)}, {v(vhi)}, 13, {v(V_STAT)}')
    I(f's_lshl_b32 s{S_T0}, s{S_W}, 11')
    I(f'v_lshl_add_u32 {v(V_CVL)}, {v(va_)}, 6, s{S_T0}')
    I(f'v_lshl_add_u32 {v(V_CVL)}, {v(vg)}, 4, {v(V_CVL)}')
    I(f'v_lshrrev_b32 {v(V_HW)}, 1, {v(V_CVL)}')
    I(f'v_add_u32 {v(V_HW)}, {L_H + 512}, {v(V_HW)}')
    I(f's_lshr_b32 s{S_T0}, s{S_W}, 1')
    I(f's_and_b32 s{S_T1}, s{S_W}, 1')
    I(f's_mul_i32 s{S_T3}, s{S_T0}, 4608')
    I(f's_lshl_b32 s{S_T4}, s{S_T1}, 8')
    I(f's_sub_u32 s{S_T3}, s{S_T3}, s{S_T4}')
    I(f's_add_u32 s{S_T3}, s{S_T3}, {L_H + 512 - 32 - 192}')
    I(f'v_lshl_add_u32 {v(V_CB)}, {v(va_)}, 5, s{S_T3}')
    I(f'v_lshl_add_u32 {v(V_CB)}, {v(vg)}, 4, {v(V_CB)}')
    I(f's_mul_i32 s{S_T3}, s{S_T0}, 8320')
    I(f's_sub_u32 s{S_T3}, s{S_T3}, s{S_T4}')
    I(f's_add_u32 s{S_T3}, s{S_T3}, {L_RK + 4160 + 4 * (1015 - 176)}')
    I(f'v_and_b32 {v(x0)}, 1, {v(va_)}')
    I(f'v_mul_u32_u24 {v(x0)}, 4160, {v(x0)}')
    I(f'v_lshrrev_b32 {v(x1)}, 1, {v(va_)}')
    I(f'v_lshl_add_u32 {v(x0)}, {v(x1)}, 2, {v(x0)}')
    I(f'v_lshl_add_u32 {v(x1)}, {v(vg)}, 4, s{S_T3}')
    I(f'v_sub_u32 {v(V_CA[0])}, {v(x1)}, {v(x0)}')
    for i in range(1, 4):
        I(f'v_subrev_u32 {v(V_CA[i])}, {1024 * i}, {v(V_CA[0])}')
    I(f'v_add_u32 {v(V_OFR)}, {L_B}, {v(V_L16)}')
    I(f's_lshl_b32 s{S_T3}, s{S_W}, 13')
    I(f'v_add_u32 {v(V_EXW)}, s{S_T3}, {v(V_OFR)}')
    I(f's_lshl_b32 s{S_T3}, s{S_W}, 11')
    I(f'v_add_u32 {v(V_EXR)}, s{S_T3}, {v(V_OFR)}')
    I(f's_lshl_b32 s{S_T3}, s{S_W}, 19')
    I(f's_lshl_b32 s{S_T4}, s2, 8')
    I(f's_add_u32 s{S_T3}, s{S_T3}, s{S_T4}')
    I(f'v_lshrrev_b32 {v(x0)}, 2, {v(va_)}')
    I(f'v_lshl_add_u32 {v(V_XTST)}, {v(x0)}, 16, s{S_T3}')
    I(f'v_xor_b32 {v(x0)}, s2, {v(va_)}')
    I(f'v_and_b32 {v(x0)}, 3, {v(x0)}')
    I(f'v_lshl_add_u32 {v(V_XTST)}, {v(x0)}, 5, {v(V_XTST)}')
    I(f'v_lshl_add_u32 {v(V_XTST)}, {v(vg)}, 3, {v(V_XTST)}')
    I(f's_lshl_b32 s{S_T3}, s{S_RB}, 16')
    I(f's_lshl_b32 s{S_T4}, s{S_W}, 12')
    I(f's_add_u32 s{S_T3}, s{S_T3}, s{S_T4}')
    I(f'v_add_u32 {v(V_XTLD)}, s{S_T3}, {v(V_L16)}')
    I(f'v_lshrrev_b32 {v(x0)}, 2, {v(V_L)}')
    I(f'v_lshlrev_b32 {v(V_XT[0])}, 7, {v(x0)}')
    I(f'v_bfe_u32 {v(x0)}, {v(V_L)}, 3, 2')
    I(f'v_xor_b32 {v(x0)}, s{S_W}, {v(x0)}')
    I(f'v_lshl_add_u32 {v(V_XT[0])}, {v(x0)}, 5, {v(V_XT[0])}')
    I(f'v_and_b32 {v(x0)}, 3, {v(V_L)}')
    I(f'v_lshl_add_u32 {v(V_XT[0])}, {v(x0)}, 3, {v(V_XT[0])}')
    for i in range(1, 4):
        I(f'v_xor_b32 {v(V_XT[i])}, {32 * i}, {v(V_XT[0])}')
    I(f's_lshl_b32 s{S_T4}, s{S_CG}, 2')
    I(f's_add_u32 s{S_T4}, s{S_T4}, s{S_W}')
    I(f's_lshl_b32 s{S_T4}, s{S_T4}, 10')
    I(f's_lshl_b32 s{S_T3}, s{S_RB}, 16')
    I(f's_add_u32 s{S_T3}, s{S_T3}, s{S_T4}')
    I(f'v_lshl_add_u32 {v(V_PQST)}, {v(va_)}, 5, s{S_T3}')
    I(f'v_lshl_add_u32 {v(V_PQST)}, {v(vg)}, 3, {v(V_PQST)}')
    I(f'v_lshl_add_u32 {v(V_KVST)}, {v(V_L)}, 2, s{S_T4}')
    I(f's_lshl_b32 s{S_T3}, s{S_RB}, 1')
    I(f's_add_u32 s{S_T3}, s{S_T3}, s{S_TH}')
    I(f's_lshl_b32 s{S_T3}, s{S_T3}, 15')
    I(f's_lshl_b32 s{S_T4}, s{S_W}, 13')
    I(f's_add_u32 s{S_T3}, s{S_T3}, s{S_T4}')
    I(f'v_and_b32 {v(x0)}, 31, {v(V_L)}')
    I(f'v_lshl_add_u32 {v(V_PQLD)}, {v(x0)}, 5, s{S_T3}')
    I(f'v_lshl_add_u32 {v(V_PQLD)}, {v(vhi)}, 4, {v(V_PQLD)}')
    I(f'v_and_b32 {v(x0)}, 1, {v(vg)}')
    I(f'v_lshl_add_u32 {v(V_KVLD)}, {v(x0)}, 10, s{S_T4}')
    I(f'v_lshl_add_u32 {v(V_KVLD)}, {v(vhi)}, 5, {v(V_KVLD)}')
    I(f'v_and_b32 {v(x0)}, 3, {v(va_)}')
    I(f'v_lshl_add_u32 {v(V_KVLD)}, {v(x0)}, 8, {v(V_KVLD)}')
    I(f'v_bfe_u32 {v(x1)}, {v(va_)}, 2, 1')
    I(f'v_lshl_add_u32 {v(V_KVLD)}, {v(x1)}, 7, {v(V_KVLD)}')
    I(f'v_lshrrev_b32 {v(x1)}, 3, {v(va_)}')
    I(f'v_lshl_add_u32 {v(V_KVLD)}, {v(x1)}, 6, {v(V_KVLD)}')
    I(f's_lshl_b32 s{S_T3}, s{S_W}, 9')
    I(f'v_lshl_add_u32 {v(V_ZLD)}, {v(x1)}, 8, s{S_T3}')
    I(f'v_lshl_add_u32 {v(V_ZLD)}, {v(x0)}, 6, {v(V_ZLD)}')
    I(f'v_lshl_add_u32 {v(V_ZLD)}, {v(vhi)}, 5, {v(V_ZLD)}')
    I(f's_lshl_b32 s{S_T3}, s{S_NB}, 14')
    I(f's_lshl_b32 s{S_T4}, s{S_W}, 12')
    I(f's_add_u32 s{S_T3}, s{S_T3}, s{S_T4}')
    I(f's_lshl_b32 s{S_T4}, s{S_TH}, 6')
    I(f's_add_u32 s{S_T3}, s{S_T3}, s{S_T4}')
    I(f'v_lshl_add_u32 {v(V_RES[0])}, {v(vhi)}, 11, s{S_T3}')
    I(f'v_lshl_add_u32 {v(V_RES[0])}, {v(x0)}, 3, {v(V_RES[0])}')
    I(f'v_lshrrev_b32 {v(x0)}, 2, {v(va_)}')
    I(f'v_lshl_add_u32 {v(V_RES[0])}, {v(x0)}, 7, {v(V_RES[0])}')
    I(f'v_xor_b32 {v(x1)}, {v(x1)}, {v(vg)}')
    I(f'v_and_b32 {v(x1)}, 1, {v(x1)}')
    I(f'v_lshl_add_u32 {v(V_RES[0])}, {v(x1)}, 5, {v(V_RES[0])}')
    I(f'v_xor_b32 {v(V_RES[1])}, 64, {v(V_RES[0])}')
    I(f's_lshl_b32 s{S_T3}, s{S_W}, 6')
    I(f's_add_u32 s{S_T3}, s{S_T3}, {L_STAT}')
    I(f'v_lshl_add_u32 {v(V_SW)}, {v(va_)}, 2, s{S_T3}')
    I(f'v_lshl_add_u32 {v(V_SR4)}, {v(vg)}, 4, s{S_T3}')
    I(f'v_mov_b32 {v(V_SR1)}, {v(V_SW)}')
    I(f's_and_b32 s{S_T3}, s2, 15')
    I(f's_lshl_b32 s{S_T3}, s{S_T3}, 8')
    I(f'v_lshl_add_u32 {v(V_ARR)}, {v(V_L)}, 12, s{S_T3}')
    I(f's_and_b32 s{S_T3}, s2, 3')
    I(f's_lshl_b32 s{S_T3}, s{S_T3}, 12')
    I(f'v_lshl_add_u32 {v(V_POLL)}, {v(va_)}, 8, s{S_T3}')
    vod, vor = P.alloc(), P.alloc()
    I(f's_lshl_b32 s{S_T3}, s{S_NB}, 8')
    I(f'v_lshl_add_u32 {v(vod)}, {v(vg)}, 10, s{S_T3}')
    I(f'v_xor_b32 {v(x1)}, {v(x0)}, {v(vg)}')
    I(f'v_lshl_add_u32 {v(vod)}, {v(x1)}, 6, {v(vod)}')
    I(f'v_and_b32 {v(x1)}, 3, {v(V_L)}')
    I(f'v_lshl_add_u32 {v(vod)}, {v(x1)}, 4, {v(vod)}')
    I(f'v_lshlrev_b32 {v(vor)}, 11, {v(vhi)}')
    I(f'v_lshl_add_u32 {v(vor)}, {v(x0)}, 8, {v(vor)}')
    I(f'v_xor_b32 {v(x0)}, s{S_W}, {v(x0)}')
    I(f'v_lshl_add_u32 {v(vor)}, {v(x0)}, 6, {v(vor)}')
    I(f'v_and_b32 {v(x0)}, 1, {v(V_L)}')
    I(f'v_lshl_add_u32 {v(vor)}, {v(x0)}, 5, {v(vor)}')
    I(f'v_and_b32 {v(x0)}, 1, {v(vg)}')
    I(f'v_lshl_add_u32 {v(vor)}, {v(x0)}, 4, {v(vor)}')
    I(f'v_bfe_u32 {v(x0)}, {v(V_L)}, 1, 1')
    I(f'v_lshl_add_u32 {v(vor)}, {v(x0)}, 3, {v(vor)}')
    I(f'v_add_u32 {v(vor)}, {L_B}, {v(vor)}')
    kg = dict(w=P.alloc(), a0=P.alloc(), a1=P.alloc(), g=P.alloc(), t1=P.alloc(), t2=P.alloc(), t3=P.alloc(), rk=P.alloc())
    I(f's_mul_i32 s{S_T3}, s{S_T0}, {KG_CH}')
    I(f's_add_u32 s{S_T3}, s{S_T3}, {L_B}')
    I(f'v_and_b32 {v(x0)}, 127, v0')
    I(f'v_lshl_add_u32 {v(kg["w"])}, {v(x0)}, 2, s{S_T3}')
    I(f'v_lshl_add_u32 {v(x1)}, {v(vg)}, 4, s{S_T3}')
    I(f'v_mul_u32_u24 {v(kg["a0"])}, {KG_ROW}, {v(va_)}')
    I(f'v_add_u32 {v(kg["a0"])}, {v(kg["a0"])}, {v(x1)}')
    I(f's_mul_i32 s{S_T4}, s{S_T1}, {16 * KG_ROW}')
    I(f'v_add_u32 {v(kg["g"])}, s{S_T4}, {v(kg["a0"])}')
    I(f'v_min_u32 {v(kg["a1"])}, 4, {v(va_)}')
    I(f'v_mul_u32_u24 {v(kg["a1"])}, {KG_ROW}, {v(kg["a1"])}')
    I(f'v_add_u32 {v(kg["a1"])}, {v(kg["a1"])}, {v(x1)}')
    I(f's_mul_i32 s{S_T3}, s{S_T0}, 4608')
    I(f's_add_u32 s{S_T3}, s{S_T3}, {L_H + 512}')
    vj = t[5]
    I(f's_lshl_b32 s{S_T4}, s{S_T1}, 4')
    vj = P.alloc()
    I(f'v_add_u32 {v(vj)}, s{S_T4}, {v(va_)}')
    I(f'v_lshl_add_u32 {v(kg["t3"])}, {v(vg)}, 7, {v(vj)}')
    I(f'v_lshl_add_u32 {v(kg["t3"])}, {v(kg["t3"])}, 2, s{S_T3}')
    I(f'v_max_u32 {v(x1)}, 1, {v(vg)}')
    I(f'v_sub_u32 {v(x1)}, 6, {v(x1)}')
    I(f'v_lshlrev_b32 {v(kg["t1"])}, {v(x1)}, {v(vj)}')
    I(f'v_lshlrev_b32 {v(x1)}, 4, {v(vg)}')
    I(f'v_lshlrev_b32 {v(vj)}, 9, {v(vg)}')
    I(f'v_cmp_lt_u32 vcc, 1, {v(vg)}')
    I(f'v_cndmask_b32 {v(x1)}, {v(x1)}, {v(vj)}, vcc')
    I(f'v_add3_u32 {v(kg["t1"])}, {v(kg["t1"])}, {v(x1)}, s{S_T3}')
    I(f'v_cmp_eq_u32 vcc, 3, {v(vg)}')
    I(f'v_mov_b32 {v(vj)}, 256')
    I(f'v_cndmask_b32 {v(x1)}, 8, {v(vj)}, vcc')
    I(f'v_add_u32 {v(kg["t2"])}, {v(kg["t1"])}, {v(x1)}')
    gi = P.alloc(18, 2)
    I(f'v_lshlrev_b32 {v(x1)}, 4, {v(x0)}')
    I(f'v_sub_u32 {v(x1)}, 2047, {v(x1)}')
    fl = P.alloc(2, 2)
    lg_ = P.alloc(2, 2)
    I(f's_movk_i32 s{S_T4}, 128')
    for u in range(0, 18, 2):
        n = 2 if u < 16 else 1
        for q in range(n):
            I(f'v_subrev_u32 {v(lg_ + q)}, {u + q}, {v(x1)}')
            I(f'v_cvt_f32_i32 {v(fl + q)}, {v(lg_ + q)}')
        I(f'v_cvt_pk_bf16_f32 {v(vj)}, {v(fl)}, {v(fl + 1)}')
        for q in range(n):
            I(f'v_bfe_i32 {v(fl + q)}, {v(vj)}, {16 * q}, 16')
            I(f'v_subrev_u32 {v(fl + q)}, {0x4280}, {v(fl + q)}')
            I(f'v_med3_i32 {v(fl + q)}, {v(fl + q)}, {v(lg_ + q)}, s{S_T4}')
            I(f'v_lshl_add_u32 {v(gi + u + q)}, {v(fl + q)}, 2, s{S_T3}')
    P.free(fl, 2), P.free(lg_, 2), P.free(vj)
    I(f's_mul_i32 s{S_T3}, s{S_T0}, 8320')
    I(f's_add_u32 s{S_T3}, s{S_T3}, {L_RK}')
    I(f'v_lshl_add_u32 {v(kg["rk"])}, {v(x0)}, 5, s{S_T3}')
    I(f's_mul_i32 s{S_T3}, s{S_T0}, 4608')
    I(f's_add_u32 s{S_T3}, s{S_T3}, {L_H}')
    I(f'v_lshl_add_u32 {v(x1)}, {v(x0)}, 2, s{S_T3}')
    I(f'ds_write_b32 {v(x1)}, {v(zero4)}')
    I(f's_mul_i32 s{S_T3}, s{S_W}, 4160')
    I(f's_add_u32 s{S_T3}, s{S_T3}, {L_RK + 4096}')
    I(f'v_lshl_add_u32 {v(x1)}, {v(va_)}, 2, s{S_T3}')
    I(f'ds_write_b32 {v(x1)}, {v(zero4)}')

    st = P.alloc(4, 2)
    for r in range(2):
        for i in range(4):
            c = '0' if i == 0 else v(st + r)
            I(f'v_dot2_f32_bf16 {v(st + r)}, {v(xs + 4 * r + i)}, s{S_ONES}, {c}')
            c = '0' if i == 0 else v(st + 2 + r)
            I(f'v_dot2_f32_bf16 {v(st + 2 + r)}, {v(xs + 4 * r + i)}, {v(xs + 4 * r + i)}, {c}')
    I(f's_cmp_lg_u32 s{sinit}, 3')
    I('s_cbranch_scc1 L_noflag')
    I(f'v_mov_b32 {v(x1)}, 1')
    A.cond = True
    I(f'global_store_dword {v(zero4)}, {v(x1)}, {s(S_DBG, 2)} sc1')
    A.cond = False
    A.label('L_noflag')
    I('s_nop 1')
    I(f'v_permlane32_swap_b32 {v(st)}, {v(st + 2)}')
    I(f'v_permlane32_swap_b32 {v(st + 1)}, {v(st + 3)}')
    I(f'v_add_f32 {v(st)}, {v(st)}, {v(st + 2)}')
    I(f'v_add_f32 {v(st + 1)}, {v(st + 1)}, {v(st + 3)}')
    I(f'v_permlane16_swap_b32 {v(st)}, {v(st + 1)}')
    I(f'v_add_f32 {v(st)}, {v(st)}, {v(st + 1)}')
    for sh in (8, 4, 2, 1):
        I(f'v_add_f32_dpp {v(st)}, {v(st)}, {v(st)} row_ror:{sh} row_mask:0xf bank_mask:0xf')
    I(f'v_and_b32 {v(x0)}, 1, {v(vg)}')
    I(f'v_add_u32 {v(x0)}, s{srow}, {v(x0)}')
    I(f'v_lshlrev_b32 {v(x0)}, 2, {v(x0)}')
    I(f'v_lshl_add_u32 {v(x0)}, {v(vhi)}, 13, {v(x0)}')
    I(f's_mov_b32 s{S_T0}, {hex(WS_ST[0])}')
    I('s_mov_b32 exec_lo, 0x00010001')
    I('s_mov_b32 exec_hi, 0x00010001')
    I(f'buffer_store_dword {v(st)}, {v(x0)}, {WS}, s{S_T0} offen sc1')
    I('s_mov_b64 exec, -1')
    x2store(0, xt)
    I(f's_lshl_b32 s{S_T0}, s{sinit}, 7')
    I(f's_add_u32 s{S_T0}, s{S_T0}, {hex(WS_ZERO)}')
    I('s_mov_b64 exec, 0xff')
    I(f'buffer_store_dwordx4 {v(zero4, 4)}, {v(V_L16)}, {WS}, s{S_T0} offen sc1')
    I('s_mov_b64 exec, -1')
    P.free(st, 4), P.free(xs, 8), P.free(xt, 8)
    for r in t:
        P.free(r)
    stamp('p1_stored')
    A.wait_vm()
    global_arrive(first=True)
    P.free(zero4, 4)
    stamp('arr1')
    consume_w(0)
    A.barrier()
    for th in dma_w(1, L_A, vwd):
        th()
    stamp('wq_done')
    kgen(par, kg, gi)
    stamp('kgen_done')
    A.wait_vm()
    A.barrier()
    consume_w(1)
    return vwd, vod, vor


def x2store(layer, d):
    I(f's_mov_b32 s{S_T0}, {hex(WS_X2[layer])}')
    for i in range(8):
        I(f'buffer_store_dword {v(d + i)}, {v(V_X2ST)}, {WS}, s{S_T0} offen sc1')
        if i < 7:
            I(f's_add_u32 s{S_T0}, s{S_T0}, 8192')


def kgen(par, kg, gi):
    LOG2E = math.log2(math.e)
    I(f'v_readfirstlane_b32 s{S_T0}, {v(par + 7)}')
    I(f'v_readfirstlane_b32 s{S_T1}, {v(par + 6)}')
    I(f's_lshl_b32 s{S_D}, s{S_T0}, 16')
    I(f's_and_b32 s{S_D + 1}, s{S_T0}, 0xffff0000')
    I(f's_lshl_b32 s{S_T0}, s{S_T1}, 16')
    I(f's_and_b32 s{S_T1}, s{S_T1}, 0xffff0000')
    I(f's_cmp_ge_u32 s{S_W}, 2')
    I(f's_cselect_b32 s{S_T0}, s{S_T1}, s{S_T0}')
    dt = par + 6
    I(f'v_mov_b32 {v(dt)}, s{S_T0}')
    I(f'v_mul_f32 {v(dt)}, s{S_EXP}, {v(dt)}')
    I(f'v_exp_f32 {v(dt)}, {v(dt)}')
    for i in range(6):
        I(f'v_lshlrev_b32 {v(par + i)}, 16, {v(par + i)}')
    I(f'v_cvt_pk_bf16_f32 {v(dt)}, {v(dt)}, {v(dt)}')
    I(f'v_and_b32 {v(dt)}, 0xffff0000, {v(dt)}')
    z, Bc, Cc = par, par + 2, par + 4
    pk('mul', v(z, 2), (v(z, 2), 'p'), bc(dt))
    pk('mul', v(Bc, 2), (v(Bc, 2), 'p'), bc(dt))
    tmp = P.alloc(2, 2)
    CB = P.alloc(2, 2)
    cmul(CB, Cc, Bc, tmp)
    E = {}
    for rho in (1, 8, 64, 256):
        e = P.alloc(2, 2)
        E[rho] = e
        I(f'v_mul_f32 {v(tmp)}, {f32(rho * LOG2E)}, {v(z)}')
        I(f'v_mul_f32 {v(tmp + 1)}, {f32(rho / (2 * math.pi))}, {v(z + 1)}')
        I(f'v_exp_f32 {v(tmp)}, {v(tmp)}')
        I(f'v_fract_f32 {v(tmp + 1)}, {v(tmp + 1)}')
        I(f'v_cos_f32 {v(e)}, {v(tmp + 1)}')
        I(f'v_sin_f32 {v(e + 1)}, {v(tmp + 1)}')
        pk('mul', v(e, 2), (v(e, 2), 'p'), bc(tmp))
    pkr = [P.alloc(), P.alloc()]
    cnt = [0]

    def put(row, r, neg):
        d = pkr[cnt[0] & 1]
        cnt[0] += 1
        I(f'v_cvt_pk_bf16_f32 {v(d)}, {v(r)}, {"-" if neg else ""}{v(r + 1)}')
        I(f'ds_write_b32 {v(kg["w"])}, {v(d)} offset:{row * KG_ROW}')
    for rho, x, y in ((128, 64, 64), (192, 128, 64), (2, 1, 1), (4, 2, 2)):
        E[rho] = P.alloc(2, 2)
        cmul(E[rho], E[x], E[y], tmp)
    cur = P.alloc(2, 2)
    o = P.alloc(2, 2)
    I(f'v_mov_b32 {v(pkr[0])}, 0x3f80')
    I(f'ds_write_b32 {v(kg["w"])}, {v(pkr[0])}')
    cnt[0] = 1
    for m in (1, 2, 3):
        put(8 * m, E[64 * m], False)
    for j in range(1, 8):
        if j == 1:
            g = E[8]
        elif j == 2:
            cmul(cur, E[8], E[8], tmp)
            g = cur
        else:
            cmul(cur, cur, E[8], tmp)
        put(j, g, False)
        for m in (1, 2, 3):
            cmul(o, g, E[64 * m], tmp)
            put(8 * m + j, o, False)
    put(32, CB, True)
    for j in range(1, 8):
        cmul(cur, CB if j == 1 else cur, E[1], tmp)
        put(32 + j, cur, True)
    U = CB
    cmul(U, U, E[256], tmp)
    put(40, U, True)
    for j in range(1, 4):
        cmul(cur, U if j == 1 else cur, E[2], tmp)
        put(40 + j, cur, True)
    for j in range(2):
        cmul(U, U, E[256], tmp)
        put(44 + 2 * j, U, True)
        cmul(cur, U, E[4], tmp)
        put(45 + 2 * j, cur, True)
    for j in range(5):
        cmul(U, U, E[256], tmp)
        put(48 + j, U, True)
    for r in list(E.values()) + [tmp, CB, cur, o]:
        P.free(r, 2)
    P.free(pkr[0]), P.free(pkr[1])
    P.free(par, 8)
    A.barrier()
    d0, d1 = P.alloc(4, 2), P.alloc(4, 2)
    mf = []
    for st in range(8):
        for tl, d in ((0, d0), (1, d1)):
            def em(reg, st=st, tl=tl, d=d):
                c = '0' if st == 0 else v(d, 4)
                I(f'v_mfma_f32_16x16x32_bf16 {v(d, 4)}, {v(reg[("a", tl, st)], 4)}, {v(reg[("g", st)], 4)}, {c}')
            mf.append((em, [('a', tl, st), ('g', st)]))

    def loader(k, r):
        if k[0] == 'g':
            return [f'ds_read_b128 {v(r, 4)}, {v(kg["g"])} offset:{64 * k[1]}']
        base = kg['a0'] if k[1] == 0 else kg['a1']
        return [f'ds_read_b128 {v(r, 4)}, {v(base)} offset:{(32 + 16 * k[1]) * KG_ROW + 64 * k[2]}']
    stream(mf, loader, 12, 8)
    I(f'ds_write_b64 {v(kg["t1"])}, {v(d0, 2)}')
    I(f'ds_write_b64 {v(kg["t2"])}, {v(d0 + 2, 2)}')
    for r in range(4):
        I(f'ds_write_b32 {v(kg["t3"])}, {v(d1 + r)} offset:{2048 + 128 * r}')
    P.free(d0, 4), P.free(d1, 4)
    A.barrier()
    for u in range(17):
        I(f'ds_read_b32 {v(gi + u)}, {v(gi + u)}')
    c = P.alloc(16, 2)
    for cp in range(2):
        for m in range(8):
            I(f'v_cvt_pk_bf16_f32 {v(c + 8 * cp + m)}, {v(gi + 2 * m + cp)}, {v(gi + 2 * m + cp + 1)}')
        for hq in range(2):
            I(f'ds_write_b128 {v(kg["rk"])}, {v(c + 8 * cp + 4 * hq, 4)} offset:{4160 * cp + 16 * hq}')
    P.free(c, 16), P.free(gi, 18)
    for r in kg.values():
        P.free(r)


def conv(layer, fillers):
    xd = P.alloc(8, 2)
    sm = P.alloc(8, 2)
    sq = P.alloc(8, 2)
    I(f's_lshl_b32 s{S_T0}, s2, 13')
    I(f's_add_u32 s{S_T0}, s{S_T0}, {hex(WS_X2[layer])}')
    I(f's_mov_b32 s{S_T1}, {hex(WS_ST[layer])}')
    I(f's_mov_b32 s{S_T2}, {hex(WS_ST[layer] + 8192)}')
    for i in range(2):
        I(f'buffer_load_dwordx4 {v(sm + 4 * i, 4)}, {v(V_CVL)}, {WS}, s{S_T1} offen offset:{1024 * i} sc1')
        I(f'buffer_load_dwordx4 {v(sq + 4 * i, 4)}, {v(V_CVL)}, {WS}, s{S_T2} offen offset:{1024 * i} sc1')
        I(f'buffer_load_dwordx4 {v(xd + 4 * i, 4)}, {v(V_CVL)}, {WS}, s{S_T0} offen offset:{1024 * i} sc1')
    base = P.alloc(16, 2)
    hh = P.alloc(4, 2)
    hp = P.alloc(4, 2)
    LN = s(S_LN, 2)
    for i in range(2):
        m, q, x = sm + 4 * i, sq + 4 * i, xd + 4 * i
        for j in (0, 2):
            pk('mul', v(m + j, 2), (v(m + j, 2), 'p'), (LN, 'l'))
        for j in (0, 2):
            pk('fma', v(q + j, 2), (v(q + j, 2), 'p'), (LN, 'l'), (LN, 'h'))
        for j in (0, 2):
            pk('fma', v(q + j, 2), (v(m + j, 2), 'p', 'b'), (v(m + j, 2), 'p'), (v(q + j, 2), 'p'))
        for j in range(4):
            I(f'v_max_f32 {v(q + j)}, s{S_LN + 1}, {v(q + j)}')
        for j in range(4):
            I(f'v_rsq_f32 {v(q + j)}, {v(q + j)}')
        for c in range(2):
            b = base + 8 * i + 4 * c
            for j in range(4):
                if c == 0:
                    I(f'v_lshlrev_b32 {v(b + j)}, 16, {v(x + j)}')
                else:
                    I(f'v_and_b32 {v(b + j)}, 0xffff0000, {v(x + j)}')
            for j in (0, 2):
                pk('add', v(hh + j, 2), (v(b + j, 2), 'p'), (v(m + j, 2), 'p', 'b'))
            for j in (0, 2):
                pk('mul', v(hh + j, 2), (v(hh + j, 2), 'p'), (v(q + j, 2), 'p'))
            for j in (0, 2):
                I(f'v_cvt_pk_bf16_f32 {v(hp + 2 * c + j // 2)}, {v(hh + j)}, {v(hh + j + 1)}')
            I(f'ds_write_b64 {v(V_HW)}, {v(hp + 2 * c, 2)} offset:{4608 * c + 512 * i}')
            for j in (0, 2):
                pk('fma', v(b + j, 2), (v(hh + j, 2), 'p'), (s(S_D, 2), 'h' if c else 'l'), (v(b + j, 2), 'p'))
    P.free(xd, 8), P.free(sm, 8), P.free(sq, 8), P.free(hh, 4), P.free(hp, 4)
    A.barrier()
    stamp(f'conv{layer}_h')
    acc = P.alloc(32, 2)
    mf = []
    seen = set()
    fin = {}
    for cc in range(4):
        if cc < 3:
            seq = [(p, n) for p in range(7, -1, -1) for n in range(p, 8)]
        else:
            seq = [(p, n) for n in range(8) for p in range(n + 1)]
        for (p, n) in seq:
            def em(reg, cc=cc, p=p, n=n, fst=(n not in seen)):
                d = v(acc + 4 * n, 4)
                I(f'v_mfma_f32_16x16x32_bf16 {d}, {v(reg[("A", cc, p)], 4)}, {v(reg[("B", cc, n - p)], 4)}, {"0" if fst else d}')
            seen.add(n)
            mf.append((em, [('A', cc, p), ('B', cc, n - p)]))
            fin[n] = len(mf) - 1

    def loader(k, r):
        _, cc, x = k
        if k[0] == 'B':
            return [f'ds_read_b128 {v(r, 4)}, {v(V_CB)} offset:{512 * x + 64 * (3 - cc)}']
        o = 128 * (1 - (x & 1)) + 16 * (3 - cc)
        return [f'ds_read2_b32 {v(r, 2)}, {v(V_CA[x >> 1])} offset0:{o} offset1:{o + 1}',
                f'ds_read2_b32 {v(r + 2, 2)}, {v(V_CA[x >> 1])} offset0:{o + 2} offset1:{o + 3}']
    fill = {}
    for n in range(8):
        at = min(fin[n] + 7, len(mf) - 1)
        fill.setdefault(at, []).append(lambda reg, n=n: I(f'ds_write_b128 {v(V_EXW)}, {v(acc + 4 * n, 4)} offset:{1024 * n}'))
    for i, th in enumerate(fillers):
        fill.setdefault(4 + 6 * i, []).append(lambda reg, th=th: th())
    stream(mf, loader, 20, 14, fill=fill)
    P.free(acc, 32)
    A.barrier()
    stamp(f'conv{layer}_mm')
    ex = P.alloc(32, 2)
    for i in range(2):
        for u in range(4):
            I(f'ds_read_b128 {v(ex + 16 * i + 4 * u, 4)}, {v(V_EXR)} offset:{8192 * u + 1024 * i}')
    I(f's_mov_b32 s{S_T0}, {hex(WS_XT[layer])}')
    I(f's_mov_b32 s{S_T1}, {hex(WS_XT[layer] + 262144)}')
    for i in range(2):
        for c in range(2):
            b = base + 8 * i + 4 * c
            e = ex + 16 * i + 8 * c
            for j in (0, 2):
                pk('add', v(b + j, 2), (v(b + j, 2), 'p'), (v(e + j, 2), 'p'))
            for j in (0, 2):
                pk('add', v(b + j, 2), (v(b + j, 2), 'p'), (v(e + 4 + j, 2), 'p'))
            for j in (0, 2):
                I(f'v_cvt_pk_bf16_f32 {v(e + j // 2)}, {v(b + j)}, {v(b + j + 1)}')
            I(f'buffer_store_dwordx2 {v(e, 2)}, {v(V_XTST)}, {WS}, s{S_T0 + i} offen offset:{128 * c} sc1')
    P.free(ex, 32), P.free(base, 16)


def phi(x, tmp):
    EX = s(S_EXP, 2)
    for j in (0, 2):
        pk('fma', v(tmp + j, 2), (v(x + j, 2), 'p'), (EX, 'l'), (EX, 'h'))
    for j in range(4):
        I(f'v_exp_f32_e64 {v(tmp + j)}, {v(tmp + j)} clamp')
    for j in range(4):
        I(f'v_max_f32 {v(x + j)}, s{S_E6}, {v(x + j)}')
    for j in (0, 2):
        pk('add', v(x + j, 2), (v(x + j, 2), 'p'), (v(tmp + j, 2), 'p'))


def p3(layer, after_dma, fillers):
    for ck in range(4):
        I(f's_mov_b32 s{S_T0}, {hex(WS_XT[layer] + ck * 16384)}')
        if ck == 0:
            I(f's_lshl_b32 m0, s{S_W}, 12')
        else:
            I('s_add_u32 m0, m0, 16384')
        for j in range(4):
            I(f'buffer_load_dwordx4 {v(V_XTLD)}, {WS}, s{S_T0} offen offset:{1024 * j} sc1 lds', tag=f'xt{ck}')
    after_dma()
    acc = P.alloc(48, 2)
    ss = P.alloc(4, 2)
    mf = []
    fill = {}
    for st in range(16):
        for i in range(4):
            for y in range(3):
                def em(reg, st=st, i=i, y=y):
                    d = v(acc + 16 * y + 4 * i, 4)
                    c = '0' if st == 0 else d
                    x = v(reg[(st, i)], 4)
                    if y == 0:
                        I(f'v_mfma_f32_16x16x32_bf16 {d}, {wq_reg(y, st)}, {x}, {c}')
                    else:
                        I(f'v_mfma_f32_16x16x32_bf16 {d}, {x}, {wq_reg(y, st)}, {c}')
                keys = [(st, i)]
                if i in (1, 2):
                    keys.append((st, 0))
                mf.append((em, keys))
        for j in range(8):
            def dot(reg, st=st, j=j):
                x = v(reg[(st, 0)] + j // 2)
                d = v(ss + (j & 1))
                c = '0' if (st == 0 and j < 2) else d
                I(f'v_dot2_f32_bf16 {d}, {x}, {x if j & 1 else s(S_ONES)}, {c}')
            fill.setdefault(12 * st + j, []).append(dot)
    for i, th in enumerate(fillers):
        fill.setdefault(60 + 8 * i, []).append(lambda reg, th=th: th())

    def loader(k, r):
        st, i = k
        return [f'ds_read_b64_tr_b16 {v(r + 2 * z, 2)}, {v(V_XT[i])} offset:{4096 * st + 2048 * z}' for z in range(2)]

    def mkgate(ck):
        def g():
            A.wait_vm(f'xt{ck}')
            A.barrier(lg=(ck == 0))
            if ck == 0:
                stamp(f'p3_{layer}_c0')
        return g
    gate = {(4 * ck, 0): mkgate(ck) for ck in range(4)}
    stream(mf, loader, 10, 14, fill=fill, gate=gate, rate=1)
    stamp(f'p3_{layer}_mm')
    for r in (0, 1):
        I(f'v_mov_b32 {v(ss + 2 + r)}, {v(ss + r)}')
    for r in (0, 1):
        I(f'v_permlane32_swap_b32 {v(ss + r)}, {v(ss + 2 + r)}')
    pk('add', v(ss, 2), (v(ss, 2), 'p'), (v(ss + 2, 2), 'p'))
    for r in (0, 1):
        I(f'v_mov_b32 {v(ss + 2 + r)}, {v(ss + r)}')
    for r in (0, 1):
        I(f'v_permlane16_swap_b32 {v(ss + r)}, {v(ss + 2 + r)}')
    pk('add', v(ss, 2), (v(ss, 2), 'p'), (v(ss + 2, 2), 'p'))
    pk('mul', v(ss, 2), (v(ss, 2), 'p'), (s(S_LN, 2), 'l'))
    I(f'v_fma_f32 {v(ss + 1)}, -{v(ss)}, {v(ss)}, {v(ss + 1)}')
    I(f'v_max_f32 {v(ss + 1)}, 0, {v(ss + 1)}')
    I(f'v_add_f32 {v(ss + 1)}, s{S_LN + 1}, {v(ss + 1)}')
    I(f'v_rsq_f32 {v(ss + 1)}, {v(ss + 1)}')
    I(f'v_mul_f32 {v(ss)}, {v(ss)}, {v(ss + 1)}')
    I(f'ds_write2st64_b32 {v(V_SW)}, {v(ss + 1)}, {v(ss)} offset0:0 offset1:1')
    A.barrier()
    P.free(ss, 4)
    r4 = P.alloc(32, 2)
    r1 = P.alloc(8, 2)
    ta = P.alloc(2)
    for i in range(4):
        if i:
            I(f'v_xor_b32 {v(ta)}, {64 * i}, {v(V_SR4)}')
            I(f'v_xor_b32 {v(ta + 1)}, {64 * i}, {v(V_SR1)}')
        a4 = ta if i else V_SR4
        a1 = ta + 1 if i else V_SR1
        I(f'ds_read_b128 {v(r4 + 8 * i, 4)}, {v(a4)}')
        I(f'ds_read_b128 {v(r4 + 8 * i + 4, 4)}, {v(a4)} offset:256')
        I(f'ds_read2st64_b32 {v(r1 + 2 * i, 2)}, {v(a1)} offset0:0 offset1:1')
    P.free(ta, 2)
    tmp = P.alloc(4, 2)
    fk = P.alloc(8, 2)
    fv = P.alloc(8, 2)
    E6 = s(S_E6, 2)
    for i in range(4):
        r, rm = r4 + 8 * i, r4 + 8 * i + 4
        k_, v_ = acc + 16 + 4 * i, acc + 32 + 4 * i
        for j in (0, 2):
            pk('fma', v(tmp + j, 2), (v(rm + j, 2), 'p', 'b'), bc(V_CSKV), (E6, 'p'))
        for j in (0, 2):
            pk('fma', v(k_ + j, 2), (v(k_ + j, 2), 'p'), (v(r + j, 2), 'p'), (v(tmp + j, 2), 'p'))
        for j in (0, 2):
            pk('mul', v(v_ + j, 2), (v(v_ + j, 2), 'p'), (v(r + j, 2), 'p'))
        for j in (0, 2):
            pk('fma', v(v_ + j, 2), (v(rm + j, 2), 'p', 'b'), bc(V_CSKV + 1), (v(v_ + j, 2), 'p'))
        phi(k_, tmp)
        for j in (0, 2):
            I(f'v_cvt_pk_bf16_f32 {v(fk + 2 * i + j // 2)}, {v(k_ + j)}, {v(k_ + j + 1)}')
            I(f'v_cvt_pk_bf16_f32 {v(fv + 2 * i + j // 2)}, {v(v_ + j)}, {v(v_ + j + 1)}')
    dkv, dz = r4, r4 + 4
    for hf in range(2):
        I(f'v_mfma_f32_16x16x32_bf16 {v(dkv, 4)}, {v(fv + 4 * hf, 4)}, {v(fk + 4 * hf, 4)}, {v(dkv, 4) if hf else 0}')
        I(f'v_mfma_f32_16x16x32_bf16 {v(dz, 4)}, {v(V_ONES, 4)}, {v(fk + 4 * hf, 4)}, {v(dz, 4) if hf else 0}')

    def qtile(i):
        q_ = acc + 4 * i
        rr = v(r1 + 2 * i, 2)
        for j in (0, 2):
            pk('fma', v(tmp + j, 2), (rr, 'h', 'b'), (v(V_CSQ + j, 2), 'p'), (E6, 'p'))
        for j in (0, 2):
            pk('fma', v(q_ + j, 2), (v(q_ + j, 2), 'p'), (rr, 'l'), (v(tmp + j, 2), 'p'))
        phi(q_, tmp)
        for j in (0, 2):
            I(f'v_cvt_pk_bf16_f32 {v(q_ + j // 2)}, {v(q_ + j)}, {v(q_ + j + 1)}')
        I(f's_xor_b32 s{S_T0}, s{S_W}, {i}')
        I(f's_lshr_b32 s{S_T1}, s{S_T0}, 1')
        I(f's_lshl_b32 s{S_T1}, s{S_T1}, 15')
        I(f's_and_b32 s{S_T0}, s{S_T0}, 1')
        I(f's_lshl_b32 s{S_T0}, s{S_T0}, 9')
        I(f's_add_u32 s{S_T0}, s{S_T0}, s{S_T1}')
        I(f's_add_u32 s{S_T0}, s{S_T0}, {hex(WS_PQ[layer])}')
        I(f'buffer_store_dwordx2 {v(q_, 2)}, {v(V_PQST)}, {WS}, s{S_T0} offen sc1')
    qtile(0)
    I(f's_mov_b32 s{S_T2}, {hex(WS_KV[layer])}')
    for r in range(4):
        I(f'buffer_atomic_add_f32 {v(dkv + r)}, {v(V_KVST)}, {WS}, s{S_T2} offen offset:{256 * r}')
    I(f's_lshl_b32 s{S_T0}, s{S_CG}, 2')
    I(f's_add_u32 s{S_T0}, s{S_T0}, s{S_W}')
    I(f's_mul_i32 s{S_T0}, s{S_T0}, 960')
    I(f's_sub_u32 s{S_T0}, {hex(WS_KV[layer] + 32768)}, s{S_T0}')
    I('s_mov_b64 exec, 0xffff')
    I(f'buffer_atomic_add_f32 {v(dz)}, {v(V_KVST)}, {WS}, s{S_T0} offen')
    I('s_mov_b64 exec, -1')
    for i in range(1, 4):
        qtile(i)
    P.free(r4, 32), P.free(r1, 8), P.free(tmp, 4), P.free(fk, 8), P.free(fv, 8), P.free(acc, 48)


def p4_pre():
    acc = P.alloc(16, 2)
    res = P.alloc(8, 2)
    for j in range(4):
        I(f'ds_read_b64_tr_b16 {v(res + 2 * j, 2)}, {v(V_RES[j & 1])} offset:{512 * j}')
    for j in range(8):
        I(f'v_lshlrev_b32 {v(acc + 2 * j)}, 16, {v(res + j)}')
        I(f'v_and_b32 {v(acc + 2 * j + 1)}, 0xffff0000, {v(res + j)}')
    P.free(res, 8)
    return acc


def p4(layer, acc):
    zf = P.alloc(8, 2)
    kv = P.alloc(32, 2)
    pq = P.alloc(32, 2)
    I(f's_mov_b32 s{S_T0}, {hex(WS_KV[layer] + 32768)}')
    for j in range(2):
        I(f'buffer_load_dwordx4 {v(zf + 4 * j, 4)}, {v(V_ZLD)}, {WS}, s{S_T0} offen offset:{16 * j} sc1')
    for pp in range(4):
        if pp % 2 == 0:
            I(f's_mov_b32 s{S_T0}, {hex(WS_KV[layer] + 2048 * pp)}')
            I(f's_mov_b32 s{S_T1}, {hex(WS_PQ[layer] + 2048 * pp)}')
        for j in range(2):
            I(f'buffer_load_dwordx4 {v(kv + 8 * pp + 4 * j, 4)}, {v(V_KVLD)}, {WS}, s{S_T0} offen offset:{2048 * (pp & 1) + 16 * j} sc1')
        for j in range(2):
            I(f'buffer_load_dwordx4 {v(pq + 8 * pp + 4 * j, 4)}, {v(V_PQLD)}, {WS}, s{S_T1} offen offset:{2048 * (pp & 1) + 1024 * j} sc1')
    for j in range(4):
        I(f'v_cvt_pk_bf16_f32 {v(zf + j)}, {v(zf + 2 * j)}, {v(zf + 2 * j + 1)}')
    D = [P.alloc(16, 2), P.alloc(16, 2)]
    MK = s(S_MASK, 2)

    def prep(pp):
        x = kv + 8 * pp
        for j in range(4):
            I(f'v_cvt_pk_bf16_f32 {v(x + j)}, {v(x + 2 * j)}, {v(x + 2 * j + 1)}')
        for j in range(4):
            I(f'v_cndmask_b32 {v(x + 4 + j)}, {v(zf + j)}, {v(x + j)}, {MK}')
        for j in range(4):
            I(f'v_cndmask_b32 {v(x + j)}, {v(x + j)}, {v(zf + j)}, {MK}')

    def mm(hh):
        I(f'v_mfma_f32_32x32x16_bf16 {v(D[hh & 1], 16)}, {v(kv + 4 * hh, 4)}, {v(pq + 4 * hh, 4)}, 0')

    def norm(hh):
        d = D[hh & 1]
        num = d + 8 * (hh & 1)
        den = d + 8 * (1 - (hh & 1)) + hh
        I(f'v_add_f32 {v(den)}, s{S_E6}, {v(den)}')
        I(f'v_rcp_f32 {v(den)}, {v(den)}')
        for j in range(0, 8, 2):
            pk('mul', v(num + j, 2), (v(num + j, 2), 'p'), bc(den))
        o = pq + 4 * hh
        for j in range(4):
            I(f'v_cvt_pk_bf16_f32 {v(o + j)}, {v(num + 2 * j)}, {v(num + 2 * j + 1)}')
        I(f'ds_write_b128 {v(V_EXW)}, {v(o, 4)} offset:{1024 * hh}')
    prep(0)
    for pp in range(4):
        mm(2 * pp)
        mm(2 * pp + 1)
        if pp < 3:
            prep(pp + 1)
        norm(2 * pp)
        norm(2 * pp + 1)
    P.free(zf, 8), P.free(kv, 32), P.free(pq, 32), P.free(D[0], 16), P.free(D[1], 16)
    A.barrier()
    stamp(f'p4_{layer}_o')
    mf = []
    for h in range(32):
        def em(reg, h=h):
            I(f'v_mfma_f32_32x32x16_bf16 {v(acc, 16)}, {wo_reg(h)}, {v(reg[h], 4)}, {v(acc, 16)}')
        mf.append((em, [h]))
    stream(mf, lambda k, r: [f'ds_read_b128 {v(r, 4)}, {v(V_OFR)} offset:{1024 * k}'], 8, 7)
    stamp(f'p4_{layer}_mm')
    o = P.alloc(8, 2)
    for j in range(8):
        I(f'v_cvt_pk_bf16_f32 {v(o + j)}, {v(acc + 2 * j)}, {v(acc + 2 * j + 1)}')
    if layer == 0:
        x2store(1, o)
        ss = P.alloc(2, 2)
        for j in range(8):
            I(f'v_dot2_f32_bf16 {v(ss)}, {v(o + j)}, s{S_ONES}, {v(ss) if j else 0}')
            I(f'v_dot2_f32_bf16 {v(ss + 1)}, {v(o + j)}, {v(o + j)}, {v(ss + 1) if j else 0}')
        I(f'v_permlane32_swap_b32 {v(ss)}, {v(ss + 1)}')
        I(f'v_add_f32 {v(ss)}, {v(ss)}, {v(ss + 1)}')
        I(f's_mov_b32 s{S_T0}, {hex(WS_ST[1])}')
        I(f'buffer_atomic_add_f32 {v(ss)}, {v(V_STAT)}, {WS}, s{S_T0} offen')
        P.free(ss, 2)
    else:
        for j in range(2):
            I(f'global_store_dwordx4 {v(V_TILE)}, {v(o + 4 * j, 4)}, {s(S_OUT, 2)} offset:{16 * j}')
    P.free(o, 8), P.free(acc, 16)


def main():
    vwd, vod, vor = prologue()
    bar = 1
    for layer in range(2):
        stamp(f'pre_wait{bar}')
        global_wait(bar)
        stamp(f'wait{bar}')
        conv(layer, dma_w(2, L_A, vwd) if layer == 0 else [])
        A.wait_vm()
        global_arrive()
        bar += 1
        stamp(f'arr{bar}')
        if layer == 0:
            for th in dma_wo(0, L_B, vod):
                th()
            consume_w(2)
            A.wait_vm()
            P.free(vwd)
        global_wait(bar)
        stamp(f'wait{bar}')
        if layer == 0:
            p3(layer, lambda: consume_wo(0, vor), dma_wo(1, L_B, vod))
        else:
            p3(layer, lambda: None, [])
        A.wait_vm()
        global_arrive()
        bar += 1
        stamp(f'arr{bar}')
        if layer == 0:
            consume_wo(1, vor)
            P.free(vod), P.free(vor)
        acc = p4_pre()
        global_wait(bar)
        stamp(f'wait{bar}')
        p4(layer, acc)
        if layer == 0:
            A.wait_vm()
            global_arrive()
            bar += 1
    if DIAG:
        A.wait_vm()
        stamp('end')
        t = P.alloc(2)
        I(f's_lshl_b32 s{S_T0}, s2, 2')
        I(f's_add_u32 s{S_T0}, s{S_T0}, s{S_W}')
        I(f's_lshl_b32 s{S_T0}, s{S_T0}, 7')
        I(f's_add_u32 s{S_T0}, s{S_T0}, {hex(WS_DIAG)}')
        I(f'v_mov_b32 {v(t + 1)}, 0')
        I('s_mov_b64 exec, 1')
        for k in range(nstamp[0]):
            I(f'v_mov_b32 {v(t)}, s{S_STAMP + k}')
            I(f'buffer_store_dword {v(t)}, {v(t + 1)}, {WS}, s{S_T0} offen offset:{4 * k}')
        pr = [x for x in sys.argv if x.startswith('--probe=')]
        if pr:
            nm = pr[0][8:]
            k = stamp_names.index(nm)
            I(f's_add_u32 s{S_T1}, s{S_STAMP + k}, 6000')
            A.label('L_probe')
            I('s_memrealtime s[100:101]')
            A._wait(lg=0)
            I(f's_sub_u32 s{S_T0}, s100, s{S_T1}')
            I(f's_cmp_lt_i32 s{S_T0}, 0')
            I('s_cbranch_scc1 L_probe')
        I(f's_lshl_b32 s{S_T0}, s2, 2')
        I(f's_add_u32 s{S_T0}, s{S_T0}, s{S_W}')
        I(f's_cmp_lg_u32 s{S_T0}, 400')
        I('s_cbranch_scc1 L_end')
        sel = [k for k in range(1, nstamp[0]) if k % 2 == 1 or k == nstamp[0] - 1][-15:]
        for j, k in enumerate(sel):
            I(f's_sub_u32 s{S_T0}, s{S_STAMP + k}, s{S_STAMP}')
            I(f'v_mov_b32 {v(t)}, s{S_T0}')
            I(f'global_store_dword {v(t + 1)}, {v(t)}, {s(S_DBG, 2)} offset:{4 * (j + 1)}')
        print('debug stamps:', [stamp_names[k] for k in sel], file=sys.stderr)
        P.free(t, 2)
    A.label('L_end')
    A.raw('    s_endpgm')

    ref = open(f'cdna_kernels/{NAME}.s.ref').read().splitlines()
    head = []
    for ln in ref:
        if ln.startswith('; @launch'):
            head.append(f'; @launch grid=(256,1,1) block=(256,1,1) lds={L_END}')
            break
        head.append(ln)
    txt = '\n'.join(head) + f'''
.amdgcn_target "amdgcn-amd-amdhsa--gfx950"
.text
.globl {NAME}_kernel
.p2align 8
.type {NAME}_kernel,@function
{NAME}_kernel:
''' + A.text() + f'''.section .rodata,"a"
.p2align 6
.amdhsa_kernel {NAME}_kernel
  .amdhsa_next_free_vgpr 512
  .amdhsa_next_free_sgpr 102
  .amdhsa_accum_offset 256
  .amdhsa_group_segment_fixed_size 0
  .amdhsa_kernarg_size 120
  .amdhsa_user_sgpr_count 2
  .amdhsa_user_sgpr_kernarg_segment_ptr 1
  .amdhsa_system_sgpr_workgroup_id_x 1
.end_amdhsa_kernel
'''
    out = [x for x in sys.argv[1:] if not x.startswith('--')]
    path = out[0] if out else f'cdna_kernels/{NAME}.s'
    open(path, 'w').write(txt)
    if DIAG:
        open(path + '.stamps', 'w').write('\n'.join(stamp_names))
    print(f'wrote {path}: {A.ninstr} instrs, {A.nnop} nop states, vgpr peak {P.peak}, lds {L_END}', file=sys.stderr)


main()
```

```python
import sys, struct, math
from emit import *
from layout import layout

NAME = 'interleave_layers__ssm_conv_s4__linear_attn_block__prompt'
DIAG = '--diag' in sys.argv


def f32(x):
    return '0x%08x' % struct.unpack('<I', struct.pack('<f', x))[0]


WS_CNT = 0x0
WS_ZERO = 0x10000
WS_KV = [WS_ZERO, WS_ZERO + 0xC000]
WS_ST = [0x30000, WS_ZERO + 0x18000]
WS_DIAG = 0x40000
WS_X2 = [0x200000, 0x400000]
WS_XT = [0x600000, 0x800000]
WS_PQ = [0xA00000, 0xC00000]
WS_SIZE = 0xE00000

L_A = 0
L_B = 65536
L_RK = 131072
L_H = L_RK + 4 * 4160
L_STAT = L_H + 2 * 4608
L_END = L_STAT + 512
KG_ARR = 16
KG_ROW = 544
KG_CH = 53 * KG_ROW

S_U, S_ARE, S_AIM, S_BRE, S_BIM, S_CRE, S_CIM, S_LDT, S_DSK = 4, 6, 8, 10, 12, 14, 16, 18, 20
S_WQKV, S_WO, S_OUT, S_DBG, S_WS = 24, 26, 28, 30, 32
R_WS, R_WQ, R_WO = 36, 40, 44
S_W, S_RB, S_CG, S_NB, S_TH = 48, 49, 50, 51, 52
S_T0, S_T1, S_T2 = 53, 54, 55
S_D = 56
S_MASK = 58
S_ONES = 60
S_SPIN = 61
S_LN = 62
S_EXP = 64
S_E6 = 66
S_T3, S_T4 = 68, 69
S_STAMP = 70
S_M1, S_M2 = 22, 34

A = Asm()
I = A.I
P = Pool(1, 192)
WS = s(R_WS, 4)
nstamp = [0]
stamp_names = []


STSEL = [x[5:].split(',') for x in sys.argv if x.startswith('--st=')]
STSEL = STSEL[0] if STSEL else None


def stamp(name, fine=False):
    if not DIAG:
        return
    if name not in ('entry', 'end'):
        if STSEL is None:
            if fine or not name.startswith(('wait', 'arr')):
                return
        elif not any(name.startswith(p) for p in STSEL):
            return
    k = nstamp[0]
    assert k < 16, 'too many stamps'
    I(f's_memrealtime s[{S_STAMP + 2 * k}:{S_STAMP + 2 * k + 1}]')
    stamp_names.append(name)
    nstamp[0] += 1


def pk(op, dst, *srcs):
    sel, selhi, nlo, nhi, txt = [], [], [], [], []
    for sr in srcs:
        t, m = sr[0], sr[1]
        ng = sr[2] if len(sr) > 2 else ''
        txt.append(t)
        sel.append(1 if m in 'hx' else 0)
        selhi.append(1 if m in 'ph' else 0)
        nlo.append(1 if ng in ('l', 'b') else 0)
        nhi.append(1 if ng in ('h', 'b') else 0)
    f = lambda l: '[' + ','.join(map(str, l)) + ']'
    line = f'v_pk_{op}_f32 {dst}, ' + ', '.join(txt) + f' op_sel:{f(sel)} op_sel_hi:{f(selhi)}'
    if any(nlo):
        line += f' neg_lo:{f(nlo)}'
    if any(nhi):
        line += f' neg_hi:{f(nhi)}'
    I(line)


def bc(r):
    return (v(r & ~1, 2), 'h' if r & 1 else 'l')


def cmul(d, x, y, tmp):
    pk('mul', v(tmp, 2), (v(x, 2), 'l'), (v(y, 2), 'p'))
    pk('fma', v(d, 2), (v(x, 2), 'h', 'l'), (v(y, 2), 'x'), (v(tmp, 2), 'p'))


def wq_reg(y, st):
    return a((y * 16 + st) * 4, 4)


def wo_reg(h, n=4, off=0):
    if h < 16:
        return a(192 + 4 * h + off, n)
    return v(192 + 4 * (h - 16) + off, n)


V_L = P.alloc()
V_L16 = P.alloc()
V_XT = [P.alloc() for _ in range(4)]
V_TILE = P.alloc()
V_X2ST = P.alloc()
V_STAT = P.alloc()
V_CVL = P.alloc()
V_HW = P.alloc()
V_CA = [P.alloc() for _ in range(4)]
V_CB = P.alloc()
V_EXW = P.alloc()
V_EXR = P.alloc()
V_OFR = P.alloc()
V_XTST = P.alloc()
V_XTLD = P.alloc()
V_PQST = P.alloc()
V_KVST = P.alloc()
V_ZST = P.alloc()
V_PQLD = P.alloc()
V_KVLD = P.alloc()
V_ZLD = P.alloc()
V_RES = [P.alloc(), P.alloc()]
V_SW = P.alloc()
V_SR4 = P.alloc()
V_SR1 = P.alloc()
V_ARR = P.alloc()
V_POLL = P.alloc()
V_CSKV = P.alloc(2)
V_CSQ = P.alloc(4)
V_ONES = P.alloc(4)


def global_arrive(first=None):
    A.barrier(lg=not first)
    lab = f'L_arr{global_arrive.n}'
    global_arrive.n += 1
    I(f's_cmp_lg_u32 s{S_W}, 0')
    I(f's_cbranch_scc1 {lab}')
    t = P.alloc()
    if first:
        flag, zero = first
        I(f's_mov_b32 s{S_SPIN}, 0x200000')
        A.label(lab + '_init')
        I(f'v_readfirstlane_b32 s{S_T0}, {v(flag)}')
        I(f's_sub_u32 s{S_SPIN}, s{S_SPIN}, 1')
        I(f's_cbranch_scc1 {lab}_go')
        I(f's_cmp_lg_u32 s{S_T0}, 0')
        I(f's_cbranch_scc1 {lab}_go')
        A.cond = True
        I(f'global_load_dword {v(flag)}, {v(zero)}, {s(S_DBG, 2)} sc1')
        A.cond = False
        A._wait(vm=0)
        A.vm.pop()
        I(f's_branch {lab}_init')
        A.label(lab + '_go')
    I(f'v_mov_b32 {v(t)}, 1')
    I('s_mov_b64 exec, 15')
    A.cond = True
    I(f'buffer_atomic_add {v(t)}, {v(V_ARR)}, {WS}, 0 offen sc1')
    A.cond = False
    I('s_mov_b64 exec, -1')
    P.free(t)
    A.label(lab)


global_arrive.n = 0


def global_wait(k):
    lab = f'L_wait{k}'
    I(f's_cmp_lg_u32 s{S_W}, 0')
    I(f's_cbranch_scc0 {lab}_w0')
    A.raw(f'#touch s{k}')
    I(f's_branch {lab}')
    A.label(lab + '_w0')
    t = P.alloc()
    I(f's_mov_b32 s{S_SPIN}, 0x200000')
    I(f's_mov_b32 s{S_T0}, {16 * k}')
    I('s_mov_b64 exec, 0xffff')
    A.label(lab + '_poll')
    A.cond = True
    I(f'buffer_load_dword {v(t)}, {v(V_POLL)}, {WS}, 0 offen sc1')
    A.cond = False
    I(f's_sub_u32 s{S_SPIN}, s{S_SPIN}, 1')
    I(f's_cbranch_scc1 {lab}_done')
    A._wait(vm=0)
    A.vm.pop()
    I(f'v_cmp_gt_u32 vcc, s{S_T0}, {v(t)}')
    I(f's_cbranch_vccnz {lab}_poll')
    A.label(lab + '_done')
    I('s_mov_b64 exec, -1')
    P.free(t)
    A.label(lab)
    A.raw(f'#seg s{k}')
    A.barrier()


def dma_w(y, region, vaddr, tag='wdma'):
    th = []

    def first():
        I(f's_mul_i32 s{S_T3}, s{S_W}, {128 * 3072}')
        I(f's_add_u32 s{S_T3}, s{S_T3}, {y * 1024}')
        I(f's_lshl_b32 s{S_T4}, s{S_W}, 14')
        I(f's_add_u32 m0, s{S_T4}, {region}')
        I(f'buffer_load_dwordx4 {v(vaddr)}, {s(R_WQ, 4)}, s{S_T3} offen lds', tag=tag)

    def nxt():
        I(f's_add_u32 s{S_T3}, s{S_T3}, {8 * 3072}')
        I(f's_add_u32 m0, m0, 1024')
        I(f'buffer_load_dwordx4 {v(vaddr)}, {s(R_WQ, 4)}, s{S_T3} offen lds', tag=tag)
    return [first] + [nxt] * 15


def dma_wo(kh, region, vaddr):
    def first():
        I(f's_lshl_b32 s{S_T3}, s{S_W}, 16')
        I(f's_add_u32 s{S_T3}, s{S_T3}, {kh * 256 * 1024}')
        I(f's_lshl_b32 s{S_T4}, s{S_W}, 14')
        I(f's_add_u32 m0, s{S_T4}, {region}')
        I(f'buffer_load_dwordx4 {v(vaddr)}, {s(R_WO, 4)}, s{S_T3} offen lds', tag='wdma')

    def nxt():
        I(f's_add_u32 s{S_T3}, s{S_T3}, 4096')
        I(f's_add_u32 m0, m0, 1024')
        I(f'buffer_load_dwordx4 {v(vaddr)}, {s(R_WO, 4)}, s{S_T3} offen lds', tag='wdma')
    return [first] + [nxt] * 15


def consume_w(y, vaddr):
    out = []
    for st in range(16):
        b = (y * 16 + st) * 4
        for z in range(2):
            def th(b=b, z=z, st=st):
                I(f'ds_read_b64_tr_b16 {a(b + 2 * z, 2)}, {v(vaddr)} offset:{4096 * st + 2048 * z}')
            th.lds = True
            out.append(th)
    return out


def colsums():
    d = [V_CSQ, P.alloc(4, 2), P.alloc(4, 2)]
    for st in range(16):
        for y in range(3):
            c = '0' if st == 0 else v(d[y], 4)
            if y == 0:
                I(f'v_mfma_f32_16x16x32_bf16 {v(d[y], 4)}, {wq_reg(y, st)}, {v(V_ONES, 4)}, {c}')
            else:
                I(f'v_mfma_f32_16x16x32_bf16 {v(d[y], 4)}, {v(V_ONES, 4)}, {wq_reg(y, st)}, {c}')
    for y in (1, 2):
        I(f'v_mov_b32 {v(V_CSKV + y - 1)}, {v(d[y])}')
        P.free(d[y], 4)


def consume_wo(kh, vaddr):
    for hh in range(16):
        for z in range(2):
            I(f'ds_read_b64_tr_b16 {wo_reg(16 * kh + hh, 2, 2 * z)}, {v(vaddr)} offset:{4096 * hh + 1024 * z}')


def stream(mf, loader, nslots, look, fill=None, gate=None, rate=1, burst=9):
    fill = fill or {}
    gate = gate or {}
    first, last, order = {}, {}, []
    for m, (_, keys) in enumerate(mf):
        for k in keys:
            if k not in first:
                first[k] = m
                order.append(k)
            last[k] = m
    slots = [P.alloc(4, 2) for _ in range(nslots)]
    free = list(slots)
    reg = {}
    pend = []
    nxt = [0]

    def start_key():
        k = order[nxt[0]]
        nxt[0] += 1
        if k in gate:
            gate[k]()
        reg[k] = free.pop(0)
        pend.extend(loader(k, reg[k]))

    def issue(n, m, force=False):
        while n > 0:
            if not pend:
                if nxt[0] >= len(order) or not free:
                    return
                if first[order[nxt[0]]] > m + look:
                    return
                start_key()
            I(pend.pop(0))
            n -= 1

    issue(burst, -1)
    for m, (em, keys) in enumerate(mf):
        while any(k not in reg for k in keys) or (pend and order[nxt[0] - 1] in keys):
            assert pend or free, 'no free slot'
            if not pend:
                start_key()
            I(pend.pop(0))
        em(reg)
        for k in keys:
            if last[k] == m:
                free.append(reg[k])
        fl = fill.get(m, [])
        if not any(getattr(th, 'lds', False) for th in fl):
            issue(rate, m)
        for th in fl:
            th(reg)
    for r in slots:
        P.free(r, 4)


def prologue():
    I('s_cmp_ge_u32 s2, 256')
    I('s_cbranch_scc1 L_end')
    I('s_load_dwordx16 s[4:19], s[0:1], 0')
    I('s_load_dwordx8 s[20:27], s[0:1], 64')
    I('s_load_dwordx4 s[28:31], s[0:1], 96')
    I('s_load_dwordx2 s[32:33], s[0:1], 112')
    stamp('entry')
    t = [P.alloc() for _ in range(8)]
    I(f's_getpc_b64 s[{S_T3}:{S_T4}]')
    A.label('L_pc')
    I(f's_lshr_b32 s{S_T1}, s2, 3')
    I(f'v_lshrrev_b32 {v(t[0])}, 4, v0')
    I(f'v_lshl_add_u32 {v(t[0])}, {v(t[0])}, 5, s{S_T1}')
    I(f'v_lshlrev_b32 {v(t[0])}, 7, {v(t[0])}')
    I(f'v_add_u32 {v(t[0])}, L_pg1-L_pc, {v(t[0])}')
    I(f'v_min_u32 {v(t[0])}, L_end-L_pc, {v(t[0])}')
    pf = P.alloc(2)
    I(f'global_load_dword {v(pf)}, {v(t[0])}, s[{S_T3}:{S_T4}]')
    I(f'v_lshrrev_b32 {v(t[0])}, 6, v0')
    I(f'v_and_b32 {v(V_L)}, 63, v0')
    I(f'v_readfirstlane_b32 s{S_W}, {v(t[0])}')
    I(f's_and_b32 s{S_T0}, s2, 7')
    I(f's_and_b32 s{S_T2}, s{S_T1}, 3')
    I(f's_lshl_b32 s{S_RB}, s{S_T0}, 2')
    I(f's_add_u32 s{S_RB}, s{S_RB}, s{S_T2}')
    I(f's_lshr_b32 s{S_CG}, s{S_T1}, 2')
    I(f's_lshr_b32 s{S_NB}, s{S_CG}, 1')
    I(f's_and_b32 s{S_TH}, s{S_CG}, 1')
    I(f'v_lshlrev_b32 {v(V_L16)}, 4, {v(V_L)}')
    vsr = P.alloc()
    srow = S_T2
    I(f's_lshl_b32 s{S_T0}, s{S_RB}, 6')
    I(f's_lshl_b32 s{S_T1}, s{S_CG}, 3')
    I(f's_add_u32 s{S_T1}, s{S_T1}, s{S_T0}')
    I(f's_lshl_b32 s{S_T3}, s{S_W}, 1')
    I(f's_add_u32 s{srow}, s{S_T1}, s{S_T3}')
    I(f's_lshl_b32 s{S_T1}, s{srow}, 10')
    I(f'v_add_u32 {v(vsr)}, s{S_T1}, {v(V_L16)}')
    vt, vhi = t[1], t[2]
    I(f's_lshl_b32 s{S_T1}, s{S_TH}, 5')
    I(f's_add_u32 s{S_T0}, s{S_T0}, s{S_T1}')
    I(f'v_and_b32 {v(vt)}, 31, {v(V_L)}')
    I(f'v_add_u32 {v(vt)}, s{S_T0}, {v(vt)}')
    I(f'v_lshrrev_b32 {v(vhi)}, 5, {v(V_L)}')
    I(f's_lshl_b32 s{S_T0}, s{S_NB}, 8')
    I(f's_lshl_b32 s{S_T1}, s{S_W}, 6')
    I(f's_add_u32 s{S_T0}, s{S_T0}, s{S_T1}')
    I(f'v_lshl_add_u32 {v(V_TILE)}, {v(vt)}, 10, s{S_T0}')
    I(f'v_lshl_add_u32 {v(V_TILE)}, {v(vhi)}, 5, {v(V_TILE)}')
    vpo = P.alloc()
    I(f's_lshl_b32 s{S_T1}, s2, 9')
    I(f'v_lshl_add_u32 {v(vpo)}, v0, 1, s{S_T1}')
    sinit = S_SPIN
    I(f's_lshl_b32 s{S_T1}, s2, 2')
    I(f's_add_u32 s{sinit}, s{S_T1}, s{S_W}')
    vwp = P.alloc()
    I(f's_lshl_b32 s{S_T1}, s{sinit}, 11')
    I(f'v_and_b32 {v(vwp)}, 15, v0')
    I(f'v_lshl_add_u32 {v(vwp)}, {v(vwp)}, 7, s{S_T1}')
    vwd = P.alloc()
    I(f'v_lshrrev_b32 {v(t[3])}, 3, {v(V_L)}')
    I(f'v_mul_u32_u24 {v(vwd)}, 3072, {v(t[3])}')
    I(f'v_bfe_u32 {v(t[3])}, {v(V_L)}, 1, 2')
    I(f'v_lshrrev_b32 {v(t[4])}, 4, {v(V_L)}')
    I(f'v_xor_b32 {v(t[3])}, {v(t[3])}, {v(t[4])}')
    I(f'v_lshl_add_u32 {v(vwd)}, {v(t[3])}, 5, {v(vwd)}')
    I(f'v_and_b32 {v(t[3])}, 1, {v(V_L)}')
    I(f'v_lshl_add_u32 {v(vwd)}, {v(t[3])}, 4, {v(vwd)}')
    I(f's_lshl_b32 s{S_T1}, s{S_CG}, 7')
    I(f'v_add_u32 {v(vwd)}, s{S_T1}, {v(vwd)}')
    zero4 = P.alloc(4, 2)
    for i in range(4):
        I(f'v_mov_b32 {v(zero4 + i)}, 0')
    for r, n in ((R_WS, WS_SIZE), (R_WQ, 512 * 3072), (R_WO, 512 * 1024)):
        I(f's_mov_b32 s{r + 2}, {hex(n)}')
        I(f's_mov_b32 s{r + 3}, 0x20000')
    xs = P.alloc(8, 2)
    xt = P.alloc(8, 2)
    par = P.alloc(8, 2)

    def first_loads():
        A._wait(lg=0)
        stamp('a_karg')
        I(f'global_load_dwordx4 {v(xs, 4)}, {v(vsr)}, {s(S_U, 2)}')
        I(f'global_load_dwordx4 {v(xs + 4, 4)}, {v(vsr)}, {s(S_U, 2)} offset:1024')
        I(f's_lshl_b32 s{S_T3}, s2, 2')
        I(f's_load_dword s{S_D}, {s(S_LDT, 2)}, s{S_T3}')
        I(f's_load_dword s{S_D + 1}, {s(S_DSK, 2)}, s{S_T3}')
        for r, p in ((R_WS, S_WS), (R_WQ, S_WQKV), (R_WO, S_WO)):
            I(f's_mov_b64 s[{r}:{r + 1}], s[{p}:{p + 1}]')
        I(f's_cmp_lg_u32 s{sinit}, 3')
        I('s_cbranch_scc1 L_noinit')
        I(f'v_lshlrev_b32 {v(t[5])}, 8, {v(V_L)}')
        A.cond = True
        I(f'buffer_store_dword {v(zero4)}, {v(t[5])}, {WS}, 0 offen sc1')
        A.cond = False
        A.label('L_noinit')
        I(f'global_load_dwordx4 {v(xt, 4)}, {v(V_TILE)}, {s(S_U, 2)}')
        I(f'global_load_dwordx4 {v(xt + 4, 4)}, {v(V_TILE)}, {s(S_U, 2)} offset:16')
        for j in range(2):
            I(f's_mov_b32 s{S_M1 + j}, 0xaaaaaaaa')
        stamp('a_ldiss')

    def second_loads():
        for i, sp in enumerate((S_ARE, S_AIM, S_BRE, S_BIM, S_CRE, S_CIM)):
            I(f'global_load_ushort {v(par + i)}, {v(vpo)}, {s(sp, 2)}')
        I('s_mov_b64 exec, 0xffff')
        I(f'buffer_load_dword {v(pf + 1)}, {v(vwp)}, {s(R_WQ, 4)}, 0 offen')
        I(f'v_subrev_u32 {v(vwp)}, {512 * 3072}, {v(vwp)}')
        I(f'buffer_load_dword {v(t[5])}, {v(vwp)}, {s(R_WO, 4)}, 0 offen')
        I('s_mov_b64 exec, -1')
        stamp('a_ld2iss')

    I(f's_mov_b32 s{S_MASK}, 0xffff0000')
    I(f's_mov_b32 s{S_MASK + 1}, 0xffff0000')
    I(f's_mov_b32 s{S_ONES}, 0x3f803f80')
    for j in range(2):
        I(f's_mov_b32 s{S_M2 + j}, 0xcccccccc')
    I(f's_mov_b32 s{S_LN}, {f32(1 / 512)}')
    I(f's_mov_b32 s{S_LN + 1}, {f32(1e-5)}')
    I(f's_mov_b32 s{S_EXP}, {f32(math.log2(math.e))}')
    I(f's_mov_b32 s{S_EXP + 1}, {f32(-1e-6 * math.log2(math.e))}')
    I(f's_mov_b32 s{S_E6}, {f32(1e-6)}')
    I(f's_mov_b32 s{S_E6 + 1}, {f32(1e-6)}')
    for i in range(4):
        I(f'v_mov_b32 {v(V_ONES + i)}, s{S_ONES}')
    vg, va_, x0, x1 = t[4], t[6], t[3], t[7]
    I(f'v_and_b32 {v(va_)}, 15, {v(V_L)}')
    I(f's_lshl_b32 s{S_T0}, s{S_NB}, 19')
    I(f's_lshl_b32 s{S_T1}, s{S_W}, 17')
    I(f's_add_u32 s{S_T0}, s{S_T0}, s{S_T1}')
    I(f'v_lshl_add_u32 {v(V_X2ST)}, {v(vt)}, 2, s{S_T0}')
    I(f'v_lshl_add_u32 {v(V_X2ST)}, {v(vhi)}, 16, {v(V_X2ST)}')
    I(f'v_lshlrev_b32 {v(V_STAT)}, 2, {v(vt)}')
    I(f'v_lshl_add_u32 {v(V_STAT)}, {v(vhi)}, 13, {v(V_STAT)}')
    I(f's_lshl_b32 s{S_T0}, s{S_W}, 11')
    I(f'v_lshl_add_u32 {v(V_CVL)}, {v(va_)}, 6, s{S_T0}')
    I(f'v_lshl_add_u32 {v(V_CVL)}, {v(vg)}, 4, {v(V_CVL)}')
    I(f'v_lshrrev_b32 {v(V_HW)}, 1, {v(V_CVL)}')
    I(f'v_add_u32 {v(V_HW)}, {L_H + 512}, {v(V_HW)}')
    I(f's_lshr_b32 s{S_T0}, s{S_W}, 1')
    I(f's_and_b32 s{S_T1}, s{S_W}, 1')
    I(f's_mul_i32 s{S_T3}, s{S_T0}, 4608')
    I(f's_lshl_b32 s{S_T4}, s{S_T1}, 8')
    I(f's_sub_u32 s{S_T3}, s{S_T3}, s{S_T4}')
    I(f's_add_u32 s{S_T3}, s{S_T3}, {L_H + 512 - 32 - 192}')
    I(f'v_lshl_add_u32 {v(V_CB)}, {v(va_)}, 5, s{S_T3}')
    I(f'v_lshl_add_u32 {v(V_CB)}, {v(vg)}, 4, {v(V_CB)}')
    I(f's_mul_i32 s{S_T3}, s{S_T0}, 8320')
    I(f's_sub_u32 s{S_T3}, s{S_T3}, s{S_T4}')
    I(f's_add_u32 s{S_T3}, s{S_T3}, {L_RK + 4160 + 4 * (1015 - 176)}')
    I(f'v_and_b32 {v(x0)}, 1, {v(va_)}')
    I(f'v_mul_u32_u24 {v(x0)}, 4160, {v(x0)}')
    I(f'v_lshrrev_b32 {v(x1)}, 1, {v(va_)}')
    I(f'v_lshl_add_u32 {v(x0)}, {v(x1)}, 2, {v(x0)}')
    I(f'v_lshl_add_u32 {v(x1)}, {v(vg)}, 4, s{S_T3}')
    I(f'v_sub_u32 {v(V_CA[0])}, {v(x1)}, {v(x0)}')
    for i in range(1, 4):
        I(f'v_subrev_u32 {v(V_CA[i])}, {1024 * i}, {v(V_CA[0])}')
    I(f'v_add_u32 {v(V_OFR)}, {L_B}, {v(V_L16)}')
    I(f's_lshl_b32 s{S_T3}, s{S_W}, 13')
    I(f'v_add_u32 {v(V_EXW)}, s{S_T3}, {v(V_OFR)}')
    I(f's_lshl_b32 s{S_T3}, s{S_W}, 11')
    I(f'v_add_u32 {v(V_EXR)}, s{S_T3}, {v(V_OFR)}')
    I(f's_lshl_b32 s{S_T3}, s{S_W}, 19')
    I(f's_lshl_b32 s{S_T4}, s2, 8')
    I(f's_add_u32 s{S_T3}, s{S_T3}, s{S_T4}')
    I(f'v_lshrrev_b32 {v(x0)}, 2, {v(va_)}')
    I(f'v_lshl_add_u32 {v(V_XTST)}, {v(x0)}, 16, s{S_T3}')
    I(f'v_xor_b32 {v(x0)}, s2, {v(va_)}')
    I(f'v_and_b32 {v(x0)}, 3, {v(x0)}')
    I(f'v_lshl_add_u32 {v(V_XTST)}, {v(x0)}, 5, {v(V_XTST)}')
    I(f'v_lshl_add_u32 {v(V_XTST)}, {v(vg)}, 3, {v(V_XTST)}')
    I(f's_lshl_b32 s{S_T3}, s{S_RB}, 16')
    I(f's_lshl_b32 s{S_T4}, s{S_W}, 12')
    I(f's_add_u32 s{S_T3}, s{S_T3}, s{S_T4}')
    I(f'v_add_u32 {v(V_XTLD)}, s{S_T3}, {v(V_L16)}')
    I(f'v_lshrrev_b32 {v(x0)}, 2, {v(V_L)}')
    I(f'v_lshlrev_b32 {v(V_XT[0])}, 7, {v(x0)}')
    I(f'v_bfe_u32 {v(x0)}, {v(V_L)}, 3, 2')
    I(f'v_xor_b32 {v(x0)}, s{S_W}, {v(x0)}')
    I(f'v_lshl_add_u32 {v(V_XT[0])}, {v(x0)}, 5, {v(V_XT[0])}')
    I(f'v_and_b32 {v(x0)}, 3, {v(V_L)}')
    I(f'v_lshl_add_u32 {v(V_XT[0])}, {v(x0)}, 3, {v(V_XT[0])}')
    for i in range(1, 4):
        I(f'v_xor_b32 {v(V_XT[i])}, {32 * i}, {v(V_XT[0])}')
    first_loads()
    I(f's_lshl_b32 s{S_T4}, s{S_CG}, 2')
    I(f's_add_u32 s{S_T4}, s{S_T4}, s{S_W}')
    I(f's_lshl_b32 s{S_T4}, s{S_T4}, 10')
    I(f's_lshl_b32 s{S_T3}, s{S_RB}, 16')
    I(f's_add_u32 s{S_T3}, s{S_T3}, s{S_T4}')
    I(f'v_lshl_add_u32 {v(V_PQST)}, {v(va_)}, 5, s{S_T3}')
    I(f'v_lshl_add_u32 {v(V_PQST)}, {v(vg)}, 3, {v(V_PQST)}')
    I(f's_and_b32 s{S_T3}, s{S_W}, 1')
    I(f's_mul_i32 s{S_T3}, s{S_T3}, 768')
    I(f's_sub_u32 s{S_T3}, s{S_T4}, s{S_T3}')
    I(f'v_lshl_add_u32 {v(V_KVST)}, {v(vg)}, 4, s{S_T3}')
    I(f'v_and_b32 {v(x0)}, 3, {v(va_)}')
    I(f'v_lshl_add_u32 {v(V_KVST)}, {v(x0)}, 2, {v(V_KVST)}')
    I(f'v_bfe_u32 {v(x0)}, {v(va_)}, 2, 1')
    I(f'v_lshl_add_u32 {v(V_KVST)}, {v(x0)}, 10, {v(V_KVST)}')
    I(f'v_lshrrev_b32 {v(x0)}, 3, {v(va_)}')
    I(f'v_lshl_add_u32 {v(V_KVST)}, {v(x0)}, 9, {v(V_KVST)}')
    I(f's_lshr_b32 s{S_T3}, s{S_T4}, 4')
    I(f'v_lshl_add_u32 {v(V_ZST)}, {v(V_L)}, 2, s{S_T3}')
    I(f's_lshl_b32 s{S_T3}, s{S_RB}, 1')
    I(f's_add_u32 s{S_T3}, s{S_T3}, s{S_TH}')
    I(f's_lshl_b32 s{S_T3}, s{S_T3}, 15')
    I(f's_lshl_b32 s{S_T4}, s{S_W}, 13')
    I(f's_add_u32 s{S_T3}, s{S_T3}, s{S_T4}')
    I(f'v_and_b32 {v(x0)}, 31, {v(V_L)}')
    I(f'v_lshl_add_u32 {v(V_PQLD)}, {v(x0)}, 5, s{S_T3}')
    I(f'v_lshl_add_u32 {v(V_PQLD)}, {v(vhi)}, 4, {v(V_PQLD)}')
    I(f'v_lshl_add_u32 {v(V_KVLD)}, {v(vg)}, 8, s{S_T4}')
    I(f'v_and_b32 {v(x0)}, 3, {v(va_)}')
    I(f'v_lshl_add_u32 {v(V_KVLD)}, {v(x0)}, 6, {v(V_KVLD)}')
    I(f'v_bfe_u32 {v(x1)}, {v(va_)}, 2, 1')
    I(f'v_lshl_add_u32 {v(V_KVLD)}, {v(x1)}, 5, {v(V_KVLD)}')
    I(f'v_lshrrev_b32 {v(x1)}, 3, {v(va_)}')
    I(f'v_lshl_add_u32 {v(V_KVLD)}, {v(x1)}, 4, {v(V_KVLD)}')
    I(f's_lshl_b32 s{S_T3}, s{S_W}, 9')
    I(f'v_lshl_add_u32 {v(V_ZLD)}, {v(x1)}, 8, s{S_T3}')
    I(f'v_lshl_add_u32 {v(V_ZLD)}, {v(x0)}, 6, {v(V_ZLD)}')
    I(f'v_lshl_add_u32 {v(V_ZLD)}, {v(vhi)}, 5, {v(V_ZLD)}')
    second_loads()
    P.free(vsr), P.free(vpo)
    I(f's_lshl_b32 s{S_T3}, s{S_NB}, 14')
    I(f's_lshl_b32 s{S_T4}, s{S_W}, 12')
    I(f's_add_u32 s{S_T3}, s{S_T3}, s{S_T4}')
    I(f's_lshl_b32 s{S_T4}, s{S_TH}, 6')
    I(f's_add_u32 s{S_T3}, s{S_T3}, s{S_T4}')
    I(f'v_lshl_add_u32 {v(V_RES[0])}, {v(vhi)}, 11, s{S_T3}')
    I(f'v_lshl_add_u32 {v(V_RES[0])}, {v(x0)}, 3, {v(V_RES[0])}')
    I(f'v_lshrrev_b32 {v(x0)}, 2, {v(va_)}')
    I(f'v_lshl_add_u32 {v(V_RES[0])}, {v(x0)}, 7, {v(V_RES[0])}')
    I(f'v_xor_b32 {v(x1)}, {v(x1)}, {v(vg)}')
    I(f'v_and_b32 {v(x1)}, 1, {v(x1)}')
    I(f'v_lshl_add_u32 {v(V_RES[0])}, {v(x1)}, 5, {v(V_RES[0])}')
    I(f'v_xor_b32 {v(V_RES[1])}, 64, {v(V_RES[0])}')
    I(f's_lshl_b32 s{S_T3}, s{S_W}, 6')
    I(f's_add_u32 s{S_T3}, s{S_T3}, {L_STAT}')
    I(f'v_lshl_add_u32 {v(V_SW)}, {v(va_)}, 2, s{S_T3}')
    I(f'v_lshl_add_u32 {v(V_SR4)}, {v(vg)}, 4, s{S_T3}')
    I(f'v_mov_b32 {v(V_SR1)}, {v(V_SW)}')
    I(f's_and_b32 s{S_T3}, s2, 15')
    I(f's_lshl_b32 s{S_T3}, s{S_T3}, 8')
    I(f'v_lshl_add_u32 {v(V_ARR)}, {v(V_L)}, 12, s{S_T3}')
    I(f's_and_b32 s{S_T3}, s2, 3')
    I(f's_lshl_b32 s{S_T3}, s{S_T3}, 12')
    I(f'v_lshl_add_u32 {v(V_POLL)}, {v(va_)}, 8, s{S_T3}')
    vod, vor = P.alloc(), P.alloc()
    I(f's_lshl_b32 s{S_T3}, s{S_NB}, 8')
    I(f'v_lshl_add_u32 {v(vod)}, {v(vg)}, 10, s{S_T3}')
    I(f'v_xor_b32 {v(x1)}, {v(x0)}, {v(vg)}')
    I(f'v_lshl_add_u32 {v(vod)}, {v(x1)}, 6, {v(vod)}')
    I(f'v_and_b32 {v(x1)}, 3, {v(V_L)}')
    I(f'v_lshl_add_u32 {v(vod)}, {v(x1)}, 4, {v(vod)}')
    I(f'v_lshlrev_b32 {v(vor)}, 11, {v(vhi)}')
    I(f'v_lshl_add_u32 {v(vor)}, {v(x0)}, 8, {v(vor)}')
    I(f'v_xor_b32 {v(x0)}, s{S_W}, {v(x0)}')
    I(f'v_lshl_add_u32 {v(vor)}, {v(x0)}, 6, {v(vor)}')
    I(f'v_and_b32 {v(x0)}, 1, {v(V_L)}')
    I(f'v_lshl_add_u32 {v(vor)}, {v(x0)}, 5, {v(vor)}')
    I(f'v_and_b32 {v(x0)}, 1, {v(vg)}')
    I(f'v_lshl_add_u32 {v(vor)}, {v(x0)}, 4, {v(vor)}')
    I(f'v_bfe_u32 {v(x0)}, {v(V_L)}, 1, 1')
    I(f'v_lshl_add_u32 {v(vor)}, {v(x0)}, 3, {v(vor)}')
    I(f'v_add_u32 {v(vor)}, {L_B}, {v(vor)}')
    kg = dict(w=P.alloc(), a0=P.alloc(), a1=P.alloc(), g=P.alloc(), t1=P.alloc(), t2=P.alloc(), t3=P.alloc(), rk=P.alloc())
    I(f's_mul_i32 s{S_T3}, s{S_T0}, {KG_CH}')
    I(f's_add_u32 s{S_T3}, s{S_T3}, {L_B}')
    I(f'v_and_b32 {v(x0)}, 127, v0')
    I(f'v_lshl_add_u32 {v(kg["w"])}, {v(x0)}, 2, s{S_T3}')
    I(f'v_lshl_add_u32 {v(x1)}, {v(vg)}, 4, s{S_T3}')
    I(f'v_mul_u32_u24 {v(kg["a0"])}, {KG_ROW}, {v(va_)}')
    I(f'v_add_u32 {v(kg["a0"])}, {v(kg["a0"])}, {v(x1)}')
    I(f's_mul_i32 s{S_T4}, s{S_T1}, {16 * KG_ROW}')
    I(f'v_add_u32 {v(kg["g"])}, s{S_T4}, {v(kg["a0"])}')
    I(f'v_min_u32 {v(kg["a1"])}, 4, {v(va_)}')
    I(f'v_mul_u32_u24 {v(kg["a1"])}, {KG_ROW}, {v(kg["a1"])}')
    I(f'v_add_u32 {v(kg["a1"])}, {v(kg["a1"])}, {v(x1)}')
    I(f's_mul_i32 s{S_T3}, s{S_T0}, 4608')
    I(f's_add_u32 s{S_T3}, s{S_T3}, {L_H + 512}')
    I(f's_lshl_b32 s{S_T4}, s{S_T1}, 4')
    vj = P.alloc()
    I(f'v_add_u32 {v(vj)}, s{S_T4}, {v(va_)}')
    I(f'v_lshl_add_u32 {v(kg["t3"])}, {v(vg)}, 7, {v(vj)}')
    I(f'v_lshl_add_u32 {v(kg["t3"])}, {v(kg["t3"])}, 2, s{S_T3}')
    I(f'v_max_u32 {v(x1)}, 1, {v(vg)}')
    I(f'v_sub_u32 {v(x1)}, 6, {v(x1)}')
    I(f'v_lshlrev_b32 {v(kg["t1"])}, {v(x1)}, {v(vj)}')
    I(f'v_lshlrev_b32 {v(x1)}, 4, {v(vg)}')
    I(f'v_lshlrev_b32 {v(vj)}, 9, {v(vg)}')
    I(f'v_cmp_lt_u32 vcc, 1, {v(vg)}')
    I(f'v_cndmask_b32 {v(x1)}, {v(x1)}, {v(vj)}, vcc')
    I(f'v_add3_u32 {v(kg["t1"])}, {v(kg["t1"])}, {v(x1)}, s{S_T3}')
    I(f'v_cmp_eq_u32 vcc, 3, {v(vg)}')
    I(f'v_mov_b32 {v(vj)}, 256')
    I(f'v_cndmask_b32 {v(x1)}, 8, {v(vj)}, vcc')
    I(f'v_add_u32 {v(kg["t2"])}, {v(kg["t1"])}, {v(x1)}')
    A.raw('#page')
    A.raw('#seg s0')
    gi = P.alloc(18, 2)
    I(f'v_lshlrev_b32 {v(x1)}, 4, {v(x0)}')
    I(f'v_sub_u32 {v(x1)}, 2047, {v(x1)}')
    fl = P.alloc(2, 2)
    lg_ = P.alloc(2, 2)
    I(f's_movk_i32 s{S_T4}, 128')
    for u in range(0, 18, 2):
        n = 2 if u < 16 else 1
        for q in range(n):
            I(f'v_subrev_u32 {v(lg_ + q)}, {u + q}, {v(x1)}')
            I(f'v_cvt_f32_i32 {v(fl + q)}, {v(lg_ + q)}')
        I(f'v_cvt_pk_bf16_f32 {v(vj)}, {v(fl)}, {v(fl + 1)}')
        for q in range(n):
            I(f'v_bfe_i32 {v(fl + q)}, {v(vj)}, {16 * q}, 16')
            I(f'v_subrev_u32 {v(fl + q)}, {0x4280}, {v(fl + q)}')
            I(f'v_med3_i32 {v(fl + q)}, {v(fl + q)}, {v(lg_ + q)}, s{S_T4}')
            I(f'v_lshl_add_u32 {v(gi + u + q)}, {v(fl + q)}, 2, s{S_T3}')
    P.free(fl, 2), P.free(lg_, 2), P.free(vj)
    I(f's_mul_i32 s{S_T3}, s{S_T0}, 8320')
    I(f's_add_u32 s{S_T3}, s{S_T3}, {L_RK}')
    I(f'v_lshl_add_u32 {v(kg["rk"])}, {v(x0)}, 5, s{S_T3}')
    I(f's_mul_i32 s{S_T3}, s{S_T0}, 4608')
    I(f's_add_u32 s{S_T3}, s{S_T3}, {L_H}')
    I(f'v_lshl_add_u32 {v(x1)}, {v(x0)}, 2, s{S_T3}')
    I(f'ds_write_b32 {v(x1)}, {v(zero4)}')
    I(f's_mul_i32 s{S_T3}, s{S_W}, 4160')
    I(f's_add_u32 s{S_T3}, s{S_T3}, {L_RK + 4096}')
    I(f'v_lshl_add_u32 {v(x1)}, {v(va_)}, 2, s{S_T3}')
    I(f'ds_write_b32 {v(x1)}, {v(zero4)}')

    I(f'v_and_b32 {v(x0)}, 1, {v(vg)}')
    I(f'v_add_u32 {v(x0)}, s{srow}, {v(x0)}')
    I(f'v_lshlrev_b32 {v(x0)}, 2, {v(x0)}')
    I(f'v_lshl_add_u32 {v(x0)}, {v(vhi)}, 13, {v(x0)}')
    I(f'v_mov_b32 {v(x1)}, 1')
    I(f's_lshl_b32 s{S_T0}, s{sinit}, 7')
    I(f's_add_u32 s{S_T0}, s{S_T0}, {hex(WS_ZERO)}')
    I('s_mov_b64 exec, 0xff')
    I(f'buffer_store_dwordx4 {v(zero4, 4)}, {v(V_L16)}, {WS}, s{S_T0} offen sc1')
    I('s_mov_b64 exec, -1')
    A.raw('#touch s0')
    stamp('a_setup')
    x2store(0, xt)
    stamp('a_xarr')
    I(f's_cmp_lg_u32 s{sinit}, 3')
    I('s_cbranch_scc1 L_noflag')
    A.cond = True
    I(f'global_store_dword {v(zero4)}, {v(x1)}, {s(S_DBG, 2)} sc1')
    A.cond = False
    A.label('L_noflag')
    st = P.alloc(4, 2)
    for i in range(4):
        for r in range(2):
            c = '0' if i == 0 else v(st + r)
            I(f'v_dot2_f32_bf16 {v(st + r)}, {v(xs + 4 * r + i)}, s{S_ONES}, {c}')
            c = '0' if i == 0 else v(st + 2 + r)
            I(f'v_dot2_f32_bf16 {v(st + 2 + r)}, {v(xs + 4 * r + i)}, {v(xs + 4 * r + i)}, {c}')
    I(f's_mov_b32 s{S_T0}, {hex(WS_ST[0])}')
    I(f'v_permlane32_swap_b32 {v(st)}, {v(st + 2)}')
    I(f'v_permlane32_swap_b32 {v(st + 1)}, {v(st + 3)}')
    I(f'v_add_f32 {v(st)}, {v(st)}, {v(st + 2)}')
    I(f'v_add_f32 {v(st + 1)}, {v(st + 1)}, {v(st + 3)}')
    I(f'v_permlane16_swap_b32 {v(st)}, {v(st + 1)}')
    I(f'v_add_f32 {v(st)}, {v(st)}, {v(st + 1)}')
    for sh in (8, 4, 2, 1):
        I(f'v_add_f32_dpp {v(st)}, {v(st)}, {v(st)} row_ror:{sh} row_mask:0xf bank_mask:0xf')
    I('s_mov_b32 exec_lo, 0x00010001')
    I('s_mov_b32 exec_hi, 0x00010001')
    I(f'buffer_store_dword {v(st)}, {v(x0)}, {WS}, s{S_T0} offen sc1')
    I('s_mov_b64 exec, -1')
    flag = P.alloc()
    I(f'global_load_dword {v(flag)}, {v(zero4)}, {s(S_DBG, 2)} sc1')
    stamp('a_stored')

    def arrive1():
        A.wait_vm()
        stamp('a_drained')
        global_arrive(first=(flag, zero4))
        stamp('arr1')
    hooks = {KG_ARR: [arrive1]}
    for i, th in enumerate(dma_w(0, L_A, vwd)):
        hooks.setdefault(KG_ARR + 1 + 2 * i, []).append(th)
    kgen(par, kg, gi, hooks)
    P.free(st, 4), P.free(xs, 8), P.free(xt, 8), P.free(flag), P.free(zero4, 4), P.free(pf, 2), P.free(vwp)
    for r in t:
        P.free(r)
    stamp('a_kgen')
    A.wait_vm()
    return vwd, vod, vor


def x2store(layer, d):
    I(f's_mov_b32 s{S_T0}, {hex(WS_X2[layer])}')
    for i in range(8):
        I(f'buffer_store_dword {v(d + i)}, {v(V_X2ST)}, {WS}, s{S_T0} offen sc1')
        if i < 7:
            I(f's_add_u32 s{S_T0}, s{S_T0}, 8192')


def kgen(par, kg, gi, hooks):
    LOG2E = math.log2(math.e)
    A.wait_lg()
    I(f's_lshl_b32 s{S_T0}, s{S_D}, 16')
    I(f's_and_b32 s{S_T1}, s{S_D}, 0xffff0000')
    I(f's_lshl_b32 s{S_D}, s{S_D + 1}, 16')
    I(f's_and_b32 s{S_D + 1}, s{S_D + 1}, 0xffff0000')
    I(f's_cmp_ge_u32 s{S_W}, 2')
    I(f's_cselect_b32 s{S_T0}, s{S_T1}, s{S_T0}')
    dt = par + 6
    I(f'v_mov_b32 {v(dt)}, s{S_T0}')
    I(f'v_mul_f32 {v(dt)}, s{S_EXP}, {v(dt)}')
    I(f'v_exp_f32 {v(dt)}, {v(dt)}')
    for i in range(6):
        I(f'v_lshlrev_b32 {v(par + i)}, 16, {v(par + i)}')
    I(f'v_cvt_pk_bf16_f32 {v(dt)}, {v(dt)}, {v(dt)}')
    I(f'v_and_b32 {v(dt)}, 0xffff0000, {v(dt)}')
    z, Bc, Cc = par, par + 2, par + 4
    pk('mul', v(z, 2), (v(z, 2), 'p'), bc(dt))
    pk('mul', v(Bc, 2), (v(Bc, 2), 'p'), bc(dt))
    tmp = P.alloc(2, 2)
    CB = P.alloc(2, 2)
    cmul(CB, Cc, Bc, tmp)
    E = {}
    for rho in (1, 8, 64, 256):
        e = P.alloc(2, 2)
        E[rho] = e
        I(f'v_mul_f32 {v(tmp)}, {f32(rho * LOG2E)}, {v(z)}')
        I(f'v_mul_f32 {v(tmp + 1)}, {f32(rho / (2 * math.pi))}, {v(z + 1)}')
        I(f'v_exp_f32 {v(tmp)}, {v(tmp)}')
        I(f'v_fract_f32 {v(tmp + 1)}, {v(tmp + 1)}')
        I(f'v_cos_f32 {v(e)}, {v(tmp + 1)}')
        I(f'v_sin_f32 {v(e + 1)}, {v(tmp + 1)}')
        pk('mul', v(e, 2), (v(e, 2), 'p'), bc(tmp))
    pkr = [P.alloc(), P.alloc()]
    cnt = [0]

    def put(row, r, neg):
        d = pkr[cnt[0] & 1]
        cnt[0] += 1
        I(f'v_cvt_pk_bf16_f32 {v(d)}, {v(r)}, {"-" if neg else ""}{v(r + 1)}')
        I(f'ds_write_b32 {v(kg["w"])}, {v(d)} offset:{row * KG_ROW}')
        for th in hooks.pop(cnt[0], []):
            th()
    for rho, x, y in ((128, 64, 64), (192, 128, 64), (2, 1, 1), (4, 2, 2)):
        E[rho] = P.alloc(2, 2)
        cmul(E[rho], E[x], E[y], tmp)
    cur = P.alloc(2, 2)
    o = P.alloc(2, 2)
    I(f'v_mov_b32 {v(pkr[0])}, 0x3f80')
    I(f'ds_write_b32 {v(kg["w"])}, {v(pkr[0])}')
    cnt[0] = 1
    for m in (1, 2, 3):
        put(8 * m, E[64 * m], False)
    for j in range(1, 8):
        if j == 1:
            g = E[8]
        elif j == 2:
            cmul(cur, E[8], E[8], tmp)
            g = cur
        else:
            cmul(cur, cur, E[8], tmp)
        put(j, g, False)
        for m in (1, 2, 3):
            cmul(o, g, E[64 * m], tmp)
            put(8 * m + j, o, False)
    put(32, CB, True)
    for j in range(1, 8):
        cmul(cur, CB if j == 1 else cur, E[1], tmp)
        put(32 + j, cur, True)
    U = CB
    cmul(U, U, E[256], tmp)
    put(40, U, True)
    for j in range(1, 4):
        cmul(cur, U if j == 1 else cur, E[2], tmp)
        put(40 + j, cur, True)
    for j in range(2):
        cmul(U, U, E[256], tmp)
        put(44 + 2 * j, U, True)
        cmul(cur, U, E[4], tmp)
        put(45 + 2 * j, cur, True)
    for j in range(5):
        cmul(U, U, E[256], tmp)
        put(48 + j, U, True)
    for r in list(E.values()) + [tmp, CB, cur, o]:
        P.free(r, 2)
    P.free(pkr[0]), P.free(pkr[1])
    P.free(par, 8)
    assert not hooks
    stamp('a_kg1')
    A.barrier()
    d0, d1 = P.alloc(4, 2), P.alloc(4, 2)
    mf = []
    for st in range(8):
        for tl, d in ((0, d0), (1, d1)):
            def em(reg, st=st, tl=tl, d=d):
                c = '0' if st == 0 else v(d, 4)
                I(f'v_mfma_f32_16x16x32_bf16 {v(d, 4)}, {v(reg[("a", tl, st)], 4)}, {v(reg[("g", st)], 4)}, {c}')
            mf.append((em, [('a', tl, st), ('g', st)]))

    def loader(k, r):
        if k[0] == 'g':
            return [f'ds_read_b128 {v(r, 4)}, {v(kg["g"])} offset:{64 * k[1]}']
        base = kg['a0'] if k[1] == 0 else kg['a1']
        return [f'ds_read_b128 {v(r, 4)}, {v(base)} offset:{(32 + 16 * k[1]) * KG_ROW + 64 * k[2]}']
    stream(mf, loader, 12, 8, rate=2, burst=12)
    I(f'ds_write_b64 {v(kg["t1"])}, {v(d0, 2)}')
    I(f'ds_write_b64 {v(kg["t2"])}, {v(d0 + 2, 2)}')
    for r in range(4):
        I(f'ds_write_b32 {v(kg["t3"])}, {v(d1 + r)} offset:{2048 + 128 * r}')
    P.free(d0, 4), P.free(d1, 4)
    stamp('a_kg2')
    A.barrier()
    for u in range(17):
        I(f'ds_read_b32 {v(gi + u)}, {v(gi + u)}')
    c = P.alloc(16, 2)
    for cp in range(2):
        for m in range(8):
            I(f'v_cvt_pk_bf16_f32 {v(c + 8 * cp + m)}, {v(gi + 2 * m + cp)}, {v(gi + 2 * m + cp + 1)}')
        for hq in range(2):
            I(f'ds_write_b128 {v(kg["rk"])}, {v(c + 8 * cp + 4 * hq, 4)} offset:{4160 * cp + 16 * hq}')
    P.free(c, 16), P.free(gi, 18)
    for r in kg.values():
        P.free(r)


def conv(layer, vwd):
    xd = P.alloc(8, 2)
    sm = P.alloc(8, 2)
    sq = P.alloc(8, 2)
    I(f's_lshl_b32 s{S_T0}, s2, 13')
    I(f's_add_u32 s{S_T0}, s{S_T0}, {hex(WS_X2[layer])}')
    I(f's_mov_b32 s{S_T1}, {hex(WS_ST[layer])}')
    I(f's_mov_b32 s{S_T2}, {hex(WS_ST[layer] + 8192)}')
    for i in range(2):
        I(f'buffer_load_dwordx4 {v(sm + 4 * i, 4)}, {v(V_CVL)}, {WS}, s{S_T1} offen offset:{1024 * i} sc1')
        I(f'buffer_load_dwordx4 {v(sq + 4 * i, 4)}, {v(V_CVL)}, {WS}, s{S_T2} offen offset:{1024 * i} sc1')
        I(f'buffer_load_dwordx4 {v(xd + 4 * i, 4)}, {v(V_CVL)}, {WS}, s{S_T0} offen offset:{1024 * i} sc1')
    stamp(f'conv{layer}_iss')
    if layer == 0:
        kdma = dma_w(1, L_B, vwd, 'wk')
        vwb = P.alloc()
        I(f'v_add_u32 {v(vwb)}, {L_B}, {v(V_XT[0])}')
        for i, th in enumerate(consume_w(0, V_XT[0])):
            th()
            if i % 8 == 7:
                kdma.pop(0)()
    base = P.alloc(16, 2)
    hh = P.alloc(4, 2)
    hp = P.alloc(4, 2)
    LN = s(S_LN, 2)
    for i in range(2):
        m, q, x = sm + 4 * i, sq + 4 * i, xd + 4 * i
        for j in (0, 2):
            pk('mul', v(m + j, 2), (v(m + j, 2), 'p'), (LN, 'l'))
        for j in (0, 2):
            pk('fma', v(q + j, 2), (v(q + j, 2), 'p'), (LN, 'l'), (LN, 'h'))
        for j in (0, 2):
            pk('fma', v(q + j, 2), (v(m + j, 2), 'p', 'b'), (v(m + j, 2), 'p'), (v(q + j, 2), 'p'))
        for j in range(4):
            I(f'v_max_f32 {v(q + j)}, s{S_LN + 1}, {v(q + j)}')
        for j in range(4):
            I(f'v_rsq_f32 {v(q + j)}, {v(q + j)}')
        for c in range(2):
            b = base + 8 * i + 4 * c
            for j in range(4):
                if c == 0:
                    I(f'v_lshlrev_b32 {v(b + j)}, 16, {v(x + j)}')
                else:
                    I(f'v_and_b32 {v(b + j)}, 0xffff0000, {v(x + j)}')
            for j in (0, 2):
                pk('add', v(hh + j, 2), (v(b + j, 2), 'p'), (v(m + j, 2), 'p', 'b'))
            for j in (0, 2):
                pk('mul', v(hh + j, 2), (v(hh + j, 2), 'p'), (v(q + j, 2), 'p'))
            for j in (0, 2):
                I(f'v_cvt_pk_bf16_f32 {v(hp + 2 * c + j // 2)}, {v(hh + j)}, {v(hh + j + 1)}')
            I(f'ds_write_b64 {v(V_HW)}, {v(hp + 2 * c, 2)} offset:{4608 * c + 512 * i}')
            if layer == 0:
                kdma.pop(0)()
            for j in (0, 2):
                pk('fma', v(b + j, 2), (v(hh + j, 2), 'p'), (s(S_D, 2), 'h' if c else 'l'), (v(b + j, 2), 'p'))
    P.free(xd, 8), P.free(sm, 8), P.free(sq, 8), P.free(hh, 4), P.free(hp, 4)
    A.barrier()
    stamp(f'conv{layer}_h')
    acc = P.alloc(32, 2)
    mf = []
    seen = set()
    fin = {}
    for cc in range(4):
        if cc < 3:
            seq = [(p, n) for p in range(7, -1, -1) for n in range(p, 8)]
        else:
            seq = [(p, n) for n in range(8) for p in range(n + 1)]
        for (p, n) in seq:
            def em(reg, cc=cc, p=p, n=n, fst=(n not in seen)):
                d = v(acc + 4 * n, 4)
                I(f'v_mfma_f32_16x16x32_bf16 {d}, {v(reg[("A", cc, p)], 4)}, {v(reg[("B", cc, n - p)], 4)}, {"0" if fst else d}')
            seen.add(n)
            mf.append((em, [('A', cc, p), ('B', cc, n - p)]))
            fin[n] = len(mf) - 1

    def loader(k, r):
        _, cc, x = k
        if k[0] == 'B':
            return [f'ds_read_b128 {v(r, 4)}, {v(V_CB)} offset:{512 * x + 64 * (3 - cc)}']
        o = 128 * (1 - (x & 1)) + 16 * (3 - cc)
        return [f'ds_read2_b32 {v(r, 2)}, {v(V_CA[x >> 1])} offset0:{o} offset1:{o + 1}',
                f'ds_read2_b32 {v(r + 2, 2)}, {v(V_CA[x >> 1])} offset0:{o + 2} offset1:{o + 3}']
    fill = {}
    for n in range(8):
        at = min(fin[n] + 7, len(mf) - 1)
        fill.setdefault(at, []).append(lambda reg, n=n: I(f'ds_write_b128 {v(V_EXW)}, {v(acc + 4 * n, 4)} offset:{1024 * n}'))
    if layer == 0:
        def wrap(th):
            f = lambda reg: th()
            f.lds = getattr(th, 'lds', False)
            return f
        rest = kdma + dma_w(2, L_A, vwd, 'wv')
        for i, th in enumerate(rest):
            fill.setdefault(2 + 5 * i, []).append(wrap(th))

        def kready():
            A.wait_vm('wk')
            A.barrier(lg=False)
        fill.setdefault(60, []).append(wrap(kready))
        for i, th in enumerate(consume_w(1, vwb)):
            fill.setdefault(61 + i + i // 2, []).append(wrap(th))
        fill.setdefault(113, []).append(wrap(A.barrier))
    stream(mf, loader, 22, 40, fill=fill, burst=12)
    P.free(acc, 32)
    if layer == 0:
        P.free(vwb)
    A.barrier()
    stamp(f'conv{layer}_mm')
    ex = P.alloc(32, 2)
    for i in range(2):
        for u in range(4):
            I(f'ds_read_b128 {v(ex + 16 * i + 4 * u, 4)}, {v(V_EXR)} offset:{8192 * u + 1024 * i}')
    I(f's_mov_b32 s{S_T0}, {hex(WS_XT[layer])}')
    I(f's_mov_b32 s{S_T1}, {hex(WS_XT[layer] + 262144)}')
    for i in range(2):
        for c in range(2):
            b = base + 8 * i + 4 * c
            e = ex + 16 * i + 8 * c
            for j in (0, 2):
                pk('add', v(b + j, 2), (v(b + j, 2), 'p'), (v(e + j, 2), 'p'))
            for j in (0, 2):
                pk('add', v(b + j, 2), (v(b + j, 2), 'p'), (v(e + 4 + j, 2), 'p'))
            for j in (0, 2):
                I(f'v_cvt_pk_bf16_f32 {v(e + j // 2)}, {v(b + j)}, {v(b + j + 1)}')
            I(f'buffer_store_dwordx2 {v(e, 2)}, {v(V_XTST)}, {WS}, s{S_T0 + i} offen offset:{128 * c} sc1')
    P.free(ex, 32), P.free(base, 16)
    stamp(f'conv{layer}_st')


def phi(x, tmp):
    EX = s(S_EXP, 2)
    for j in (0, 2):
        pk('fma', v(tmp + j, 2), (v(x + j, 2), 'p'), (EX, 'l'), (EX, 'h'))
    for j in range(4):
        I(f'v_exp_f32_e64 {v(tmp + j)}, {v(tmp + j)} clamp')
    for j in range(4):
        I(f'v_max_f32 {v(x + j)}, s{S_E6}, {v(x + j)}')
    for j in (0, 2):
        pk('add', v(x + j, 2), (v(x + j, 2), 'p'), (v(tmp + j, 2), 'p'))


def p3(layer, after_dma, fillers):
    for ck in range(4):
        I(f's_mov_b32 s{S_T0}, {hex(WS_XT[layer] + ck * 16384)}')
        if ck == 0:
            I(f's_lshl_b32 m0, s{S_W}, 12')
        else:
            I('s_add_u32 m0, m0, 16384')
        for j in range(4):
            I(f'buffer_load_dwordx4 {v(V_XTLD)}, {WS}, s{S_T0} offen offset:{1024 * j} sc1 lds', tag=f'xt{ck}')
    after_dma()
    acc = P.alloc(48, 2)
    ss = P.alloc(8, 2)
    mf = []
    fill = {}
    for st in range(16):
        for i in range(4):
            for y in range(3):
                def em(reg, st=st, i=i, y=y):
                    d = v(acc + 16 * y + 4 * i, 4)
                    c = '0' if st == 0 else d
                    x = v(reg[(st, i)], 4)
                    if y == 0:
                        I(f'v_mfma_f32_16x16x32_bf16 {d}, {wq_reg(y, st)}, {x}, {c}')
                    else:
                        I(f'v_mfma_f32_16x16x32_bf16 {d}, {x}, {wq_reg(y, st)}, {c}')
                mf.append((em, [(st, i)]))
            if i == 0:
                for y in range(2):
                    def em(reg, st=st, y=y):
                        d = v(ss + 4 * y, 4)
                        x = v(reg[(st, 0)], 4)
                        I(f'v_mfma_f32_16x16x32_bf16 {d}, {v(V_ONES, 4) if y else x}, {x}, {"0" if st == 0 else d}')
                    mf.append((em, [(st, 0)]))
    for i, th in enumerate(fillers):
        fill.setdefault(70 + 9 * i, []).append(lambda reg, th=th: th())

    def loader(k, r):
        st, i = k
        return [f'ds_read_b64_tr_b16 {v(r + 2 * z, 2)}, {v(V_XT[i])} offset:{4096 * st + 2048 * z}' for z in range(2)]

    def mkgate(ck):
        def g():
            A.wait_vm(f'xt{ck}')
            A.barrier(lg=(ck == 0))
            if ck == 0:
                stamp(f'p3_{layer}_c0')
        return g
    gate = {(4 * ck, 0): mkgate(ck) for ck in range(4)}
    stream(mf, loader, 9, 16, fill=fill, gate=gate, burst=8)
    stamp(f'p3_{layer}_mm')
    I(f'v_cndmask_b32 {v(ss)}, {v(ss)}, {v(ss + 1)}, {s(S_M1, 2)}')
    I(f'v_cndmask_b32 {v(ss + 2)}, {v(ss + 2)}, {v(ss + 3)}, {s(S_M1, 2)}')
    I(f'v_mul_f32 {v(ss + 4)}, s{S_LN}, {v(ss + 4)}')
    I(f'v_cndmask_b32 {v(ss)}, {v(ss)}, {v(ss + 2)}, {s(S_M2, 2)}')
    I(f'v_mul_f32 {v(ss + 1)}, {v(ss + 4)}, {v(ss + 4)}')
    I(f'v_fma_f32 {v(ss + 1)}, {v(ss)}, s{S_LN}, -{v(ss + 1)}')
    I(f'v_max_f32 {v(ss + 1)}, 0, {v(ss + 1)}')
    I(f'v_add_f32 {v(ss + 1)}, s{S_LN + 1}, {v(ss + 1)}')
    I(f'v_rsq_f32 {v(ss + 1)}, {v(ss + 1)}')
    I('s_mov_b32 exec_lo, 0x00f0000f')
    I('s_mov_b32 exec_hi, 0xf0000f00')
    I(f'v_mul_f32 {v(ss)}, {v(ss + 4)}, {v(ss + 1)}')
    I(f'ds_write2st64_b32 {v(V_SW)}, {v(ss + 1)}, {v(ss)} offset0:0 offset1:1')
    I('s_mov_b64 exec, -1')
    A.barrier()
    stamp(f'p3_{layer}_st')
    P.free(ss, 8)
    r4 = P.alloc(32, 2)
    r1 = P.alloc(8, 2)
    ta = P.alloc(2)
    for i in range(4):
        if i:
            I(f'v_xor_b32 {v(ta)}, {64 * i}, {v(V_SR4)}')
            I(f'v_xor_b32 {v(ta + 1)}, {64 * i}, {v(V_SR1)}')
        a4 = ta if i else V_SR4
        a1 = ta + 1 if i else V_SR1
        I(f'ds_read_b128 {v(r4 + 8 * i, 4)}, {v(a4)}')
        I(f'ds_read_b128 {v(r4 + 8 * i + 4, 4)}, {v(a4)} offset:256')
        I(f'ds_read2st64_b32 {v(r1 + 2 * i, 2)}, {v(a1)} offset0:0 offset1:1')
    P.free(ta, 2)
    tmp = P.alloc(4, 2)
    fk = P.alloc(8, 2)
    fv = P.alloc(8, 2)
    E6 = s(S_E6, 2)
    for i in range(4):
        r, rm = r4 + 8 * i, r4 + 8 * i + 4
        k_, v_ = acc + 16 + 4 * i, acc + 32 + 4 * i
        for j in (0, 2):
            pk('fma', v(tmp + j, 2), (v(rm + j, 2), 'p', 'b'), bc(V_CSKV), (E6, 'p'))
        for j in (0, 2):
            pk('fma', v(k_ + j, 2), (v(k_ + j, 2), 'p'), (v(r + j, 2), 'p'), (v(tmp + j, 2), 'p'))
        for j in (0, 2):
            pk('mul', v(v_ + j, 2), (v(v_ + j, 2), 'p'), (v(r + j, 2), 'p'))
        for j in (0, 2):
            pk('fma', v(v_ + j, 2), (v(rm + j, 2), 'p', 'b'), bc(V_CSKV + 1), (v(v_ + j, 2), 'p'))
        phi(k_, tmp)
        for j in (0, 2):
            I(f'v_cvt_pk_bf16_f32 {v(fk + 2 * i + j // 2)}, {v(k_ + j)}, {v(k_ + j + 1)}')
            I(f'v_cvt_pk_bf16_f32 {v(fv + 2 * i + j // 2)}, {v(v_ + j)}, {v(v_ + j + 1)}')
    stamp(f'p3_{layer}_kv')
    dkv, dz = r4, r4 + 4
    for hf in range(2):
        I(f'v_mfma_f32_16x16x32_bf16 {v(dkv, 4)}, {v(fv + 4 * hf, 4)}, {v(fk + 4 * hf, 4)}, {v(dkv, 4) if hf else 0}')
        I(f'v_mfma_f32_16x16x32_bf16 {v(dz, 4)}, {v(V_ONES, 4)}, {v(fk + 4 * hf, 4)}, {v(dz, 4) if hf else 0}')

    def qtile(i):
        q_ = acc + 4 * i
        rr = v(r1 + 2 * i, 2)
        for j in (0, 2):
            pk('fma', v(tmp + j, 2), (rr, 'h', 'b'), (v(V_CSQ + j, 2), 'p'), (E6, 'p'))
        for j in (0, 2):
            pk('fma', v(q_ + j, 2), (v(q_ + j, 2), 'p'), (rr, 'l'), (v(tmp + j, 2), 'p'))
        phi(q_, tmp)
        for j in (0, 2):
            I(f'v_cvt_pk_bf16_f32 {v(q_ + j // 2)}, {v(q_ + j)}, {v(q_ + j + 1)}')
        I(f's_xor_b32 s{S_T0}, s{S_W}, {i}')
        I(f's_lshr_b32 s{S_T1}, s{S_T0}, 1')
        I(f's_lshl_b32 s{S_T1}, s{S_T1}, 15')
        I(f's_and_b32 s{S_T0}, s{S_T0}, 1')
        I(f's_lshl_b32 s{S_T0}, s{S_T0}, 9')
        I(f's_add_u32 s{S_T0}, s{S_T0}, s{S_T1}')
        I(f's_add_u32 s{S_T0}, s{S_T0}, {hex(WS_PQ[layer])}')
        I(f'buffer_store_dwordx2 {v(q_, 2)}, {v(V_PQST)}, {WS}, s{S_T0} offen sc1')
    qtile(0)
    I(f's_mov_b32 s{S_T2}, {hex(WS_KV[layer])}')
    for r in range(4):
        I(f'buffer_atomic_add_f32 {v(dkv + r)}, {v(V_KVST)}, {WS}, s{S_T2} offen offset:{64 * r}')
    I(f's_mov_b32 s{S_T0}, {hex(WS_KV[layer] + 32768)}')
    I('s_mov_b64 exec, 0xffff')
    I(f'buffer_atomic_add_f32 {v(dz)}, {v(V_ZST)}, {WS}, s{S_T0} offen')
    I('s_mov_b64 exec, -1')
    stamp(f'p3_{layer}_atom')
    for i in range(1, 4):
        qtile(i)
    stamp(f'p3_{layer}_q')
    P.free(r4, 32), P.free(r1, 8), P.free(tmp, 4), P.free(fk, 8), P.free(fv, 8), P.free(acc, 48)


def p4_pre():
    acc = P.alloc(16, 2)
    res = P.alloc(8, 2)
    for j in range(4):
        I(f'ds_read_b64_tr_b16 {v(res + 2 * j, 2)}, {v(V_RES[j & 1])} offset:{512 * j}')
    for j in range(8):
        I(f'v_lshlrev_b32 {v(acc + 2 * j)}, 16, {v(res + j)}')
        I(f'v_and_b32 {v(acc + 2 * j + 1)}, 0xffff0000, {v(res + j)}')
    P.free(res, 8)
    return acc


def p4(layer, acc):
    zf = P.alloc(8, 2)
    kv = P.alloc(32, 2)
    pq = P.alloc(32, 2)
    I(f's_mov_b32 s{S_T0}, {hex(WS_KV[layer] + 32768)}')
    for j in range(2):
        I(f'buffer_load_dwordx4 {v(zf + 4 * j, 4)}, {v(V_ZLD)}, {WS}, s{S_T0} offen offset:{16 * j} sc1')
    for pp in range(4):
        if pp % 2 == 0:
            I(f's_mov_b32 s{S_T0}, {hex(WS_KV[layer] + 2048 * pp)}')
            I(f's_mov_b32 s{S_T1}, {hex(WS_PQ[layer] + 2048 * pp)}')
        for j in range(2):
            I(f'buffer_load_dwordx4 {v(kv + 8 * pp + 4 * j, 4)}, {v(V_KVLD)}, {WS}, s{S_T0} offen offset:{2048 * (pp & 1) + 1024 * j} sc1')
        for j in range(2):
            I(f'buffer_load_dwordx4 {v(pq + 8 * pp + 4 * j, 4)}, {v(V_PQLD)}, {WS}, s{S_T1} offen offset:{2048 * (pp & 1) + 1024 * j} sc1')
    stamp(f'p4_{layer}_iss')
    for j in range(4):
        I(f'v_cvt_pk_bf16_f32 {v(zf + j)}, {v(zf + 2 * j)}, {v(zf + 2 * j + 1)}')
    stamp(f'p4_{layer}_z')
    D = [P.alloc(16, 2), P.alloc(16, 2)]
    MK = s(S_MASK, 2)

    def prep(pp):
        x = kv + 8 * pp
        for j in range(4):
            I(f'v_cvt_pk_bf16_f32 {v(x + j)}, {v(x + 2 * j)}, {v(x + 2 * j + 1)}')
        for j in range(4):
            I(f'v_cndmask_b32 {v(x + 4 + j)}, {v(zf + j)}, {v(x + j)}, {MK}')
        for j in range(4):
            I(f'v_cndmask_b32 {v(x + j)}, {v(x + j)}, {v(zf + j)}, {MK}')

    def mm(hh):
        I(f'v_mfma_f32_32x32x16_bf16 {v(D[hh & 1], 16)}, {v(kv + 4 * hh, 4)}, {v(pq + 4 * hh, 4)}, 0')

    def norm(hh):
        d = D[hh & 1]
        num = d + 8 * (hh & 1)
        den = d + 8 * (1 - (hh & 1)) + hh
        I(f'v_add_f32 {v(den)}, s{S_E6}, {v(den)}')
        I(f'v_rcp_f32 {v(den)}, {v(den)}')
        for j in range(0, 8, 2):
            pk('mul', v(num + j, 2), (v(num + j, 2), 'p'), bc(den))
        o = pq + 4 * hh
        for j in range(4):
            I(f'v_cvt_pk_bf16_f32 {v(o + j)}, {v(num + 2 * j)}, {v(num + 2 * j + 1)}')
        I(f'ds_write_b128 {v(V_EXW)}, {v(o, 4)} offset:{1024 * hh}')
    prep(0)
    for pp in range(4):
        mm(2 * pp)
        mm(2 * pp + 1)
        if pp < 3:
            prep(pp + 1)
        norm(2 * pp)
        norm(2 * pp + 1)
        if pp in (0, 2):
            stamp(f'p4_{layer}_n{pp}')
    P.free(zf, 8), P.free(kv, 32), P.free(pq, 32), P.free(D[0], 16), P.free(D[1], 16)
    A.barrier()
    stamp(f'p4_{layer}_o')
    mf = []
    for h in range(32):
        def em(reg, h=h):
            I(f'v_mfma_f32_32x32x16_bf16 {v(acc, 16)}, {wo_reg(h)}, {v(reg[h], 4)}, {v(acc, 16)}')
        mf.append((em, [h]))
    stream(mf, lambda k, r: [f'ds_read_b128 {v(r, 4)}, {v(V_OFR)} offset:{1024 * k}'], 8, 7)
    stamp(f'p4_{layer}_mm')
    o = P.alloc(8, 2)
    for j in range(8):
        I(f'v_cvt_pk_bf16_f32 {v(o + j)}, {v(acc + 2 * j)}, {v(acc + 2 * j + 1)}')
    if layer == 0:
        x2store(1, o)
        ss = P.alloc(2, 2)
        for j in range(8):
            I(f'v_dot2_f32_bf16 {v(ss)}, {v(o + j)}, s{S_ONES}, {v(ss) if j else 0}')
            I(f'v_dot2_f32_bf16 {v(ss + 1)}, {v(o + j)}, {v(o + j)}, {v(ss + 1) if j else 0}')
        I(f'v_permlane32_swap_b32 {v(ss)}, {v(ss + 1)}')
        I(f'v_add_f32 {v(ss)}, {v(ss)}, {v(ss + 1)}')
        I(f's_mov_b32 s{S_T0}, {hex(WS_ST[1])}')
        I(f'buffer_atomic_add_f32 {v(ss)}, {v(V_STAT)}, {WS}, s{S_T0} offen')
        P.free(ss, 2)
    else:
        for j in range(2):
            I(f'global_store_dwordx4 {v(V_TILE)}, {v(o + 4 * j, 4)}, {s(S_OUT, 2)} offset:{16 * j}')
    P.free(o, 8), P.free(acc, 16)
    stamp(f'p4_{layer}_st')


def main():
    vwd, vod, vor = prologue()
    bar = 1
    for layer in range(2):
        stamp(f'pre_wait{bar}')
        global_wait(bar)
        stamp(f'wait{bar}')
        conv(layer, vwd)
        A.wait_vm()
        global_arrive()
        bar += 1
        stamp(f'arr{bar}')
        if layer == 0:
            wod = dma_wo(0, L_B, vod)
            for i, th in enumerate(consume_w(2, V_XT[0])):
                th()
                if i % 8 == 7:
                    wod.pop(0)()
            for th in wod:
                th()
            colsums()
            A.wait_vm()
            P.free(vwd)
        global_wait(bar)
        stamp(f'wait{bar}')
        if layer == 0:
            p3(layer, lambda: consume_wo(0, vor), dma_wo(1, L_B, vod))
        else:
            p3(layer, lambda: None, [])
        A.wait_vm()
        global_arrive()
        bar += 1
        stamp(f'arr{bar}')
        if layer == 0:
            consume_wo(1, vor)
            P.free(vod), P.free(vor)
        acc = p4_pre()
        global_wait(bar)
        stamp(f'wait{bar}')
        p4(layer, acc)
        if layer == 0:
            A.wait_vm()
            global_arrive()
            bar += 1
    if DIAG:
        A.wait_vm()
        stamp('end')
        A._wait(lg=0)
        t = P.alloc(2)
        I(f's_lshl_b32 s{S_T0}, s2, 2')
        I(f's_add_u32 s{S_T0}, s{S_T0}, s{S_W}')
        I(f's_lshl_b32 s{S_T0}, s{S_T0}, 7')
        I(f's_add_u32 s{S_T0}, s{S_T0}, {hex(WS_DIAG)}')
        I(f'v_mov_b32 {v(t + 1)}, 0')
        I('s_mov_b64 exec, 1')
        for k in range(nstamp[0]):
            I(f'v_mov_b32 {v(t)}, s{S_STAMP + 2 * k}')
            I(f'buffer_store_dword {v(t)}, {v(t + 1)}, {WS}, s{S_T0} offen offset:{4 * k}')
        pr = [x for x in sys.argv if x.startswith('--probe=')]
        if pr:
            nm = pr[0][8:]
            k = stamp_names.index(nm)
            I(f's_add_u32 s{S_T1}, s{S_STAMP + 2 * k}, 6000')
            A.label('L_probe')
            I('s_memrealtime s[4:5]')
            A._wait(lg=0)
            I(f's_sub_u32 s{S_T0}, s4, s{S_T1}')
            I(f's_cmp_lt_i32 s{S_T0}, 0')
            I('s_cbranch_scc1 L_probe')
        I(f's_lshl_b32 s{S_T0}, s2, 2')
        I(f's_add_u32 s{S_T0}, s{S_T0}, s{S_W}')
        I(f's_cmp_lg_u32 s{S_T0}, 400')
        I('s_cbranch_scc1 L_end')
        sel = list(range(1, nstamp[0]))
        for j, k in enumerate(sel):
            I(f's_sub_u32 s{S_T0}, s{S_STAMP + 2 * k}, s{S_STAMP}')
            I(f'v_mov_b32 {v(t)}, s{S_T0}')
            I(f'global_store_dword {v(t + 1)}, {v(t)}, {s(S_DBG, 2)} offset:{4 * (j + 1)}')
        print('debug stamps:', [stamp_names[k] for k in sel], file=sys.stderr)
        P.free(t, 2)
    A.label('L_end')
    A.raw('    s_endpgm')

    lines, info = layout(A.out, align='--noalign' not in sys.argv, touch='--notouch' not in sys.argv)
    body = '\n'.join(lines) + '\n'
    print(info, file=sys.stderr)
    ref = open(f'cdna_kernels/{NAME}.s.ref').read().splitlines()
    head = []
    for ln in ref:
        if ln.startswith('; @launch'):
            head.append(f'; @launch grid=(256,1,1) block=(256,1,1) lds={L_END}')
            break
        head.append(ln)
    txt = '\n'.join(head) + f'''
.amdgcn_target "amdgcn-amd-amdhsa--gfx950"
.text
.globl {NAME}_kernel
.p2align 12
.p2align 8
.type {NAME}_kernel,@function
{NAME}_kernel:
''' + body + f'''.section .rodata,"a"
.p2align 6
.amdhsa_kernel {NAME}_kernel
  .amdhsa_next_free_vgpr 512
  .amdhsa_next_free_sgpr 102
  .amdhsa_accum_offset 256
  .amdhsa_group_segment_fixed_size 0
  .amdhsa_kernarg_size 120
  .amdhsa_user_sgpr_count 2
  .amdhsa_user_sgpr_kernarg_segment_ptr 1
  .amdhsa_system_sgpr_workgroup_id_x 1
.end_amdhsa_kernel
'''
    out = [x for x in sys.argv[1:] if not x.startswith('--')]
    path = out[0] if out else f'cdna_kernels/{NAME}.s'
    open(path, 'w').write(txt)
    if DIAG:
        open(path + '.stamps', 'w').write('\n'.join(stamp_names))
    print(f'wrote {path}: {A.ninstr} instrs, {A.nnop} nop states, vgpr peak {P.peak}, lds {L_END}', file=sys.stderr)


main()
```

```python
import re

REG_RE = re.compile(r'(?<![\w.])([vas])(?:(\d+)|\[(\d+):(\d+)\])(?![\w])')
TRANS = ('v_exp_f32', 'v_log_f32', 'v_rcp_f32', 'v_rsq_f32', 'v_sqrt_f32', 'v_sin_f32', 'v_cos_f32')


def regs_of(op):
    out = set()
    for m in REG_RE.finditer(op):
        f = m.group(1)
        if m.group(2) is not None:
            out.add((f, int(m.group(2))))
        else:
            for i in range(int(m.group(3)), int(m.group(4)) + 1):
                out.add((f, i))
    if re.search(r'\bvcc\b', op):
        out.add(('s', 'vcc'))
    if re.search(r'\bexec\b', op):
        out.add(('s', 'exec'))
    if re.search(r'\bm0\b', op):
        out.add(('s', 'm0'))
    return out


def split_ops(s):
    ops, depth, cur = [], 0, ''
    for ch in s:
        if ch == '[':
            depth += 1
        if ch == ']':
            depth -= 1
        if ch == ',' and depth == 0:
            ops.append(cur.strip())
            cur = ''
        else:
            cur += ch
    if cur.strip():
        ops.append(cur.strip())
    return ops


class Ins:
    def __init__(self, text):
        self.text = text
        t = text.split(';')[0].strip()
        parts = t.split(None, 1)
        self.mn = parts[0]
        self.ops = split_ops(parts[1]) if len(parts) > 1 else []
        mn = self.mn
        self.defs, self.uses = set(), set()
        self.kind = 'other'
        self.srcA = self.srcB = self.srcC = set()
        self.passes = 0
        self.storedata = set()
        ops = self.ops
        R = [regs_of(o) for o in ops]
        if mn.startswith('v_mfma'):
            self.kind = 'mfma'
            self.defs = R[0]
            self.srcA, self.srcB, self.srcC = R[1], R[2], R[3]
            self.uses = R[1] | R[2] | R[3]
            self.passes = 8 if '32x32' in mn else 4
        elif mn.startswith('v_'):
            self.kind = 'valu'
            if mn.startswith('v_cmp'):
                self.defs = R[0]
                self.uses = set().union(*R[1:])
            elif mn.startswith('v_permlane'):
                self.defs = R[0] | R[1]
                self.uses = R[0] | R[1]
            elif mn.startswith('v_nop'):
                pass
            else:
                self.defs = set(R[0])
                rest = R[1:]
                if mn.startswith(('v_add_co', 'v_sub_co', 'v_addc_co', 'v_subb_co')):
                    self.defs |= R[1]
                    rest = R[2:]
                self.uses = set().union(*rest) if rest else set()
                if mn.startswith(('v_fmac', 'v_dot2c', 'v_writelane')) or '_dpp' in mn or 'sdwa' in mn:
                    self.uses |= R[0]
        elif mn.startswith('ds_'):
            self.kind = 'ds'
            if mn.startswith(('ds_read', 'ds_bpermute', 'ds_swizzle', 'ds_permute')):
                self.defs = R[0]
                self.uses = set().union(*R[1:])
            else:
                self.uses = set().union(*R)
                if 'addtid' in mn:
                    self.uses.add(('s', 'm0'))
        elif mn.startswith(('buffer_', 'global_')):
            self.kind = 'vmem'
            islds = bool(re.search(r'\blds\b', t)) or '_lds_' in mn
            if 'load' in mn and not islds:
                self.defs = R[0]
                self.uses = set().union(*R[1:])
            else:
                self.uses = set().union(*R)
                if islds:
                    self.uses.add(('s', 'm0'))
                if 'atomic' in mn and re.search(r'\bsc0\b', t):
                    self.defs = R[0]
                if 'store' in mn and ('x4' in mn or 'x3' in mn):
                    self.storedata = R[0] if mn.startswith('buffer_') else R[1]
            self.islds = islds
        elif mn.startswith(('s_load', 's_memtime', 's_memrealtime')):
            self.kind = 'smem'
            self.defs = R[0]
            self.uses = set().union(*R[1:]) if len(R) > 1 else set()
        elif mn.startswith('s_'):
            self.kind = 'salu'
            if mn.startswith(('s_cmp', 's_cbranch', 's_branch', 's_waitcnt', 's_nop', 's_barrier', 's_endpgm', 's_sleep',
                              's_setprio', 's_setpc', 's_bitcmp')):
                self.uses = set().union(*R) if R else set()
            else:
                self.defs = set(R[0]) if R else set()
                self.uses = set().union(*R[1:]) if len(R) > 1 else set()
                if 'saveexec' in mn:
                    self.defs.add(('s', 'exec'))
        self.trans = mn.replace('_e64', '').replace('_e32', '') in TRANS
        self.dot = mn.startswith('v_dot')
        self.ws = 1
        if mn == 's_nop':
            self.ws = int(ops[0]) + 1


def vonly(s):
    return {r for r in s if r[0] in 'va'}


def sonly(s):
    return {r for r in s if r[0] == 's'}


def need_ws(p, c):
    n = 0
    if p.kind == 'valu':
        pv = vonly(p.defs)
        ps = sonly(p.defs)
        if c.kind == 'mfma' and pv & c.uses:
            n = max(n, 3 if p.dot else 2)
        if c.kind == 'valu':
            if pv & c.uses:
                if c.mn.startswith('v_permlane') or '_dpp' in c.mn:
                    n = max(n, 2)
                if c.mn.startswith(('v_readlane', 'v_readfirstlane')):
                    n = max(n, 1)
                if p.trans and not c.trans:
                    n = max(n, 1)
                if p.trans and c.trans:
                    n = max(n, 1)
            if p.dot and pv & (c.uses | c.defs):
                if c.mn == p.mn:
                    ab = regs_of(c.ops[1]) | regs_of(c.ops[2])
                    if pv & ab:
                        n = max(n, 3)
                else:
                    n = max(n, 3)
            if ps & c.uses:
                n = max(n, 4 if c.mn.startswith(('v_readlane', 'v_writelane')) else 2)
        if p.dot and c.kind in ('vmem', 'ds') and pv & c.uses:
            n = max(n, 3)
        if p.trans and c.kind in ('vmem', 'ds') and pv & c.uses:
            n = max(n, 1)
        if c.kind == 'vmem' and ps & c.uses:
            n = max(n, 5)
        if c.kind in ('salu', 'smem') and ps & c.uses:
            n = max(n, 1)
    if p.kind == 'mfma':
        big = p.passes == 8
        if c.kind == 'mfma':
            if p.defs & (c.srcA | c.srcB):
                n = max(n, 12 if big else 8)
            if p.defs & c.srcC:
                if not (p.defs == c.srcC and p.passes == c.passes):
                    n = max(n, 10 if big else 6)
            if p.defs & c.defs and not (p.defs == c.srcC):
                n = max(n, 10 if big else 6)
        elif c.kind in ('valu', 'vmem', 'ds'):
            if p.defs & (c.uses | c.defs):
                n = max(n, 12 if big else 8)
            if c.kind == 'valu' and p.srcC & c.defs:
                n = max(n, 7 if big else 3)
    if p.kind == 'vmem' and p.storedata:
        if p.storedata & c.defs:
            n = max(n, 2)
    if p.kind == 'salu' and ('s', 'm0') in p.defs and ('s', 'm0') in c.uses and c.kind in ('vmem', 'ds'):
        n = max(n, 1)
    return n


class Asm:
    def __init__(self):
        self.out = []
        self.hist = []
        self.vm = []
        self.lg = []
        self.nnop = 0
        self.cond = False
        self.ninstr = 0

    def raw(self, text):
        self.out.append(text)

    def comment(self, text):
        self.out.append('    ; ' + text)

    def label(self, name):
        self.out.append(name + ':')

    def _emit(self, ins):
        need = 0
        dist = 0
        for p in reversed(self.hist):
            n = need_ws(p, ins)
            if n - dist > need:
                need = n - dist
            dist += p.ws
            if dist >= 14:
                break
        if need > 0:
            nop = Ins(f's_nop {need - 1}')
            self.out.append('    ' + nop.text)
            self.hist.append(nop)
            self.nnop += need
        self.out.append('    ' + ins.text)
        self.hist.append(ins)
        self.hist = self.hist[-20:]
        self.ninstr += 1

    def _count_after(self, q, idx):
        return sum(1 for e in q[idx + 1:] if not e['cond'])

    def _wait(self, vm=None, lg=None):
        s = []
        if vm is not None:
            s.append(f'vmcnt({min(vm, 63)})')
        if lg is not None:
            s.append(f'lgkmcnt({min(lg, 15)})')
        self._emit(Ins('s_waitcnt ' + ' '.join(s)))

    def _retire(self, q, n):
        k = 0
        for i in range(len(q)):
            if self._count_after(q, i) >= n:
                k = i + 1
        del q[:k]

    def I(self, text, tag=None):
        ins = Ins(text)
        touched = vonly(ins.uses | ins.defs)
        wv = wl = None
        for q, name in ((self.vm, 'vm'), (self.lg, 'lg')):
            last = -1
            for i, e in enumerate(q):
                if e['defs'] & touched:
                    last = i
            if last >= 0:
                n = self._count_after(q, last)
                if name == 'vm':
                    wv = n
                else:
                    wl = n
                del q[:last + 1]
        if wv is not None or wl is not None:
            self._wait(wv, wl)
            if wv is not None:
                self._retire(self.vm, min(wv, 63))
            if wl is not None:
                self._retire(self.lg, min(wl, 15))
        self._emit(ins)
        if ins.kind == 'vmem':
            self.vm.append(dict(defs=vonly(ins.defs), tag=tag, cond=self.cond))
        elif ins.kind == 'ds':
            self.lg.append(dict(defs=vonly(ins.defs), tag=tag, cond=self.cond))
        return ins

    def need(self, regs):
        touched = regs_of(regs)
        last = -1
        for i, en in enumerate(self.lg):
            if en['defs'] & touched:
                last = i
        if last >= 0:
            n = self._count_after(self.lg, last)
            del self.lg[:last + 1]
            self._wait(lg=n)
            self._retire(self.lg, min(n, 15))

    def wait_vm(self, tag=None):
        if tag is None:
            self._wait(vm=0)
            del self.vm[:]
            return
        last = -1
        for i, e in enumerate(self.vm):
            if e['tag'] == tag:
                last = i
        if last < 0:
            return
        n = self._count_after(self.vm, last)
        del self.vm[:last + 1]
        self._wait(vm=n)
        self._retire(self.vm, min(n, 63))

    def wait_lg(self, tag=None):
        if tag is None:
            self._wait(lg=0)
            del self.lg[:]
            return
        last = -1
        for i, e in enumerate(self.lg):
            if e['tag'] == tag:
                last = i
        if last < 0:
            return
        n = self._count_after(self.lg, last)
        del self.lg[:last + 1]
        self._wait(lg=n)
        self._retire(self.lg, min(n, 15))

    def wait_all(self):
        self._wait(vm=0, lg=0)
        del self.vm[:]
        del self.lg[:]

    def barrier(self, lg=True):
        if lg and self.lg:
            self.wait_lg()
        self._emit(Ins('s_barrier'))

    def text(self):
        return '\n'.join(self.out) + '\n'


class Pool:
    def __init__(self, lo, hi):
        self.lo, self.hi = lo, hi
        self.used = set()
        self.peak = lo

    def alloc(self, n=1, align=None):
        if align is None:
            align = 1 if n == 1 else 2
        if getattr(self, 'force4', False) and n >= 4:
            align = 4
        b = self.lo
        while b + n <= self.hi:
            if b % align == 0 and all((b + i) not in self.used for i in range(n)):
                for i in range(n):
                    self.used.add(b + i)
                self.peak = max(self.peak, b + n)
                return b
            b += 1
        raise RuntimeError(f'out of registers allocating {n} (used {len(self.used)})')

    def free(self, b, n=1):
        for i in range(n):
            assert (b + i) in self.used, f'double free v{b + i}'
            self.used.remove(b + i)


def v(b, n=1):
    return f'v{b}' if n == 1 else f'v[{b}:{b + n - 1}]'


def a(b, n=1):
    return f'a{b}' if n == 1 else f'a[{b}:{b + n - 1}]'


def s(b, n=1):
    return f's{b}' if n == 1 else f's[{b}:{b + n - 1}]'
```

```python
import sys, struct, math
from emit import *
from layout import layout

NAME = 'interleave_layers__ssm_conv_s4__linear_attn_block__prompt'
DIAG = '--diag' in sys.argv


def f32(x):
    return '0x%08x' % struct.unpack('<I', struct.pack('<f', x))[0]


WS_CNT = 0x0
WS_ZERO = 0x10000
WS_KV = [WS_ZERO, WS_ZERO + 0xC000]
WS_ST = [0x30000, WS_ZERO + 0x18000]
WS_DIAG = 0x40000
WS_X2 = [0x200000, 0x400000]
WS_XT = [0x600000, 0x800000]
WS_PQ = [0xA00000, 0xC00000]
WS_SIZE = 0xE00000

L_A = 0
L_B = 65536
L_RK = 131072
L_H = L_RK + 4 * 4160
L_STAT = L_H + 2 * 4608
L_END = L_STAT + 512
KG_ARR = 18
KG_ROW = 288
KG_W = 54 * KG_ROW

S_U, S_ARE, S_AIM, S_BRE, S_BIM, S_CRE, S_CIM, S_LDT, S_DSK = 4, 6, 8, 10, 12, 14, 16, 18, 20
S_WQKV, S_WO, S_OUT, S_DBG, S_WS = 24, 26, 28, 30, 32
R_WS, R_WQ, R_WO = 36, 40, 44
S_W, S_RB, S_CG, S_NB, S_TH = 48, 49, 50, 51, 52
S_T0, S_T1, S_T2 = 53, 54, 55
S_D = 56
S_MASK = 58
S_ONES = 60
S_SPIN = 61
S_LN = 62
S_EXP = 64
S_E6 = 66
S_T3, S_T4 = 68, 69
S_STAMP = 70
S_M1, S_M2 = 22, 34

A = Asm()
I = A.I
P = Pool(1, 192)
P.force4 = '--al4' in sys.argv
WS = s(R_WS, 4)
nstamp = [0]
stamp_names = []


STSEL = [x[5:].split(',') for x in sys.argv if x.startswith('--st=')]
STSEL = STSEL[0] if STSEL else None


def stamp(name, fine=False):
    if not DIAG:
        return
    if name not in ('entry', 'end'):
        if STSEL is None:
            if fine or not name.startswith(('wait', 'arr')):
                return
        elif not any(name.startswith(p) for p in STSEL):
            return
    k = nstamp[0]
    assert k < 16, 'too many stamps'
    I(f'{"s_memtime" if "--cyc" in sys.argv else "s_memrealtime"} s[{S_STAMP + 2 * k}:{S_STAMP + 2 * k + 1}]')
    stamp_names.append(name)
    nstamp[0] += 1


def pk(op, dst, *srcs):
    sel, selhi, nlo, nhi, txt = [], [], [], [], []
    for sr in srcs:
        t, m = sr[0], sr[1]
        ng = sr[2] if len(sr) > 2 else ''
        txt.append(t)
        sel.append(1 if m in 'hx' else 0)
        selhi.append(1 if m in 'ph' else 0)
        nlo.append(1 if ng in ('l', 'b') else 0)
        nhi.append(1 if ng in ('h', 'b') else 0)
    f = lambda l: '[' + ','.join(map(str, l)) + ']'
    line = f'v_pk_{op}_f32 {dst}, ' + ', '.join(txt) + f' op_sel:{f(sel)} op_sel_hi:{f(selhi)}'
    if any(nlo):
        line += f' neg_lo:{f(nlo)}'
    if any(nhi):
        line += f' neg_hi:{f(nhi)}'
    I(line)


def bc(r):
    return (v(r & ~1, 2), 'h' if r & 1 else 'l')


def cmul(d, x, y, tmp):
    pk('mul', v(tmp, 2), (v(x, 2), 'l'), (v(y, 2), 'p'))
    pk('fma', v(d, 2), (v(x, 2), 'h', 'l'), (v(y, 2), 'x'), (v(tmp, 2), 'p'))


def wq_reg(y, st):
    return a((y * 16 + st) * 4, 4)


def wo_reg(h, n=4, off=0):
    if h < 16:
        return a(192 + 4 * h + off, n)
    return v(192 + 4 * (h - 16) + off, n)


V_L = P.alloc()
V_L16 = P.alloc()
V_XT = [P.alloc() for _ in range(4)]
V_TILE = P.alloc()
V_X2ST = P.alloc()
V_STAT = P.alloc()
V_CVL = P.alloc()
V_HW = P.alloc()
V_CA = [P.alloc() for _ in range(4)]
V_CB = P.alloc()
V_EXW = P.alloc()
V_EXR = P.alloc()
V_OFR = P.alloc()
V_XTST = P.alloc()
V_XTLD = P.alloc()
V_PQST = P.alloc()
V_KVST = P.alloc()
V_ZST = P.alloc()
V_PQLD = P.alloc()
V_KVLD = P.alloc()
V_ZLD = P.alloc()
V_OFW = P.alloc()
V_RES = [P.alloc(), P.alloc()]
V_SW = P.alloc()
V_SR4 = P.alloc()
V_SR1 = V_SW
V_ARR = P.alloc()
V_POLL = P.alloc()
V_PA = P.alloc(2)
POLL_GAP = 4
V_CSKV = P.alloc(2)
V_CSQ = P.alloc(4)
V_ONES = P.alloc(4)


def global_arrive(first=None):
    A.barrier(lg=not first)
    lab = f'L_arr{global_arrive.n}'
    global_arrive.n += 1
    I(f's_cmp_lg_u32 s{S_W}, 0')
    I(f's_cbranch_scc1 {lab}')
    t = P.alloc()
    if first:
        flag, zero = first
        I(f's_mov_b32 s{S_SPIN}, 0x200000')
        A.label(lab + '_init')
        I(f'v_readfirstlane_b32 s{S_T0}, {v(flag)}')
        I(f's_sub_u32 s{S_SPIN}, s{S_SPIN}, 1')
        I(f's_cbranch_scc1 {lab}_go')
        I(f's_cmp_lg_u32 s{S_T0}, 0')
        I(f's_cbranch_scc1 {lab}_go')
        A.cond = True
        I(f'global_load_dword {v(flag)}, {v(zero)}, {s(S_DBG, 2)} sc1')
        A.cond = False
        A._wait(vm=0)
        A.vm.pop()
        I(f's_branch {lab}_init')
        A.label(lab + '_go')
    I(f'v_mov_b32 {v(t)}, 1')
    I('s_mov_b32 exec_hi, 0')
    A.cond = True
    I(f'buffer_atomic_add {v(t)}, {v(V_ARR)}, {WS}, 0 offen')
    A.cond = False
    I('s_mov_b64 exec, -1')
    P.free(t)
    A.label(lab)


global_arrive.n = 0


def _poll(r):
    A._emit(Ins(f'v_mov_b32 {v(r)}, 0'))
    A._emit(Ins(f'buffer_atomic_add {v(r)}, {v(V_POLL)}, {WS}, 0 offen sc0'))


def poll_start(k):
    lab = f'L_ps{k}'
    I(f's_cmp_lg_u32 s{S_W}, 0')
    I(f's_cbranch_scc1 {lab}')
    I('s_mov_b64 exec, 0xff')
    _poll(V_PA)
    I('s_mov_b64 exec, -1')
    A.label(lab)
    A.vm.append(dict(defs=set(), tag=None, cond=True))


def global_wait(k, started=False):
    lab = f'L_wait{k}'
    I(f's_cmp_lg_u32 s{S_W}, 0')
    I(f's_cbranch_scc0 {lab}_w0')
    A.raw(f'#touch s{k}')
    I(f's_branch {lab}')
    A.label(lab + '_w0')
    pa, pb = V_PA, V_PA + 1
    raw = lambda t: A._emit(Ins(t))
    I('s_mov_b64 exec, 0xff')
    if not started:
        _poll(pa)
    I(f's_mov_b32 s{S_SPIN}, 0x100000')
    I(f's_movk_i32 s{S_T0}, {32 * k}')
    if not started:
        raw(f's_sleep {POLL_GAP}')
    A.label(lab + '_poll')
    _poll(pb)
    raw('s_waitcnt vmcnt(1)')
    raw(f'v_cmp_gt_u32 vcc, s{S_T0}, {v(pa)}')
    raw(f's_cbranch_vccz {lab}_done')
    _poll(pa)
    raw(f's_sub_u32 s{S_SPIN}, s{S_SPIN}, 1')
    raw(f's_cbranch_scc1 {lab}_done')
    raw('s_waitcnt vmcnt(1)')
    raw(f'v_cmp_gt_u32 vcc, s{S_T0}, {v(pb)}')
    raw(f's_cbranch_vccnz {lab}_poll')
    A.label(lab + '_done')
    I('s_mov_b64 exec, -1')
    A.vm.append(dict(defs=set(), tag=None, cond=True))
    A.label(lab)
    A.raw(f'#seg s{k}')
    A.barrier()


def dma_pieces(srd, vaddr, init, step, gstep, tag):
    out = []
    for i in range(16):
        th = []
        if i == 0:
            th += [lambda t=t: I(t) for t in init]
        elif i % 4 == 0:
            th.append(lambda: I('s_add_u32 m0, m0, 4096'))
            th.append(lambda: I(f's_add_u32 s{S_T3}, s{S_T3}, {gstep - 3 * (step - 1024)}'))
        elif step != 1024:
            th.append(lambda: I(f's_add_u32 s{S_T3}, s{S_T3}, {step - 1024}'))

        def ld(i=i):
            I(f'buffer_load_dwordx4 {v(vaddr)}, {s(srd, 4)}, s{S_T3} offen offset:{1024 * (i % 4)} lds', tag=tag)
        ld.lds = True
        th.append(ld)
        out.append(th)
    return out


def dma_w(y, region, vaddr, tag='wdma'):
    return dma_pieces(R_WQ, vaddr, [f's_lshl_b32 s{S_T4}, s{S_W}, 14', f's_add_u32 m0, s{S_T4}, {region}',
                                    f's_mul_i32 s{S_T3}, s{S_W}, {128 * 3072}', f's_add_u32 s{S_T3}, s{S_T3}, {y * 1024}'], 8 * 3072, 32 * 3072, tag)


def dma_wo(kh, region, vaddr, tag='wdma'):
    return dma_pieces(R_WO, vaddr, [f's_lshl_b32 s{S_T4}, s{S_W}, 14', f's_add_u32 m0, s{S_T4}, {region}',
                                    f's_lshl_b32 s{S_T3}, s{S_W}, 16', f's_add_u32 s{S_T3}, s{S_T3}, {kh * 256 * 1024}'], 1024, 16384, tag)


def run_all(th):
    for t in th:
        t()


def spread(fill, pieces, start, step, solo=True):
    for i, th in enumerate(pieces):
        at = start + int(i * step)
        for j, t in enumerate(th):
            f = lambda reg, t=t: t()
            f.lds = getattr(t, 'lds', False) and solo
            fill.setdefault(max(0, at - (len(th) - 1 - j)), []).append(f)


def consume_w(y, vaddr):
    out = []
    for st in range(16):
        b = (y * 16 + st) * 4
        for z in range(2):
            def th(b=b, z=z, st=st):
                I(f'ds_read_b64_tr_b16 {a(b + 2 * z, 2)}, {v(vaddr)} offset:{4096 * st + 2048 * z}')
            th.lds = True
            out.append(th)
    return out


def colsums(ys):
    d = {y: V_CSQ if y == 0 else P.alloc(4, 2) for y in ys}
    for y in ys:
        for st in range(16):
            c = '0' if st == 0 else v(d[y], 4)
            if y == 0:
                I(f'v_mfma_f32_16x16x32_bf16 {v(d[y], 4)}, {wq_reg(y, st)}, {v(V_ONES, 4)}, {c}')
            else:
                I(f'v_mfma_f32_16x16x32_bf16 {v(d[y], 4)}, {v(V_ONES, 4)}, {wq_reg(y, st)}, {c}')
    for y in ys:
        if y:
            I(f'v_mov_b32 {v(V_CSKV + y - 1)}, {v(d[y])}')
            P.free(d[y], 4)


def consume_wo(kh, vaddr):
    for hh in range(16):
        for z in range(2):
            I(f'ds_read_b64_tr_b16 {wo_reg(16 * kh + hh, 2, 2 * z)}, {v(vaddr)} offset:{4096 * hh + 2048 * z}')


def stream(mf, loader, nslots, look, fill=None, gate=None, rate=1, burst=9, pre=None):
    fill = fill or {}
    gate = gate or {}
    first, last, order = {}, {}, []
    for m, (_, keys) in enumerate(mf):
        for k in keys:
            if k not in first:
                first[k] = m
                order.append(k)
            last[k] = m
    slots = [P.alloc(4, 2) for _ in range(nslots)]
    free = list(slots)
    reg = {}
    pend = []
    nxt = [0]

    def start_key():
        k = order[nxt[0]]
        nxt[0] += 1
        if k in gate:
            gate[k]()
        reg[k] = free.pop(0)
        pend.extend(loader(k, reg[k]))

    def issue(n, m, force=False):
        while n > 0:
            if not pend:
                if nxt[0] >= len(order) or not free:
                    return
                if first[order[nxt[0]]] > m + look:
                    return
                start_key()
            I(pend.pop(0))
            n -= 1

    issue(burst, -1)
    if pre:
        pre()
    for m, (em, keys) in enumerate(mf):
        while any(k not in reg for k in keys) or (pend and order[nxt[0] - 1] in keys):
            assert pend or free, 'no free slot'
            if not pend:
                start_key()
            I(pend.pop(0))
        em(reg)
        for k in keys:
            if last[k] == m:
                free.append(reg[k])
        fl = fill.get(m, [])
        solo = any(getattr(th, 'lds', False) for th in fl)
        if not solo:
            issue(1, m)
        for th in fl:
            th(reg)
        if rate > 1 and not solo:
            if m + 1 < len(mf):
                nk = mf[m + 1][1]
                if all(k in reg for k in nk) and not (pend and order[nxt[0] - 1] in nk):
                    A.need(', '.join(v(reg[k], 4) for k in nk))
            issue(rate - 1, m)
    for r in slots:
        P.free(r, 4)


def lane_fields():
    f = [P.alloc() for _ in range(5)]
    I(f'v_and_b32 {v(f[0])}, 15, {v(V_L)}')
    I(f'v_lshrrev_b32 {v(f[1])}, 4, {v(V_L)}')
    I(f'v_lshrrev_b32 {v(f[2])}, 5, {v(V_L)}')
    return f


def setup_conv(va_, vg, x0, x1):
    I(f'v_lshl_add_u32 {v(V_CVL)}, s{S_W}, 11, {v(V_L16)}')
    I(f'v_lshrrev_b32 {v(V_HW)}, 1, {v(V_CVL)}')
    I(f'v_add_u32 {v(V_HW)}, {L_H + 512}, {v(V_HW)}')
    I(f's_lshr_b32 s{S_T0}, s{S_W}, 1')
    I(f's_and_b32 s{S_T1}, s{S_W}, 1')
    I(f's_mul_i32 s{S_T3}, s{S_T0}, 4608')
    I(f's_lshl_b32 s{S_T4}, s{S_T1}, 8')
    I(f's_sub_u32 s{S_T3}, s{S_T3}, s{S_T4}')
    I(f's_add_u32 s{S_T3}, s{S_T3}, {L_H + 512 - 32 - 192}')
    I(f'v_lshl_add_u32 {v(V_CB)}, {v(va_)}, 5, s{S_T3}')
    I(f'v_lshl_add_u32 {v(V_CB)}, {v(vg)}, 4, {v(V_CB)}')
    I(f's_mul_i32 s{S_T3}, s{S_T0}, 8320')
    I(f's_sub_u32 s{S_T3}, s{S_T3}, s{S_T4}')
    I(f's_add_u32 s{S_T3}, s{S_T3}, {L_RK + 4160 + 4 * (1015 - 176)}')
    I(f'v_and_b32 {v(x0)}, 1, {v(va_)}')
    I(f'v_mul_u32_u24 {v(x0)}, 4160, {v(x0)}')
    I(f'v_lshrrev_b32 {v(x1)}, 1, {v(va_)}')
    I(f'v_lshl_add_u32 {v(x0)}, {v(x1)}, 2, {v(x0)}')
    I(f'v_lshl_add_u32 {v(x1)}, {v(vg)}, 4, s{S_T3}')
    I(f'v_sub_u32 {v(V_CA[0])}, {v(x1)}, {v(x0)}')
    for i in range(1, 4):
        I(f'v_subrev_u32 {v(V_CA[i])}, {1024 * i}, {v(V_CA[0])}')
    I(f's_mul_i32 s{S_T3}, s{S_W}, 10240')
    I(f's_add_u32 s{S_T3}, s{S_T3}, {L_B}')
    I(f'v_lshl_add_u32 {v(V_EXW)}, {v(vg)}, 6, s{S_T3}')
    I(f'v_add_u32 {v(V_EXW)}, {v(V_EXW)}, {v(V_L16)}')
    I(f's_mul_i32 s{S_T3}, s{S_W}, 2560')
    I(f's_add_u32 s{S_T3}, s{S_T3}, {L_B}')
    I(f'v_and_b32 {v(x0)}, 3, {v(V_L)}')
    I(f'v_mul_u32_u24 {v(V_EXR)}, 316, {v(x0)}')
    I(f'v_lshl_add_u32 {v(V_EXR)}, {v(V_L)}, 2, {v(V_EXR)}')
    I(f'v_add_u32 {v(V_EXR)}, s{S_T3}, {v(V_EXR)}')
    I(f's_lshl_b32 s{S_T3}, s{S_W}, 19')
    I(f's_lshl_b32 s{S_T4}, s2, 8')
    I(f's_add_u32 s{S_T3}, s{S_T3}, s{S_T4}')
    I(f'v_lshl_add_u32 {v(V_XTST)}, {v(vg)}, 16, s{S_T3}')
    I(f'v_lshl_add_u32 {v(V_XTST)}, {v(va_)}, 3, {v(V_XTST)}')
    I(f's_and_b32 s{S_T4}, s2, 3')
    I(f's_lshl_b32 s{S_T4}, s{S_T4}, 5')
    I(f'v_xor_b32 {v(V_XTST)}, s{S_T4}, {v(V_XTST)}')
    I(f'v_lshrrev_b32 {v(x0)}, 2, {v(V_L)}')
    I(f'v_lshlrev_b32 {v(V_XT[0])}, 7, {v(x0)}')
    I(f'v_bfe_u32 {v(x0)}, {v(V_L)}, 3, 2')
    I(f'v_xor_b32 {v(x0)}, s{S_W}, {v(x0)}')
    I(f'v_lshl_add_u32 {v(V_XT[0])}, {v(x0)}, 5, {v(V_XT[0])}')
    I(f'v_and_b32 {v(x0)}, 3, {v(V_L)}')
    I(f'v_lshl_add_u32 {v(V_XT[0])}, {v(x0)}, 3, {v(V_XT[0])}')
    I(f's_mov_b32 s{S_LN}, {f32(1 / 512)}')
    I(f's_mov_b32 s{S_LN + 1}, {f32(1e-5)}')


def setup_late():
    va_, vg, vhi, x0, x1 = f = lane_fields()
    T3, T4 = S_T0, S_T1
    for j in range(2):
        I(f's_mov_b32 s{S_MASK + j}, 0xffff0000')
        I(f's_mov_b32 s{S_M1 + j}, 0xaaaaaaaa')
        I(f's_mov_b32 s{S_M2 + j}, 0xcccccccc')
        I(f's_mov_b32 s{S_E6 + j}, {f32(1e-6)}')
    I(f's_mov_b32 s{S_EXP + 1}, {f32(-1e-6 * math.log2(math.e))}')
    for i in range(1, 4):
        I(f'v_xor_b32 {v(V_XT[i])}, {32 * i}, {v(V_XT[0])}')
    I(f'v_and_b32 {v(V_STAT)}, 0x1fff, {v(V_X2ST)}')
    I(f'v_lshl_add_u32 {v(V_STAT)}, {v(vhi)}, 13, {v(V_STAT)}')
    I(f's_lshl_b32 s{T3}, s{S_RB}, 16')
    I(f's_lshl_b32 s{T4}, s{S_W}, 12')
    I(f's_add_u32 s{T3}, s{T3}, s{T4}')
    I(f'v_add_u32 {v(V_XTLD)}, s{T3}, {v(V_L16)}')
    I(f's_lshl_b32 s{T4}, s{S_CG}, 2')
    I(f's_add_u32 s{T4}, s{T4}, s{S_W}')
    I(f's_lshl_b32 s{T4}, s{T4}, 10')
    I(f's_lshl_b32 s{T3}, s{S_RB}, 16')
    I(f's_add_u32 s{T3}, s{T3}, s{T4}')
    I(f'v_lshl_add_u32 {v(V_PQST)}, {v(va_)}, 5, s{T3}')
    I(f'v_lshl_add_u32 {v(V_PQST)}, {v(vg)}, 3, {v(V_PQST)}')
    I(f's_lshr_b32 s{T3}, s{S_W}, 1')
    I(f'v_lshl_add_u32 {v(V_PQST)}, s{T3}, 15, {v(V_PQST)}')
    I(f's_and_b32 s{T3}, s{S_W}, 1')
    I(f'v_lshl_add_u32 {v(V_PQST)}, s{T3}, 9, {v(V_PQST)}')
    I(f's_mul_i32 s{T3}, s{T3}, 768')
    I(f's_sub_u32 s{T3}, s{T4}, s{T3}')
    I(f'v_lshl_add_u32 {v(V_KVST)}, {v(vg)}, 4, s{T3}')
    I(f'v_and_b32 {v(x0)}, 3, {v(va_)}')
    I(f'v_lshl_add_u32 {v(V_KVST)}, {v(x0)}, 2, {v(V_KVST)}')
    I(f'v_bfe_u32 {v(x0)}, {v(va_)}, 2, 1')
    I(f'v_lshl_add_u32 {v(V_KVST)}, {v(x0)}, 10, {v(V_KVST)}')
    I(f'v_lshrrev_b32 {v(x0)}, 3, {v(va_)}')
    I(f'v_lshl_add_u32 {v(V_KVST)}, {v(x0)}, 9, {v(V_KVST)}')
    I(f's_lshr_b32 s{T3}, s{T4}, 4')
    I(f'v_lshl_add_u32 {v(V_ZST)}, {v(V_L)}, 2, s{T3}')
    I(f's_lshl_b32 s{T3}, s{S_RB}, 1')
    I(f's_add_u32 s{T3}, s{T3}, s{S_TH}')
    I(f's_lshl_b32 s{T3}, s{T3}, 15')
    I(f's_lshl_b32 s{T4}, s{S_W}, 13')
    I(f's_add_u32 s{T3}, s{T3}, s{T4}')
    I(f'v_and_b32 {v(x0)}, 31, {v(V_L)}')
    I(f'v_lshl_add_u32 {v(V_PQLD)}, {v(x0)}, 5, s{T3}')
    I(f'v_lshl_add_u32 {v(V_PQLD)}, {v(vhi)}, 4, {v(V_PQLD)}')
    I(f'v_add_u32 {v(V_KVLD)}, s{T4}, {v(V_L16)}')
    I(f'v_and_b32 {v(x0)}, 3, {v(va_)}')
    I(f'v_lshrrev_b32 {v(x1)}, 3, {v(va_)}')
    I(f's_lshl_b32 s{T3}, s{S_W}, 9')
    I(f's_add_u32 s{T3}, s{T3}, 32768')
    I(f'v_lshl_add_u32 {v(V_ZLD)}, {v(x1)}, 8, s{T3}')
    I(f'v_lshl_add_u32 {v(V_ZLD)}, {v(x0)}, 6, {v(V_ZLD)}')
    I(f'v_lshl_add_u32 {v(V_ZLD)}, {v(vg)}, 4, {v(V_ZLD)}')
    ROT = S_NB if '--rot' in sys.argv else None
    if ROT:
        I(f's_lshl_b32 s{T3}, s{S_NB}, 7')
        I(f'v_xor_b32 {v(V_ZLD)}, s{T3}, {v(V_ZLD)}')
        I(f's_lshl_b32 s{T3}, s{S_NB}, 11')
    else:
        I(f's_mov_b32 s{T3}, 0')
    I(f'v_add_u32 {v(V_KVLD)}, s{T3}, {v(V_KVLD)}')
    I(f'v_add_u32 {v(V_PQLD)}, s{T3}, {v(V_PQLD)}')
    I(f'v_add_u32 {v(V_OFR)}, {L_B}, {v(V_L16)}')
    I(f'v_add_u32 {v(V_OFW)}, {L_B}, {v(V_KVLD)}')
    I(f's_lshl_b32 s{T3}, s{S_NB}, 14')
    I(f's_lshl_b32 s{T4}, s{S_W}, 12')
    I(f's_add_u32 s{T3}, s{T3}, s{T4}')
    I(f's_lshl_b32 s{T4}, s{S_TH}, 6')
    I(f's_add_u32 s{T3}, s{T3}, s{T4}')
    I(f'v_lshl_add_u32 {v(V_RES[0])}, {v(vhi)}, 11, s{T3}')
    I(f'v_lshl_add_u32 {v(V_RES[0])}, {v(x0)}, 3, {v(V_RES[0])}')
    I(f'v_lshrrev_b32 {v(x0)}, 2, {v(va_)}')
    I(f'v_lshl_add_u32 {v(V_RES[0])}, {v(x0)}, 7, {v(V_RES[0])}')
    I(f'v_xor_b32 {v(x1)}, {v(x1)}, {v(vg)}')
    I(f'v_and_b32 {v(x1)}, 1, {v(x1)}')
    I(f'v_lshl_add_u32 {v(V_RES[0])}, {v(x1)}, 5, {v(V_RES[0])}')
    I(f'v_xor_b32 {v(V_RES[1])}, 64, {v(V_RES[0])}')
    I(f's_lshl_b32 s{T3}, s{S_W}, 6')
    I(f's_add_u32 s{T3}, s{T3}, {L_STAT}')
    I(f'v_lshl_add_u32 {v(V_SW)}, {v(va_)}, 2, s{T3}')
    I(f'v_lshl_add_u32 {v(V_SR4)}, {v(vg)}, 4, s{T3}')
    vod, vor = P.alloc(), P.alloc()
    I(f's_lshl_b32 s{T3}, s{S_NB}, 8')
    I(f'v_lshl_add_u32 {v(vod)}, {v(vg)}, 12, s{T3}')
    I(f'v_xor_b32 {v(x1)}, {v(x0)}, {v(vg)}')
    I(f'v_lshl_add_u32 {v(vod)}, {v(x1)}, 6, {v(vod)}')
    I(f'v_and_b32 {v(x1)}, 3, {v(V_L)}')
    I(f'v_lshl_add_u32 {v(vod)}, {v(x1)}, 4, {v(vod)}')
    I(f'v_lshlrev_b32 {v(vor)}, 10, {v(vhi)}')
    I(f'v_lshl_add_u32 {v(vor)}, {v(x0)}, 8, {v(vor)}')
    I(f'v_xor_b32 {v(x0)}, s{S_W}, {v(x0)}')
    I(f'v_lshl_add_u32 {v(vor)}, {v(x0)}, 6, {v(vor)}')
    I(f'v_and_b32 {v(x0)}, 1, {v(V_L)}')
    I(f'v_lshl_add_u32 {v(vor)}, {v(x0)}, 5, {v(vor)}')
    I(f'v_and_b32 {v(x0)}, 1, {v(vg)}')
    I(f'v_lshl_add_u32 {v(vor)}, {v(x0)}, 4, {v(vor)}')
    I(f'v_bfe_u32 {v(x0)}, {v(V_L)}, 1, 1')
    I(f'v_lshl_add_u32 {v(vor)}, {v(x0)}, 3, {v(vor)}')
    I(f'v_add_u32 {v(vor)}, {L_B}, {v(vor)}')
    for r in f:
        P.free(r)
    return vod, vor


TS = [18, 10, 6, 2]
TB = [0, 16 * 18, 16 * 18 + 16 * 10, 16 * 18 + 16 * 10 + 32 * 6]


def rne(o, sh):
    q, r = o >> sh, o & ((1 << sh) - 1)
    if sh == 0:
        return q
    h = 1 << (sh - 1)
    return q + (1 if (r > h or (r == h and q & 1)) else 0)


def setup_kgen(va_, vg, x0, x1):
    kg = dict(w=P.alloc(), a0=P.alloc(), a1=P.alloc(), g=P.alloc(), t1=P.alloc(), t2=P.alloc(), t3=P.alloc(), rk=P.alloc())
    I(f's_lshr_b32 s{S_T0}, s{S_W}, 1')
    I(f's_and_b32 s{S_T1}, s{S_W}, 1')
    I(f's_mul_i32 s{S_T3}, s{S_W}, {KG_W}')
    I(f's_add_u32 s{S_T3}, s{S_T3}, {L_B}')
    I(f'v_lshl_add_u32 {v(kg["w"])}, {v(V_L)}, 2, s{S_T3}')
    I(f's_mul_i32 s{S_T3}, s{S_T0}, {2 * KG_W}')
    I(f's_add_u32 s{S_T3}, s{S_T3}, {L_B}')
    I(f'v_lshl_add_u32 {v(x1)}, {v(vg)}, 4, s{S_T3}')
    I(f'v_mul_u32_u24 {v(kg["a0"])}, {KG_ROW}, {v(va_)}')
    I(f'v_add_u32 {v(kg["a0"])}, {v(kg["a0"])}, {v(x1)}')
    I(f's_mul_i32 s{S_T4}, s{S_T1}, {16 * KG_ROW}')
    I(f'v_add_u32 {v(kg["g"])}, s{S_T4}, {v(kg["a0"])}')
    I(f'v_min_u32 {v(kg["a1"])}, 4, {v(va_)}')
    I(f'v_mul_u32_u24 {v(kg["a1"])}, {KG_ROW}, {v(kg["a1"])}')
    I(f'v_add_u32 {v(kg["a1"])}, {v(kg["a1"])}, {v(x1)}')
    I(f's_mul_i32 s{S_T3}, s{S_T0}, 4608')
    I(f's_add_u32 s{S_T3}, s{S_T3}, {L_H + 512}')
    vj, vw = P.alloc(), P.alloc()
    I(f's_lshl_b32 s{S_T4}, s{S_T1}, 2')
    I(f'v_and_b32 {v(x0)}, 3, {v(va_)}')
    I(f'v_lshl_add_u32 {v(vj)}, {v(x0)}, 3, s{S_T4}')
    I(f'v_lshrrev_b32 {v(x0)}, 2, {v(va_)}')
    I(f'v_add_u32 {v(vj)}, {v(vj)}, {v(x0)}')
    I(f'v_lshl_add_u32 {v(kg["t3"])}, {v(vg)}, 7, {v(vj)}')
    I(f'v_lshl_add_u32 {v(kg["t3"])}, {v(kg["t3"])}, 2, s{S_T3}')
    I(f'v_max_u32 {v(x1)}, 1, {v(vg)}')
    I(f'v_sub_u32 {v(x1)}, 6, {v(x1)}')
    I(f'v_lshlrev_b32 {v(kg["t1"])}, {v(x1)}, {v(vj)}')
    I(f'v_lshrrev_b32 {v(vw)}, 1, {v(vj)}')
    I(f'v_lshl_add_u32 {v(kg["t1"])}, {v(vw)}, 3, {v(kg["t1"])}')
    I(f's_mov_b32 s{S_T4}, {hex(0 | (1 << 8) | ((TB[1] // 4) << 16) | ((TB[2] // 4) << 24))}')
    I(f'v_lshlrev_b32 {v(x1)}, 3, {v(vg)}')
    I(f'v_bfe_u32 {v(x1)}, s{S_T4}, {v(x1)}, 8')
    I(f'v_lshl_add_u32 {v(x1)}, {v(x1)}, 4, s{S_T3}')
    I(f'v_add_u32 {v(kg["t1"])}, {v(kg["t1"])}, {v(x1)}')
    I(f'v_cmp_eq_u32 vcc, 3, {v(vg)}')
    I(f'v_mov_b32 {v(vj)}, {16 * TS[2] * 4}')
    I(f'v_cndmask_b32 {v(x1)}, 8, {v(vj)}, vcc')
    I(f'v_add_u32 {v(kg["t2"])}, {v(kg["t1"])}, {v(x1)}')
    gi = P.alloc(18, 2)
    vn, vs = vj, vw
    I(f'v_and_b32 {v(x0)}, 127, v0')
    I(f'v_sub_u32 {v(vn)}, 127, {v(x0)}')
    I(f'v_or_b32 {v(x1)}, 8, {v(vn)}')
    I(f'v_ffbh_u32 {v(x1)}, {v(x1)}')
    I(f'v_sub_u32 {v(vs)}, 28, {v(x1)}')
    I(f'v_lshlrev_b32 {v(vs)}, 3, {v(vs)}')
    first = [0, 16, 32, 64]
    cb = [TB[q] - first[q] * TS[q] for q in range(4)]
    assert all(c % 4 == 0 and 0 <= c // 4 < 256 for c in cb)
    I(f's_mov_b32 s{S_T4}, {hex(sum(TS[q] << (8 * q) for q in range(4)))}')
    I(f'v_bfe_u32 {v(x1)}, s{S_T4}, {v(vs)}, 8')
    I(f'v_mul_u32_u24 {v(x1)}, {v(x1)}, {v(vn)}')
    I(f's_mov_b32 s{S_T4}, {hex(sum((cb[q] // 4) << (8 * q) for q in range(4)))}')
    I(f'v_bfe_u32 {v(gi + 17)}, s{S_T4}, {v(vs)}, 8')
    I(f'v_lshl_add_u32 {v(x1)}, {v(gi + 17)}, 2, {v(x1)}')
    I(f'v_lshl_add_u32 {v(gi + 15)}, {v(x1)}, 2, s{S_T3}')
    for u in range(15):
        o = 15 - u
        dl = []
        for q in range(4):
            d = rne(o, q)
            dl.append(4 * (d if d < (16 >> q) else TS[q]))
        I(f's_mov_b32 s{S_T4}, {hex(sum(dl[q] << (8 * q) for q in range(4)))}')
        I(f'v_bfe_u32 {v(x1)}, s{S_T4}, {v(vs)}, 8')
        I(f'v_add_u32 {v(gi + u)}, {v(x1)}, {v(gi + 15)}')
    I(f'v_cmp_ge_u32 vcc, 16, {v(vn)}')
    I(f'v_cndmask_b32 {v(x1)}, 0, 12, vcc')
    I(f'v_sub_u32 {v(gi + 16)}, {v(gi + 15)}, {v(x1)}')
    P.free(vj), P.free(vw)
    I(f's_mul_i32 s{S_T4}, s{S_T0}, 8320')
    I(f's_add_u32 s{S_T4}, s{S_T4}, {L_RK}')
    I(f'v_lshl_add_u32 {v(kg["rk"])}, {v(x0)}, 5, s{S_T4}')
    return kg, gi


def prologue():
    I('s_cmp_ge_u32 s2, 256')
    I('s_cbranch_scc1 L_end')
    I('s_load_dwordx16 s[4:19], s[0:1], 0')
    I('s_load_dwordx8 s[20:27], s[0:1], 64')
    I('s_load_dwordx4 s[28:31], s[0:1], 96')
    I('s_load_dwordx2 s[32:33], s[0:1], 112')
    stamp('entry')
    pf = P.alloc(4)
    I(f's_getpc_b64 s[{S_T3}:{S_T4}]')
    A.label('L_pc')
    I(f's_lshr_b32 s{S_T1}, s2, 3')
    I(f'v_lshrrev_b32 {v(pf)}, 4, v0')
    I(f'v_lshl_add_u32 {v(pf)}, {v(pf)}, 5, s{S_T1}')
    I(f'v_lshlrev_b32 {v(pf)}, 7, {v(pf)}')
    I(f'v_min_u32 {v(pf)}, L_end-L_pc, {v(pf)}')
    I(f'global_load_dword {v(pf)}, {v(pf)}, s[{S_T3}:{S_T4}]')
    I(f'v_lshrrev_b32 {v(pf + 1)}, 6, v0')
    I(f'v_and_b32 {v(V_L)}, 63, v0')
    I(f'v_readfirstlane_b32 s{S_W}, {v(pf + 1)}')
    I(f's_and_b32 s{S_T0}, s2, 7')
    I(f's_and_b32 s{S_T2}, s{S_T1}, 3')
    I(f's_lshl_b32 s{S_RB}, s{S_T0}, 2')
    I(f's_add_u32 s{S_RB}, s{S_RB}, s{S_T2}')
    I(f's_lshr_b32 s{S_CG}, s{S_T1}, 2')
    I(f's_lshr_b32 s{S_NB}, s{S_CG}, 1')
    I(f's_and_b32 s{S_TH}, s{S_CG}, 1')
    I(f'v_lshlrev_b32 {v(V_L16)}, 4, {v(V_L)}')
    va_, vg, vhi, x0, x1 = f = lane_fields()
    I(f's_and_b32 s{S_T3}, s{S_T1}, 7')
    I(f's_lshl_b32 s{S_T3}, s{S_T3}, 7')
    I(f'v_lshl_add_u32 {v(V_ARR)}, {v(V_L)}, 10, s{S_T3}')
    I(f's_lshl_b32 s{S_T3}, s{S_T1}, 10')
    I(f'v_lshl_add_u32 {v(V_POLL)}, {v(V_L)}, 7, s{S_T3}')
    vsr, vsa = P.alloc(), P.alloc()
    I(f's_lshl_b32 s{S_T0}, s{S_RB}, 6')
    I(f's_lshl_b32 s{S_T1}, s{S_CG}, 3')
    I(f's_add_u32 s{S_T1}, s{S_T1}, s{S_T0}')
    I(f's_lshl_b32 s{S_T3}, s{S_W}, 1')
    I(f's_add_u32 s{S_T2}, s{S_T1}, s{S_T3}')
    I(f's_lshl_b32 s{S_T1}, s{S_T2}, 10')
    I(f'v_add_u32 {v(vsr)}, s{S_T1}, {v(V_L16)}')
    I(f'v_and_b32 {v(vsa)}, 1, {v(vg)}')
    I(f'v_add_lshl_u32 {v(vsa)}, {v(vsa)}, s{S_T2}, 2')
    I(f'v_lshl_add_u32 {v(vsa)}, {v(vhi)}, 13, {v(vsa)}')
    I(f's_lshl_b32 s{S_T1}, s{S_TH}, 5')
    I(f's_add_u32 s{S_T0}, s{S_T0}, s{S_T1}')
    I(f'v_and_b32 {v(x0)}, 31, {v(V_L)}')
    I(f'v_add_u32 {v(x0)}, s{S_T0}, {v(x0)}')
    I(f's_lshl_b32 s{S_T0}, s{S_NB}, 8')
    I(f's_lshl_b32 s{S_T1}, s{S_W}, 6')
    I(f's_add_u32 s{S_T0}, s{S_T0}, s{S_T1}')
    I(f'v_lshl_add_u32 {v(V_TILE)}, {v(x0)}, 10, s{S_T0}')
    I(f'v_lshl_add_u32 {v(V_TILE)}, {v(vhi)}, 5, {v(V_TILE)}')
    I(f's_lshl_b32 s{S_T0}, s{S_T0}, 11')
    I(f'v_lshl_add_u32 {v(V_X2ST)}, {v(x0)}, 2, s{S_T0}')
    I(f'v_lshl_add_u32 {v(V_X2ST)}, {v(vhi)}, 16, {v(V_X2ST)}')
    vpo = P.alloc()
    I(f's_lshl_b32 s{S_T1}, s2, 9')
    I(f'v_lshl_add_u32 {v(vpo)}, v0, 1, s{S_T1}')
    sinit = S_SPIN
    I(f's_lshl_b32 s{S_T2}, s2, 2')
    I(f's_add_u32 s{sinit}, s{S_T2}, s{S_W}')
    vwp = P.alloc()
    I(f's_lshl_b32 s{S_T1}, s{sinit}, 11')
    I(f'v_lshl_add_u32 {v(vwp)}, {v(va_)}, 7, s{S_T1}')
    zero4 = P.alloc(4, 2)
    for i in range(4):
        I(f'v_mov_b32 {v(zero4 + i)}, 0')
    for r, n in ((R_WS, WS_SIZE), (R_WQ, 512 * 3072), (R_WO, 512 * 1024)):
        I(f's_mov_b32 s{r + 2}, {hex(n)}')
        I(f's_mov_b32 s{r + 3}, 0x20000')
    xs = P.alloc(8, 2)
    xt = P.alloc(8, 2)
    par = P.alloc(8, 2)
    A._wait(lg=0)
    stamp('a_karg')
    I(f'global_load_dwordx4 {v(xs, 4)}, {v(vsr)}, {s(S_U, 2)}')
    I(f'global_load_dwordx4 {v(xs + 4, 4)}, {v(vsr)}, {s(S_U, 2)} offset:1024')
    I(f's_load_dword s{S_D}, {s(S_LDT, 2)}, s{S_T2}')
    I(f's_load_dword s{S_D + 1}, {s(S_DSK, 2)}, s{S_T2}')
    for r, p in ((R_WS, S_WS), (R_WQ, S_WQKV), (R_WO, S_WO)):
        I(f's_mov_b64 s[{r}:{r + 1}], s[{p}:{p + 1}]')
    I(f's_cmp_lg_u32 s{sinit}, 3')
    I('s_cbranch_scc1 L_noinit')
    I(f'v_lshlrev_b32 {v(x0)}, 9, {v(V_L)}')
    A.cond = True
    for j in range(4):
        I(f'buffer_store_dword {v(zero4)}, {v(x0)}, {WS}, 0 offen offset:{128 * j} sc1')
    A.cond = False
    A.label('L_noinit')
    for i, sp in enumerate((S_ARE, S_AIM, S_BRE, S_BIM, S_CRE, S_CIM)):
        I(f'global_load_ushort {v(par + i)}, {v(vpo)}, {s(sp, 2)}')
    I(f'global_load_dwordx4 {v(xt, 4)}, {v(V_TILE)}, {s(S_U, 2)}')
    I(f'global_load_dwordx4 {v(xt + 4, 4)}, {v(V_TILE)}, {s(S_U, 2)} offset:16')
    stamp('a_ldiss')
    P.free(vsr), P.free(vpo)
    kg, gi = setup_kgen(va_, vg, x0, x1)
    I(f'v_lshl_add_u32 {v(x1)}, {v(x0)}, 2, s{S_T3}')
    I(f'v_subrev_u32 {v(x1)}, 512, {v(x1)}')
    I(f'ds_write_b32 {v(x1)}, {v(zero4)}')
    I(f's_mul_i32 s{S_T3}, s{S_W}, 4160')
    I(f's_add_u32 s{S_T3}, s{S_T3}, {L_RK + 4096}')
    I(f'v_lshl_add_u32 {v(x1)}, {v(va_)}, 2, s{S_T3}')
    I(f'ds_write_b32 {v(x1)}, {v(zero4)}')
    stamp('a_kgset')
    I('s_mov_b64 exec, 0xffff')
    I(f'buffer_load_dword {v(pf + 1)}, {v(vwp)}, {s(R_WQ, 4)}, 0 offen')
    I(f'v_subrev_u32 {v(vwp)}, {512 * 3072}, {v(vwp)}')
    I(f'buffer_load_dword {v(pf + 2)}, {v(vwp)}, {s(R_WO, 4)}, 0 offen')
    I(f's_lshl_b32 s{S_T0}, s{sinit}, 7')
    I(f's_add_u32 s{S_T0}, s{S_T0}, {hex(WS_ZERO)}')
    I('s_mov_b64 exec, 0xff')
    I(f'buffer_store_dwordx4 {v(zero4, 4)}, {v(V_L16)}, {WS}, s{S_T0} offen sc1')
    I('s_mov_b64 exec, -1')
    setup_conv(va_, vg, x0, x1)
    vwd = P.alloc()
    I(f'v_lshrrev_b32 {v(x0)}, 3, {v(V_L)}')
    I(f'v_mul_u32_u24 {v(vwd)}, 3072, {v(x0)}')
    I(f'v_bfe_u32 {v(x0)}, {v(V_L)}, 1, 2')
    I(f'v_xor_b32 {v(x0)}, {v(x0)}, {v(vg)}')
    I(f'v_lshl_add_u32 {v(vwd)}, {v(x0)}, 5, {v(vwd)}')
    I(f'v_and_b32 {v(x0)}, 1, {v(V_L)}')
    I(f'v_lshl_add_u32 {v(vwd)}, {v(x0)}, 4, {v(vwd)}')
    I(f'v_lshl_add_u32 {v(vwd)}, s{S_CG}, 7, {v(vwd)}')
    I(f's_mov_b32 s{S_ONES}, 0x3f803f80')
    I(f's_mov_b32 s{S_EXP}, {f32(math.log2(math.e))}')
    for i in range(4):
        I(f'v_mov_b32 {v(V_ONES + i)}, s{S_ONES}')
    I(f'v_mov_b32 {v(x1)}, 1')
    A.raw('#page')
    A.raw('#seg s0')
    A.raw('#touch s0')
    stamp('a_setup')
    st = P.alloc(4, 2)
    for i in range(4):
        for r in range(2):
            c = '0' if i == 0 else v(st + r)
            I(f'v_dot2_f32_bf16 {v(st + r)}, {v(xs + 4 * r + i)}, s{S_ONES}, {c}')
            c = '0' if i == 0 else v(st + 2 + r)
            I(f'v_dot2_f32_bf16 {v(st + 2 + r)}, {v(xs + 4 * r + i)}, {v(xs + 4 * r + i)}, {c}')
    stamp('a_xs')
    I(f's_mov_b32 s{S_T0}, {hex(WS_ST[0])}')
    I(f'v_permlane32_swap_b32 {v(st)}, {v(st + 2)}')
    I(f'v_permlane32_swap_b32 {v(st + 1)}, {v(st + 3)}')
    I(f'v_add_f32 {v(st)}, {v(st)}, {v(st + 2)}')
    I(f'v_add_f32 {v(st + 1)}, {v(st + 1)}, {v(st + 3)}')
    I(f'v_permlane16_swap_b32 {v(st)}, {v(st + 1)}')
    I(f'v_add_f32 {v(st)}, {v(st)}, {v(st + 1)}')
    for sh in (8, 4, 2, 1):
        I(f'v_add_f32_dpp {v(st)}, {v(st)}, {v(st)} row_ror:{sh} row_mask:0xf bank_mask:0xf')
    I('s_mov_b32 exec_lo, 0x00010001')
    I('s_mov_b32 exec_hi, 0x00010001')
    I(f'buffer_store_dword {v(st)}, {v(vsa)}, {WS}, s{S_T0} offen sc1')
    I('s_mov_b64 exec, -1')
    x2store(0, xt)
    I(f's_cmp_lg_u32 s{sinit}, 3')
    I('s_cbranch_scc1 L_noflag')
    A.cond = True
    I(f'global_store_dword {v(zero4)}, {v(x1)}, {s(S_DBG, 2)} sc1')
    A.cond = False
    A.label('L_noflag')
    flag = pf + 3
    I(f'global_load_dword {v(flag)}, {v(zero4)}, {s(S_DBG, 2)} sc1')
    stamp('a_stored')

    def arrive1():
        A.wait_vm()
        stamp('a_drained')
        global_arrive(first=(flag, zero4))
        stamp('arr1')
    hooks = {KG_ARR: [arrive1]}
    for i, th in enumerate(dma_w(1, L_A, vwd)):
        hooks.setdefault(KG_ARR + 2 + 2 * i, []).extend(th)
    kgen(par, kg, gi, hooks)
    P.free(st, 4), P.free(xs, 8), P.free(xt, 8), P.free(zero4, 4), P.free(pf, 4), P.free(vwp), P.free(vsa)
    for r in f:
        P.free(r)
    stamp('a_kgen')
    A.wait_vm()
    return vwd


def x2store(layer, d):
    I(f's_mov_b32 s{S_T0}, {hex(WS_X2[layer])}')
    for i in range(8):
        I(f'buffer_store_dword {v(d + i)}, {v(V_X2ST)}, {WS}, s{S_T0} offen sc1')
        if i < 7:
            I(f's_add_u32 s{S_T0}, s{S_T0}, 8192')


def kgen(par, kg, gi, hooks):
    LOG2E = math.log2(math.e)
    A.wait_lg()
    I(f's_lshl_b32 s{S_T0}, s{S_D}, 16')
    I(f's_and_b32 s{S_T1}, s{S_D}, 0xffff0000')
    I(f's_lshl_b32 s{S_D}, s{S_D + 1}, 16')
    I(f's_and_b32 s{S_D + 1}, s{S_D + 1}, 0xffff0000')
    I(f's_cmp_ge_u32 s{S_W}, 2')
    I(f's_cselect_b32 s{S_T0}, s{S_T1}, s{S_T0}')
    dt = par + 6
    I(f'v_mov_b32 {v(dt)}, s{S_T0}')
    I(f'v_mul_f32 {v(dt)}, s{S_EXP}, {v(dt)}')
    I(f'v_exp_f32 {v(dt)}, {v(dt)}')
    for i in range(6):
        I(f'v_lshlrev_b32 {v(par + i)}, 16, {v(par + i)}')
    I(f'v_cvt_pk_bf16_f32 {v(dt)}, {v(dt)}, {v(dt)}')
    I(f'v_and_b32 {v(dt)}, 0xffff0000, {v(dt)}')
    z, Bc, Cc = par, par + 2, par + 4
    pk('mul', v(z, 2), (v(z, 2), 'p'), bc(dt))
    pk('mul', v(Bc, 2), (v(Bc, 2), 'p'), bc(dt))
    tmp = P.alloc(2, 2)
    CB = P.alloc(2, 2)
    cmul(CB, Cc, Bc, tmp)
    E = {}
    for rho in (1, 8, 64, 256):
        e = P.alloc(2, 2)
        E[rho] = e
        I(f'v_mul_f32 {v(tmp)}, {f32(rho * LOG2E)}, {v(z)}')
        I(f'v_mul_f32 {v(tmp + 1)}, {f32(rho / (2 * math.pi))}, {v(z + 1)}')
        I(f'v_exp_f32 {v(tmp)}, {v(tmp)}')
        I(f'v_fract_f32 {v(tmp + 1)}, {v(tmp + 1)}')
        I(f'v_cos_f32 {v(e)}, {v(tmp + 1)}')
        I(f'v_sin_f32 {v(e + 1)}, {v(tmp + 1)}')
        pk('mul', v(e, 2), (v(e, 2), 'p'), bc(tmp))
    pkr = [P.alloc() for _ in range(2)]
    cnt = [0]

    def put(r, neg):
        row = cnt[0]
        cnt[0] += 1
        if r is None:
            I(f'v_mov_b32 {v(pkr[row & 1])}, 0x3f80')
        else:
            I(f'v_cvt_pk_bf16_f32 {v(pkr[row & 1])}, {v(r)}, {"-" if neg else ""}{v(r + 1)}')
        if row & 1:
            o0 = (KG_ROW // 4) * (row & 2)
            I(f'ds_write2_b32 {v(kg["w"])}, {v(pkr[0])}, {v(pkr[1])} offset0:{o0} offset1:{o0 + KG_ROW // 4}')
            if row & 2:
                I(f'v_add_u32 {v(kg["w"])}, {4 * KG_ROW}, {v(kg["w"])}')
        elif row == 52:
            I(f'ds_write_b32 {v(kg["w"])}, {v(pkr[0])}')
        for th in hooks.pop(cnt[0], []):
            th()
    for rho, x, y in ((128, 64, 64), (192, 128, 64), (2, 1, 1), (4, 2, 2)):
        E[rho] = P.alloc(2, 2)
        cmul(E[rho], E[x], E[y], tmp)
    cur = P.alloc(2, 2)
    o = P.alloc(2, 2)
    put(None, False)
    for m in (1, 2, 3):
        put(E[64 * m], False)
    for j in range(1, 8):
        if j == 1:
            g = E[8]
        elif j == 2:
            cmul(cur, E[8], E[8], tmp)
            g = cur
        else:
            cmul(cur, cur, E[8], tmp)
        put(g, False)
        for m in (1, 2, 3):
            cmul(o, g, E[64 * m], tmp)
            put(o, False)
    put(CB, True)
    for j in range(1, 8):
        cmul(cur, CB if j == 1 else cur, E[1], tmp)
        put(cur, True)
    U = CB
    cmul(U, U, E[256], tmp)
    put(U, True)
    for j in range(1, 4):
        cmul(cur, U if j == 1 else cur, E[2], tmp)
        put(cur, True)
    for j in range(2):
        cmul(U, U, E[256], tmp)
        put(U, True)
        cmul(cur, U, E[4], tmp)
        put(cur, True)
    for j in range(5):
        cmul(U, U, E[256], tmp)
        put(U, True)
    for r in list(E.values()) + [tmp, CB, cur, o]:
        P.free(r, 2)
    P.free(pkr[0]), P.free(pkr[1])
    P.free(par, 8)
    assert not hooks
    stamp('a_kg1')
    A.barrier()
    d0, d1 = P.alloc(4, 2), P.alloc(4, 2)
    mf = []
    for st in range(8):
        for tl, d in ((0, d0), (1, d1)):
            def em(reg, st=st, tl=tl, d=d):
                c = '0' if st == 0 else v(d, 4)
                I(f'v_mfma_f32_16x16x32_bf16 {v(d, 4)}, {v(reg[("a", tl, st)], 4)}, {v(reg[("g", st)], 4)}, {c}')
            mf.append((em, [('a', tl, st), ('g', st)]))

    def loader(k, r):
        ko = KG_W * (k[-1] >> 2) + 64 * (k[-1] & 3)
        if k[0] == 'g':
            return [f'ds_read_b128 {v(r, 4)}, {v(kg["g"])} offset:{ko}']
        base = kg['a0'] if k[1] == 0 else kg['a1']
        return [f'ds_read_b128 {v(r, 4)}, {v(base)} offset:{(32 + 16 * k[1]) * KG_ROW + ko}']
    stream(mf, loader, 15, 12, rate=2, burst=15)
    I(f'ds_write_b64 {v(kg["t1"])}, {v(d0, 2)}')
    I(f'ds_write_b64 {v(kg["t2"])}, {v(d0 + 2, 2)}')
    I(f'v_add_u32 {v(kg["t3"])}, {4 * TB[3]}, {v(kg["t3"])}')
    I('s_mov_b32 exec_hi, 0')
    for r in (0, 2):
        I(f'ds_write2_b32 {v(kg["t3"])}, {v(d1 + r)}, {v(d1 + r + 1)} offset0:{32 * r} offset1:{32 * r + 32}')
    I('s_mov_b64 exec, -1')
    P.free(d0, 4), P.free(d1, 4)
    stamp('a_kg2')
    A.barrier()
    for u in range(17):
        I(f'ds_read_b32 {v(gi + u)}, {v(gi + u)}')
    c = P.alloc(16, 2)
    for cp in range(2):
        for m in range(8):
            I(f'v_cvt_pk_bf16_f32 {v(c + 8 * cp + m)}, {v(gi + 2 * m + cp)}, {v(gi + 2 * m + cp + 1)}')
        for hq in range(2):
            I(f'ds_write_b128 {v(kg["rk"])}, {v(c + 8 * cp + 4 * hq, 4)} offset:{4160 * cp + 16 * hq}')
    P.free(c, 16), P.free(gi, 18)
    for r in kg.values():
        P.free(r)


def conv(layer, vwd):
    xd = P.alloc(8, 2)
    sm = P.alloc(8, 2)
    sq = P.alloc(8, 2)
    for i in range(2):
        I(f'buffer_load_dwordx4 {v(sm + 4 * i, 4)}, {v(V_CVL)}, {WS}, s{S_T1} offen offset:{1024 * i} sc1')
        I(f'buffer_load_dwordx4 {v(sq + 4 * i, 4)}, {v(V_CVL)}, {WS}, s{S_T2} offen offset:{1024 * i} sc1')
        I(f'buffer_load_dwordx4 {v(xd + 4 * i, 4)}, {v(V_CVL)}, {WS}, s{S_T3} offen offset:{1024 * i} sc1')
        if i == 0 and '--nocvb' not in sys.argv:
            A.barrier()
    stamp(f'conv{layer}_iss')
    if layer == 0:
        for th in consume_w(1, V_XT[0]):
            th()
    base = P.alloc(16, 2)
    hh = P.alloc(4, 2)
    hp = P.alloc(4, 2)
    LN = s(S_LN, 2)
    for i in range(2):
        m, q, x = sm + 4 * i, sq + 4 * i, xd + 4 * i
        for j in (0, 2):
            pk('mul', v(m + j, 2), (v(m + j, 2), 'p'), (LN, 'l'))
        for j in (0, 2):
            pk('fma', v(q + j, 2), (v(q + j, 2), 'p'), (LN, 'l'), (LN, 'h'))
        for j in (0, 2):
            pk('fma', v(q + j, 2), (v(m + j, 2), 'p', 'b'), (v(m + j, 2), 'p'), (v(q + j, 2), 'p'))
        for j in range(4):
            I(f'v_max_f32 {v(q + j)}, s{S_LN + 1}, {v(q + j)}')
        for j in range(4):
            I(f'v_rsq_f32 {v(q + j)}, {v(q + j)}')
        for c in range(2):
            b = base + 8 * i + 4 * c
            for j in range(4):
                if c == 0:
                    I(f'v_lshlrev_b32 {v(b + j)}, 16, {v(x + j)}')
                else:
                    I(f'v_and_b32 {v(b + j)}, 0xffff0000, {v(x + j)}')
            for j in (0, 2):
                pk('add', v(hh + j, 2), (v(b + j, 2), 'p'), (v(m + j, 2), 'p', 'b'))
            for j in (0, 2):
                pk('mul', v(hh + j, 2), (v(hh + j, 2), 'p'), (v(q + j, 2), 'p'))
            for j in (0, 2):
                I(f'v_cvt_pk_bf16_f32 {v(hp + 2 * c + j // 2)}, {v(hh + j)}, {v(hh + j + 1)}')
            I(f'ds_write_b64 {v(V_HW)}, {v(hp + 2 * c, 2)} offset:{4608 * c + 512 * i}')
            for j in (0, 2):
                pk('fma', v(b + j, 2), (v(hh + j, 2), 'p'), (s(S_D, 2), 'h' if c else 'l'), (v(b + j, 2), 'p'))
    P.free(xd, 8), P.free(sm, 8), P.free(sq, 8), P.free(hh, 4), P.free(hp, 4)
    A.barrier()
    stamp(f'conv{layer}_h')
    acc = P.alloc(32, 2)
    mf = []
    seen = set()
    fin = {}
    for cc in range(4):
        if cc < 3:
            seq = [(p, n) for p in range(7, -1, -1) for n in range(p, 8)]
        else:
            seq = [(p, n) for n in range(8) for p in range(n + 1)]
        for (p, n) in seq:
            def em(reg, cc=cc, p=p, n=n, fst=(n not in seen)):
                d = v(acc + 4 * n, 4)
                I(f'v_mfma_f32_16x16x32_bf16 {d}, {v(reg[("A", cc, p)], 4)}, {v(reg[("B", cc, n - p)], 4)}, {"0" if fst else d}')
            seen.add(n)
            mf.append((em, [('A', cc, p), ('B', cc, n - p)]))
            fin[n] = len(mf) - 1

    def loader(k, r):
        _, cc, x = k
        if k[0] == 'B':
            return [f'ds_read_b128 {v(r, 4)}, {v(V_CB)} offset:{512 * x + 64 * (3 - cc)}']
        o = 128 * (1 - (x & 1)) + 16 * (3 - cc)
        return [f'ds_read2_b32 {v(r, 2)}, {v(V_CA[x >> 1])} offset0:{o} offset1:{o + 1}',
                f'ds_read2_b32 {v(r + 2, 2)}, {v(V_CA[x >> 1])} offset0:{o + 2} offset1:{o + 3}']
    fill = {}
    for n in range(8):
        at = min(fin[n] + 7, len(mf) - 1)
        fill.setdefault(at, []).append(lambda reg, n=n: I(f'ds_write_b128 {v(V_EXW)}, {v(acc + 4 * n, 4)} offset:{1280 * n}'))
    if layer == 0:
        spread(fill, dma_w(1 if '--exp1' in sys.argv else 2, L_A, vwd), *((10, 8.5) if '--exp2' in sys.argv else (10, 6.5)), solo='--exp3' not in sys.argv)
    stream(mf, loader, 21, 40, fill=fill, burst=12)
    P.free(acc, 32)
    A.barrier()
    stamp(f'conv{layer}_mm')
    ex = P.alloc(32, 2)
    for i in range(2):
        for u in range(4):
            I(f'ds_read_b128 {v(ex + 16 * i + 4 * u, 4)}, {v(V_EXR)} offset:{10240 * u + 1280 * i}')
    I(f's_mov_b32 s{S_T0}, {hex(WS_XT[layer])}')
    I(f's_mov_b32 s{S_T1}, {hex(WS_XT[layer] + 262144)}')
    for i in range(2):
        for c in range(2):
            b = base + 8 * i + 4 * c
            e = ex + 16 * i + 8 * c
            for j in (0, 2):
                pk('add', v(b + j, 2), (v(b + j, 2), 'p'), (v(e + j, 2), 'p'))
            for j in (0, 2):
                pk('add', v(b + j, 2), (v(b + j, 2), 'p'), (v(e + 4 + j, 2), 'p'))
            for j in (0, 2):
                I(f'v_cvt_pk_bf16_f32 {v(e + j // 2)}, {v(b + j)}, {v(b + j + 1)}')
            I(f'buffer_store_dwordx2 {v(e, 2)}, {v(V_XTST)}, {WS}, s{S_T0 + i} offen offset:{128 * c} sc1', tag='xtst')
    P.free(ex, 32), P.free(base, 16)
    stamp(f'conv{layer}_st')


def phi(x, tmp):
    EX = s(S_EXP, 2)
    for j in (0, 2):
        pk('fma', v(tmp + j, 2), (v(x + j, 2), 'p'), (EX, 'l'), (EX, 'h'))
    for j in range(4):
        I(f'v_exp_f32_e64 {v(tmp + j)}, {v(tmp + j)} clamp')
    for j in range(4):
        I(f'v_max_f32 {v(x + j)}, s{S_E6}, {v(x + j)}')
    for j in (0, 2):
        pk('add', v(x + j, 2), (v(x + j, 2), 'p'), (v(tmp + j, 2), 'p'))


DOTSTATS = '--dot' in sys.argv


def p3(layer, vod, vor):
    for ck in range(4):
        if ck == 0:
            I(f's_lshl_b32 m0, s{S_W}, 12')
        else:
            I('s_add_u32 m0, m0, 16384')
        I(f's_mov_b32 s{S_T0}, {hex(WS_XT[layer] + ck * 16384)}')
        for j in range(4):
            I(f'buffer_load_dwordx4 {v(V_XTLD)}, {WS}, s{S_T0} offen offset:{1024 * j} sc1 lds', tag=f'xt{ck}')
        if layer == 0 and ck == 1:
            vwb = P.alloc()
            I(f'v_add_u32 {v(vwb)}, {L_B}, {v(V_XT[0])}')
            run_all(consume_w(0, vwb))
            P.free(vwb)
        if layer == 0 and ck == 2:
            colsums([0])
    acc = P.alloc(32, 4)
    ss = P.alloc(8, 4)

    def loader(k, r):
        st, i = k
        return [f'ds_read_b64_tr_b16 {v(r + 2 * z, 2)}, {v(V_XT[i])} offset:{4096 * st + 2048 * z}' for z in range(2)]
    mf = []
    fill = {}
    for st in range(16):
        for i in range(4):
            for y in (1, 2):
                def em(reg, st=st, i=i, y=y):
                    d = v(acc + 16 * (y - 1) + 4 * i, 4)
                    I(f'v_mfma_f32_16x16x32_bf16 {d}, {v(reg[(st, i)], 4)}, {wq_reg(y, st)}, {"0" if st == 0 else d}')
                mf.append((em, [(st, i)]))
            if i == 0 and not DOTSTATS:
                for y in range(2):
                    def em(reg, st=st, y=y):
                        d = v(ss + 4 * y, 4)
                        x = v(reg[(st, 0)], 4)
                        I(f'v_mfma_f32_16x16x32_bf16 {d}, {v(V_ONES, 4) if y else x}, {x}, {"0" if st == 0 else d}')
                    mf.append((em, [(st, 0)]))
            if i == 0 and DOTSTATS:
                def dots(reg, st=st):
                    for j in range(8):
                        x = v(reg[(st, 0)] + j // 2)
                        d = v(ss + (j & 1))
                        c = '0' if (st == 0 and j < 2) else d
                        I(f'v_dot2_f32_bf16 {d}, {x}, {x if j & 1 else s(S_ONES)}, {c}')
                fill.setdefault(len(mf) - 2, []).append(dots)
    per = len(mf) // 16
    if layer == 0:
        spread(fill, dma_wo(0, L_B, vod), 5 * per + 3, 0.66 * per)

    def mkgate(ck):
        def g():
            A.wait_vm(f'xt{ck}')
            A.barrier(lg=(ck == 0))
            if ck == 0:
                stamp(f'p3_{layer}_c0')
        return g
    gate = {(4 * ck, 0): mkgate(ck) for ck in range(4)}
    stream(mf, loader, 9, per + 2, fill=fill, gate=gate, burst=8)
    stamp(f'p3_{layer}_mm')
    if DOTSTATS:
        for r in (0, 1):
            I(f'v_mov_b32 {v(ss + 2 + r)}, {v(ss + r)}')
        for r in (0, 1):
            I(f'v_permlane32_swap_b32 {v(ss + r)}, {v(ss + 2 + r)}')
        pk('add', v(ss, 2), (v(ss, 2), 'p'), (v(ss + 2, 2), 'p'))
        for r in (0, 1):
            I(f'v_mov_b32 {v(ss + 2 + r)}, {v(ss + r)}')
        for r in (0, 1):
            I(f'v_permlane16_swap_b32 {v(ss + r)}, {v(ss + 2 + r)}')
        pk('add', v(ss, 2), (v(ss, 2), 'p'), (v(ss + 2, 2), 'p'))
        pk('mul', v(ss, 2), (v(ss, 2), 'p'), (s(S_LN, 2), 'l'))
        I(f'v_fma_f32 {v(ss + 1)}, -{v(ss)}, {v(ss)}, {v(ss + 1)}')
        I(f'v_max_f32 {v(ss + 1)}, 0, {v(ss + 1)}')
        I(f'v_add_f32 {v(ss + 1)}, s{S_LN + 1}, {v(ss + 1)}')
        I(f'v_rsq_f32 {v(ss + 1)}, {v(ss + 1)}')
        I(f'v_mul_f32 {v(ss)}, {v(ss)}, {v(ss + 1)}')
        I(f'ds_write2st64_b32 {v(V_SW)}, {v(ss + 1)}, {v(ss)} offset0:0 offset1:1')
    else:
        I(f'v_cndmask_b32 {v(ss)}, {v(ss)}, {v(ss + 1)}, {s(S_M1, 2)}')
        I(f'v_cndmask_b32 {v(ss + 2)}, {v(ss + 2)}, {v(ss + 3)}, {s(S_M1, 2)}')
        I(f'v_mul_f32 {v(ss + 4)}, s{S_LN}, {v(ss + 4)}')
        I(f'v_cndmask_b32 {v(ss)}, {v(ss)}, {v(ss + 2)}, {s(S_M2, 2)}')
        I(f'v_mul_f32 {v(ss + 1)}, {v(ss + 4)}, {v(ss + 4)}')
        I(f'v_fma_f32 {v(ss + 1)}, {v(ss)}, s{S_LN}, -{v(ss + 1)}')
        I(f'v_max_f32 {v(ss + 1)}, 0, {v(ss + 1)}')
        I(f'v_add_f32 {v(ss + 1)}, s{S_LN + 1}, {v(ss + 1)}')
        I(f'v_rsq_f32 {v(ss + 1)}, {v(ss + 1)}')
        I('s_mov_b32 exec_lo, 0x00f0000f')
        I('s_mov_b32 exec_hi, 0xf0000f00')
        I(f'v_mul_f32 {v(ss)}, {v(ss + 4)}, {v(ss + 1)}')
        I(f'ds_write2st64_b32 {v(V_SW)}, {v(ss + 1)}, {v(ss)} offset0:0 offset1:1')
        I('s_mov_b64 exec, -1')
    ta = P.alloc(6, 2)
    for i in range(1, 4):
        I(f'v_xor_b32 {v(ta + 2 * i - 2)}, {64 * i}, {v(V_SR4)}')
        I(f'v_xor_b32 {v(ta + 2 * i - 1)}, {64 * i}, {v(V_SR1)}')
    A.barrier()
    stamp(f'p3_{layer}_st')
    P.free(ss, 8)
    r4 = P.alloc(32, 4)
    r1 = P.alloc(8, 2)
    for i in range(4):
        a4 = ta + 2 * i - 2 if i else V_SR4
        I(f'ds_read_b128 {v(r4 + 8 * i + 4, 4)}, {v(a4)} offset:256')
        I(f'ds_read_b128 {v(r4 + 8 * i, 4)}, {v(a4)}')
    for i in range(4):
        a1 = ta + 2 * i - 1 if i else V_SR1
        I(f'ds_read2st64_b32 {v(r1 + 2 * i, 2)}, {v(a1)} offset0:0 offset1:1')
    P.free(ta, 6)
    tmp = P.alloc(4, 2)
    fk = P.alloc(8, 4)
    fv = P.alloc(8, 4)
    dkv, dz = P.alloc(4, 4), P.alloc(4, 4)
    E6 = s(S_E6, 2)
    for i in range(4):
        r, rm = r4 + 8 * i, r4 + 8 * i + 4
        k_, v_ = acc + 4 * i, acc + 16 + 4 * i
        for j in (0, 2):
            pk('fma', v(tmp + j, 2), (v(rm + j, 2), 'p', 'b'), bc(V_CSKV), (E6, 'p'))
        for j in (0, 2):
            pk('fma', v(k_ + j, 2), (v(k_ + j, 2), 'p'), (v(r + j, 2), 'p'), (v(tmp + j, 2), 'p'))
        for j in (0, 2):
            pk('mul', v(v_ + j, 2), (v(v_ + j, 2), 'p'), (v(r + j, 2), 'p'))
        for j in (0, 2):
            pk('fma', v(v_ + j, 2), (v(rm + j, 2), 'p', 'b'), bc(V_CSKV + 1), (v(v_ + j, 2), 'p'))
        phi(k_, tmp)
        for j in (0, 2):
            I(f'v_cvt_pk_bf16_f32 {v(fv + 2 * i + j // 2)}, {v(v_ + j)}, {v(v_ + j + 1)}')
        for j in (0, 2):
            I(f'v_cvt_pk_bf16_f32 {v(fk + 2 * i + j // 2)}, {v(k_ + j)}, {v(k_ + j + 1)}')
    stamp(f'p3_{layer}_kv')
    I(f's_mov_b32 s{S_T2}, {hex(WS_KV[layer])}')
    I(f's_mov_b32 s{S_T0}, {hex(WS_KV[layer] + 32768)}')
    for hf in range(2):
        I(f'v_mfma_f32_16x16x32_bf16 {v(dkv, 4)}, {v(fv + 4 * hf, 4)}, {v(fk + 4 * hf, 4)}, {v(dkv, 4) if hf else 0}')
    for hf in range(2):
        I(f'v_mfma_f32_16x16x32_bf16 {v(dz, 4)}, {v(V_ONES, 4)}, {v(fk + 4 * hf, 4)}, {v(dz, 4) if hf else 0}')
    P.free(r4, 32), P.free(fk, 8), P.free(fv, 8), P.free(acc, 32)

    def atomics():
        for r in range(4):
            I(f'buffer_atomic_add_f32 {v(dkv + r)}, {v(V_KVST)}, {WS}, s{S_T2} offen offset:{64 * r}')
        I('s_mov_b64 exec, 0xffff')
        I(f'buffer_atomic_add_f32 {v(dz)}, {v(V_ZST)}, {WS}, s{S_T0} offen')
        I('s_mov_b64 exec, -1')
        stamp(f'p3_{layer}_atom')
    acc = P.alloc(16, 4)
    mf = []
    fill = {}
    for st in range(16):
        for i in range(4):
            def em(reg, st=st, i=i):
                d = v(acc + 4 * i, 4)
                I(f'v_mfma_f32_16x16x32_bf16 {d}, {wq_reg(0, st)}, {v(reg[(st, i)], 4)}, {"0" if st == 0 else d}')
            mf.append((em, [(st, i)]))
    stream(mf, loader, 8, 6, fill=fill, rate=2, burst=10, pre=atomics)
    P.free(dkv, 4), P.free(dz, 4)
    stamp(f'p3_{layer}_qmm')
    res = p4_res() if layer == 0 else None
    I(f's_mov_b32 s{S_T0}, {hex(WS_PQ[layer])}')
    ta = P.alloc(4)
    for i in range(1, 4):
        I(f'v_xor_b32 {v(ta + i)}, {(i >> 1) * 32768 + (i & 1) * 512}, {v(V_PQST)}')
    for i in range(4):
        q_ = acc + 4 * i
        rr = v(r1 + 2 * i, 2)
        for j in (0, 2):
            pk('fma', v(tmp + j, 2), (rr, 'h', 'b'), (v(V_CSQ + j, 2), 'p'), (E6, 'p'))
        for j in (0, 2):
            pk('fma', v(q_ + j, 2), (v(q_ + j, 2), 'p'), (rr, 'l'), (v(tmp + j, 2), 'p'))
        phi(q_, tmp)
        for j in (0, 2):
            I(f'v_cvt_pk_bf16_f32 {v(q_ + j // 2)}, {v(q_ + j)}, {v(q_ + j + 1)}')
        I(f'buffer_store_dwordx2 {v(q_, 2)}, {v(ta + i if i else V_PQST)}, {WS}, s{S_T0} offen sc1', tag='pqst')
    stamp(f'p3_{layer}_q')
    P.free(r1, 8), P.free(tmp, 4), P.free(acc, 16), P.free(ta, 4)
    return res


P4_UP = int(([x[6:] for x in sys.argv if x.startswith('--p4up')] or ['3'])[0])


P4FL = '' if '--nosc1' in sys.argv else 'sc1'


OUTFL = ([x[6:] for x in sys.argv if x.startswith('--out=')] or [''])[0].replace('+', ' ')


def p4_res():
    res = P.alloc(8, 2)
    for j in range(4):
        I(f'ds_read_b64_tr_b16 {v(res + 2 * j, 2)}, {v(V_RES[j & 1])} offset:{512 * j}')
    return res


def p4_pre(res, layer):
    I(f's_mov_b32 s{S_T1}, {hex(WS_KV[layer])}')
    I(f's_mov_b32 s{S_T2}, {hex(WS_PQ[layer])}')
    acc = P.alloc(16, 4)
    ad = P.alloc(9)
    for pp in range(1, 4):
        for j, r in enumerate((V_KVLD, V_PQLD, V_OFW)):
            I(f'v_xor_b32 {v(ad + 3 * pp - 3 + j)}, {2048 * pp}, {v(r)}')
    for j in range(8):
        I(f'v_lshlrev_b32 {v(acc + 2 * j)}, 16, {v(res + j)}')
        I(f'v_and_b32 {v(acc + 2 * j + 1)}, 0xffff0000, {v(res + j)}')
    P.free(res, 8)
    return acc, ad


def p4(layer, acc, ad):
    zf = P.alloc(8, 2)
    kv = P.alloc(32, 2)
    pq = P.alloc(32, 2)
    adr = lambda pp, j: v(ad + 3 * pp - 3 + j) if pp else v((V_KVLD, V_PQLD, V_OFW)[j])

    def loads(pp):
        out = []
        for j in range(2):
            out.append(f'buffer_load_dwordx4 {v(kv + 8 * pp + 4 * j, 4)}, {adr(pp, 0)}, {WS}, s{S_T1} offen offset:{1024 * j} sc1')
        for j in range(2):
            out.append(f'buffer_load_dwordx4 {v(pq + 8 * pp + 4 * j, 4)}, {adr(pp, 1)}, {WS}, s{S_T2} offen offset:{1024 * j} sc1')
        return out
    I(f'buffer_load_dwordx4 {v(zf + 4, 4)}, {v(V_ZLD)}, {WS}, s{S_T1} offen sc1')
    for pp in range(P4_UP):
        for t in loads(pp):
            I(t)
        if pp < P4_UP - 1:
            A.barrier()
    late = [t for pp in range(P4_UP, 4) for t in loads(pp)]
    stamp(f'p4_{layer}_iss')
    for j in range(4):
        I(f'v_cvt_pk_bf16_f32 {v(zf + j)}, {v(zf + 4 + 2 * (j & 1))}, {v(zf + 5 + 2 * (j & 1))}')
    stamp(f'p4_{layer}_z')
    D = [P.alloc(16, 2), P.alloc(16, 2)]
    MK = s(S_MASK, 2)

    def prep(pp):
        x = kv + 8 * pp
        for j in range(4):
            I(f'v_cvt_pk_bf16_f32 {v(x + j)}, {v(x + 2 * j)}, {v(x + 2 * j + 1)}')
        if pp == 0:
            for j in range(2):
                I(f'v_permlane16_swap_b32 {v(zf + j)}, {v(zf + 2 + j)}')
        for j in range(4):
            I(f'v_cndmask_b32 {v(x + 4 + j)}, {v(zf + j)}, {v(x + j)}, {MK}')
        for j in range(4):
            I(f'v_cndmask_b32 {v(x + j)}, {v(x + j)}, {v(zf + j)}, {MK}')

    def mm(hh):
        I(f'v_mfma_f32_32x32x16_bf16 {v(D[hh & 1], 16)}, {v(kv + 4 * hh, 4)}, {v(pq + 4 * hh, 4)}, 0')

    def norm(pp):
        den = [D[o] + 8 * (1 - o) + 2 * pp + o for o in range(2)]
        for o in range(2):
            I(f'v_add_f32 {v(den[o])}, s{S_E6}, {v(den[o])}')
        for o in range(2):
            I(f'v_rcp_f32 {v(den[o])}, {v(den[o])}')
        for o in range(2):
            num = D[o] + 8 * o
            for j in range(0, 8, 2):
                pk('mul', v(num + j, 2), (v(num + j, 2), 'p'), bc(den[o]))
            if late:
                I(late.pop(0))
            of = pq + 8 * pp + 4 * o
            for j in range(4):
                I(f'v_cvt_pk_bf16_f32 {v(of + j)}, {v(num + 2 * j)}, {v(num + 2 * j + 1)}')
            I(f'ds_write_b128 {adr(pp, 2)}, {v(of, 4)} offset:{1024 * o}')
    prep(0)
    for pp in range(4):
        mm(2 * pp)
        mm(2 * pp + 1)
        while late:
            I(late.pop(0))
        stamp(f'p4_{layer}_m{pp}')
        if pp in (1, 2):
            prep(pp + 1)
        norm(pp)
        if pp == 0:
            prep(1)
        stamp(f'p4_{layer}_n{pp}')
    P.free(zf, 8), P.free(kv, 32), P.free(pq, 32), P.free(D[0], 16), P.free(D[1], 16), P.free(ad, 9)
    A.barrier()
    stamp(f'p4_{layer}_o')
    mf = []
    for h in range(32):
        def em(reg, h=h):
            I(f'v_mfma_f32_32x32x16_bf16 {v(acc, 16)}, {wo_reg(h)}, {v(reg[h], 4)}, {v(acc, 16)}')
        mf.append((em, [h]))
    stream(mf, lambda k, r: [f'ds_read_b128 {v(r, 4)}, {v(V_OFR)} offset:{1024 * k}'], 8, 7)
    stamp(f'p4_{layer}_mm')
    o = P.alloc(8, 2)
    for j in range(8):
        I(f'v_cvt_pk_bf16_f32 {v(o + j)}, {v(acc + 2 * j)}, {v(acc + 2 * j + 1)}')
    if layer == 0:
        x2store(1, o)
        ss = P.alloc(2, 2)
        for j in range(8):
            I(f'v_dot2_f32_bf16 {v(ss)}, {v(o + j)}, s{S_ONES}, {v(ss) if j else 0}')
            I(f'v_dot2_f32_bf16 {v(ss + 1)}, {v(o + j)}, {v(o + j)}, {v(ss + 1) if j else 0}')
        I(f'v_permlane32_swap_b32 {v(ss)}, {v(ss + 1)}')
        I(f'v_add_f32 {v(ss)}, {v(ss)}, {v(ss + 1)}')
        I(f's_mov_b32 s{S_T0}, {hex(WS_ST[1])}')
        I(f'buffer_atomic_add_f32 {v(ss)}, {v(V_STAT)}, {WS}, s{S_T0} offen')
        P.free(ss, 2)
    else:
        for j in range(2):
            I(f'global_store_dwordx4 {v(V_TILE)}, {v(o + 4 * j, 4)}, {s(S_OUT, 2)} offset:{16 * j} {OUTFL}')
    P.free(o, 8), P.free(acc, 16)
    stamp(f'p4_{layer}_st')


def main():
    vwd = prologue()
    vod = vor = None
    bar = 1
    for layer in range(2):
        I(f's_lshl_b32 s{S_T3}, s2, 13')
        I(f's_add_u32 s{S_T3}, s{S_T3}, {hex(WS_X2[layer])}')
        I(f's_mov_b32 s{S_T1}, {hex(WS_ST[layer])}')
        I(f's_mov_b32 s{S_T2}, {hex(WS_ST[layer] + 8192)}')
        stamp(f'pre_wait{bar}')
        global_wait(bar)
        stamp(f'wait{bar}')
        conv(layer, vwd)
        if layer == 0:
            A.barrier()
            qd = dma_w(0, L_B, vwd, 'wq')
            for th in qd[:6]:
                run_all(th)
            vod, vor = setup_late()
            colsums([1])
            A.wait_vm('xtst')
        else:
            A.wait_vm()
        global_arrive()
        bar += 1
        stamp(f'arr{bar}')
        if layer == 0:
            qd = qd[6:]
            for i, th in enumerate(consume_w(2, V_XT[0])):
                th()
                if i % 3 == 2:
                    run_all(qd.pop(0))
            assert not qd
            poll_start(bar)
            colsums([2])
            A.wait_vm()
            P.free(vwd)
            stamp('pre_wait2')
        global_wait(bar, started=(layer == 0))
        stamp(f'wait{bar}')
        res = p3(layer, vod, vor)
        if layer == 0:
            A.wait_vm('wdma')
            A.barrier()
            od = dma_wo(1, L_A, vod, 'wo1')
            for th in od[:6]:
                run_all(th)
            consume_wo(0, vor)
            A.wait_vm('pqst')
        else:
            A.wait_vm()
        global_arrive()
        bar += 1
        stamp(f'arr{bar}')
        if layer == 0:
            for th in od[6:]:
                run_all(th)
            acc, ad = p4_pre(res, layer)
            I(f'v_subrev_u32 {v(vor)}, {L_B - L_A}, {v(vor)}')
            A.wait_vm()
            poll_start(bar)
            A.barrier()
            consume_wo(1, vor)
            P.free(vod), P.free(vor)
            stamp('pre_wait3')
        else:
            poll_start(bar)
            acc, ad = p4_pre(p4_res(), layer)
        global_wait(bar, started=True)
        stamp(f'wait{bar}')
        p4(layer, acc, ad)
        if layer == 0:
            A.wait_vm()
            global_arrive()
            bar += 1
    if DIAG:
        A.wait_vm()
        stamp('end')
        A._wait(lg=0)
        t = P.alloc(2)
        I(f's_lshl_b32 s{S_T0}, s2, 2')
        I(f's_add_u32 s{S_T0}, s{S_T0}, s{S_W}')
        I(f's_lshl_b32 s{S_T0}, s{S_T0}, 7')
        I(f's_add_u32 s{S_T0}, s{S_T0}, {hex(WS_DIAG)}')
        I(f'v_mov_b32 {v(t + 1)}, 0')
        I('s_mov_b64 exec, 1')
        for k in range(nstamp[0]):
            I(f'v_mov_b32 {v(t)}, s{S_STAMP + 2 * k}')
            I(f'buffer_store_dword {v(t)}, {v(t + 1)}, {WS}, s{S_T0} offen offset:{4 * k}')
        pr = [x for x in sys.argv if x.startswith('--probe=')]
        if pr:
            nm = pr[0][8:]
            k = stamp_names.index(nm)
            I(f's_add_u32 s{S_T1}, s{S_STAMP + 2 * k}, 6000')
            A.label('L_probe')
            I('s_memrealtime s[4:5]')
            A._wait(lg=0)
            I(f's_sub_u32 s{S_T0}, s4, s{S_T1}')
            I(f's_cmp_lt_i32 s{S_T0}, 0')
            I('s_cbranch_scc1 L_probe')
        I(f's_lshl_b32 s{S_T0}, s2, 2')
        I(f's_add_u32 s{S_T0}, s{S_T0}, s{S_W}')
        I(f's_cmp_lg_u32 s{S_T0}, 400')
        I('s_cbranch_scc1 L_end')
        sel = list(range(1, nstamp[0]))
        for j, k in enumerate(sel):
            I(f's_sub_u32 s{S_T0}, s{S_STAMP + 2 * k}, s{S_STAMP}')
            I(f'v_mov_b32 {v(t)}, s{S_T0}')
            I(f'global_store_dword {v(t + 1)}, {v(t)}, {s(S_DBG, 2)} offset:{4 * (j + 1)}')
        print('debug stamps:', [stamp_names[k] for k in sel], file=sys.stderr)
        P.free(t, 2)
    A.label('L_end')
    A.raw('    s_endpgm')

    lines, info = layout(A.out, align='--noalign' not in sys.argv, touch='--notouch' not in sys.argv)
    body = '\n'.join(lines) + '\n'
    print(info, file=sys.stderr)
    ref = open(f'cdna_kernels/{NAME}.s.ref').read().splitlines()
    head = []
    for ln in ref:
        if ln.startswith('; @launch'):
            head.append(f'; @launch grid=(256,1,1) block=(256,1,1) lds={L_END}')
            break
        head.append(ln)
    txt = '\n'.join(head) + f'''
.amdgcn_target "amdgcn-amd-amdhsa--gfx950"
.text
.globl {NAME}_kernel
.p2align 12
.p2align 8
.type {NAME}_kernel,@function
{NAME}_kernel:
''' + body + f'''.section .rodata,"a"
.p2align 6
.amdhsa_kernel {NAME}_kernel
  .amdhsa_next_free_vgpr 512
  .amdhsa_next_free_sgpr 102
  .amdhsa_accum_offset 256
  .amdhsa_group_segment_fixed_size 0
  .amdhsa_kernarg_size 120
  .amdhsa_user_sgpr_count 2
  .amdhsa_user_sgpr_kernarg_segment_ptr 1
  .amdhsa_system_sgpr_workgroup_id_x 1
.end_amdhsa_kernel
'''
    out = [x for x in sys.argv[1:] if not x.startswith('--')]
    path = out[0] if out else f'cdna_kernels/{NAME}.s'
    open(path, 'w').write(txt)
    if DIAG:
        open(path + '.stamps', 'w').write('\n'.join(stamp_names))
    print(f'wrote {path}: {A.ninstr} instrs, {A.nnop} nop states, vgpr peak {P.peak}, lds {L_END}', file=sys.stderr)


main()
```

```python
import sys, struct, math
from emit import *
from layout import layout

NAME = 'interleave_layers__ssm_conv_s4__linear_attn_block__prompt'
DIAG = '--diag' in sys.argv


def f32(x):
    return '0x%08x' % struct.unpack('<I', struct.pack('<f', x))[0]


WS_CNT = 0x0
WS_ZERO = 0x10000
WS_KV = [WS_ZERO, WS_ZERO + 0xC000]
WS_ST = [0x30000, WS_ZERO + 0x18000]
WS_DIAG = 0x40000
WS_X2 = [0x200000, 0x400000]
WS_XT = [0x600000, 0x800000]
WS_PQ = [0xA00000, 0xC00000]
WS_SIZE = 0xE00000

L_A = 0
L_B = 65536
L_RK = 131072
L_H = L_RK + 4 * 4160
L_STAT = L_H + 2 * 4608
L_END = L_STAT + 512
KG_ARR = 18
KG_ROW = 288
KG_W = 54 * KG_ROW

S_U, S_ARE, S_AIM, S_BRE, S_BIM, S_CRE, S_CIM, S_LDT, S_DSK = 4, 6, 8, 10, 12, 14, 16, 18, 20
S_WQKV, S_WO, S_OUT, S_DBG, S_WS = 24, 26, 28, 30, 32
R_WS, R_WQ, R_WO = 36, 40, 44
S_W, S_RB, S_CG, S_NB, S_TH = 48, 49, 50, 51, 52
S_T0, S_T1, S_T2 = 53, 54, 55
S_D = 56
S_MASK = 58
S_ONES = 60
S_SPIN = 61
S_LN = 62
S_EXP = 64
S_E6 = 66
S_T3, S_T4 = 68, 69
S_STAMP = 70
S_M1, S_M2 = 22, 34

A = Asm()
I = A.I
P = Pool(1, 192)
P.force4 = '--al4' in sys.argv
WS = s(R_WS, 4)
nstamp = [0]
stamp_names = []


STSEL = [x[5:].split(',') for x in sys.argv if x.startswith('--st=')]
STSEL = STSEL[0] if STSEL else None


def stamp(name, fine=False):
    if not DIAG:
        return
    if name not in ('entry', 'end'):
        if STSEL is None:
            if fine or not name.startswith(('wait', 'arr')):
                return
        elif not any(name.startswith(p) for p in STSEL):
            return
    k = nstamp[0]
    assert k < 16, 'too many stamps'
    I(f'{"s_memtime" if "--cyc" in sys.argv else "s_memrealtime"} s[{S_STAMP + 2 * k}:{S_STAMP + 2 * k + 1}]')
    stamp_names.append(name)
    nstamp[0] += 1


def pk(op, dst, *srcs):
    sel, selhi, nlo, nhi, txt = [], [], [], [], []
    for sr in srcs:
        t, m = sr[0], sr[1]
        ng = sr[2] if len(sr) > 2 else ''
        txt.append(t)
        sel.append(1 if m in 'hx' else 0)
        selhi.append(1 if m in 'ph' else 0)
        nlo.append(1 if ng in ('l', 'b') else 0)
        nhi.append(1 if ng in ('h', 'b') else 0)
    f = lambda l: '[' + ','.join(map(str, l)) + ']'
    line = f'v_pk_{op}_f32 {dst}, ' + ', '.join(txt) + f' op_sel:{f(sel)} op_sel_hi:{f(selhi)}'
    if any(nlo):
        line += f' neg_lo:{f(nlo)}'
    if any(nhi):
        line += f' neg_hi:{f(nhi)}'
    I(line)


def bc(r):
    return (v(r & ~1, 2), 'h' if r & 1 else 'l')


def cmul(d, x, y, tmp):
    pk('mul', v(tmp, 2), (v(x, 2), 'l'), (v(y, 2), 'p'))
    pk('fma', v(d, 2), (v(x, 2), 'h', 'l'), (v(y, 2), 'x'), (v(tmp, 2), 'p'))


def wq_reg(y, st):
    return a((y * 16 + st) * 4, 4)


def wo_reg(h, n=4, off=0):
    if h < 16:
        return a(192 + 4 * h + off, n)
    return v(192 + 4 * (h - 16) + off, n)


V_L = P.alloc()
V_L16 = P.alloc()
V_XT = [P.alloc() for _ in range(4)]
V_TILE = P.alloc()
V_X2ST = P.alloc()
V_STAT = P.alloc()
V_CVL = P.alloc()
V_HW = P.alloc()
V_CA = [P.alloc() for _ in range(4)]
V_CB = P.alloc()
V_EXW = P.alloc()
V_EXR = P.alloc()
V_OFR = P.alloc()
V_XTST = P.alloc()
V_XTLD = P.alloc()
V_PQST = P.alloc()
V_KVST = P.alloc()
V_ZST = P.alloc()
V_PQLD = P.alloc()
V_KVLD = P.alloc()
V_ZLD = P.alloc()
V_OFW = P.alloc()
V_RES = [P.alloc(), P.alloc()]
V_SW = P.alloc()
V_SR4 = P.alloc()
V_SR1 = V_SW
V_ARR = P.alloc()
V_POLL = P.alloc()
V_PA = P.alloc(2)
POLL_GAP = 4
V_CSKV = P.alloc(2)
V_CSQ = P.alloc(4)
V_ONES = P.alloc(4)


def global_arrive(first=None):
    A.barrier(lg=not first)
    lab = f'L_arr{global_arrive.n}'
    global_arrive.n += 1
    I(f's_cmp_lg_u32 s{S_W}, 0')
    I(f's_cbranch_scc1 {lab}')
    t = P.alloc()
    if first:
        flag, zero = first
        I(f's_mov_b32 s{S_SPIN}, 0x200000')
        A.label(lab + '_init')
        I(f'v_readfirstlane_b32 s{S_T0}, {v(flag)}')
        I(f's_sub_u32 s{S_SPIN}, s{S_SPIN}, 1')
        I(f's_cbranch_scc1 {lab}_go')
        I(f's_cmp_lg_u32 s{S_T0}, 0')
        I(f's_cbranch_scc1 {lab}_go')
        A.cond = True
        I(f'global_load_dword {v(flag)}, {v(zero)}, {s(S_DBG, 2)} sc1')
        A.cond = False
        A._wait(vm=0)
        A.vm.pop()
        I(f's_branch {lab}_init')
        A.label(lab + '_go')
    I(f'v_mov_b32 {v(t)}, 1')
    I('s_mov_b32 exec_hi, 0')
    A.cond = True
    I(f'buffer_atomic_add {v(t)}, {v(V_ARR)}, {WS}, 0 offen')
    A.cond = False
    I('s_mov_b64 exec, -1')
    P.free(t)
    A.label(lab)


global_arrive.n = 0


def _poll(r):
    A._emit(Ins(f'v_mov_b32 {v(r)}, 0'))
    A._emit(Ins(f'buffer_atomic_add {v(r)}, {v(V_POLL)}, {WS}, 0 offen sc0'))


def poll_start(k):
    lab = f'L_ps{k}'
    I(f's_cmp_lg_u32 s{S_W}, 0')
    I(f's_cbranch_scc1 {lab}')
    I('s_mov_b64 exec, 0xff')
    _poll(V_PA)
    I('s_mov_b64 exec, -1')
    A.label(lab)
    A.vm.append(dict(defs=set(), tag=None, cond=True))


def global_wait(k, started=False):
    lab = f'L_wait{k}'
    I(f's_cmp_lg_u32 s{S_W}, 0')
    I(f's_cbranch_scc0 {lab}_w0')
    A.raw(f'#touch s{k}')
    I(f's_branch {lab}')
    A.label(lab + '_w0')
    pa, pb = V_PA, V_PA + 1
    raw = lambda t: A._emit(Ins(t))
    I('s_mov_b64 exec, 0xff')
    if not started:
        _poll(pa)
    I(f's_mov_b32 s{S_SPIN}, 0x100000')
    I(f's_movk_i32 s{S_T0}, {32 * k}')
    if not started:
        raw(f's_sleep {POLL_GAP}')
    A.label(lab + '_poll')
    _poll(pb)
    raw('s_waitcnt vmcnt(1)')
    raw(f'v_cmp_gt_u32 vcc, s{S_T0}, {v(pa)}')
    raw(f's_cbranch_vccz {lab}_done')
    _poll(pa)
    raw(f's_sub_u32 s{S_SPIN}, s{S_SPIN}, 1')
    raw(f's_cbranch_scc1 {lab}_done')
    raw('s_waitcnt vmcnt(1)')
    raw(f'v_cmp_gt_u32 vcc, s{S_T0}, {v(pb)}')
    raw(f's_cbranch_vccnz {lab}_poll')
    A.label(lab + '_done')
    I('s_mov_b64 exec, -1')
    A.vm.append(dict(defs=set(), tag=None, cond=True))
    A.label(lab)
    A.raw(f'#seg s{k}')
    A.barrier()


def dma_pieces(srd, vaddr, init, step, gstep, tag):
    out = []
    for i in range(16):
        th = []
        if i == 0:
            th += [lambda t=t: I(t) for t in init]
        elif i % 4 == 0:
            th.append(lambda: I('s_add_u32 m0, m0, 4096'))
            th.append(lambda: I(f's_add_u32 s{S_T3}, s{S_T3}, {gstep - 3 * (step - 1024)}'))
        elif step != 1024:
            th.append(lambda: I(f's_add_u32 s{S_T3}, s{S_T3}, {step - 1024}'))

        def ld(i=i):
            I(f'buffer_load_dwordx4 {v(vaddr)}, {s(srd, 4)}, s{S_T3} offen offset:{1024 * (i % 4)} lds', tag=tag)
        ld.lds = True
        th.append(ld)
        out.append(th)
    return out


def dma_w(y, region, vaddr, tag='wdma'):
    return dma_pieces(R_WQ, vaddr, [f's_lshl_b32 s{S_T4}, s{S_W}, 14', f's_add_u32 m0, s{S_T4}, {region}',
                                    f's_mul_i32 s{S_T3}, s{S_W}, {128 * 3072}', f's_add_u32 s{S_T3}, s{S_T3}, {y * 1024}'], 8 * 3072, 32 * 3072, tag)


def dma_wo(kh, region, vaddr, tag='wdma'):
    return dma_pieces(R_WO, vaddr, [f's_lshl_b32 s{S_T4}, s{S_W}, 14', f's_add_u32 m0, s{S_T4}, {region}',
                                    f's_lshl_b32 s{S_T3}, s{S_W}, 16', f's_add_u32 s{S_T3}, s{S_T3}, {kh * 256 * 1024}'], 1024, 16384, tag)


def run_all(th):
    for t in th:
        t()


def spread(fill, pieces, start, step, solo=True):
    for i, th in enumerate(pieces):
        at = start + int(i * step)
        for j, t in enumerate(th):
            f = lambda reg, t=t: t()
            f.lds = getattr(t, 'lds', False) and solo
            fill.setdefault(max(0, at - (len(th) - 1 - j)), []).append(f)


def consume_w(y, vaddr):
    out = []
    for st in range(16):
        b = (y * 16 + st) * 4
        for z in range(2):
            def th(b=b, z=z, st=st):
                I(f'ds_read_b64_tr_b16 {a(b + 2 * z, 2)}, {v(vaddr)} offset:{4096 * st + 2048 * z}')
            th.lds = True
            out.append(th)
    return out


def colsums(ys):
    d = {y: V_CSQ if y == 0 else P.alloc(4, 2) for y in ys}
    for y in ys:
        for st in range(16):
            c = '0' if st == 0 else v(d[y], 4)
            if y == 0:
                I(f'v_mfma_f32_16x16x32_bf16 {v(d[y], 4)}, {wq_reg(y, st)}, {v(V_ONES, 4)}, {c}')
            else:
                I(f'v_mfma_f32_16x16x32_bf16 {v(d[y], 4)}, {v(V_ONES, 4)}, {wq_reg(y, st)}, {c}')
    for y in ys:
        if y:
            I(f'v_mov_b32 {v(V_CSKV + y - 1)}, {v(d[y])}')
            P.free(d[y], 4)


def consume_wo(kh, vaddr):
    for hh in range(16):
        for z in range(2):
            I(f'ds_read_b64_tr_b16 {wo_reg(16 * kh + hh, 2, 2 * z)}, {v(vaddr)} offset:{4096 * hh + 2048 * z}')


def stream(mf, loader, nslots, look, fill=None, gate=None, rate=1, burst=9, pre=None):
    fill = fill or {}
    gate = gate or {}
    first, last, order = {}, {}, []
    for m, (_, keys) in enumerate(mf):
        for k in keys:
            if k not in first:
                first[k] = m
                order.append(k)
            last[k] = m
    slots = [P.alloc(4, 2) for _ in range(nslots)]
    free = list(slots)
    reg = {}
    pend = []
    nxt = [0]

    def start_key():
        k = order[nxt[0]]
        nxt[0] += 1
        if k in gate:
            gate[k]()
        reg[k] = free.pop(0)
        pend.extend(loader(k, reg[k]))

    def issue(n, m, force=False):
        while n > 0:
            if not pend:
                if nxt[0] >= len(order) or not free:
                    return
                if first[order[nxt[0]]] > m + look:
                    return
                start_key()
            I(pend.pop(0))
            n -= 1

    issue(burst, -1)
    if pre:
        pre()
    for m, (em, keys) in enumerate(mf):
        while any(k not in reg for k in keys) or (pend and order[nxt[0] - 1] in keys):
            assert pend or free, 'no free slot'
            if not pend:
                start_key()
            I(pend.pop(0))
        em(reg)
        for k in keys:
            if last[k] == m:
                free.append(reg[k])
        fl = fill.get(m, [])
        solo = any(getattr(th, 'lds', False) for th in fl)
        if not solo:
            issue(1, m)
        for th in fl:
            th(reg)
        if rate > 1 and not solo:
            if m + 1 < len(mf):
                nk = mf[m + 1][1]
                if all(k in reg for k in nk) and not (pend and order[nxt[0] - 1] in nk):
                    A.need(', '.join(v(reg[k], 4) for k in nk))
            issue(rate - 1, m)
    for r in slots:
        P.free(r, 4)


def lane_fields():
    f = [P.alloc() for _ in range(5)]
    I(f'v_and_b32 {v(f[0])}, 15, {v(V_L)}')
    I(f'v_lshrrev_b32 {v(f[1])}, 4, {v(V_L)}')
    I(f'v_lshrrev_b32 {v(f[2])}, 5, {v(V_L)}')
    return f


def setup_conv(va_, vg, x0, x1):
    I(f'v_lshl_add_u32 {v(V_CVL)}, s{S_W}, 11, {v(V_L16)}')
    I(f'v_lshrrev_b32 {v(V_HW)}, 1, {v(V_CVL)}')
    I(f'v_add_u32 {v(V_HW)}, {L_H + 512}, {v(V_HW)}')
    I(f's_lshr_b32 s{S_T0}, s{S_W}, 1')
    I(f's_and_b32 s{S_T1}, s{S_W}, 1')
    I(f's_mul_i32 s{S_T3}, s{S_T0}, 4608')
    I(f's_lshl_b32 s{S_T4}, s{S_T1}, 8')
    I(f's_sub_u32 s{S_T3}, s{S_T3}, s{S_T4}')
    I(f's_add_u32 s{S_T3}, s{S_T3}, {L_H + 512 - 32 - 192}')
    I(f'v_lshl_add_u32 {v(V_CB)}, {v(va_)}, 5, s{S_T3}')
    I(f'v_lshl_add_u32 {v(V_CB)}, {v(vg)}, 4, {v(V_CB)}')
    I(f's_mul_i32 s{S_T3}, s{S_T0}, 8320')
    I(f's_sub_u32 s{S_T3}, s{S_T3}, s{S_T4}')
    I(f's_add_u32 s{S_T3}, s{S_T3}, {L_RK + 4160 + 4 * (1015 - 176)}')
    I(f'v_and_b32 {v(x0)}, 1, {v(va_)}')
    I(f'v_mul_u32_u24 {v(x0)}, 4160, {v(x0)}')
    I(f'v_lshrrev_b32 {v(x1)}, 1, {v(va_)}')
    I(f'v_lshl_add_u32 {v(x0)}, {v(x1)}, 2, {v(x0)}')
    I(f'v_lshl_add_u32 {v(x1)}, {v(vg)}, 4, s{S_T3}')
    I(f'v_sub_u32 {v(V_CA[0])}, {v(x1)}, {v(x0)}')
    for i in range(1, 4):
        I(f'v_subrev_u32 {v(V_CA[i])}, {1024 * i}, {v(V_CA[0])}')
    I(f's_mul_i32 s{S_T3}, s{S_W}, 10240')
    I(f's_add_u32 s{S_T3}, s{S_T3}, {L_B}')
    I(f'v_lshl_add_u32 {v(V_EXW)}, {v(vg)}, 6, s{S_T3}')
    I(f'v_add_u32 {v(V_EXW)}, {v(V_EXW)}, {v(V_L16)}')
    I(f's_mul_i32 s{S_T3}, s{S_W}, 2560')
    I(f's_add_u32 s{S_T3}, s{S_T3}, {L_B}')
    I(f'v_and_b32 {v(x0)}, 3, {v(V_L)}')
    I(f'v_mul_u32_u24 {v(V_EXR)}, 316, {v(x0)}')
    I(f'v_lshl_add_u32 {v(V_EXR)}, {v(V_L)}, 2, {v(V_EXR)}')
    I(f'v_add_u32 {v(V_EXR)}, s{S_T3}, {v(V_EXR)}')
    I(f's_lshl_b32 s{S_T3}, s{S_W}, 19')
    I(f's_lshl_b32 s{S_T4}, s2, 8')
    I(f's_add_u32 s{S_T3}, s{S_T3}, s{S_T4}')
    I(f'v_lshl_add_u32 {v(V_XTST)}, {v(vg)}, 16, s{S_T3}')
    I(f'v_lshl_add_u32 {v(V_XTST)}, {v(va_)}, 3, {v(V_XTST)}')
    I(f's_and_b32 s{S_T4}, s2, 3')
    I(f's_lshl_b32 s{S_T4}, s{S_T4}, 5')
    I(f'v_xor_b32 {v(V_XTST)}, s{S_T4}, {v(V_XTST)}')
    I(f'v_lshrrev_b32 {v(x0)}, 2, {v(V_L)}')
    I(f'v_lshlrev_b32 {v(V_XT[0])}, 7, {v(x0)}')
    I(f'v_bfe_u32 {v(x0)}, {v(V_L)}, 3, 2')
    I(f'v_xor_b32 {v(x0)}, s{S_W}, {v(x0)}')
    I(f'v_lshl_add_u32 {v(V_XT[0])}, {v(x0)}, 5, {v(V_XT[0])}')
    I(f'v_and_b32 {v(x0)}, 3, {v(V_L)}')
    I(f'v_lshl_add_u32 {v(V_XT[0])}, {v(x0)}, 3, {v(V_XT[0])}')
    I(f's_mov_b32 s{S_LN}, {f32(1 / 512)}')
    I(f's_mov_b32 s{S_LN + 1}, {f32(1e-5)}')


def setup_late():
    va_, vg, vhi, x0, x1 = f = lane_fields()
    T3, T4 = S_T0, S_T1
    for j in range(2):
        I(f's_mov_b32 s{S_MASK + j}, 0xffff0000')
        I(f's_mov_b32 s{S_M1 + j}, 0xaaaaaaaa')
        I(f's_mov_b32 s{S_M2 + j}, 0xcccccccc')
        I(f's_mov_b32 s{S_E6 + j}, {f32(1e-6)}')
    I(f's_mov_b32 s{S_EXP + 1}, {f32(-1e-6 * math.log2(math.e))}')
    for i in range(1, 4):
        I(f'v_xor_b32 {v(V_XT[i])}, {32 * i}, {v(V_XT[0])}')
    I(f'v_and_b32 {v(V_STAT)}, 0x1fff, {v(V_X2ST)}')
    I(f'v_lshl_add_u32 {v(V_STAT)}, {v(vhi)}, 13, {v(V_STAT)}')
    I(f's_lshl_b32 s{T3}, s{S_RB}, 16')
    I(f's_lshl_b32 s{T4}, s{S_W}, 12')
    I(f's_add_u32 s{T3}, s{T3}, s{T4}')
    I(f'v_add_u32 {v(V_XTLD)}, s{T3}, {v(V_L16)}')
    I(f's_lshl_b32 s{T4}, s{S_CG}, 2')
    I(f's_add_u32 s{T4}, s{T4}, s{S_W}')
    I(f's_lshl_b32 s{T4}, s{T4}, 10')
    I(f's_lshl_b32 s{T3}, s{S_RB}, 16')
    I(f's_add_u32 s{T3}, s{T3}, s{T4}')
    I(f'v_lshl_add_u32 {v(V_PQST)}, {v(va_)}, 5, s{T3}')
    I(f'v_lshl_add_u32 {v(V_PQST)}, {v(vg)}, 3, {v(V_PQST)}')
    I(f's_lshr_b32 s{T3}, s{S_W}, 1')
    I(f'v_lshl_add_u32 {v(V_PQST)}, s{T3}, 15, {v(V_PQST)}')
    I(f's_and_b32 s{T3}, s{S_W}, 1')
    I(f'v_lshl_add_u32 {v(V_PQST)}, s{T3}, 9, {v(V_PQST)}')
    I(f's_mul_i32 s{T3}, s{T3}, 768')
    I(f's_sub_u32 s{T3}, s{T4}, s{T3}')
    I(f'v_lshl_add_u32 {v(V_KVST)}, {v(vg)}, 4, s{T3}')
    I(f'v_and_b32 {v(x0)}, 3, {v(va_)}')
    I(f'v_lshl_add_u32 {v(V_KVST)}, {v(x0)}, 2, {v(V_KVST)}')
    I(f'v_bfe_u32 {v(x0)}, {v(va_)}, 2, 1')
    I(f'v_lshl_add_u32 {v(V_KVST)}, {v(x0)}, 10, {v(V_KVST)}')
    I(f'v_lshrrev_b32 {v(x0)}, 3, {v(va_)}')
    I(f'v_lshl_add_u32 {v(V_KVST)}, {v(x0)}, 9, {v(V_KVST)}')
    I(f's_lshr_b32 s{T3}, s{T4}, 4')
    I(f'v_lshl_add_u32 {v(V_ZST)}, {v(V_L)}, 2, s{T3}')
    I(f's_lshl_b32 s{T3}, s{S_RB}, 1')
    I(f's_add_u32 s{T3}, s{T3}, s{S_TH}')
    I(f's_lshl_b32 s{T3}, s{T3}, 15')
    I(f's_lshl_b32 s{T4}, s{S_W}, 13')
    I(f's_add_u32 s{T3}, s{T3}, s{T4}')
    I(f'v_and_b32 {v(x0)}, 31, {v(V_L)}')
    I(f'v_lshl_add_u32 {v(V_PQLD)}, {v(x0)}, 5, s{T3}')
    I(f'v_lshl_add_u32 {v(V_PQLD)}, {v(vhi)}, 4, {v(V_PQLD)}')
    I(f'v_add_u32 {v(V_KVLD)}, s{T4}, {v(V_L16)}')
    I(f'v_and_b32 {v(x0)}, 3, {v(va_)}')
    I(f'v_lshrrev_b32 {v(x1)}, 3, {v(va_)}')
    I(f's_lshl_b32 s{T3}, s{S_W}, 9')
    I(f's_add_u32 s{T3}, s{T3}, 32768')
    I(f'v_lshl_add_u32 {v(V_ZLD)}, {v(x1)}, 8, s{T3}')
    I(f'v_lshl_add_u32 {v(V_ZLD)}, {v(x0)}, 6, {v(V_ZLD)}')
    I(f'v_lshl_add_u32 {v(V_ZLD)}, {v(vg)}, 4, {v(V_ZLD)}')
    ROT = S_NB if '--rot' in sys.argv else None
    if ROT:
        I(f's_lshl_b32 s{T3}, s{S_NB}, 7')
        I(f'v_xor_b32 {v(V_ZLD)}, s{T3}, {v(V_ZLD)}')
        I(f's_lshl_b32 s{T3}, s{S_NB}, 11')
    else:
        I(f's_mov_b32 s{T3}, 0')
    I(f'v_add_u32 {v(V_KVLD)}, s{T3}, {v(V_KVLD)}')
    I(f'v_add_u32 {v(V_PQLD)}, s{T3}, {v(V_PQLD)}')
    I(f'v_add_u32 {v(V_OFR)}, {L_B}, {v(V_L16)}')
    I(f'v_add_u32 {v(V_OFW)}, {L_B}, {v(V_KVLD)}')
    I(f's_lshl_b32 s{T3}, s{S_NB}, 14')
    I(f's_lshl_b32 s{T4}, s{S_W}, 12')
    I(f's_add_u32 s{T3}, s{T3}, s{T4}')
    I(f's_lshl_b32 s{T4}, s{S_TH}, 6')
    I(f's_add_u32 s{T3}, s{T3}, s{T4}')
    I(f'v_lshl_add_u32 {v(V_RES[0])}, {v(vhi)}, 11, s{T3}')
    I(f'v_lshl_add_u32 {v(V_RES[0])}, {v(x0)}, 3, {v(V_RES[0])}')
    I(f'v_lshrrev_b32 {v(x0)}, 2, {v(va_)}')
    I(f'v_lshl_add_u32 {v(V_RES[0])}, {v(x0)}, 7, {v(V_RES[0])}')
    I(f'v_xor_b32 {v(x1)}, {v(x1)}, {v(vg)}')
    I(f'v_and_b32 {v(x1)}, 1, {v(x1)}')
    I(f'v_lshl_add_u32 {v(V_RES[0])}, {v(x1)}, 5, {v(V_RES[0])}')
    I(f'v_xor_b32 {v(V_RES[1])}, 64, {v(V_RES[0])}')
    I(f's_lshl_b32 s{T3}, s{S_W}, 6')
    I(f's_add_u32 s{T3}, s{T3}, {L_STAT}')
    I(f'v_lshl_add_u32 {v(V_SW)}, {v(va_)}, 2, s{T3}')
    I(f'v_lshl_add_u32 {v(V_SR4)}, {v(vg)}, 4, s{T3}')
    vod, vor = P.alloc(), P.alloc()
    I(f's_lshl_b32 s{T3}, s{S_NB}, 8')
    I(f'v_lshl_add_u32 {v(vod)}, {v(vg)}, 12, s{T3}')
    I(f'v_xor_b32 {v(x1)}, {v(x0)}, {v(vg)}')
    I(f'v_lshl_add_u32 {v(vod)}, {v(x1)}, 6, {v(vod)}')
    I(f'v_and_b32 {v(x1)}, 3, {v(V_L)}')
    I(f'v_lshl_add_u32 {v(vod)}, {v(x1)}, 4, {v(vod)}')
    I(f'v_lshlrev_b32 {v(vor)}, 10, {v(vhi)}')
    I(f'v_lshl_add_u32 {v(vor)}, {v(x0)}, 8, {v(vor)}')
    I(f'v_xor_b32 {v(x0)}, s{S_W}, {v(x0)}')
    I(f'v_lshl_add_u32 {v(vor)}, {v(x0)}, 6, {v(vor)}')
    I(f'v_and_b32 {v(x0)}, 1, {v(V_L)}')
    I(f'v_lshl_add_u32 {v(vor)}, {v(x0)}, 5, {v(vor)}')
    I(f'v_and_b32 {v(x0)}, 1, {v(vg)}')
    I(f'v_lshl_add_u32 {v(vor)}, {v(x0)}, 4, {v(vor)}')
    I(f'v_bfe_u32 {v(x0)}, {v(V_L)}, 1, 1')
    I(f'v_lshl_add_u32 {v(vor)}, {v(x0)}, 3, {v(vor)}')
    I(f'v_add_u32 {v(vor)}, {L_B}, {v(vor)}')
    for r in f:
        P.free(r)
    return vod, vor


TS = [18, 10, 6, 2]
TB = [0, 16 * 18, 16 * 18 + 16 * 10, 16 * 18 + 16 * 10 + 32 * 6]


def rne(o, sh):
    q, r = o >> sh, o & ((1 << sh) - 1)
    if sh == 0:
        return q
    h = 1 << (sh - 1)
    return q + (1 if (r > h or (r == h and q & 1)) else 0)


def setup_kgen(va_, vg, x0, x1):
    kg = dict(w=P.alloc(), a0=P.alloc(), a1=P.alloc(), g=P.alloc(), t1=P.alloc(), t2=P.alloc(), t3=P.alloc(), rk=P.alloc())
    I(f's_lshr_b32 s{S_T0}, s{S_W}, 1')
    I(f's_and_b32 s{S_T1}, s{S_W}, 1')
    I(f's_mul_i32 s{S_T3}, s{S_W}, {KG_W}')
    I(f's_add_u32 s{S_T3}, s{S_T3}, {L_B}')
    I(f'v_lshl_add_u32 {v(kg["w"])}, {v(V_L)}, 2, s{S_T3}')
    I(f's_mul_i32 s{S_T3}, s{S_T0}, {2 * KG_W}')
    I(f's_add_u32 s{S_T3}, s{S_T3}, {L_B}')
    I(f'v_lshl_add_u32 {v(x1)}, {v(vg)}, 4, s{S_T3}')
    I(f'v_mul_u32_u24 {v(kg["a0"])}, {KG_ROW}, {v(va_)}')
    I(f'v_add_u32 {v(kg["a0"])}, {v(kg["a0"])}, {v(x1)}')
    I(f's_mul_i32 s{S_T4}, s{S_T1}, {16 * KG_ROW}')
    I(f'v_add_u32 {v(kg["g"])}, s{S_T4}, {v(kg["a0"])}')
    I(f'v_min_u32 {v(kg["a1"])}, 4, {v(va_)}')
    I(f'v_mul_u32_u24 {v(kg["a1"])}, {KG_ROW}, {v(kg["a1"])}')
    I(f'v_add_u32 {v(kg["a1"])}, {v(kg["a1"])}, {v(x1)}')
    I(f's_mul_i32 s{S_T3}, s{S_T0}, 4608')
    I(f's_add_u32 s{S_T3}, s{S_T3}, {L_H + 512}')
    vj, vw = P.alloc(), P.alloc()
    I(f's_lshl_b32 s{S_T4}, s{S_T1}, 2')
    I(f'v_and_b32 {v(x0)}, 3, {v(va_)}')
    I(f'v_lshl_add_u32 {v(vj)}, {v(x0)}, 3, s{S_T4}')
    I(f'v_lshrrev_b32 {v(x0)}, 2, {v(va_)}')
    I(f'v_add_u32 {v(vj)}, {v(vj)}, {v(x0)}')
    I(f'v_lshl_add_u32 {v(kg["t3"])}, {v(vg)}, 7, {v(vj)}')
    I(f'v_lshl_add_u32 {v(kg["t3"])}, {v(kg["t3"])}, 2, s{S_T3}')
    I(f'v_max_u32 {v(x1)}, 1, {v(vg)}')
    I(f'v_sub_u32 {v(x1)}, 6, {v(x1)}')
    I(f'v_lshlrev_b32 {v(kg["t1"])}, {v(x1)}, {v(vj)}')
    I(f'v_lshrrev_b32 {v(vw)}, 1, {v(vj)}')
    I(f'v_lshl_add_u32 {v(kg["t1"])}, {v(vw)}, 3, {v(kg["t1"])}')
    I(f's_mov_b32 s{S_T4}, {hex(0 | (1 << 8) | ((TB[1] // 4) << 16) | ((TB[2] // 4) << 24))}')
    I(f'v_lshlrev_b32 {v(x1)}, 3, {v(vg)}')
    I(f'v_bfe_u32 {v(x1)}, s{S_T4}, {v(x1)}, 8')
    I(f'v_lshl_add_u32 {v(x1)}, {v(x1)}, 4, s{S_T3}')
    I(f'v_add_u32 {v(kg["t1"])}, {v(kg["t1"])}, {v(x1)}')
    I(f'v_cmp_eq_u32 vcc, 3, {v(vg)}')
    I(f'v_mov_b32 {v(vj)}, {16 * TS[2] * 4}')
    I(f'v_cndmask_b32 {v(x1)}, 8, {v(vj)}, vcc')
    I(f'v_add_u32 {v(kg["t2"])}, {v(kg["t1"])}, {v(x1)}')
    gi = P.alloc(18, 2)
    vn, vs = vj, vw
    I(f'v_and_b32 {v(x0)}, 127, v0')
    I(f'v_sub_u32 {v(vn)}, 127, {v(x0)}')
    I(f'v_or_b32 {v(x1)}, 8, {v(vn)}')
    I(f'v_ffbh_u32 {v(x1)}, {v(x1)}')
    I(f'v_sub_u32 {v(vs)}, 28, {v(x1)}')
    I(f'v_lshlrev_b32 {v(vs)}, 3, {v(vs)}')
    first = [0, 16, 32, 64]
    cb = [TB[q] - first[q] * TS[q] for q in range(4)]
    assert all(c % 4 == 0 and 0 <= c // 4 < 256 for c in cb)
    I(f's_mov_b32 s{S_T4}, {hex(sum(TS[q] << (8 * q) for q in range(4)))}')
    I(f'v_bfe_u32 {v(x1)}, s{S_T4}, {v(vs)}, 8')
    I(f'v_mul_u32_u24 {v(x1)}, {v(x1)}, {v(vn)}')
    I(f's_mov_b32 s{S_T4}, {hex(sum((cb[q] // 4) << (8 * q) for q in range(4)))}')
    I(f'v_bfe_u32 {v(gi + 17)}, s{S_T4}, {v(vs)}, 8')
    I(f'v_lshl_add_u32 {v(x1)}, {v(gi + 17)}, 2, {v(x1)}')
    I(f'v_lshl_add_u32 {v(gi + 15)}, {v(x1)}, 2, s{S_T3}')
    for u in range(15):
        o = 15 - u
        dl = []
        for q in range(4):
            d = rne(o, q)
            dl.append(4 * (d if d < (16 >> q) else TS[q]))
        I(f's_mov_b32 s{S_T4}, {hex(sum(dl[q] << (8 * q) for q in range(4)))}')
        I(f'v_bfe_u32 {v(x1)}, s{S_T4}, {v(vs)}, 8')
        I(f'v_add_u32 {v(gi + u)}, {v(x1)}, {v(gi + 15)}')
    I(f'v_cmp_ge_u32 vcc, 16, {v(vn)}')
    I(f'v_cndmask_b32 {v(x1)}, 0, 12, vcc')
    I(f'v_sub_u32 {v(gi + 16)}, {v(gi + 15)}, {v(x1)}')
    P.free(vj), P.free(vw)
    I(f's_mul_i32 s{S_T4}, s{S_T0}, 8320')
    I(f's_add_u32 s{S_T4}, s{S_T4}, {L_RK}')
    I(f'v_lshl_add_u32 {v(kg["rk"])}, {v(x0)}, 5, s{S_T4}')
    return kg, gi


def prologue():
    I('s_cmp_ge_u32 s2, 256')
    I('s_cbranch_scc1 L_end')
    I('s_load_dwordx16 s[4:19], s[0:1], 0')
    I('s_load_dwordx8 s[20:27], s[0:1], 64')
    I('s_load_dwordx4 s[28:31], s[0:1], 96')
    I('s_load_dwordx2 s[32:33], s[0:1], 112')
    stamp('entry')
    pf = P.alloc(4)
    I(f's_getpc_b64 s[{S_T3}:{S_T4}]')
    A.label('L_pc')
    I(f's_lshr_b32 s{S_T1}, s2, 3')
    I(f'v_lshrrev_b32 {v(pf)}, 4, v0')
    I(f'v_lshl_add_u32 {v(pf)}, {v(pf)}, 5, s{S_T1}')
    I(f'v_lshlrev_b32 {v(pf)}, 7, {v(pf)}')
    I(f'v_min_u32 {v(pf)}, L_end-L_pc, {v(pf)}')
    I(f'global_load_dword {v(pf)}, {v(pf)}, s[{S_T3}:{S_T4}]')
    I(f'v_lshrrev_b32 {v(pf + 1)}, 6, v0')
    I(f'v_and_b32 {v(V_L)}, 63, v0')
    I(f'v_readfirstlane_b32 s{S_W}, {v(pf + 1)}')
    I(f's_and_b32 s{S_T0}, s2, 7')
    I(f's_and_b32 s{S_T2}, s{S_T1}, 3')
    I(f's_lshl_b32 s{S_RB}, s{S_T0}, 2')
    I(f's_add_u32 s{S_RB}, s{S_RB}, s{S_T2}')
    I(f's_lshr_b32 s{S_CG}, s{S_T1}, 2')
    I(f's_lshr_b32 s{S_NB}, s{S_CG}, 1')
    I(f's_and_b32 s{S_TH}, s{S_CG}, 1')
    I(f'v_lshlrev_b32 {v(V_L16)}, 4, {v(V_L)}')
    va_, vg, vhi, x0, x1 = f = lane_fields()
    I(f's_and_b32 s{S_T3}, s{S_T1}, 7')
    I(f's_lshl_b32 s{S_T3}, s{S_T3}, 7')
    I(f'v_lshl_add_u32 {v(V_ARR)}, {v(V_L)}, 10, s{S_T3}')
    I(f's_lshl_b32 s{S_T3}, s{S_T1}, 10')
    I(f'v_lshl_add_u32 {v(V_POLL)}, {v(V_L)}, 7, s{S_T3}')
    vsr, vsa = P.alloc(), P.alloc()
    I(f's_lshl_b32 s{S_T0}, s{S_RB}, 6')
    I(f's_lshl_b32 s{S_T1}, s{S_CG}, 3')
    I(f's_add_u32 s{S_T1}, s{S_T1}, s{S_T0}')
    I(f's_lshl_b32 s{S_T3}, s{S_W}, 1')
    I(f's_add_u32 s{S_T2}, s{S_T1}, s{S_T3}')
    I(f's_lshl_b32 s{S_T1}, s{S_T2}, 10')
    I(f'v_add_u32 {v(vsr)}, s{S_T1}, {v(V_L16)}')
    I(f'v_and_b32 {v(vsa)}, 1, {v(vg)}')
    I(f'v_add_lshl_u32 {v(vsa)}, {v(vsa)}, s{S_T2}, 2')
    I(f'v_lshl_add_u32 {v(vsa)}, {v(vhi)}, 13, {v(vsa)}')
    I(f's_lshl_b32 s{S_T1}, s{S_TH}, 5')
    I(f's_add_u32 s{S_T0}, s{S_T0}, s{S_T1}')
    I(f'v_and_b32 {v(x0)}, 31, {v(V_L)}')
    I(f'v_add_u32 {v(x0)}, s{S_T0}, {v(x0)}')
    I(f's_lshl_b32 s{S_T0}, s{S_NB}, 8')
    I(f's_lshl_b32 s{S_T1}, s{S_W}, 6')
    I(f's_add_u32 s{S_T0}, s{S_T0}, s{S_T1}')
    I(f'v_lshl_add_u32 {v(V_TILE)}, {v(x0)}, 10, s{S_T0}')
    I(f'v_lshl_add_u32 {v(V_TILE)}, {v(vhi)}, 5, {v(V_TILE)}')
    I(f's_lshl_b32 s{S_T0}, s{S_T0}, 11')
    I(f'v_lshl_add_u32 {v(V_X2ST)}, {v(x0)}, 2, s{S_T0}')
    I(f'v_lshl_add_u32 {v(V_X2ST)}, {v(vhi)}, 16, {v(V_X2ST)}')
    vtd, vtr = P.alloc(), P.alloc()
    I(f'v_readfirstlane_b32 s{S_T0}, {v(V_TILE)}')
    I(f'v_lshrrev_b32 {v(x0)}, 2, {v(V_L)}')
    I(f'v_xor_b32 {v(x1)}, {v(V_L)}, {v(vg)}')
    I(f'v_and_b32 {v(x1)}, 3, {v(x1)}')
    I(f'v_lshl_add_u32 {v(vtd)}, {v(x0)}, 10, s{S_T0}')
    I(f'v_lshl_add_u32 {v(vtd)}, {v(x1)}, 4, {v(vtd)}')
    I(f'v_add_u32 {v(vtr)}, {16384 - 1024}, {v(vtd)}')
    I(f's_lshl_b32 m0, s{S_W}, 11')
    vpo = P.alloc()
    I(f's_lshl_b32 s{S_T1}, s2, 9')
    I(f'v_lshl_add_u32 {v(vpo)}, v0, 1, s{S_T1}')
    sinit = S_SPIN
    I(f's_lshl_b32 s{S_T2}, s2, 2')
    I(f's_add_u32 s{sinit}, s{S_T2}, s{S_W}')
    vwp = P.alloc()
    I(f's_lshl_b32 s{S_T1}, s{sinit}, 11')
    I(f'v_lshl_add_u32 {v(vwp)}, {v(va_)}, 7, s{S_T1}')
    zero4 = P.alloc(4, 2)
    for i in range(4):
        I(f'v_mov_b32 {v(zero4 + i)}, 0')
    for r, n in ((R_WS, WS_SIZE), (R_WQ, 512 * 3072), (R_WO, 512 * 1024)):
        I(f's_mov_b32 s{r + 2}, {hex(n)}')
        I(f's_mov_b32 s{r + 3}, 0x20000')
    xs = P.alloc(8, 2)
    xt = P.alloc(8, 2)
    par = P.alloc(8, 2)
    A._wait(lg=0)
    stamp('a_karg')
    I(f's_cmp_lg_u32 s{sinit}, 3')
    I('s_cbranch_scc1 L_noinit')
    I(f'v_lshlrev_b32 {v(x0)}, 9, {v(V_L)}')
    A.cond = True
    for j in range(4):
        I(f'global_store_dword {v(x0)}, {v(zero4)}, {s(S_WS, 2)} offset:{128 * j} sc1')
    A.cond = False
    A.label('L_noinit')
    I(f'global_load_dwordx4 {v(xs, 4)}, {v(vsr)}, {s(S_U, 2)}')
    I(f'global_load_dwordx4 {v(xs + 4, 4)}, {v(vsr)}, {s(S_U, 2)} offset:1024')
    I(f'global_load_lds_dwordx4 {v(vtd)}, {s(S_U, 2)}', tag='xt')
    I(f'global_load_lds_dwordx4 {v(vtr)}, {s(S_U, 2)} offset:1024', tag='xt')
    I(f's_load_dword s{S_D}, {s(S_LDT, 2)}, s{S_T2}')
    I(f's_load_dword s{S_D + 1}, {s(S_DSK, 2)}, s{S_T2}')
    for i, sp in enumerate((S_ARE, S_AIM, S_BRE, S_BIM, S_CRE, S_CIM)):
        I(f'global_load_ushort {v(par + i)}, {v(vpo)}, {s(sp, 2)}')
    for r, p in ((R_WS, S_WS), (R_WQ, S_WQKV), (R_WO, S_WO)):
        I(f's_mov_b64 s[{r}:{r + 1}], s[{p}:{p + 1}]')
    stamp('a_ldiss')
    P.free(vsr), P.free(vpo), P.free(vtd)
    I(f'v_and_b32 {v(x0)}, 31, {v(V_L)}')
    I(f'v_lshlrev_b32 {v(vtr)}, 6, {v(x0)}')
    I(f'v_lshl_add_u32 {v(vtr)}, s{S_W}, 11, {v(vtr)}')
    I(f'v_bfe_u32 {v(x0)}, {v(V_L)}, 2, 2')
    I(f'v_lshlrev_b32 {v(x1)}, 1, {v(vhi)}')
    I(f'v_xor_b32 {v(x0)}, {v(x0)}, {v(x1)}')
    I(f'v_lshl_add_u32 {v(vtr)}, {v(x0)}, 4, {v(vtr)}')
    kg, gi = setup_kgen(va_, vg, x0, x1)
    I(f's_cmp_lg_u32 s{sinit}, 3')
    I('s_cbranch_scc1 L_noflag')
    I(f'v_mov_b32 {v(x1)}, 1')
    A._wait(vm=10)
    A.cond = True
    I(f'global_store_dword {v(zero4)}, {v(x1)}, {s(S_DBG, 2)} sc1')
    A.cond = False
    A.label('L_noflag')
    I(f'v_lshl_add_u32 {v(x1)}, {v(x0)}, 2, s{S_T3}')
    I(f'v_subrev_u32 {v(x1)}, 512, {v(x1)}')
    I(f'ds_write_b32 {v(x1)}, {v(zero4)}')
    I(f's_mul_i32 s{S_T3}, s{S_W}, 4160')
    I(f's_add_u32 s{S_T3}, s{S_T3}, {L_RK + 4096}')
    I(f'v_lshl_add_u32 {v(x1)}, {v(va_)}, 2, s{S_T3}')
    I(f'ds_write_b32 {v(x1)}, {v(zero4)}')
    stamp('a_kgset')
    I('s_mov_b64 exec, 0xffff')
    I(f'buffer_load_dword {v(pf + 1)}, {v(vwp)}, {s(R_WQ, 4)}, 0 offen')
    I(f'v_subrev_u32 {v(vwp)}, {512 * 3072}, {v(vwp)}')
    I(f'buffer_load_dword {v(pf + 2)}, {v(vwp)}, {s(R_WO, 4)}, 0 offen')
    I(f's_lshl_b32 s{S_T0}, s{sinit}, 7')
    I(f's_add_u32 s{S_T0}, s{S_T0}, {hex(WS_ZERO)}')
    I('s_mov_b64 exec, 0xff')
    I(f'buffer_store_dwordx4 {v(zero4, 4)}, {v(V_L16)}, {WS}, s{S_T0} offen sc1')
    I('s_mov_b64 exec, -1')
    setup_conv(va_, vg, x0, x1)
    vwd = P.alloc()
    I(f'v_lshrrev_b32 {v(x0)}, 3, {v(V_L)}')
    I(f'v_mul_u32_u24 {v(vwd)}, 3072, {v(x0)}')
    I(f'v_bfe_u32 {v(x0)}, {v(V_L)}, 1, 2')
    I(f'v_xor_b32 {v(x0)}, {v(x0)}, {v(vg)}')
    I(f'v_lshl_add_u32 {v(vwd)}, {v(x0)}, 5, {v(vwd)}')
    I(f'v_and_b32 {v(x0)}, 1, {v(V_L)}')
    I(f'v_lshl_add_u32 {v(vwd)}, {v(x0)}, 4, {v(vwd)}')
    I(f'v_lshl_add_u32 {v(vwd)}, s{S_CG}, 7, {v(vwd)}')
    I(f's_mov_b32 s{S_ONES}, 0x3f803f80')
    I(f's_mov_b32 s{S_EXP}, {f32(math.log2(math.e))}')
    for i in range(4):
        I(f'v_mov_b32 {v(V_ONES + i)}, s{S_ONES}')
    I(f'v_xor_b32 {v(x1)}, 16, {v(vtr)}')
    if '--latepage' not in sys.argv:
        A.raw('#page')
        A.raw('#seg s0')
        A.raw('#touch s0')
    stamp('a_setup')
    st = P.alloc(4, 2)
    for i in range(4):
        for r in range(2):
            c = '0' if i == 0 else v(st + r)
            I(f'v_dot2_f32_bf16 {v(st + r)}, {v(xs + 4 * r + i)}, s{S_ONES}, {c}')
            c = '0' if i == 0 else v(st + 2 + r)
            I(f'v_dot2_f32_bf16 {v(st + 2 + r)}, {v(xs + 4 * r + i)}, {v(xs + 4 * r + i)}, {c}')
    stamp('a_xs')
    A.wait_vm('xt')
    I(f'ds_read_b128 {v(xt, 4)}, {v(vtr)}')
    I(f'ds_read_b128 {v(xt + 4, 4)}, {v(x1)}')
    I(f's_mov_b32 s{S_T0}, {hex(WS_ST[0])}')
    I(f'v_permlane32_swap_b32 {v(st)}, {v(st + 2)}')
    I(f'v_permlane32_swap_b32 {v(st + 1)}, {v(st + 3)}')
    I(f'v_add_f32 {v(st)}, {v(st)}, {v(st + 2)}')
    I(f'v_add_f32 {v(st + 1)}, {v(st + 1)}, {v(st + 3)}')
    I(f'v_permlane16_swap_b32 {v(st)}, {v(st + 1)}')
    I(f'v_add_f32 {v(st)}, {v(st)}, {v(st + 1)}')
    for sh in (8, 4, 2, 1):
        I(f'v_add_f32_dpp {v(st)}, {v(st)}, {v(st)} row_ror:{sh} row_mask:0xf bank_mask:0xf')
    I('s_mov_b32 exec_lo, 0x00010001')
    I('s_mov_b32 exec_hi, 0x00010001')
    I(f'buffer_store_dword {v(st)}, {v(vsa)}, {WS}, s{S_T0} offen sc1')
    I('s_mov_b64 exec, -1')
    x2store(0, xt)
    flag = pf + 3
    I(f'global_load_dword {v(flag)}, {v(zero4)}, {s(S_DBG, 2)} sc1')
    stamp('a_stored')
    if '--latepage' in sys.argv:
        A.raw('#page')
        A.raw('#seg s0')
        A.raw('#touch s0')

    if '--seq' in sys.argv:
        for nm, n in (('par', 13), ('wpf', 11), ('zero', 10), ('st', 9), ('x2', 1), ('flag', 0)):
            A._wait(vm=n)
            stamp('b_' + nm)

    def arrive1():
        stamp('b_pre')
        A.wait_vm()
        stamp('a_drained')
        global_arrive(first=(flag, zero4))
        stamp('arr1')
    hooks = {KG_ARR: [arrive1]}
    for i, th in enumerate(dma_w(1, L_A, vwd)):
        hooks.setdefault(KG_ARR + 2 + 2 * i, []).extend(th)
    kgen(par, kg, gi, hooks)
    P.free(st, 4), P.free(xs, 8), P.free(xt, 8), P.free(zero4, 4), P.free(pf, 4), P.free(vwp), P.free(vsa), P.free(vtr)
    for r in f:
        P.free(r)
    stamp('a_kgen')
    A.wait_vm()
    return vwd


def x2store(layer, d):
    I(f's_mov_b32 s{S_T0}, {hex(WS_X2[layer])}')
    for i in range(8):
        I(f'buffer_store_dword {v(d + i)}, {v(V_X2ST)}, {WS}, s{S_T0} offen sc1')
        if i < 7:
            I(f's_add_u32 s{S_T0}, s{S_T0}, 8192')


def kgen(par, kg, gi, hooks):
    LOG2E = math.log2(math.e)
    A.wait_lg()
    I(f's_lshl_b32 s{S_T0}, s{S_D}, 16')
    I(f's_and_b32 s{S_T1}, s{S_D}, 0xffff0000')
    I(f's_lshl_b32 s{S_D}, s{S_D + 1}, 16')
    I(f's_and_b32 s{S_D + 1}, s{S_D + 1}, 0xffff0000')
    I(f's_cmp_ge_u32 s{S_W}, 2')
    I(f's_cselect_b32 s{S_T0}, s{S_T1}, s{S_T0}')
    dt = par + 6
    I(f'v_mov_b32 {v(dt)}, s{S_T0}')
    I(f'v_mul_f32 {v(dt)}, s{S_EXP}, {v(dt)}')
    I(f'v_exp_f32 {v(dt)}, {v(dt)}')
    for i in range(6):
        I(f'v_lshlrev_b32 {v(par + i)}, 16, {v(par + i)}')
    I(f'v_cvt_pk_bf16_f32 {v(dt)}, {v(dt)}, {v(dt)}')
    I(f'v_and_b32 {v(dt)}, 0xffff0000, {v(dt)}')
    z, Bc, Cc = par, par + 2, par + 4
    pk('mul', v(z, 2), (v(z, 2), 'p'), bc(dt))
    pk('mul', v(Bc, 2), (v(Bc, 2), 'p'), bc(dt))
    tmp = P.alloc(2, 2)
    CB = P.alloc(2, 2)
    cmul(CB, Cc, Bc, tmp)
    E = {}
    for rho in (1, 8, 64, 256):
        e = P.alloc(2, 2)
        E[rho] = e
        I(f'v_mul_f32 {v(tmp)}, {f32(rho * LOG2E)}, {v(z)}')
        I(f'v_mul_f32 {v(tmp + 1)}, {f32(rho / (2 * math.pi))}, {v(z + 1)}')
        I(f'v_exp_f32 {v(tmp)}, {v(tmp)}')
        I(f'v_fract_f32 {v(tmp + 1)}, {v(tmp + 1)}')
        I(f'v_cos_f32 {v(e)}, {v(tmp + 1)}')
        I(f'v_sin_f32 {v(e + 1)}, {v(tmp + 1)}')
        pk('mul', v(e, 2), (v(e, 2), 'p'), bc(tmp))
    pkr = [P.alloc() for _ in range(2)]
    cnt = [0]

    def put(r, neg):
        row = cnt[0]
        cnt[0] += 1
        if r is None:
            I(f'v_mov_b32 {v(pkr[row & 1])}, 0x3f80')
        else:
            I(f'v_cvt_pk_bf16_f32 {v(pkr[row & 1])}, {v(r)}, {"-" if neg else ""}{v(r + 1)}')
        if row & 1:
            o0 = (KG_ROW // 4) * (row & 2)
            I(f'ds_write2_b32 {v(kg["w"])}, {v(pkr[0])}, {v(pkr[1])} offset0:{o0} offset1:{o0 + KG_ROW // 4}')
            if row & 2:
                I(f'v_add_u32 {v(kg["w"])}, {4 * KG_ROW}, {v(kg["w"])}')
        elif row == 52:
            I(f'ds_write_b32 {v(kg["w"])}, {v(pkr[0])}')
        for th in hooks.pop(cnt[0], []):
            th()
    for rho, x, y in ((128, 64, 64), (192, 128, 64), (2, 1, 1), (4, 2, 2)):
        E[rho] = P.alloc(2, 2)
        cmul(E[rho], E[x], E[y], tmp)
    cur = P.alloc(2, 2)
    o = P.alloc(2, 2)
    put(None, False)
    for m in (1, 2, 3):
        put(E[64 * m], False)
    for j in range(1, 8):
        if j == 1:
            g = E[8]
        elif j == 2:
            cmul(cur, E[8], E[8], tmp)
            g = cur
        else:
            cmul(cur, cur, E[8], tmp)
        put(g, False)
        for m in (1, 2, 3):
            cmul(o, g, E[64 * m], tmp)
            put(o, False)
    put(CB, True)
    for j in range(1, 8):
        cmul(cur, CB if j == 1 else cur, E[1], tmp)
        put(cur, True)
    U = CB
    cmul(U, U, E[256], tmp)
    put(U, True)
    for j in range(1, 4):
        cmul(cur, U if j == 1 else cur, E[2], tmp)
        put(cur, True)
    for j in range(2):
        cmul(U, U, E[256], tmp)
        put(U, True)
        cmul(cur, U, E[4], tmp)
        put(cur, True)
    for j in range(5):
        cmul(U, U, E[256], tmp)
        put(U, True)
    for r in list(E.values()) + [tmp, CB, cur, o]:
        P.free(r, 2)
    P.free(pkr[0]), P.free(pkr[1])
    P.free(par, 8)
    assert not hooks
    stamp('a_kg1')
    A.barrier()
    d0, d1 = P.alloc(4, 2), P.alloc(4, 2)
    mf = []
    for st in range(8):
        for tl, d in ((0, d0), (1, d1)):
            def em(reg, st=st, tl=tl, d=d):
                c = '0' if st == 0 else v(d, 4)
                I(f'v_mfma_f32_16x16x32_bf16 {v(d, 4)}, {v(reg[("a", tl, st)], 4)}, {v(reg[("g", st)], 4)}, {c}')
            mf.append((em, [('a', tl, st), ('g', st)]))

    def loader(k, r):
        ko = KG_W * (k[-1] >> 2) + 64 * (k[-1] & 3)
        if k[0] == 'g':
            return [f'ds_read_b128 {v(r, 4)}, {v(kg["g"])} offset:{ko}']
        base = kg['a0'] if k[1] == 0 else kg['a1']
        return [f'ds_read_b128 {v(r, 4)}, {v(base)} offset:{(32 + 16 * k[1]) * KG_ROW + ko}']
    stream(mf, loader, 15, 12, rate=2, burst=15)
    I(f'ds_write_b64 {v(kg["t1"])}, {v(d0, 2)}')
    I(f'ds_write_b64 {v(kg["t2"])}, {v(d0 + 2, 2)}')
    I(f'v_add_u32 {v(kg["t3"])}, {4 * TB[3]}, {v(kg["t3"])}')
    I('s_mov_b32 exec_hi, 0')
    for r in (0, 2):
        I(f'ds_write2_b32 {v(kg["t3"])}, {v(d1 + r)}, {v(d1 + r + 1)} offset0:{32 * r} offset1:{32 * r + 32}')
    I('s_mov_b64 exec, -1')
    P.free(d0, 4), P.free(d1, 4)
    stamp('a_kg2')
    poll_start(1)
    A.barrier()
    for u in range(17):
        I(f'ds_read_b32 {v(gi + u)}, {v(gi + u)}')
    c = P.alloc(16, 2)
    for cp in range(2):
        for m in range(8):
            I(f'v_cvt_pk_bf16_f32 {v(c + 8 * cp + m)}, {v(gi + 2 * m + cp)}, {v(gi + 2 * m + cp + 1)}')
        for hq in range(2):
            I(f'ds_write_b128 {v(kg["rk"])}, {v(c + 8 * cp + 4 * hq, 4)} offset:{4160 * cp + 16 * hq}')
    P.free(c, 16), P.free(gi, 18)
    for r in kg.values():
        P.free(r)


def conv(layer, vwd):
    xd = P.alloc(8, 2)
    sm = P.alloc(8, 2)
    sq = P.alloc(8, 2)
    for i in range(2):
        I(f'buffer_load_dwordx4 {v(sm + 4 * i, 4)}, {v(V_CVL)}, {WS}, s{S_T1} offen offset:{1024 * i} sc1')
        I(f'buffer_load_dwordx4 {v(sq + 4 * i, 4)}, {v(V_CVL)}, {WS}, s{S_T2} offen offset:{1024 * i} sc1')
        I(f'buffer_load_dwordx4 {v(xd + 4 * i, 4)}, {v(V_CVL)}, {WS}, s{S_T3} offen offset:{1024 * i} sc1')
        if i == 0 and '--nocvb' not in sys.argv:
            A.barrier()
    stamp(f'conv{layer}_iss')
    if layer == 0:
        for th in consume_w(1, V_XT[0]):
            th()
    base = P.alloc(16, 2)
    hh = P.alloc(4, 2)
    hp = P.alloc(4, 2)
    LN = s(S_LN, 2)
    for i in range(2):
        m, q, x = sm + 4 * i, sq + 4 * i, xd + 4 * i
        for j in (0, 2):
            pk('mul', v(m + j, 2), (v(m + j, 2), 'p'), (LN, 'l'))
        for j in (0, 2):
            pk('fma', v(q + j, 2), (v(q + j, 2), 'p'), (LN, 'l'), (LN, 'h'))
        for j in (0, 2):
            pk('fma', v(q + j, 2), (v(m + j, 2), 'p', 'b'), (v(m + j, 2), 'p'), (v(q + j, 2), 'p'))
        for j in range(4):
            I(f'v_max_f32 {v(q + j)}, s{S_LN + 1}, {v(q + j)}')
        for j in range(4):
            I(f'v_rsq_f32 {v(q + j)}, {v(q + j)}')
        for c in range(2):
            b = base + 8 * i + 4 * c
            for j in range(4):
                if c == 0:
                    I(f'v_lshlrev_b32 {v(b + j)}, 16, {v(x + j)}')
                else:
                    I(f'v_and_b32 {v(b + j)}, 0xffff0000, {v(x + j)}')
            for j in (0, 2):
                pk('add', v(hh + j, 2), (v(b + j, 2), 'p'), (v(m + j, 2), 'p', 'b'))
            for j in (0, 2):
                pk('mul', v(hh + j, 2), (v(hh + j, 2), 'p'), (v(q + j, 2), 'p'))
            for j in (0, 2):
                I(f'v_cvt_pk_bf16_f32 {v(hp + 2 * c + j // 2)}, {v(hh + j)}, {v(hh + j + 1)}')
            I(f'ds_write_b64 {v(V_HW)}, {v(hp + 2 * c, 2)} offset:{4608 * c + 512 * i}')
            for j in (0, 2):
                pk('fma', v(b + j, 2), (v(hh + j, 2), 'p'), (s(S_D, 2), 'h' if c else 'l'), (v(b + j, 2), 'p'))
    P.free(xd, 8), P.free(sm, 8), P.free(sq, 8), P.free(hh, 4), P.free(hp, 4)
    A.barrier()
    stamp(f'conv{layer}_h')
    acc = P.alloc(32, 2)
    mf = []
    seen = set()
    fin = {}
    for cc in range(4):
        if cc < 3:
            seq = [(p, n) for p in range(7, -1, -1) for n in range(p, 8)]
        else:
            seq = [(p, n) for n in range(8) for p in range(n + 1)]
        for (p, n) in seq:
            def em(reg, cc=cc, p=p, n=n, fst=(n not in seen)):
                d = v(acc + 4 * n, 4)
                I(f'v_mfma_f32_16x16x32_bf16 {d}, {v(reg[("A", cc, p)], 4)}, {v(reg[("B", cc, n - p)], 4)}, {"0" if fst else d}')
            seen.add(n)
            mf.append((em, [('A', cc, p), ('B', cc, n - p)]))
            fin[n] = len(mf) - 1

    def loader(k, r):
        _, cc, x = k
        if k[0] == 'B':
            return [f'ds_read_b128 {v(r, 4)}, {v(V_CB)} offset:{512 * x + 64 * (3 - cc)}']
        o = 128 * (1 - (x & 1)) + 16 * (3 - cc)
        return [f'ds_read2_b32 {v(r, 2)}, {v(V_CA[x >> 1])} offset0:{o} offset1:{o + 1}',
                f'ds_read2_b32 {v(r + 2, 2)}, {v(V_CA[x >> 1])} offset0:{o + 2} offset1:{o + 3}']
    fill = {}
    for n in range(8):
        at = min(fin[n] + 7, len(mf) - 1)
        fill.setdefault(at, []).append(lambda reg, n=n: I(f'ds_write_b128 {v(V_EXW)}, {v(acc + 4 * n, 4)} offset:{1280 * n}'))
    if layer == 0:
        spread(fill, dma_w(1 if '--exp1' in sys.argv else 2, L_A, vwd), *((10, 8.5) if '--exp2' in sys.argv else (10, 6.5)), solo='--exp3' not in sys.argv)
    stream(mf, loader, 21, 40, fill=fill, burst=12)
    P.free(acc, 32)
    A.barrier()
    stamp(f'conv{layer}_mm')
    ex = P.alloc(32, 2)
    for i in range(2):
        for u in range(4):
            I(f'ds_read_b128 {v(ex + 16 * i + 4 * u, 4)}, {v(V_EXR)} offset:{10240 * u + 1280 * i}')
    I(f's_mov_b32 s{S_T0}, {hex(WS_XT[layer])}')
    I(f's_mov_b32 s{S_T1}, {hex(WS_XT[layer] + 262144)}')
    for i in range(2):
        for c in range(2):
            b = base + 8 * i + 4 * c
            e = ex + 16 * i + 8 * c
            for j in (0, 2):
                pk('add', v(b + j, 2), (v(b + j, 2), 'p'), (v(e + j, 2), 'p'))
            for j in (0, 2):
                pk('add', v(b + j, 2), (v(b + j, 2), 'p'), (v(e + 4 + j, 2), 'p'))
            for j in (0, 2):
                I(f'v_cvt_pk_bf16_f32 {v(e + j // 2)}, {v(b + j)}, {v(b + j + 1)}')
            I(f'buffer_store_dwordx2 {v(e, 2)}, {v(V_XTST)}, {WS}, s{S_T0 + i} offen offset:{128 * c} sc1', tag='xtst')
    P.free(ex, 32), P.free(base, 16)
    stamp(f'conv{layer}_st')


def phi(x, tmp):
    EX = s(S_EXP, 2)
    for j in (0, 2):
        pk('fma', v(tmp + j, 2), (v(x + j, 2), 'p'), (EX, 'l'), (EX, 'h'))
    for j in range(4):
        I(f'v_exp_f32_e64 {v(tmp + j)}, {v(tmp + j)} clamp')
    for j in range(4):
        I(f'v_max_f32 {v(x + j)}, s{S_E6}, {v(x + j)}')
    for j in (0, 2):
        pk('add', v(x + j, 2), (v(x + j, 2), 'p'), (v(tmp + j, 2), 'p'))


DOTSTATS = '--dot' in sys.argv


def p3(layer, vod, vor):
    for ck in range(4):
        if ck == 0:
            I(f's_lshl_b32 m0, s{S_W}, 12')
        else:
            I('s_add_u32 m0, m0, 16384')
        I(f's_mov_b32 s{S_T0}, {hex(WS_XT[layer] + ck * 16384)}')
        for j in range(4):
            I(f'buffer_load_dwordx4 {v(V_XTLD)}, {WS}, s{S_T0} offen offset:{1024 * j} sc1 lds', tag=f'xt{ck}')
        if layer == 0 and ck == 1:
            vwb = P.alloc()
            I(f'v_add_u32 {v(vwb)}, {L_B}, {v(V_XT[0])}')
            run_all(consume_w(0, vwb))
            P.free(vwb)
        if layer == 0 and ck == 2:
            colsums([0])
    acc = P.alloc(32, 4)
    ss = P.alloc(8, 4)

    def loader(k, r):
        st, i = k
        return [f'ds_read_b64_tr_b16 {v(r + 2 * z, 2)}, {v(V_XT[i])} offset:{4096 * st + 2048 * z}' for z in range(2)]
    mf = []
    fill = {}
    for st in range(16):
        for i in range(4):
            for y in (1, 2):
                def em(reg, st=st, i=i, y=y):
                    d = v(acc + 16 * (y - 1) + 4 * i, 4)
                    I(f'v_mfma_f32_16x16x32_bf16 {d}, {v(reg[(st, i)], 4)}, {wq_reg(y, st)}, {"0" if st == 0 else d}')
                mf.append((em, [(st, i)]))
            if i == 0 and not DOTSTATS:
                for y in range(2):
                    def em(reg, st=st, y=y):
                        d = v(ss + 4 * y, 4)
                        x = v(reg[(st, 0)], 4)
                        I(f'v_mfma_f32_16x16x32_bf16 {d}, {v(V_ONES, 4) if y else x}, {x}, {"0" if st == 0 else d}')
                    mf.append((em, [(st, 0)]))
            if i == 0 and DOTSTATS:
                def dots(reg, st=st):
                    for j in range(8):
                        x = v(reg[(st, 0)] + j // 2)
                        d = v(ss + (j & 1))
                        c = '0' if (st == 0 and j < 2) else d
                        I(f'v_dot2_f32_bf16 {d}, {x}, {x if j & 1 else s(S_ONES)}, {c}')
                fill.setdefault(len(mf) - 2, []).append(dots)
    per = len(mf) // 16
    if layer == 0:
        spread(fill, dma_wo(0, L_B, vod), 5 * per + 3, 0.66 * per)

    def mkgate(ck):
        def g():
            A.wait_vm(f'xt{ck}')
            A.barrier(lg=(ck == 0))
            if ck == 0:
                stamp(f'p3_{layer}_c0')
        return g
    gate = {(4 * ck, 0): mkgate(ck) for ck in range(4)}
    stream(mf, loader, 9, per + 2, fill=fill, gate=gate, burst=8)
    stamp(f'p3_{layer}_mm')
    if DOTSTATS:
        for r in (0, 1):
            I(f'v_mov_b32 {v(ss + 2 + r)}, {v(ss + r)}')
        for r in (0, 1):
            I(f'v_permlane32_swap_b32 {v(ss + r)}, {v(ss + 2 + r)}')
        pk('add', v(ss, 2), (v(ss, 2), 'p'), (v(ss + 2, 2), 'p'))
        for r in (0, 1):
            I(f'v_mov_b32 {v(ss + 2 + r)}, {v(ss + r)}')
        for r in (0, 1):
            I(f'v_permlane16_swap_b32 {v(ss + r)}, {v(ss + 2 + r)}')
        pk('add', v(ss, 2), (v(ss, 2), 'p'), (v(ss + 2, 2), 'p'))
        pk('mul', v(ss, 2), (v(ss, 2), 'p'), (s(S_LN, 2), 'l'))
        I(f'v_fma_f32 {v(ss + 1)}, -{v(ss)}, {v(ss)}, {v(ss + 1)}')
        I(f'v_max_f32 {v(ss + 1)}, 0, {v(ss + 1)}')
        I(f'v_add_f32 {v(ss + 1)}, s{S_LN + 1}, {v(ss + 1)}')
        I(f'v_rsq_f32 {v(ss + 1)}, {v(ss + 1)}')
        I(f'v_mul_f32 {v(ss)}, {v(ss)}, {v(ss + 1)}')
        I(f'ds_write2st64_b32 {v(V_SW)}, {v(ss + 1)}, {v(ss)} offset0:0 offset1:1')
    else:
        I(f'v_cndmask_b32 {v(ss)}, {v(ss)}, {v(ss + 1)}, {s(S_M1, 2)}')
        I(f'v_cndmask_b32 {v(ss + 2)}, {v(ss + 2)}, {v(ss + 3)}, {s(S_M1, 2)}')
        I(f'v_mul_f32 {v(ss + 4)}, s{S_LN}, {v(ss + 4)}')
        I(f'v_cndmask_b32 {v(ss)}, {v(ss)}, {v(ss + 2)}, {s(S_M2, 2)}')
        I(f'v_mul_f32 {v(ss + 1)}, {v(ss + 4)}, {v(ss + 4)}')
        I(f'v_fma_f32 {v(ss + 1)}, {v(ss)}, s{S_LN}, -{v(ss + 1)}')
        I(f'v_max_f32 {v(ss + 1)}, 0, {v(ss + 1)}')
        I(f'v_add_f32 {v(ss + 1)}, s{S_LN + 1}, {v(ss + 1)}')
        I(f'v_rsq_f32 {v(ss + 1)}, {v(ss + 1)}')
        I('s_mov_b32 exec_lo, 0x00f0000f')
        I('s_mov_b32 exec_hi, 0xf0000f00')
        I(f'v_mul_f32 {v(ss)}, {v(ss + 4)}, {v(ss + 1)}')
        I(f'ds_write2st64_b32 {v(V_SW)}, {v(ss + 1)}, {v(ss)} offset0:0 offset1:1')
        I('s_mov_b64 exec, -1')
    ta = P.alloc(6, 2)
    for i in range(1, 4):
        I(f'v_xor_b32 {v(ta + 2 * i - 2)}, {64 * i}, {v(V_SR4)}')
        I(f'v_xor_b32 {v(ta + 2 * i - 1)}, {64 * i}, {v(V_SR1)}')
    A.barrier()
    stamp(f'p3_{layer}_st')
    P.free(ss, 8)
    r4 = P.alloc(32, 4)
    r1 = P.alloc(8, 2)
    for i in range(4):
        a4 = ta + 2 * i - 2 if i else V_SR4
        I(f'ds_read_b128 {v(r4 + 8 * i + 4, 4)}, {v(a4)} offset:256')
        I(f'ds_read_b128 {v(r4 + 8 * i, 4)}, {v(a4)}')
    for i in range(4):
        a1 = ta + 2 * i - 1 if i else V_SR1
        I(f'ds_read2st64_b32 {v(r1 + 2 * i, 2)}, {v(a1)} offset0:0 offset1:1')
    P.free(ta, 6)
    tmp = P.alloc(4, 2)
    fk = P.alloc(8, 4)
    fv = P.alloc(8, 4)
    dkv, dz = P.alloc(4, 4), P.alloc(4, 4)
    E6 = s(S_E6, 2)
    for i in range(4):
        r, rm = r4 + 8 * i, r4 + 8 * i + 4
        k_, v_ = acc + 4 * i, acc + 16 + 4 * i
        for j in (0, 2):
            pk('fma', v(tmp + j, 2), (v(rm + j, 2), 'p', 'b'), bc(V_CSKV), (E6, 'p'))
        for j in (0, 2):
            pk('fma', v(k_ + j, 2), (v(k_ + j, 2), 'p'), (v(r + j, 2), 'p'), (v(tmp + j, 2), 'p'))
        for j in (0, 2):
            pk('mul', v(v_ + j, 2), (v(v_ + j, 2), 'p'), (v(r + j, 2), 'p'))
        for j in (0, 2):
            pk('fma', v(v_ + j, 2), (v(rm + j, 2), 'p', 'b'), bc(V_CSKV + 1), (v(v_ + j, 2), 'p'))
        phi(k_, tmp)
        for j in (0, 2):
            I(f'v_cvt_pk_bf16_f32 {v(fv + 2 * i + j // 2)}, {v(v_ + j)}, {v(v_ + j + 1)}')
        for j in (0, 2):
            I(f'v_cvt_pk_bf16_f32 {v(fk + 2 * i + j // 2)}, {v(k_ + j)}, {v(k_ + j + 1)}')
    stamp(f'p3_{layer}_kv')
    I(f's_mov_b32 s{S_T2}, {hex(WS_KV[layer])}')
    I(f's_mov_b32 s{S_T0}, {hex(WS_KV[layer] + 32768)}')
    for hf in range(2):
        I(f'v_mfma_f32_16x16x32_bf16 {v(dkv, 4)}, {v(fv + 4 * hf, 4)}, {v(fk + 4 * hf, 4)}, {v(dkv, 4) if hf else 0}')
    for hf in range(2):
        I(f'v_mfma_f32_16x16x32_bf16 {v(dz, 4)}, {v(V_ONES, 4)}, {v(fk + 4 * hf, 4)}, {v(dz, 4) if hf else 0}')
    P.free(r4, 32), P.free(fk, 8), P.free(fv, 8), P.free(acc, 32)

    def atomics():
        for r in range(4):
            I(f'buffer_atomic_add_f32 {v(dkv + r)}, {v(V_KVST)}, {WS}, s{S_T2} offen offset:{64 * r}')
        I('s_mov_b64 exec, 0xffff')
        I(f'buffer_atomic_add_f32 {v(dz)}, {v(V_ZST)}, {WS}, s{S_T0} offen')
        I('s_mov_b64 exec, -1')
        stamp(f'p3_{layer}_atom')
    acc = P.alloc(16, 4)
    mf = []
    fill = {}
    for st in range(16):
        for i in range(4):
            def em(reg, st=st, i=i):
                d = v(acc + 4 * i, 4)
                I(f'v_mfma_f32_16x16x32_bf16 {d}, {wq_reg(0, st)}, {v(reg[(st, i)], 4)}, {"0" if st == 0 else d}')
            mf.append((em, [(st, i)]))
    stream(mf, loader, 8, 6, fill=fill, rate=2, burst=10, pre=atomics)
    P.free(dkv, 4), P.free(dz, 4)
    stamp(f'p3_{layer}_qmm')
    res = p4_res() if layer == 0 else None
    I(f's_mov_b32 s{S_T0}, {hex(WS_PQ[layer])}')
    ta = P.alloc(4)
    for i in range(1, 4):
        I(f'v_xor_b32 {v(ta + i)}, {(i >> 1) * 32768 + (i & 1) * 512}, {v(V_PQST)}')
    for i in range(4):
        q_ = acc + 4 * i
        rr = v(r1 + 2 * i, 2)
        for j in (0, 2):
            pk('fma', v(tmp + j, 2), (rr, 'h', 'b'), (v(V_CSQ + j, 2), 'p'), (E6, 'p'))
        for j in (0, 2):
            pk('fma', v(q_ + j, 2), (v(q_ + j, 2), 'p'), (rr, 'l'), (v(tmp + j, 2), 'p'))
        phi(q_, tmp)
        for j in (0, 2):
            I(f'v_cvt_pk_bf16_f32 {v(q_ + j // 2)}, {v(q_ + j)}, {v(q_ + j + 1)}')
        I(f'buffer_store_dwordx2 {v(q_, 2)}, {v(ta + i if i else V_PQST)}, {WS}, s{S_T0} offen sc1', tag='pqst')
    stamp(f'p3_{layer}_q')
    P.free(r1, 8), P.free(tmp, 4), P.free(acc, 16), P.free(ta, 4)
    return res


P4_UP = int(([x[6:] for x in sys.argv if x.startswith('--p4up')] or ['3'])[0])


P4FL = '' if '--nosc1' in sys.argv else 'sc1'


OUTFL = ([x[6:] for x in sys.argv if x.startswith('--out=')] or [''])[0].replace('+', ' ')


def p4_res():
    res = P.alloc(8, 2)
    for j in range(4):
        I(f'ds_read_b64_tr_b16 {v(res + 2 * j, 2)}, {v(V_RES[j & 1])} offset:{512 * j}')
    return res


def p4_pre(res, layer):
    I(f's_mov_b32 s{S_T1}, {hex(WS_KV[layer])}')
    I(f's_mov_b32 s{S_T2}, {hex(WS_PQ[layer])}')
    acc = P.alloc(16, 4)
    ad = P.alloc(9)
    for pp in range(1, 4):
        for j, r in enumerate((V_KVLD, V_PQLD, V_OFW)):
            I(f'v_xor_b32 {v(ad + 3 * pp - 3 + j)}, {2048 * pp}, {v(r)}')
    for j in range(8):
        I(f'v_lshlrev_b32 {v(acc + 2 * j)}, 16, {v(res + j)}')
        I(f'v_and_b32 {v(acc + 2 * j + 1)}, 0xffff0000, {v(res + j)}')
    P.free(res, 8)
    return acc, ad


def p4(layer, acc, ad):
    zf = P.alloc(8, 2)
    kv = P.alloc(32, 2)
    pq = P.alloc(32, 2)
    adr = lambda pp, j: v(ad + 3 * pp - 3 + j) if pp else v((V_KVLD, V_PQLD, V_OFW)[j])

    def loads(pp):
        out = []
        for j in range(2):
            out.append(f'buffer_load_dwordx4 {v(kv + 8 * pp + 4 * j, 4)}, {adr(pp, 0)}, {WS}, s{S_T1} offen offset:{1024 * j} sc1')
        for j in range(2):
            out.append(f'buffer_load_dwordx4 {v(pq + 8 * pp + 4 * j, 4)}, {adr(pp, 1)}, {WS}, s{S_T2} offen offset:{1024 * j} sc1')
        return out
    I(f'buffer_load_dwordx4 {v(zf + 4, 4)}, {v(V_ZLD)}, {WS}, s{S_T1} offen sc1')
    for pp in range(P4_UP):
        for t in loads(pp):
            I(t)
        if pp < P4_UP - 1:
            A.barrier()
    late = [t for pp in range(P4_UP, 4) for t in loads(pp)]
    stamp(f'p4_{layer}_iss')
    for j in range(4):
        I(f'v_cvt_pk_bf16_f32 {v(zf + j)}, {v(zf + 4 + 2 * (j & 1))}, {v(zf + 5 + 2 * (j & 1))}')
    stamp(f'p4_{layer}_z')
    D = [P.alloc(16, 2), P.alloc(16, 2)]
    MK = s(S_MASK, 2)

    def prep(pp):
        x = kv + 8 * pp
        for j in range(4):
            I(f'v_cvt_pk_bf16_f32 {v(x + j)}, {v(x + 2 * j)}, {v(x + 2 * j + 1)}')
        if pp == 0:
            for j in range(2):
                I(f'v_permlane16_swap_b32 {v(zf + j)}, {v(zf + 2 + j)}')
        for j in range(4):
            I(f'v_cndmask_b32 {v(x + 4 + j)}, {v(zf + j)}, {v(x + j)}, {MK}')
        for j in range(4):
            I(f'v_cndmask_b32 {v(x + j)}, {v(x + j)}, {v(zf + j)}, {MK}')

    def mm(hh):
        I(f'v_mfma_f32_32x32x16_bf16 {v(D[hh & 1], 16)}, {v(kv + 4 * hh, 4)}, {v(pq + 4 * hh, 4)}, 0')

    def norm(pp):
        den = [D[o] + 8 * (1 - o) + 2 * pp + o for o in range(2)]
        for o in range(2):
            I(f'v_add_f32 {v(den[o])}, s{S_E6}, {v(den[o])}')
        for o in range(2):
            I(f'v_rcp_f32 {v(den[o])}, {v(den[o])}')
        for o in range(2):
            num = D[o] + 8 * o
            for j in range(0, 8, 2):
                pk('mul', v(num + j, 2), (v(num + j, 2), 'p'), bc(den[o]))
            if late:
                I(late.pop(0))
            of = pq + 8 * pp + 4 * o
            for j in range(4):
                I(f'v_cvt_pk_bf16_f32 {v(of + j)}, {v(num + 2 * j)}, {v(num + 2 * j + 1)}')
            I(f'ds_write_b128 {adr(pp, 2)}, {v(of, 4)} offset:{1024 * o}')
    prep(0)
    for pp in range(4):
        mm(2 * pp)
        mm(2 * pp + 1)
        while late:
            I(late.pop(0))
        stamp(f'p4_{layer}_m{pp}')
        if pp in (1, 2):
            prep(pp + 1)
        norm(pp)
        if pp == 0:
            prep(1)
        stamp(f'p4_{layer}_n{pp}')
    P.free(zf, 8), P.free(kv, 32), P.free(pq, 32), P.free(D[0], 16), P.free(D[1], 16), P.free(ad, 9)
    A.barrier()
    stamp(f'p4_{layer}_o')
    mf = []
    for h in range(32):
        def em(reg, h=h):
            I(f'v_mfma_f32_32x32x16_bf16 {v(acc, 16)}, {wo_reg(h)}, {v(reg[h], 4)}, {v(acc, 16)}')
        mf.append((em, [h]))
    stream(mf, lambda k, r: [f'ds_read_b128 {v(r, 4)}, {v(V_OFR)} offset:{1024 * k}'], 8, 7)
    stamp(f'p4_{layer}_mm')
    o = P.alloc(8, 2)
    for j in range(8):
        I(f'v_cvt_pk_bf16_f32 {v(o + j)}, {v(acc + 2 * j)}, {v(acc + 2 * j + 1)}')
    if layer == 0:
        x2store(1, o)
        ss = P.alloc(2, 2)
        for j in range(8):
            I(f'v_dot2_f32_bf16 {v(ss)}, {v(o + j)}, s{S_ONES}, {v(ss) if j else 0}')
            I(f'v_dot2_f32_bf16 {v(ss + 1)}, {v(o + j)}, {v(o + j)}, {v(ss + 1) if j else 0}')
        I(f'v_permlane32_swap_b32 {v(ss)}, {v(ss + 1)}')
        I(f'v_add_f32 {v(ss)}, {v(ss)}, {v(ss + 1)}')
        I(f's_mov_b32 s{S_T0}, {hex(WS_ST[1])}')
        I(f'buffer_atomic_add_f32 {v(ss)}, {v(V_STAT)}, {WS}, s{S_T0} offen')
        P.free(ss, 2)
    else:
        for j in range(2):
            I(f'global_store_dwordx4 {v(V_TILE)}, {v(o + 4 * j, 4)}, {s(S_OUT, 2)} offset:{16 * j} {OUTFL}')
    P.free(o, 8), P.free(acc, 16)
    stamp(f'p4_{layer}_st')


def main():
    vwd = prologue()
    vod = vor = None
    bar = 1
    for layer in range(2):
        I(f's_lshl_b32 s{S_T3}, s2, 13')
        I(f's_add_u32 s{S_T3}, s{S_T3}, {hex(WS_X2[layer])}')
        I(f's_mov_b32 s{S_T1}, {hex(WS_ST[layer])}')
        I(f's_mov_b32 s{S_T2}, {hex(WS_ST[layer] + 8192)}')
        stamp(f'pre_wait{bar}')
        global_wait(bar, started=(layer == 0))
        stamp(f'wait{bar}')
        conv(layer, vwd)
        if layer == 0:
            A.barrier()
            qd = dma_w(0, L_B, vwd, 'wq')
            for th in qd[:6]:
                run_all(th)
            vod, vor = setup_late()
            colsums([1])
            A.wait_vm('xtst')
        else:
            A.wait_vm()
        global_arrive()
        bar += 1
        stamp(f'arr{bar}')
        if layer == 0:
            qd = qd[6:]
            for i, th in enumerate(consume_w(2, V_XT[0])):
                th()
                if i % 3 == 2:
                    run_all(qd.pop(0))
            assert not qd
            poll_start(bar)
            colsums([2])
            A.wait_vm()
            P.free(vwd)
            stamp('pre_wait2')
        global_wait(bar, started=(layer == 0))
        stamp(f'wait{bar}')
        res = p3(layer, vod, vor)
        if layer == 0:
            A.wait_vm('wdma')
            A.barrier()
            od = dma_wo(1, L_A, vod, 'wo1')
            for th in od[:6]:
                run_all(th)
            consume_wo(0, vor)
            A.wait_vm('pqst')
        else:
            A.wait_vm()
        global_arrive()
        bar += 1
        stamp(f'arr{bar}')
        if layer == 0:
            for th in od[6:]:
                run_all(th)
            acc, ad = p4_pre(res, layer)
            I(f'v_subrev_u32 {v(vor)}, {L_B - L_A}, {v(vor)}')
            A.wait_vm()
            poll_start(bar)
            A.barrier()
            consume_wo(1, vor)
            P.free(vod), P.free(vor)
            stamp('pre_wait3')
        else:
            poll_start(bar)
            acc, ad = p4_pre(p4_res(), layer)
        global_wait(bar, started=True)
        stamp(f'wait{bar}')
        p4(layer, acc, ad)
        if layer == 0:
            A.wait_vm()
            global_arrive()
            bar += 1
    if DIAG:
        A.wait_vm()
        stamp('end')
        A._wait(lg=0)
        t = P.alloc(2)
        I(f's_lshl_b32 s{S_T0}, s2, 2')
        I(f's_add_u32 s{S_T0}, s{S_T0}, s{S_W}')
        I(f's_lshl_b32 s{S_T0}, s{S_T0}, 7')
        I(f's_add_u32 s{S_T0}, s{S_T0}, {hex(WS_DIAG)}')
        I(f'v_mov_b32 {v(t + 1)}, 0')
        I('s_mov_b64 exec, 1')
        for k in range(nstamp[0]):
            I(f'v_mov_b32 {v(t)}, s{S_STAMP + 2 * k}')
            I(f'buffer_store_dword {v(t)}, {v(t + 1)}, {WS}, s{S_T0} offen offset:{4 * k}')
        pr = [x for x in sys.argv if x.startswith('--probe=')]
        if pr:
            nm = pr[0][8:]
            k = stamp_names.index(nm)
            I(f's_add_u32 s{S_T1}, s{S_STAMP + 2 * k}, 6000')
            A.label('L_probe')
            I('s_memrealtime s[4:5]')
            A._wait(lg=0)
            I(f's_sub_u32 s{S_T0}, s4, s{S_T1}')
            I(f's_cmp_lt_i32 s{S_T0}, 0')
            I('s_cbranch_scc1 L_probe')
        I(f's_lshl_b32 s{S_T0}, s2, 2')
        I(f's_add_u32 s{S_T0}, s{S_T0}, s{S_W}')
        I(f's_cmp_lg_u32 s{S_T0}, 400')
        I('s_cbranch_scc1 L_end')
        sel = list(range(1, nstamp[0]))
        for j, k in enumerate(sel):
            I(f's_sub_u32 s{S_T0}, s{S_STAMP + 2 * k}, s{S_STAMP}')
            I(f'v_mov_b32 {v(t)}, s{S_T0}')
            I(f'global_store_dword {v(t + 1)}, {v(t)}, {s(S_DBG, 2)} offset:{4 * (j + 1)}')
        print('debug stamps:', [stamp_names[k] for k in sel], file=sys.stderr)
        P.free(t, 2)
    A.label('L_end')
    A.raw('    s_endpgm')

    lines, info = layout(A.out, align='--noalign' not in sys.argv, touch='--notouch' not in sys.argv)
    body = '\n'.join(lines) + '\n'
    print(info, file=sys.stderr)
    ref = open(f'cdna_kernels/{NAME}.s.ref').read().splitlines()
    head = []
    for ln in ref:
        if ln.startswith('; @launch'):
            head.append(f'; @launch grid=(256,1,1) block=(256,1,1) lds={L_END}')
            break
        head.append(ln)
    txt = '\n'.join(head) + f'''
.amdgcn_target "amdgcn-amd-amdhsa--gfx950"
.text
.globl {NAME}_kernel
.p2align 12
.p2align 8
.type {NAME}_kernel,@function
{NAME}_kernel:
''' + body + f'''.section .rodata,"a"
.p2align 6
.amdhsa_kernel {NAME}_kernel
  .amdhsa_next_free_vgpr 512
  .amdhsa_next_free_sgpr 102
  .amdhsa_accum_offset 256
  .amdhsa_group_segment_fixed_size 0
  .amdhsa_kernarg_size 120
  .amdhsa_user_sgpr_count 2
  .amdhsa_user_sgpr_kernarg_segment_ptr 1
  .amdhsa_system_sgpr_workgroup_id_x 1
.end_amdhsa_kernel
'''
    out = [x for x in sys.argv[1:] if not x.startswith('--')]
    path = out[0] if out else f'cdna_kernels/{NAME}.s'
    open(path, 'w').write(txt)
    if DIAG:
        open(path + '.stamps', 'w').write('\n'.join(stamp_names))
    print(f'wrote {path}: {A.ninstr} instrs, {A.nnop} nop states, vgpr peak {P.peak}, lds {L_END}', file=sys.stderr)


main()
```

```python
import sys, struct, math
from emit import *
from layout import layout

NAME = 'interleave_layers__ssm_conv_s4__linear_attn_block__prompt'
DIAG = '--diag' in sys.argv


def f32(x):
    return '0x%08x' % struct.unpack('<I', struct.pack('<f', x))[0]


WS_CNT = 0x0
WS_ZERO = 0x10000
WS_KV = [WS_ZERO, WS_ZERO + 0xC000]
WS_ST = [0x30000, WS_ZERO + 0x18000]
WS_DIAG = 0x40000
WS_X2 = [0x200000, 0x400000]
WS_XT = [0x600000, 0x800000]
WS_PQ = [0xA00000, 0xC00000]
WS_WT = 0xE00000
WS_WTO = WS_WT + 0x180000
WS_SIZE = 0x1000000

L_A = 0
L_B = 65536
L_RK = 131072
L_H = L_RK + 4 * 4160
L_STAT = L_H + 2 * 4608
L_END = L_STAT + 512
KG_ARR = 18
KG_POLL = 36
KG_ROW = 288
KG_W = 54 * KG_ROW

S_U, S_ARE, S_AIM, S_BRE, S_BIM, S_CRE, S_CIM, S_LDT, S_DSK = 4, 6, 8, 10, 12, 14, 16, 18, 20
S_WQKV, S_WO, S_OUT, S_DBG, S_WS = 24, 26, 28, 30, 32
R_WS, R_WQ, R_WO = 36, 40, 44
S_W, S_RB, S_CG, S_NB, S_TH = 48, 49, 50, 51, 52
S_T0, S_T1, S_T2 = 53, 54, 55
S_D = 56
S_MASK = 58
S_ONES = 60
S_SPIN = 61
S_LN = 62
S_EXP = 64
S_E6 = 66
S_T3, S_T4 = 68, 69
S_STAMP = 70
S_W17 = 3
S_M1, S_M2 = 22, 34

A = Asm()
I = A.I
P = Pool(1, 192)
P.force4 = '--al4' in sys.argv
WS = s(R_WS, 4)
nstamp = [0]
stamp_names = []


STSEL = [x[5:].split(',') for x in sys.argv if x.startswith('--st=')]
STSEL = STSEL[0] if STSEL else None


def stamp(name, fine=False):
    if not DIAG:
        return
    if name not in ('entry', 'end'):
        if STSEL is None:
            if fine or not name.startswith(('wait', 'arr')):
                return
        elif not any(name.startswith(p) for p in STSEL):
            return
    k = nstamp[0]
    assert k < 16, 'too many stamps'
    I(f'{"s_memtime" if "--cyc" in sys.argv else "s_memrealtime"} s[{S_STAMP + 2 * k}:{S_STAMP + 2 * k + 1}]')
    stamp_names.append(name)
    nstamp[0] += 1


def pk(op, dst, *srcs):
    sel, selhi, nlo, nhi, txt = [], [], [], [], []
    for sr in srcs:
        t, m = sr[0], sr[1]
        ng = sr[2] if len(sr) > 2 else ''
        txt.append(t)
        sel.append(1 if m in 'hx' else 0)
        selhi.append(1 if m in 'ph' else 0)
        nlo.append(1 if ng in ('l', 'b') else 0)
        nhi.append(1 if ng in ('h', 'b') else 0)
    f = lambda l: '[' + ','.join(map(str, l)) + ']'
    line = f'v_pk_{op}_f32 {dst}, ' + ', '.join(txt) + f' op_sel:{f(sel)} op_sel_hi:{f(selhi)}'
    if any(nlo):
        line += f' neg_lo:{f(nlo)}'
    if any(nhi):
        line += f' neg_hi:{f(nhi)}'
    I(line)


def bc(r):
    return (v(r & ~1, 2), 'h' if r & 1 else 'l')


def cmul(d, x, y, tmp):
    pk('mul', v(tmp, 2), (v(x, 2), 'l'), (v(y, 2), 'p'))
    pk('fma', v(d, 2), (v(x, 2), 'h', 'l'), (v(y, 2), 'x'), (v(tmp, 2), 'p'))


def wq_reg(y, st):
    return a((y * 16 + st) * 4, 4)


def wo_reg(h, n=4, off=0):
    if h < 16:
        return a(192 + 4 * h + off, n)
    return v(192 + 4 * (h - 16) + off, n)


V_L = P.alloc()
V_L16 = P.alloc()
V_XT = [P.alloc() for _ in range(4)]
V_TILE = P.alloc()
V_X2ST = P.alloc()
V_STAT = P.alloc()
V_CVL = P.alloc()
V_HW = P.alloc()
V_CA = [P.alloc() for _ in range(4)]
V_CB = P.alloc()
V_EXW = P.alloc()
V_EXR = P.alloc()
V_XTST = P.alloc()
V_XTLD = P.alloc()
V_PQST = P.alloc()
V_KVST = P.alloc()
V_ZST = P.alloc()
V_PQLD = P.alloc()
V_KVLD = P.alloc()
V_ZLD = P.alloc()
V_OFW = P.alloc()
V_RES = [P.alloc(), P.alloc()]
V_SW = P.alloc()
V_SR4 = P.alloc()
V_SR1 = V_SW
V_ARR = P.alloc()
V_POLL = P.alloc()
V_PA = P.alloc(2)
V_WLD = P.alloc(2)
POLL_GAP = 4
V_CSKV = P.alloc(2)
V_CSQ = P.alloc(4)
V_ONES = P.alloc(4)


def global_arrive(first=None):
    A.barrier(lg=not first)
    lab = f'L_arr{global_arrive.n}'
    global_arrive.n += 1
    I(f's_cmp_lg_u32 s{S_W}, 0')
    I(f's_cbranch_scc1 {lab}')
    t = P.alloc()
    if first:
        flag, zero = first
        I(f's_mov_b32 s{S_SPIN}, 0x200000')
        A.label(lab + '_init')
        I(f'v_readfirstlane_b32 s{S_T0}, {v(flag)}')
        I(f's_sub_u32 s{S_SPIN}, s{S_SPIN}, 1')
        I(f's_cbranch_scc1 {lab}_go')
        I(f's_cmp_lg_u32 s{S_T0}, 0')
        I(f's_cbranch_scc1 {lab}_go')
        A.cond = True
        I(f'global_load_dword {v(flag)}, {v(zero)}, {s(S_DBG, 2)} sc1')
        A.cond = False
        A._wait(vm=0)
        A.vm.pop()
        I(f's_branch {lab}_init')
        A.label(lab + '_go')
    I(f'v_mov_b32 {v(t)}, 1')
    I('s_mov_b32 exec_hi, 0')
    A.cond = True
    I(f'buffer_atomic_add {v(t)}, {v(V_ARR)}, {WS}, 0 offen')
    A.cond = False
    I('s_mov_b64 exec, -1')
    P.free(t)
    A.label(lab)


global_arrive.n = 0


def _poll(r):
    A._emit(Ins(f'v_mov_b32 {v(r)}, 0'))
    A._emit(Ins(f'buffer_atomic_add {v(r)}, {v(V_POLL)}, {WS}, 0 offen sc0'))


def poll_start(k):
    lab = f'L_ps{k}'
    I(f's_cmp_lg_u32 s{S_W}, 0')
    I(f's_cbranch_scc1 {lab}')
    I('s_mov_b64 exec, 0xff')
    _poll(V_PA)
    I('s_mov_b64 exec, -1')
    A.label(lab)
    A.vm.append(dict(defs=set(), tag=None, cond=True))


def global_wait(k, started=False):
    lab = f'L_wait{k}'
    I(f's_cmp_lg_u32 s{S_W}, 0')
    I(f's_cbranch_scc0 {lab}_w0')
    A.raw(f'#touch s{k}')
    I(f's_branch {lab}')
    A.label(lab + '_w0')
    pa, pb = V_PA, V_PA + 1
    raw = lambda t: A._emit(Ins(t))
    I('s_mov_b64 exec, 0xff')
    if not started:
        _poll(pa)
    I(f's_mov_b32 s{S_SPIN}, 0x100000')
    I(f's_movk_i32 s{S_T0}, {32 * k}')
    if not started:
        raw(f's_sleep {POLL_GAP}')
    A.label(lab + '_poll')
    _poll(pb)
    raw('s_waitcnt vmcnt(1)')
    raw(f'v_cmp_gt_u32 vcc, s{S_T0}, {v(pa)}')
    raw(f's_cbranch_vccz {lab}_done')
    _poll(pa)
    raw(f's_sub_u32 s{S_SPIN}, s{S_SPIN}, 1')
    raw(f's_cbranch_scc1 {lab}_done')
    raw('s_waitcnt vmcnt(1)')
    raw(f'v_cmp_gt_u32 vcc, s{S_T0}, {v(pb)}')
    raw(f's_cbranch_vccnz {lab}_poll')
    A.label(lab + '_done')
    I('s_mov_b64 exec, -1')
    A.vm.append(dict(defs=set(), tag=None, cond=True))
    A.label(lab)
    A.raw(f'#seg s{k}')
    A.barrier()


WIL = '--nowil' not in sys.argv


def wloads(frags):
    out = []
    for f in frags:
        if f[0] == 'q':
            off, reg, va = WS_WT + (f[1] * 16 + f[2]) * (32768 if WIL else 1024), wq_reg(f[1], f[2]), V_WLD
        else:
            off, reg, va = WS_WTO + f[1] * (16384 if WIL else 1024), wo_reg(f[1]), V_WLD + 1
        th = []
        grp = off & ~4095
        so = S_T4 if f[:2] == ('q', 2) else S_T3
        if wloads.cur.get(so) != grp:
            if f[0] == 'o':
                assert WIL
                th.append(lambda grp=grp, so=so: I(f's_xor_b32 s{so}, s{S_W17}, {hex(grp)}'))
            else:
                th.append(lambda grp=grp, so=so: I(f's_mov_b32 s{so}, {hex(grp)}'))
            wloads.cur[so] = grp

        def ld(off=off, reg=reg, va=va, so=so):
            I(f'buffer_load_dwordx4 {reg}, {v(va)}, {WS}, s{so} offen offset:{off & 4095} sc1')
        ld.lds = True
        th.append(ld)
        out.append(th)
    return out


wloads.cur = {}


def run_all(th):
    for t in th:
        t()


def spread(fill, pieces, start, step, solo=True):
    for i, th in enumerate(pieces):
        at = start + int(i * step)
        for j, t in enumerate(th):
            f = lambda reg, t=t: t()
            f.lds = getattr(t, 'lds', False) and solo
            fill.setdefault(max(0, at - (len(th) - 1 - j)), []).append(f)


def colsums(ys):
    d = {y: V_CSQ if y == 0 else P.alloc(4, 2) for y in ys}
    for y in ys:
        for st in range(16):
            c = '0' if st == 0 else v(d[y], 4)
            if y == 0:
                I(f'v_mfma_f32_16x16x32_bf16 {v(d[y], 4)}, {wq_reg(y, st)}, {v(V_ONES, 4)}, {c}')
            else:
                I(f'v_mfma_f32_16x16x32_bf16 {v(d[y], 4)}, {v(V_ONES, 4)}, {wq_reg(y, st)}, {c}')
    for y in ys:
        if y:
            I(f'v_mov_b32 {v(V_CSKV + y - 1)}, {v(d[y])}')
            P.free(d[y], 4)


def stream(mf, loader, nslots, look, fill=None, gate=None, rate=1, burst=9, pre=None):
    fill = fill or {}
    gate = gate or {}
    first, last, order = {}, {}, []
    for m, (_, keys) in enumerate(mf):
        for k in keys:
            if k not in first:
                first[k] = m
                order.append(k)
            last[k] = m
    slots = [P.alloc(4, 2) for _ in range(nslots)]
    free = list(slots)
    reg = {}
    pend = []
    nxt = [0]

    def start_key():
        k = order[nxt[0]]
        nxt[0] += 1
        if k in gate:
            gate[k]()
        reg[k] = free.pop(0)
        pend.extend(loader(k, reg[k]))

    def issue(n, m, force=False):
        while n > 0:
            if not pend:
                if nxt[0] >= len(order) or not free:
                    return
                if first[order[nxt[0]]] > m + look:
                    return
                start_key()
            I(pend.pop(0))
            n -= 1

    issue(burst, -1)
    if pre:
        pre()
    for m, (em, keys) in enumerate(mf):
        while any(k not in reg for k in keys) or (pend and order[nxt[0] - 1] in keys):
            assert pend or free, 'no free slot'
            if not pend:
                start_key()
            I(pend.pop(0))
        em(reg)
        for k in keys:
            if last[k] == m:
                free.append(reg[k])
        fl = fill.get(m, [])
        solo = any(getattr(th, 'lds', False) for th in fl)
        if not solo:
            issue(1, m)
        for th in fl:
            th(reg)
        if rate > 1 and not solo:
            if m + 1 < len(mf):
                nk = mf[m + 1][1]
                if all(k in reg for k in nk) and not (pend and order[nxt[0] - 1] in nk):
                    A.need(', '.join(v(reg[k], 4) for k in nk))
            issue(rate - 1, m)
    for r in slots:
        P.free(r, 4)


ORDER = int(([x[8:] for x in sys.argv if x.startswith('--order=')] or ['2'])[0])


WPF = int(([x[6:] for x in sys.argv if x.startswith('--wpf=')] or ['2'])[0])


WN = [int(x) for x in ([x[5:] for x in sys.argv if x.startswith('--wn=')] or ['24,4,8,20,0,8'])[0].split(',')]
W_CSTEP = 120 / WN[0]


def lane_fields():
    f = [P.alloc() for _ in range(5)]
    I(f'v_and_b32 {v(f[0])}, 15, {v(V_L)}')
    I(f'v_lshrrev_b32 {v(f[1])}, 4, {v(V_L)}')
    I(f'v_lshrrev_b32 {v(f[2])}, 5, {v(V_L)}')
    return f


def setup_conv(va_, vg, x0, x1):
    I(f'v_lshl_add_u32 {v(V_CVL)}, s{S_W}, 11, {v(V_L16)}')
    I(f'v_lshrrev_b32 {v(V_HW)}, 1, {v(V_CVL)}')
    I(f'v_add_u32 {v(V_HW)}, {L_H + 512}, {v(V_HW)}')
    I(f's_lshr_b32 s{S_T0}, s{S_W}, 1')
    I(f's_and_b32 s{S_T1}, s{S_W}, 1')
    I(f's_mul_i32 s{S_T3}, s{S_T0}, 4608')
    I(f's_lshl_b32 s{S_T4}, s{S_T1}, 8')
    I(f's_sub_u32 s{S_T3}, s{S_T3}, s{S_T4}')
    I(f's_add_u32 s{S_T3}, s{S_T3}, {L_H + 512 - 32 - 192}')
    I(f'v_lshl_add_u32 {v(V_CB)}, {v(va_)}, 5, s{S_T3}')
    I(f'v_lshl_add_u32 {v(V_CB)}, {v(vg)}, 4, {v(V_CB)}')
    I(f's_mul_i32 s{S_T3}, s{S_T0}, 8320')
    I(f's_sub_u32 s{S_T3}, s{S_T3}, s{S_T4}')
    I(f's_add_u32 s{S_T3}, s{S_T3}, {L_RK + 4160 + 4 * (1015 - 176)}')
    I(f'v_and_b32 {v(x0)}, 1, {v(va_)}')
    I(f'v_mul_u32_u24 {v(x0)}, 4160, {v(x0)}')
    I(f'v_lshrrev_b32 {v(x1)}, 1, {v(va_)}')
    I(f'v_lshl_add_u32 {v(x0)}, {v(x1)}, 2, {v(x0)}')
    I(f'v_lshl_add_u32 {v(x1)}, {v(vg)}, 4, s{S_T3}')
    I(f'v_sub_u32 {v(V_CA[0])}, {v(x1)}, {v(x0)}')
    for i in range(1, 4):
        I(f'v_subrev_u32 {v(V_CA[i])}, {1024 * i}, {v(V_CA[0])}')
    I(f's_mul_i32 s{S_T3}, s{S_W}, 10240')
    I(f's_add_u32 s{S_T3}, s{S_T3}, {L_B}')
    I(f'v_lshl_add_u32 {v(V_EXW)}, {v(vg)}, 6, s{S_T3}')
    I(f'v_add_u32 {v(V_EXW)}, {v(V_EXW)}, {v(V_L16)}')
    I(f's_mul_i32 s{S_T3}, s{S_W}, 2560')
    I(f's_add_u32 s{S_T3}, s{S_T3}, {L_B}')
    I(f'v_and_b32 {v(x0)}, 3, {v(V_L)}')
    I(f'v_mul_u32_u24 {v(V_EXR)}, 316, {v(x0)}')
    I(f'v_lshl_add_u32 {v(V_EXR)}, {v(V_L)}, 2, {v(V_EXR)}')
    I(f'v_add_u32 {v(V_EXR)}, s{S_T3}, {v(V_EXR)}')
    I(f's_lshl_b32 s{S_T3}, s{S_W}, 19')
    I(f's_lshl_b32 s{S_T4}, s2, 8')
    I(f's_add_u32 s{S_T3}, s{S_T3}, s{S_T4}')
    I(f'v_lshl_add_u32 {v(V_XTST)}, {v(vg)}, 16, s{S_T3}')
    I(f'v_lshl_add_u32 {v(V_XTST)}, {v(va_)}, 3, {v(V_XTST)}')
    I(f's_and_b32 s{S_T4}, s2, 3')
    I(f's_lshl_b32 s{S_T4}, s{S_T4}, 5')
    I(f'v_xor_b32 {v(V_XTST)}, s{S_T4}, {v(V_XTST)}')
    I(f's_lshl_b32 s{S_T3}, s{S_CG}, 2')
    I(f's_add_u32 s{S_T3}, s{S_T3}, s{S_W}')
    I(f's_mul_i32 s{S_T3}, s{S_T3}, {1024 if WIL else 49152}')
    I(f'v_add_u32 {v(V_WLD)}, s{S_T3}, {v(V_L16)}')
    I(f's_mov_b32 s{S_LN}, {f32(1 / 512)}')
    I(f's_mov_b32 s{S_LN + 1}, {f32(1e-5)}')


def setup_late():
    va_, vg, vhi, x0, x1 = f = lane_fields()
    T3, T4 = S_T0, S_T1
    for j in range(2):
        I(f's_mov_b32 s{S_MASK + j}, 0xffff0000')
        I(f's_mov_b32 s{S_M1 + j}, 0xaaaaaaaa')
        I(f's_mov_b32 s{S_M2 + j}, 0xcccccccc')
        I(f's_mov_b32 s{S_E6 + j}, {f32(1e-6)}')
    I(f's_mov_b32 s{S_EXP + 1}, {f32(-1e-6 * math.log2(math.e))}')
    I(f'v_lshrrev_b32 {v(x0)}, 2, {v(V_L)}')
    I(f'v_lshlrev_b32 {v(V_XT[0])}, 7, {v(x0)}')
    I(f'v_bfe_u32 {v(x0)}, {v(V_L)}, 3, 2')
    I(f'v_xor_b32 {v(x0)}, s{S_W}, {v(x0)}')
    I(f'v_lshl_add_u32 {v(V_XT[0])}, {v(x0)}, 5, {v(V_XT[0])}')
    I(f'v_and_b32 {v(x0)}, 3, {v(V_L)}')
    I(f'v_lshl_add_u32 {v(V_XT[0])}, {v(x0)}, 3, {v(V_XT[0])}')
    for i in range(1, 4):
        I(f'v_xor_b32 {v(V_XT[i])}, {32 * i}, {v(V_XT[0])}')
    I(f'v_and_b32 {v(V_STAT)}, 0x1fff, {v(V_X2ST)}')
    I(f'v_lshl_add_u32 {v(V_STAT)}, {v(vhi)}, 13, {v(V_STAT)}')
    I(f's_lshl_b32 s{T3}, s{S_RB}, 16')
    I(f's_lshl_b32 s{T4}, s{S_W}, 12')
    I(f's_add_u32 s{T3}, s{T3}, s{T4}')
    I(f'v_add_u32 {v(V_XTLD)}, s{T3}, {v(V_L16)}')
    I(f's_lshl_b32 s{T4}, s{S_CG}, 2')
    I(f's_add_u32 s{T4}, s{T4}, s{S_W}')
    I(f's_lshl_b32 s{T4}, s{T4}, 10')
    I(f's_lshl_b32 s{T3}, s{S_RB}, 16')
    I(f's_add_u32 s{T3}, s{T3}, s{T4}')
    I(f'v_lshl_add_u32 {v(V_PQST)}, {v(va_)}, 5, s{T3}')
    I(f'v_lshl_add_u32 {v(V_PQST)}, {v(vg)}, 3, {v(V_PQST)}')
    I(f's_lshr_b32 s{T3}, s{S_W}, 1')
    I(f'v_lshl_add_u32 {v(V_PQST)}, s{T3}, 15, {v(V_PQST)}')
    I(f's_and_b32 s{T3}, s{S_W}, 1')
    I(f'v_lshl_add_u32 {v(V_PQST)}, s{T3}, 9, {v(V_PQST)}')
    I(f's_mul_i32 s{T3}, s{T3}, 768')
    I(f's_sub_u32 s{T3}, s{T4}, s{T3}')
    I(f'v_lshl_add_u32 {v(V_KVST)}, {v(vg)}, 4, s{T3}')
    I(f'v_and_b32 {v(x0)}, 3, {v(va_)}')
    I(f'v_lshl_add_u32 {v(V_KVST)}, {v(x0)}, 2, {v(V_KVST)}')
    I(f'v_bfe_u32 {v(x0)}, {v(va_)}, 2, 1')
    I(f'v_lshl_add_u32 {v(V_KVST)}, {v(x0)}, 10, {v(V_KVST)}')
    I(f'v_lshrrev_b32 {v(x0)}, 3, {v(va_)}')
    I(f'v_lshl_add_u32 {v(V_KVST)}, {v(x0)}, 9, {v(V_KVST)}')
    I(f's_lshr_b32 s{T3}, s{T4}, 4')
    I(f'v_lshl_add_u32 {v(V_ZST)}, {v(V_L)}, 2, s{T3}')
    I(f's_lshl_b32 s{T3}, s{S_RB}, 1')
    I(f's_add_u32 s{T3}, s{T3}, s{S_TH}')
    I(f's_lshl_b32 s{T3}, s{T3}, 15')
    I(f's_lshl_b32 s{T4}, s{S_W}, 13')
    I(f's_add_u32 s{T3}, s{T3}, s{T4}')
    I(f'v_and_b32 {v(x0)}, 31, {v(V_L)}')
    I(f'v_lshl_add_u32 {v(V_PQLD)}, {v(x0)}, 5, s{T3}')
    I(f'v_lshl_add_u32 {v(V_PQLD)}, {v(vhi)}, 4, {v(V_PQLD)}')
    I(f'v_add_u32 {v(V_KVLD)}, s{T4}, {v(V_L16)}')
    I(f'v_and_b32 {v(x0)}, 3, {v(va_)}')
    I(f'v_lshrrev_b32 {v(x1)}, 3, {v(va_)}')
    I(f's_lshl_b32 s{T3}, s{S_W}, 9')
    I(f's_add_u32 s{T3}, s{T3}, 32768')
    I(f'v_lshl_add_u32 {v(V_ZLD)}, {v(x1)}, 8, s{T3}')
    I(f'v_lshl_add_u32 {v(V_ZLD)}, {v(x0)}, 6, {v(V_ZLD)}')
    I(f'v_lshl_add_u32 {v(V_ZLD)}, {v(vg)}, 4, {v(V_ZLD)}')
    I(f'v_add_u32 {v(V_OFW)}, {L_B}, {v(V_KVLD)}')
    I(f's_lshl_b32 s{T3}, s{S_NB}, 14')
    I(f's_lshl_b32 s{T4}, s{S_W}, 12')
    I(f's_add_u32 s{T3}, s{T3}, s{T4}')
    I(f's_lshl_b32 s{T4}, s{S_TH}, 6')
    I(f's_add_u32 s{T3}, s{T3}, s{T4}')
    I(f'v_lshl_add_u32 {v(V_RES[0])}, {v(vhi)}, 11, s{T3}')
    I(f'v_lshl_add_u32 {v(V_RES[0])}, {v(x0)}, 3, {v(V_RES[0])}')
    I(f'v_lshrrev_b32 {v(x0)}, 2, {v(va_)}')
    I(f'v_lshl_add_u32 {v(V_RES[0])}, {v(x0)}, 7, {v(V_RES[0])}')
    I(f'v_xor_b32 {v(x1)}, {v(x1)}, {v(vg)}')
    I(f'v_and_b32 {v(x1)}, 1, {v(x1)}')
    I(f'v_lshl_add_u32 {v(V_RES[0])}, {v(x1)}, 5, {v(V_RES[0])}')
    I(f'v_xor_b32 {v(V_RES[1])}, 64, {v(V_RES[0])}')
    I(f's_lshl_b32 s{T3}, s{S_W}, 6')
    I(f's_add_u32 s{T3}, s{T3}, {L_STAT}')
    I(f'v_lshl_add_u32 {v(V_SW)}, {v(va_)}, 2, s{T3}')
    I(f'v_lshl_add_u32 {v(V_SR4)}, {v(vg)}, 4, s{T3}')
    I(f's_lshl_b32 s{S_W17}, s{S_W}, 17')
    I(f's_lshl_b32 s{T3}, s{S_NB}, 2')
    I(f's_add_u32 s{T3}, s{T3}, s{S_W}')
    I(f'v_lshl_add_u32 {v(V_WLD + 1)}, s{T3}, {10 if WIL else 15}, {v(V_L16)}')
    for r in f:
        P.free(r)


TS = [18, 10, 6, 2]
TB = [0, 16 * 18, 16 * 18 + 16 * 10, 16 * 18 + 16 * 10 + 32 * 6]


def rne(o, sh):
    q, r = o >> sh, o & ((1 << sh) - 1)
    if sh == 0:
        return q
    h = 1 << (sh - 1)
    return q + (1 if (r > h or (r == h and q & 1)) else 0)


def setup_kgen(va_, vg, x0, x1):
    kg = dict(w=P.alloc(), a0=P.alloc(), a1=P.alloc(), g=P.alloc(), t1=P.alloc(), t2=P.alloc(), t3=P.alloc(), rk=P.alloc())
    I(f's_lshr_b32 s{S_T0}, s{S_W}, 1')
    I(f's_and_b32 s{S_T1}, s{S_W}, 1')
    I(f's_mul_i32 s{S_T3}, s{S_W}, {KG_W}')
    I(f's_add_u32 s{S_T3}, s{S_T3}, {L_B}')
    I(f'v_lshl_add_u32 {v(kg["w"])}, {v(V_L)}, 2, s{S_T3}')
    I(f's_mul_i32 s{S_T3}, s{S_T0}, {2 * KG_W}')
    I(f's_add_u32 s{S_T3}, s{S_T3}, {L_B}')
    I(f'v_lshl_add_u32 {v(x1)}, {v(vg)}, 4, s{S_T3}')
    I(f'v_mul_u32_u24 {v(kg["a0"])}, {KG_ROW}, {v(va_)}')
    I(f'v_add_u32 {v(kg["a0"])}, {v(kg["a0"])}, {v(x1)}')
    I(f's_mul_i32 s{S_T4}, s{S_T1}, {16 * KG_ROW}')
    I(f'v_add_u32 {v(kg["g"])}, s{S_T4}, {v(kg["a0"])}')
    I(f'v_min_u32 {v(kg["a1"])}, 4, {v(va_)}')
    I(f'v_mul_u32_u24 {v(kg["a1"])}, {KG_ROW}, {v(kg["a1"])}')
    I(f'v_add_u32 {v(kg["a1"])}, {v(kg["a1"])}, {v(x1)}')
    I(f's_mul_i32 s{S_T3}, s{S_T0}, 4608')
    I(f's_add_u32 s{S_T3}, s{S_T3}, {L_H + 512}')
    vj, vw = P.alloc(), P.alloc()
    I(f's_lshl_b32 s{S_T4}, s{S_T1}, 2')
    I(f'v_and_b32 {v(x0)}, 3, {v(va_)}')
    I(f'v_lshl_add_u32 {v(vj)}, {v(x0)}, 3, s{S_T4}')
    I(f'v_lshrrev_b32 {v(x0)}, 2, {v(va_)}')
    I(f'v_add_u32 {v(vj)}, {v(vj)}, {v(x0)}')
    I(f'v_lshl_add_u32 {v(kg["t3"])}, {v(vg)}, 7, {v(vj)}')
    I(f'v_lshl_add_u32 {v(kg["t3"])}, {v(kg["t3"])}, 2, s{S_T3}')
    I(f'v_max_u32 {v(x1)}, 1, {v(vg)}')
    I(f'v_sub_u32 {v(x1)}, 6, {v(x1)}')
    I(f'v_lshlrev_b32 {v(kg["t1"])}, {v(x1)}, {v(vj)}')
    I(f'v_lshrrev_b32 {v(vw)}, 1, {v(vj)}')
    I(f'v_lshl_add_u32 {v(kg["t1"])}, {v(vw)}, 3, {v(kg["t1"])}')
    I(f's_mov_b32 s{S_T4}, {hex(0 | (1 << 8) | ((TB[1] // 4) << 16) | ((TB[2] // 4) << 24))}')
    I(f'v_lshlrev_b32 {v(x1)}, 3, {v(vg)}')
    I(f'v_bfe_u32 {v(x1)}, s{S_T4}, {v(x1)}, 8')
    I(f'v_lshl_add_u32 {v(x1)}, {v(x1)}, 4, s{S_T3}')
    I(f'v_add_u32 {v(kg["t1"])}, {v(kg["t1"])}, {v(x1)}')
    I(f'v_cmp_eq_u32 vcc, 3, {v(vg)}')
    I(f'v_mov_b32 {v(vj)}, {16 * TS[2] * 4}')
    I(f'v_cndmask_b32 {v(x1)}, 8, {v(vj)}, vcc')
    I(f'v_add_u32 {v(kg["t2"])}, {v(kg["t1"])}, {v(x1)}')
    gi = P.alloc(18, 2)
    vn, vs = vj, vw
    I(f'v_and_b32 {v(x0)}, 127, v0')
    I(f'v_sub_u32 {v(vn)}, 127, {v(x0)}')
    I(f'v_or_b32 {v(x1)}, 8, {v(vn)}')
    I(f'v_ffbh_u32 {v(x1)}, {v(x1)}')
    I(f'v_sub_u32 {v(vs)}, 28, {v(x1)}')
    I(f'v_lshlrev_b32 {v(vs)}, 3, {v(vs)}')
    first = [0, 16, 32, 64]
    cb = [TB[q] - first[q] * TS[q] for q in range(4)]
    assert all(c % 4 == 0 and 0 <= c // 4 < 256 for c in cb)
    I(f's_mov_b32 s{S_T4}, {hex(sum(TS[q] << (8 * q) for q in range(4)))}')
    I(f'v_bfe_u32 {v(x1)}, s{S_T4}, {v(vs)}, 8')
    I(f'v_mul_u32_u24 {v(x1)}, {v(x1)}, {v(vn)}')
    I(f's_mov_b32 s{S_T4}, {hex(sum((cb[q] // 4) << (8 * q) for q in range(4)))}')
    I(f'v_bfe_u32 {v(gi + 17)}, s{S_T4}, {v(vs)}, 8')
    I(f'v_lshl_add_u32 {v(x1)}, {v(gi + 17)}, 2, {v(x1)}')
    I(f'v_lshl_add_u32 {v(gi + 15)}, {v(x1)}, 2, s{S_T3}')
    for u in range(15):
        o = 15 - u
        dl = []
        for q in range(4):
            d = rne(o, q)
            dl.append(4 * (d if d < (16 >> q) else TS[q]))
        I(f's_mov_b32 s{S_T4}, {hex(sum(dl[q] << (8 * q) for q in range(4)))}')
        I(f'v_bfe_u32 {v(x1)}, s{S_T4}, {v(vs)}, 8')
        I(f'v_add_u32 {v(gi + u)}, {v(x1)}, {v(gi + 15)}')
    I(f'v_cmp_ge_u32 vcc, 16, {v(vn)}')
    I(f'v_cndmask_b32 {v(x1)}, 0, 12, vcc')
    I(f'v_sub_u32 {v(gi + 16)}, {v(gi + 15)}, {v(x1)}')
    P.free(vj), P.free(vw)
    I(f's_mul_i32 s{S_T4}, s{S_T0}, 8320')
    I(f's_add_u32 s{S_T4}, s{S_T4}, {L_RK}')
    I(f'v_lshl_add_u32 {v(kg["rk"])}, {v(x0)}, 5, s{S_T4}')
    return kg, gi


def prologue():
    I('s_cmp_ge_u32 s2, 256')
    I('s_cbranch_scc1 L_end')
    I('s_load_dwordx16 s[4:19], s[0:1], 0')
    I('s_load_dwordx8 s[20:27], s[0:1], 64')
    I('s_load_dwordx4 s[28:31], s[0:1], 96')
    I('s_load_dwordx2 s[32:33], s[0:1], 112')
    stamp('entry')
    pf = P.alloc(4)
    I(f's_getpc_b64 s[{S_T3}:{S_T4}]')
    A.label('L_pc')
    I(f's_lshr_b32 s{S_T1}, s2, 3')
    I(f'v_lshrrev_b32 {v(pf)}, 4, v0')
    I(f'v_lshl_add_u32 {v(pf)}, {v(pf)}, 5, s{S_T1}')
    I(f'v_lshlrev_b32 {v(pf)}, 7, {v(pf)}')
    I(f'v_min_u32 {v(pf)}, L_end-L_pc, {v(pf)}')
    I(f'global_load_dword {v(pf)}, {v(pf)}, s[{S_T3}:{S_T4}]')
    I(f'v_lshrrev_b32 {v(pf + 1)}, 6, v0')
    I(f'v_and_b32 {v(V_L)}, 63, v0')
    I(f'v_readfirstlane_b32 s{S_W}, {v(pf + 1)}')
    I(f's_and_b32 s{S_T0}, s2, 7')
    I(f's_and_b32 s{S_T2}, s{S_T1}, 3')
    I(f's_lshl_b32 s{S_RB}, s{S_T0}, 2')
    I(f's_add_u32 s{S_RB}, s{S_RB}, s{S_T2}')
    I(f's_lshr_b32 s{S_CG}, s{S_T1}, 2')
    I(f's_lshr_b32 s{S_NB}, s{S_CG}, 1')
    I(f's_and_b32 s{S_TH}, s{S_CG}, 1')
    I(f'v_lshlrev_b32 {v(V_L16)}, 4, {v(V_L)}')
    va_, vg, vhi, x0, x1 = f = lane_fields()
    I(f's_and_b32 s{S_T3}, s{S_T1}, 7')
    I(f's_lshl_b32 s{S_T3}, s{S_T3}, 7')
    I(f'v_lshl_add_u32 {v(V_ARR)}, {v(V_L)}, 10, s{S_T3}')
    I(f's_lshl_b32 s{S_T3}, s{S_T1}, 10')
    I(f'v_lshl_add_u32 {v(V_POLL)}, {v(V_L)}, 7, s{S_T3}')
    vsr, vsa = P.alloc(), P.alloc()
    I(f's_lshl_b32 s{S_T0}, s{S_RB}, 6')
    I(f's_lshl_b32 s{S_T1}, s{S_CG}, 3')
    I(f's_add_u32 s{S_T1}, s{S_T1}, s{S_T0}')
    I(f's_lshl_b32 s{S_T3}, s{S_W}, 1')
    I(f's_add_u32 s{S_T2}, s{S_T1}, s{S_T3}')
    I(f's_lshl_b32 s{S_T1}, s{S_T2}, 10')
    I(f'v_add_u32 {v(vsr)}, s{S_T1}, {v(V_L16)}')
    I(f'v_and_b32 {v(vsa)}, 1, {v(vg)}')
    I(f'v_add_lshl_u32 {v(vsa)}, {v(vsa)}, s{S_T2}, 2')
    I(f'v_lshl_add_u32 {v(vsa)}, {v(vhi)}, 13, {v(vsa)}')
    I(f's_lshl_b32 s{S_T1}, s{S_TH}, 5')
    I(f's_add_u32 s{S_T0}, s{S_T0}, s{S_T1}')
    I(f'v_and_b32 {v(x0)}, 31, {v(V_L)}')
    I(f'v_add_u32 {v(x0)}, s{S_T0}, {v(x0)}')
    I(f's_lshl_b32 s{S_T0}, s{S_NB}, 8')
    I(f's_lshl_b32 s{S_T1}, s{S_W}, 6')
    I(f's_add_u32 s{S_T0}, s{S_T0}, s{S_T1}')
    I(f'v_lshl_add_u32 {v(V_TILE)}, {v(x0)}, 10, s{S_T0}')
    I(f'v_lshl_add_u32 {v(V_TILE)}, {v(vhi)}, 5, {v(V_TILE)}')
    I(f's_lshl_b32 s{S_T0}, s{S_T0}, 11')
    I(f'v_lshl_add_u32 {v(V_X2ST)}, {v(x0)}, 2, s{S_T0}')
    I(f'v_lshl_add_u32 {v(V_X2ST)}, {v(vhi)}, 16, {v(V_X2ST)}')
    vtd, vtr = P.alloc(), P.alloc()
    I(f'v_readfirstlane_b32 s{S_T0}, {v(V_TILE)}')
    I(f'v_lshrrev_b32 {v(x0)}, 2, {v(V_L)}')
    I(f'v_xor_b32 {v(x1)}, {v(V_L)}, {v(vg)}')
    I(f'v_and_b32 {v(x1)}, 3, {v(x1)}')
    I(f'v_lshl_add_u32 {v(vtd)}, {v(x0)}, 10, s{S_T0}')
    I(f'v_lshl_add_u32 {v(vtd)}, {v(x1)}, 4, {v(vtd)}')
    I(f'v_add_u32 {v(vtr)}, {16384 - 1024}, {v(vtd)}')
    I(f's_lshl_b32 m0, s{S_W}, 11')
    vpo = P.alloc()
    I(f's_lshl_b32 s{S_T1}, s2, 9')
    I(f'v_lshl_add_u32 {v(vpo)}, v0, 1, s{S_T1}')
    sinit = S_SPIN
    I(f's_lshl_b32 s{S_T2}, s2, 2')
    I(f's_add_u32 s{sinit}, s{S_T2}, s{S_W}')
    vws = P.alloc(2)
    SA, SB, SC = S_MASK, S_MASK + 1, S_E6
    I(f's_cmp_ge_u32 s2, 192')
    I('s_cbranch_scc1 L_wo_src')
    I(f's_bfe_u32 s{SA}, s2, 0x30003')
    I(f's_lshl_b32 s{SA}, s{SA}, 1')
    I(f's_lshr_b32 s{SB}, s{S_W}, 1')
    I(f's_add_u32 s{SA}, s{SA}, s{SB}')
    I(f's_lshr_b32 s{SB}, s2, 6')
    I(f's_lshl_b32 s{SC}, s{SB}, 4')
    I(f's_add_u32 s{SC}, s{SC}, s{SA}')
    I(f's_lshl_b32 s{SC}, s{SC}, {15 if WIL else 10}')
    I(f's_mul_i32 s{SA}, s{SA}, {32 * 3072}')
    I(f's_lshl_b32 s{SB}, s{SB}, 10')
    I(f's_add_u32 s{SA}, s{SA}, s{SB}')
    I(f's_and_b32 s{SB}, s2, 7')
    I(f's_lshl_b32 s{SB}, s{SB}, 1')
    I(f's_and_b32 s{S_T1}, s{S_W}, 1')
    I(f's_add_u32 s{SB}, s{SB}, s{S_T1}')
    I(f's_mul_i32 s{S_T1}, s{SB}, {2048 if WIL else 2 * 49152}')
    I(f's_add_u32 s{SC}, s{SC}, s{S_T1}')
    I(f's_add_u32 s{SC}, s{SC}, {hex(WS_WT)}')
    I(f's_add_u32 s{SC + 1}, s{SC}, {1024 if WIL else 49152}')
    I(f's_lshl_b32 s{SB}, s{SB}, 6')
    I(f's_add_u32 s{SA}, s{SA}, s{SB}')
    I(f's_movk_i32 s{SB}, 3072')
    I('s_branch L_w_src')
    A.label('L_wo_src')
    I(f's_bfe_u32 s{SA}, s2, 0x40002')
    I(f's_and_b32 s{SB}, s2, 3')
    I(f's_lshl_b32 s{SB}, s{SB}, 2')
    I(f's_add_u32 s{SB}, s{SB}, s{S_W}')
    if WIL:
        I(f's_lshl_b32 s{SC}, s{SA}, 5')
        I(f's_add_u32 s{SC}, s{SC}, s{SB}')
        I(f's_lshl_b32 s{SC}, s{SC}, 10')
    else:
        I(f's_lshl_b32 s{SC}, s{SB}, 4')
        I(f's_add_u32 s{SC}, s{SC}, s{SA}')
        I(f's_lshl_b32 s{SC}, s{SC}, 11')
    I(f's_add_u32 s{SC}, s{SC}, {hex(WS_WTO)}')
    I(f's_add_u32 s{SC + 1}, s{SC}, {16384 if WIL else 1024}')
    I(f's_lshl_b32 s{SA}, s{SA}, 15')
    I(f's_lshl_b32 s{SB}, s{SB}, 6')
    I(f's_add_u32 s{SA}, s{SA}, s{SB}')
    I(f's_movk_i32 s{SB}, 1024')
    A.label('L_w_src')
    I(f'v_mul_u32_u24 {v(vws)}, s{SB}, {v(x0)}')
    I(f'v_and_b32 {v(x1)}, 3, {v(V_L)}')
    I(f'v_lshl_add_u32 {v(x1)}, {v(x1)}, 4, s{SA}')
    I(f'v_add_u32 {v(vws)}, {v(vws)}, {v(x1)}')
    I(f's_lshl_b32 s{SB}, s{SB}, 4')
    I(f's_sub_u32 s{SB}, s{SB}, 1024')
    I(f'v_add_u32 {v(vws + 1)}, s{SB}, {v(vws)}')
    zero4 = P.alloc(4, 2)
    for i in range(4):
        I(f'v_mov_b32 {v(zero4 + i)}, 0')
    for r, n in ((R_WS, WS_SIZE),):
        I(f's_mov_b32 s{r + 2}, {hex(n)}')
        I(f's_mov_b32 s{r + 3}, 0x20000')
    xs = P.alloc(8, 2)
    xt = P.alloc(8, 2)
    par = P.alloc(8, 2)
    vtc = par + 7
    I(f's_cmp_eq_u32 s{S_W}, 0')
    I(f's_cselect_b32 s{S_T1}, 1, 0x100')
    I(f'v_lshlrev_b32_e64 {v(vtc)}, 7, s{S_T1}')
    A._wait(lg=0)
    stamp('a_karg')
    I(f's_cmp_lg_u32 s{sinit}, 0')
    I('s_cbranch_scc1 L_noinit')
    I(f'v_lshlrev_b32 {v(x0)}, 9, {v(V_L)}')
    A.cond = True
    for j in range(4):
        I(f'global_store_dword {v(x0)}, {v(zero4)}, {s(S_WS, 2)} offset:{128 * j} sc1')
    A.cond = False
    A.label('L_noinit')
    nld = 0

    def ld_x(j):
        if j < 2:
            I(f'global_load_dwordx4 {v(xs + 4 * j, 4)}, {v(vsr)}, {s(S_U, 2)} offset:{1024 * j}')
        else:
            I(f'global_load_lds_dwordx4 {v(vtd if j == 2 else vtr)}, {s(S_U, 2)} offset:{1024 * (j - 2)}', tag='xt')

    def ld_par():
        for i, sp in enumerate((S_ARE, S_AIM, S_BRE, S_BIM, S_CRE, S_CIM)):
            I(f'global_load_ushort {v(par + i)}, {v(vpo)}, {s(sp, 2)}')

    def touch():
        I(f's_cmp_eq_u32 s{S_W}, 0')
        I(f's_cselect_b64 s[{S_T3}:{S_T4}], {s(S_DBG, 2)}, {s(S_WS, 2)}')
        I(f'global_load_dword {v(pf + 3)}, {v(vtc)}, s[{S_T3}:{S_T4}]')

    def ld_w():
        I(f's_cmp_ge_u32 s2, 192')
        I(f's_cselect_b64 s[{R_WQ}:{R_WQ + 1}], {s(S_WO, 2)}, {s(S_WQKV, 2)}')
        I('s_add_u32 m0, m0, 8192')
        for j in range(2):
            I(f'global_load_lds_dwordx4 {v(vws + j)}, s[{R_WQ}:{R_WQ + 1}] offset:{1024 * j}', tag='wt')
    nld = 13
    if ORDER == 1:
        ld_x(0), touch(), ld_par(), ld_x(1), ld_x(2), ld_x(3), ld_w()
    elif ORDER == 2:
        touch(), ld_x(0), ld_x(1), ld_x(2), ld_x(3), ld_w(), ld_par()
    elif ORDER == 3:
        touch(), ld_x(0), ld_x(1), ld_x(2), ld_x(3), ld_par(), ld_w()
    I(f's_load_dword s{S_D}, {s(S_LDT, 2)}, s{S_T2}')
    I(f's_load_dword s{S_D + 1}, {s(S_DSK, 2)}, s{S_T2}')
    for r, p in ((R_WS, S_WS),):
        I(f's_mov_b64 s[{r}:{r + 1}], s[{p}:{p + 1}]')
    stamp('a_ldiss')
    P.free(vsr), P.free(vpo), P.free(vtd)
    I(f'v_and_b32 {v(x0)}, 31, {v(V_L)}')
    I(f'v_lshlrev_b32 {v(vtr)}, 6, {v(x0)}')
    I(f'v_lshl_add_u32 {v(vtr)}, s{S_W}, 11, {v(vtr)}')
    I(f'v_bfe_u32 {v(x0)}, {v(V_L)}, 2, 2')
    I(f'v_lshlrev_b32 {v(x1)}, 1, {v(vhi)}')
    I(f'v_xor_b32 {v(x0)}, {v(x0)}, {v(x1)}')
    I(f'v_lshl_add_u32 {v(vtr)}, {v(x0)}, 4, {v(vtr)}')
    kg, gi = setup_kgen(va_, vg, x0, x1)
    I(f's_cmp_lg_u32 s{sinit}, 0')
    I('s_cbranch_scc1 L_noflag')
    I(f'v_mov_b32 {v(x1)}, 1')
    A._wait(vm=nld)
    A.cond = True
    I(f'global_store_dword {v(zero4)}, {v(x1)}, {s(S_DBG, 2)} sc1')
    A.cond = False
    A.label('L_noflag')
    I(f'v_lshl_add_u32 {v(x1)}, {v(x0)}, 2, s{S_T3}')
    I(f'v_subrev_u32 {v(x1)}, 512, {v(x1)}')
    I(f'ds_write_b32 {v(x1)}, {v(zero4)}')
    I(f's_mul_i32 s{S_T3}, s{S_W}, 4160')
    I(f's_add_u32 s{S_T3}, s{S_T3}, {L_RK + 4096}')
    I(f'v_lshl_add_u32 {v(x1)}, {v(va_)}, 2, s{S_T3}')
    I(f'ds_write_b32 {v(x1)}, {v(zero4)}')
    stamp('a_kgset')
    I(f's_lshl_b32 s{S_T0}, s{sinit}, 7')
    I(f's_add_u32 s{S_T0}, s{S_T0}, {hex(WS_ZERO)}')
    I('s_mov_b64 exec, 0xff')
    I(f'buffer_store_dwordx4 {v(zero4, 4)}, {v(V_L16)}, {WS}, s{S_T0} offen sc1')
    I('s_mov_b64 exec, -1')
    setup_conv(va_, vg, x0, x1)
    I(f's_lshl_b32 s{S_T3}, s{S_W}, 11')
    I(f's_add_u32 s{S_T3}, s{S_T3}, 8192')
    I(f'v_and_b32 {v(x0)}, 3, {v(V_L)}')
    I(f'v_lshl_add_u32 {v(vws)}, {v(V_L)}, 4, s{S_T3}')
    I(f'v_lshlrev_b32 {v(x0)}, 3, {v(x0)}')
    I(f'v_sub_u32 {v(vws)}, {v(vws)}, {v(x0)}')
    I(f'v_lshrrev_b32 {v(x0)}, 2, {v(va_)}')
    I(f'v_lshl_add_u32 {v(vws + 1)}, {v(x0)}, 8, s{S_T3}')
    I(f'v_lshl_add_u32 {v(vws + 1)}, {v(vhi)}, 6, {v(vws + 1)}')
    I(f'v_and_b32 {v(x0)}, 1, {v(V_L)}')
    I(f'v_lshl_add_u32 {v(vws + 1)}, {v(x0)}, 5, {v(vws + 1)}')
    I(f'v_and_b32 {v(x0)}, 1, {v(vg)}')
    I(f'v_lshl_add_u32 {v(vws + 1)}, {v(x0)}, 4, {v(vws + 1)}')
    I(f'v_bfe_u32 {v(x0)}, {v(V_L)}, 1, 1')
    I(f'v_lshl_add_u32 {v(vws + 1)}, {v(x0)}, 3, {v(vws + 1)}')
    I(f's_mov_b32 s{S_ONES}, 0x3f803f80')
    I(f's_mov_b32 s{S_EXP}, {f32(math.log2(math.e))}')
    for i in range(4):
        I(f'v_mov_b32 {v(V_ONES + i)}, s{S_ONES}')
    I(f'v_xor_b32 {v(x1)}, 16, {v(vtr)}')
    if '--latepage' not in sys.argv:
        A.raw('#page')
        A.raw('#seg s0')
        A.raw('#touch s0')
    stamp('a_setup')
    st = P.alloc(4, 2)
    for i in range(4):
        for r in range(2):
            c = '0' if i == 0 else v(st + r)
            I(f'v_dot2_f32_bf16 {v(st + r)}, {v(xs + 4 * r + i)}, s{S_ONES}, {c}')
            c = '0' if i == 0 else v(st + 2 + r)
            I(f'v_dot2_f32_bf16 {v(st + 2 + r)}, {v(xs + 4 * r + i)}, {v(xs + 4 * r + i)}, {c}')
    stamp('a_xs')
    A.wait_vm('xt')
    I(f'ds_read_b128 {v(xt, 4)}, {v(vtr)}')
    I(f'ds_read_b128 {v(xt + 4, 4)}, {v(x1)}')
    I(f's_mov_b32 s{S_T0}, {hex(WS_ST[0])}')
    I(f'v_permlane32_swap_b32 {v(st)}, {v(st + 2)}')
    I(f'v_permlane32_swap_b32 {v(st + 1)}, {v(st + 3)}')
    I(f'v_add_f32 {v(st)}, {v(st)}, {v(st + 2)}')
    I(f'v_add_f32 {v(st + 1)}, {v(st + 1)}, {v(st + 3)}')
    I(f'v_permlane16_swap_b32 {v(st)}, {v(st + 1)}')
    I(f'v_add_f32 {v(st)}, {v(st)}, {v(st + 1)}')
    for sh in (8, 4, 2, 1):
        I(f'v_add_f32_dpp {v(st)}, {v(st)}, {v(st)} row_ror:{sh} row_mask:0xf bank_mask:0xf')
    I('s_mov_b32 exec_lo, 0x00010001')
    I('s_mov_b32 exec_hi, 0x00010001')
    I(f'buffer_store_dword {v(st)}, {v(vsa)}, {WS}, s{S_T0} offen sc1')
    I('s_mov_b64 exec, -1')
    x2store(0, xt)

    def wtrans():
        A.wait_vm('wt')
        A.wait_lg()
        I(f's_cmp_ge_u32 s2, 192')
        I('s_cbranch_scc1 L_wo_rd')
        for f_ in range(2):
            for z in range(2):
                A._emit(Ins(f'ds_read_b64_tr_b16 {v(xs + 4 * f_ + 2 * z, 2)}, {v(vws)} offset:{1024 * z + 32 * f_}'))
        I('s_branch L_w_rd')
        A.label('L_wo_rd')
        for f_ in range(2):
            for z in range(2):
                I(f'ds_read_b64_tr_b16 {v(xs + 4 * f_ + 2 * z, 2)}, {v(vws + 1)} offset:{1024 * f_ + 128 * z}')
        A.label('L_w_rd')
        for f_ in range(2):
            I(f'buffer_store_dwordx4 {v(xs + 4 * f_, 4)}, {v(V_L16)}, {WS}, s{SC + f_} offen sc1')
    wtrans()
    flag = pf + 3
    I(f'global_load_dword {v(flag)}, {v(zero4)}, {s(S_DBG, 2)} sc1')
    stamp('a_stored')
    if '--latepage' in sys.argv:
        A.raw('#page')
        A.raw('#seg s0')
        A.raw('#touch s0')

    if '--seq' in sys.argv:
        for nm, n in (('par', 13), ('wpf', 11), ('zero', 10), ('st', 9), ('x2', 1), ('flag', 0)):
            A._wait(vm=n)
            stamp('b_' + nm)

    def arrive1():
        stamp('b_pre')
        A.wait_vm()
        stamp('a_drained')
        global_arrive(first=(flag, zero4))
        stamp('arr1')
    hooks = {KG_ARR: [arrive1]}
    kgen(par, kg, hooks)
    P.free(st, 4), P.free(xs, 8), P.free(xt, 8), P.free(zero4, 4), P.free(pf, 4), P.free(vws, 2), P.free(vsa), P.free(vtr)
    for r in f:
        P.free(r)
    poll_start(1)
    A.barrier()
    kgen2(kg)
    return kg, gi


def x2store(layer, d):
    I(f's_mov_b32 s{S_T0}, {hex(WS_X2[layer])}')
    for i in range(8):
        I(f'buffer_store_dword {v(d + i)}, {v(V_X2ST)}, {WS}, s{S_T0} offen sc1')
        if i < 7:
            I(f's_add_u32 s{S_T0}, s{S_T0}, 8192')


def kgen(par, kg, hooks):
    LOG2E = math.log2(math.e)
    A.wait_lg()
    I(f's_lshl_b32 s{S_T0}, s{S_D}, 16')
    I(f's_and_b32 s{S_T1}, s{S_D}, 0xffff0000')
    I(f's_lshl_b32 s{S_D}, s{S_D + 1}, 16')
    I(f's_and_b32 s{S_D + 1}, s{S_D + 1}, 0xffff0000')
    I(f's_cmp_ge_u32 s{S_W}, 2')
    I(f's_cselect_b32 s{S_T0}, s{S_T1}, s{S_T0}')
    dt = par + 6
    I(f'v_mov_b32 {v(dt)}, s{S_T0}')
    I(f'v_mul_f32 {v(dt)}, s{S_EXP}, {v(dt)}')
    I(f'v_exp_f32 {v(dt)}, {v(dt)}')
    for i in range(6):
        I(f'v_lshlrev_b32 {v(par + i)}, 16, {v(par + i)}')
    I(f'v_cvt_pk_bf16_f32 {v(dt)}, {v(dt)}, {v(dt)}')
    I(f'v_and_b32 {v(dt)}, 0xffff0000, {v(dt)}')
    z, Bc, Cc = par, par + 2, par + 4
    pk('mul', v(z, 2), (v(z, 2), 'p'), bc(dt))
    pk('mul', v(Bc, 2), (v(Bc, 2), 'p'), bc(dt))
    tmp = P.alloc(2, 2)
    CB = P.alloc(2, 2)
    cmul(CB, Cc, Bc, tmp)
    E = {}
    for rho in (1, 8, 64, 256):
        e = P.alloc(2, 2)
        E[rho] = e
        I(f'v_mul_f32 {v(tmp)}, {f32(rho * LOG2E)}, {v(z)}')
        I(f'v_mul_f32 {v(tmp + 1)}, {f32(rho / (2 * math.pi))}, {v(z + 1)}')
        I(f'v_exp_f32 {v(tmp)}, {v(tmp)}')
        I(f'v_fract_f32 {v(tmp + 1)}, {v(tmp + 1)}')
        I(f'v_cos_f32 {v(e)}, {v(tmp + 1)}')
        I(f'v_sin_f32 {v(e + 1)}, {v(tmp + 1)}')
        pk('mul', v(e, 2), (v(e, 2), 'p'), bc(tmp))
    pkr = [P.alloc() for _ in range(2)]
    cnt = [0]

    def put(r, neg):
        row = cnt[0]
        cnt[0] += 1
        if r is None:
            I(f'v_mov_b32 {v(pkr[row & 1])}, 0x3f80')
        else:
            I(f'v_cvt_pk_bf16_f32 {v(pkr[row & 1])}, {v(r)}, {"-" if neg else ""}{v(r + 1)}')
        if row & 1:
            o0 = (KG_ROW // 4) * (row & 2)
            I(f'ds_write2_b32 {v(kg["w"])}, {v(pkr[0])}, {v(pkr[1])} offset0:{o0} offset1:{o0 + KG_ROW // 4}')
            if row & 2:
                I(f'v_add_u32 {v(kg["w"])}, {4 * KG_ROW}, {v(kg["w"])}')
        elif row == 52:
            I(f'ds_write_b32 {v(kg["w"])}, {v(pkr[0])}')
        for th in hooks.pop(cnt[0], []):
            th()
    for rho, x, y in ((128, 64, 64), (192, 128, 64), (2, 1, 1), (4, 2, 2)):
        E[rho] = P.alloc(2, 2)
        cmul(E[rho], E[x], E[y], tmp)
    cur = P.alloc(2, 2)
    o = P.alloc(2, 2)
    put(None, False)
    for m in (1, 2, 3):
        put(E[64 * m], False)
    for j in range(1, 8):
        if j == 1:
            g = E[8]
        elif j == 2:
            cmul(cur, E[8], E[8], tmp)
            g = cur
        else:
            cmul(cur, cur, E[8], tmp)
        put(g, False)
        for m in (1, 2, 3):
            cmul(o, g, E[64 * m], tmp)
            put(o, False)
    put(CB, True)
    for j in range(1, 8):
        cmul(cur, CB if j == 1 else cur, E[1], tmp)
        put(cur, True)
    U = CB
    cmul(U, U, E[256], tmp)
    put(U, True)
    for j in range(1, 4):
        cmul(cur, U if j == 1 else cur, E[2], tmp)
        put(cur, True)
    for j in range(2):
        cmul(U, U, E[256], tmp)
        put(U, True)
        cmul(cur, U, E[4], tmp)
        put(cur, True)
    for j in range(5):
        cmul(U, U, E[256], tmp)
        put(U, True)
    for r in list(E.values()) + [tmp, CB, cur, o]:
        P.free(r, 2)
    P.free(pkr[0]), P.free(pkr[1])
    P.free(par, 8)
    assert not hooks
    stamp('a_kg1')


def kgen2(kg):
    d0, d1 = P.alloc(4, 2), P.alloc(4, 2)
    mf = []
    for st in range(8):
        for tl, d in ((0, d0), (1, d1)):
            def em(reg, st=st, tl=tl, d=d):
                c = '0' if st == 0 else v(d, 4)
                I(f'v_mfma_f32_16x16x32_bf16 {v(d, 4)}, {v(reg[("a", tl, st)], 4)}, {v(reg[("g", st)], 4)}, {c}')
            mf.append((em, [('a', tl, st), ('g', st)]))

    def loader(k, r):
        ko = KG_W * (k[-1] >> 2) + 64 * (k[-1] & 3)
        if k[0] == 'g':
            return [f'ds_read_b128 {v(r, 4)}, {v(kg["g"])} offset:{ko}']
        base = kg['a0'] if k[1] == 0 else kg['a1']
        return [f'ds_read_b128 {v(r, 4)}, {v(base)} offset:{(32 + 16 * k[1]) * KG_ROW + ko}']
    stream(mf, loader, 15, 12, rate=2, burst=15)
    I(f'ds_write_b64 {v(kg["t1"])}, {v(d0, 2)}')
    I(f'ds_write_b64 {v(kg["t2"])}, {v(d0 + 2, 2)}')
    I(f'v_add_u32 {v(kg["t3"])}, {4 * TB[3]}, {v(kg["t3"])}')
    I('s_mov_b32 exec_hi, 0')
    for r in (0, 2):
        I(f'ds_write2_b32 {v(kg["t3"])}, {v(d1 + r)}, {v(d1 + r + 1)} offset0:{32 * r} offset1:{32 * r + 32}')
    I('s_mov_b64 exec, -1')
    P.free(d0, 4), P.free(d1, 4)
    stamp('a_kg2')


def kgen3(kg, gi):
    for u in range(17):
        I(f'ds_read_b32 {v(gi + u)}, {v(gi + u)}')
    c = P.alloc(16, 2)
    for cp in range(2):
        for m in range(8):
            I(f'v_cvt_pk_bf16_f32 {v(c + 8 * cp + m)}, {v(gi + 2 * m + cp)}, {v(gi + 2 * m + cp + 1)}')
        for hq in range(2):
            I(f'ds_write_b128 {v(kg["rk"])}, {v(c + 8 * cp + 4 * hq, 4)} offset:{4160 * cp + 16 * hq}')
    A.barrier(lg=False)
    P.free(c, 16), P.free(gi, 18)
    for r in kg.values():
        P.free(r)
    stamp('a_kgen')


def conv(layer, kg, gi, wl):
    xd = P.alloc(8, 2)
    sm = P.alloc(8, 2)
    sq = P.alloc(8, 2)
    for i in range(2):
        I(f'buffer_load_dwordx4 {v(sm + 4 * i, 4)}, {v(V_CVL)}, {WS}, s{S_T1} offen offset:{1024 * i} sc1')
        I(f'buffer_load_dwordx4 {v(sq + 4 * i, 4)}, {v(V_CVL)}, {WS}, s{S_T2} offen offset:{1024 * i} sc1')
        I(f'buffer_load_dwordx4 {v(xd + 4 * i, 4)}, {v(V_CVL)}, {WS}, s{S_T3} offen offset:{1024 * i} sc1')
        if i == 0 and '--nocvb' not in sys.argv:
            A.barrier()
    stamp(f'conv{layer}_iss')
    if layer == 0:
        kgen3(kg, gi)
    base = P.alloc(16, 2)
    hh = P.alloc(4, 2)
    hp = P.alloc(4, 2)
    LN = s(S_LN, 2)
    for i in range(2):
        m, q, x = sm + 4 * i, sq + 4 * i, xd + 4 * i
        for j in (0, 2):
            pk('mul', v(m + j, 2), (v(m + j, 2), 'p'), (LN, 'l'))
        for j in (0, 2):
            pk('fma', v(q + j, 2), (v(q + j, 2), 'p'), (LN, 'l'), (LN, 'h'))
        for j in (0, 2):
            pk('fma', v(q + j, 2), (v(m + j, 2), 'p', 'b'), (v(m + j, 2), 'p'), (v(q + j, 2), 'p'))
        for j in range(4):
            I(f'v_max_f32 {v(q + j)}, s{S_LN + 1}, {v(q + j)}')
        for j in range(4):
            I(f'v_rsq_f32 {v(q + j)}, {v(q + j)}')
        for c in range(2):
            b = base + 8 * i + 4 * c
            for j in range(4):
                if c == 0:
                    I(f'v_lshlrev_b32 {v(b + j)}, 16, {v(x + j)}')
                else:
                    I(f'v_and_b32 {v(b + j)}, 0xffff0000, {v(x + j)}')
            for j in (0, 2):
                pk('add', v(hh + j, 2), (v(b + j, 2), 'p'), (v(m + j, 2), 'p', 'b'))
            for j in (0, 2):
                pk('mul', v(hh + j, 2), (v(hh + j, 2), 'p'), (v(q + j, 2), 'p'))
            for j in (0, 2):
                I(f'v_cvt_pk_bf16_f32 {v(hp + 2 * c + j // 2)}, {v(hh + j)}, {v(hh + j + 1)}')
            I(f'ds_write_b64 {v(V_HW)}, {v(hp + 2 * c, 2)} offset:{4608 * c + 512 * i}')
            for j in (0, 2):
                pk('fma', v(b + j, 2), (v(hh + j, 2), 'p'), (s(S_D, 2), 'h' if c else 'l'), (v(b + j, 2), 'p'))
    P.free(xd, 8), P.free(sm, 8), P.free(sq, 8), P.free(hh, 4), P.free(hp, 4)
    A.barrier()
    stamp(f'conv{layer}_h')
    acc = P.alloc(32, 2)
    mf = []
    seen = set()
    fin = {}
    for cc in range(4):
        if cc < 3:
            seq = [(p, n) for p in range(7, -1, -1) for n in range(p, 8)]
        else:
            seq = [(p, n) for n in range(8) for p in range(n + 1)]
        for (p, n) in seq:
            def em(reg, cc=cc, p=p, n=n, fst=(n not in seen)):
                d = v(acc + 4 * n, 4)
                I(f'v_mfma_f32_16x16x32_bf16 {d}, {v(reg[("A", cc, p)], 4)}, {v(reg[("B", cc, n - p)], 4)}, {"0" if fst else d}')
            seen.add(n)
            mf.append((em, [('A', cc, p), ('B', cc, n - p)]))
            fin[n] = len(mf) - 1

    def loader(k, r):
        _, cc, x = k
        if k[0] == 'B':
            return [f'ds_read_b128 {v(r, 4)}, {v(V_CB)} offset:{512 * x + 64 * (3 - cc)}']
        o = 128 * (1 - (x & 1)) + 16 * (3 - cc)
        return [f'ds_read2_b32 {v(r, 2)}, {v(V_CA[x >> 1])} offset0:{o} offset1:{o + 1}',
                f'ds_read2_b32 {v(r + 2, 2)}, {v(V_CA[x >> 1])} offset0:{o + 2} offset1:{o + 3}']
    fill = {}
    for n in range(8):
        at = min(fin[n] + 7, len(mf) - 1)
        fill.setdefault(at, []).append(lambda reg, n=n: I(f'ds_write_b128 {v(V_EXW)}, {v(acc + 4 * n, 4)} offset:{1280 * n}'))
    if wl:
        spread(fill, wl, 3, W_CSTEP)
    stream(mf, loader, 21, 40, fill=fill, burst=12)
    P.free(acc, 32)
    A.barrier()
    stamp(f'conv{layer}_mm')
    ex = P.alloc(32, 2)
    for i in range(2):
        for u in range(4):
            I(f'ds_read_b128 {v(ex + 16 * i + 4 * u, 4)}, {v(V_EXR)} offset:{10240 * u + 1280 * i}')
    I(f's_mov_b32 s{S_T0}, {hex(WS_XT[layer])}')
    I(f's_mov_b32 s{S_T1}, {hex(WS_XT[layer] + 262144)}')
    for i in range(2):
        for c in range(2):
            b = base + 8 * i + 4 * c
            e = ex + 16 * i + 8 * c
            for j in (0, 2):
                pk('add', v(b + j, 2), (v(b + j, 2), 'p'), (v(e + j, 2), 'p'))
            for j in (0, 2):
                pk('add', v(b + j, 2), (v(b + j, 2), 'p'), (v(e + 4 + j, 2), 'p'))
            for j in (0, 2):
                I(f'v_cvt_pk_bf16_f32 {v(e + j // 2)}, {v(b + j)}, {v(b + j + 1)}')
            I(f'buffer_store_dwordx2 {v(e, 2)}, {v(V_XTST)}, {WS}, s{S_T0 + i} offen offset:{128 * c} sc1', tag='xtst')
    P.free(ex, 32), P.free(base, 16)
    stamp(f'conv{layer}_st')


def phi(x, tmp):
    EX = s(S_EXP, 2)
    for j in (0, 2):
        pk('fma', v(tmp + j, 2), (v(x + j, 2), 'p'), (EX, 'l'), (EX, 'h'))
    for j in range(4):
        I(f'v_exp_f32_e64 {v(tmp + j)}, {v(tmp + j)} clamp')
    for j in range(4):
        I(f'v_max_f32 {v(x + j)}, s{S_E6}, {v(x + j)}')
    for j in (0, 2):
        pk('add', v(x + j, 2), (v(x + j, 2), 'p'), (v(tmp + j, 2), 'p'))


DOTSTATS = '--dot' in sys.argv


def p3(layer, wl1, wl2):
    for ck in range(4):
        if ck == 0:
            I(f's_lshl_b32 m0, s{S_W}, 12')
        else:
            I('s_add_u32 m0, m0, 16384')
        I(f's_mov_b32 s{S_T0}, {hex(WS_XT[layer] + ck * 16384)}')
        for j in range(4):
            I(f'buffer_load_dwordx4 {v(V_XTLD)}, {WS}, s{S_T0} offen offset:{1024 * j} sc1 lds', tag=f'xt{ck}')
    acc = P.alloc(32, 4)
    ss = P.alloc(8, 4)

    def loader(k, r):
        st, i = k
        return [f'ds_read_b64_tr_b16 {v(r + 2 * z, 2)}, {v(V_XT[i])} offset:{4096 * st + 2048 * z}' for z in range(2)]
    mf = []
    fill = {}
    for st in range(16):
        for i in range(4):
            for y in (1, 2):
                def em(reg, st=st, i=i, y=y):
                    d = v(acc + 16 * (y - 1) + 4 * i, 4)
                    I(f'v_mfma_f32_16x16x32_bf16 {d}, {v(reg[(st, i)], 4)}, {wq_reg(y, st)}, {"0" if st == 0 else d}')
                mf.append((em, [(st, i)]))
            if i == 0 and not DOTSTATS:
                for y in range(2):
                    def em(reg, st=st, y=y):
                        d = v(ss + 4 * y, 4)
                        x = v(reg[(st, 0)], 4)
                        I(f'v_mfma_f32_16x16x32_bf16 {d}, {v(V_ONES, 4) if y else x}, {x}, {"0" if st == 0 else d}')
                    mf.append((em, [(st, 0)]))
            if i == 0 and DOTSTATS:
                def dots(reg, st=st):
                    for j in range(8):
                        x = v(reg[(st, 0)] + j // 2)
                        d = v(ss + (j & 1))
                        c = '0' if (st == 0 and j < 2) else d
                        I(f'v_dot2_f32_bf16 {d}, {x}, {x if j & 1 else s(S_ONES)}, {c}')
                fill.setdefault(len(mf) - 2, []).append(dots)
    per = len(mf) // 16
    if wl1:
        spread(fill, wl1, 5 * per + 3, (10.5 * per) / len(wl1))

    def mkgate(ck):
        def g():
            A.wait_vm(f'xt{ck}')
            A.barrier(lg=(ck == 0))
            if ck == 0:
                stamp(f'p3_{layer}_c0')
        return g
    gate = {(4 * ck, 0): mkgate(ck) for ck in range(4)}
    stream(mf, loader, 9, per + 2, fill=fill, gate=gate, burst=8)
    stamp(f'p3_{layer}_mm')
    if DOTSTATS:
        for r in (0, 1):
            I(f'v_mov_b32 {v(ss + 2 + r)}, {v(ss + r)}')
        for r in (0, 1):
            I(f'v_permlane32_swap_b32 {v(ss + r)}, {v(ss + 2 + r)}')
        pk('add', v(ss, 2), (v(ss, 2), 'p'), (v(ss + 2, 2), 'p'))
        for r in (0, 1):
            I(f'v_mov_b32 {v(ss + 2 + r)}, {v(ss + r)}')
        for r in (0, 1):
            I(f'v_permlane16_swap_b32 {v(ss + r)}, {v(ss + 2 + r)}')
        pk('add', v(ss, 2), (v(ss, 2), 'p'), (v(ss + 2, 2), 'p'))
        pk('mul', v(ss, 2), (v(ss, 2), 'p'), (s(S_LN, 2), 'l'))
        I(f'v_fma_f32 {v(ss + 1)}, -{v(ss)}, {v(ss)}, {v(ss + 1)}')
        I(f'v_max_f32 {v(ss + 1)}, 0, {v(ss + 1)}')
        I(f'v_add_f32 {v(ss + 1)}, s{S_LN + 1}, {v(ss + 1)}')
        I(f'v_rsq_f32 {v(ss + 1)}, {v(ss + 1)}')
        I(f'v_mul_f32 {v(ss)}, {v(ss)}, {v(ss + 1)}')
        I(f'ds_write2st64_b32 {v(V_SW)}, {v(ss + 1)}, {v(ss)} offset0:0 offset1:1')
    else:
        I(f'v_cndmask_b32 {v(ss)}, {v(ss)}, {v(ss + 1)}, {s(S_M1, 2)}')
        I(f'v_cndmask_b32 {v(ss + 2)}, {v(ss + 2)}, {v(ss + 3)}, {s(S_M1, 2)}')
        I(f'v_mul_f32 {v(ss + 4)}, s{S_LN}, {v(ss + 4)}')
        I(f'v_cndmask_b32 {v(ss)}, {v(ss)}, {v(ss + 2)}, {s(S_M2, 2)}')
        I(f'v_mul_f32 {v(ss + 1)}, {v(ss + 4)}, {v(ss + 4)}')
        I(f'v_fma_f32 {v(ss + 1)}, {v(ss)}, s{S_LN}, -{v(ss + 1)}')
        I(f'v_max_f32 {v(ss + 1)}, 0, {v(ss + 1)}')
        I(f'v_add_f32 {v(ss + 1)}, s{S_LN + 1}, {v(ss + 1)}')
        I(f'v_rsq_f32 {v(ss + 1)}, {v(ss + 1)}')
        I('s_mov_b32 exec_lo, 0x00f0000f')
        I('s_mov_b32 exec_hi, 0xf0000f00')
        I(f'v_mul_f32 {v(ss)}, {v(ss + 4)}, {v(ss + 1)}')
        I(f'ds_write2st64_b32 {v(V_SW)}, {v(ss + 1)}, {v(ss)} offset0:0 offset1:1')
        I('s_mov_b64 exec, -1')
    ta = P.alloc(6, 2)
    for i in range(1, 4):
        I(f'v_xor_b32 {v(ta + 2 * i - 2)}, {64 * i}, {v(V_SR4)}')
        I(f'v_xor_b32 {v(ta + 2 * i - 1)}, {64 * i}, {v(V_SR1)}')


    def csq(lo, hi):
        if layer == 0:
            for st in range(lo, hi):
                I(f'v_mfma_f32_16x16x32_bf16 {v(V_CSQ, 4)}, {wq_reg(0, st)}, {v(V_ONES, 4)}, {v(V_CSQ, 4) if st else 0}')
    csq(0, 6)
    A.barrier()
    stamp(f'p3_{layer}_st')
    P.free(ss, 8)
    r4 = P.alloc(32, 4)
    r1 = P.alloc(8, 2)
    for i in range(4):
        a4 = ta + 2 * i - 2 if i else V_SR4
        I(f'ds_read_b128 {v(r4 + 8 * i + 4, 4)}, {v(a4)} offset:256')
        I(f'ds_read_b128 {v(r4 + 8 * i, 4)}, {v(a4)}')
    for i in range(4):
        a1 = ta + 2 * i - 1 if i else V_SR1
        I(f'ds_read2st64_b32 {v(r1 + 2 * i, 2)}, {v(a1)} offset0:0 offset1:1')
    P.free(ta, 6)
    csq(6, 16)
    tmp = P.alloc(4, 2)
    fk = P.alloc(8, 4)
    fv = P.alloc(8, 4)
    dkv, dz = P.alloc(4, 4), P.alloc(4, 4)
    E6 = s(S_E6, 2)
    for i in range(4):
        r, rm = r4 + 8 * i, r4 + 8 * i + 4
        k_, v_ = acc + 4 * i, acc + 16 + 4 * i
        for j in (0, 2):
            pk('fma', v(tmp + j, 2), (v(rm + j, 2), 'p', 'b'), bc(V_CSKV), (E6, 'p'))
        for j in (0, 2):
            pk('fma', v(k_ + j, 2), (v(k_ + j, 2), 'p'), (v(r + j, 2), 'p'), (v(tmp + j, 2), 'p'))
        for j in (0, 2):
            pk('mul', v(v_ + j, 2), (v(v_ + j, 2), 'p'), (v(r + j, 2), 'p'))
        for j in (0, 2):
            pk('fma', v(v_ + j, 2), (v(rm + j, 2), 'p', 'b'), bc(V_CSKV + 1), (v(v_ + j, 2), 'p'))
        phi(k_, tmp)
        for j in (0, 2):
            I(f'v_cvt_pk_bf16_f32 {v(fv + 2 * i + j // 2)}, {v(v_ + j)}, {v(v_ + j + 1)}')
        for j in (0, 2):
            I(f'v_cvt_pk_bf16_f32 {v(fk + 2 * i + j // 2)}, {v(k_ + j)}, {v(k_ + j + 1)}')
    stamp(f'p3_{layer}_kv')
    I(f's_mov_b32 s{S_T2}, {hex(WS_KV[layer])}')
    I(f's_mov_b32 s{S_T0}, {hex(WS_KV[layer] + 32768)}')
    for hf in range(2):
        I(f'v_mfma_f32_16x16x32_bf16 {v(dkv, 4)}, {v(fv + 4 * hf, 4)}, {v(fk + 4 * hf, 4)}, {v(dkv, 4) if hf else 0}')
    for hf in range(2):
        I(f'v_mfma_f32_16x16x32_bf16 {v(dz, 4)}, {v(V_ONES, 4)}, {v(fk + 4 * hf, 4)}, {v(dz, 4) if hf else 0}')
    P.free(r4, 32), P.free(fk, 8), P.free(fv, 8), P.free(acc, 32)

    def atomics():
        for r in range(4):
            I(f'buffer_atomic_add_f32 {v(dkv + r)}, {v(V_KVST)}, {WS}, s{S_T2} offen offset:{64 * r}')
        I('s_mov_b64 exec, 0xffff')
        I(f'buffer_atomic_add_f32 {v(dz)}, {v(V_ZST)}, {WS}, s{S_T0} offen')
        I('s_mov_b64 exec, -1')
        stamp(f'p3_{layer}_atom')
    acc = P.alloc(16, 4)
    mf = []
    fill = {}
    for st in range(16):
        for i in range(4):
            def em(reg, st=st, i=i):
                d = v(acc + 4 * i, 4)
                I(f'v_mfma_f32_16x16x32_bf16 {d}, {wq_reg(0, st)}, {v(reg[(st, i)], 4)}, {"0" if st == 0 else d}')
            mf.append((em, [(st, i)]))
    if wl2:
        spread(fill, wl2, 4, 56 / len(wl2), solo=False)
    stream(mf, loader, 8, 6, fill=fill, rate=2, burst=10, pre=atomics)
    P.free(dkv, 4), P.free(dz, 4)
    stamp(f'p3_{layer}_qmm')
    I(f's_mov_b32 s{S_T0}, {hex(WS_PQ[layer])}')
    ta = P.alloc(4)
    for i in range(1, 4):
        I(f'v_xor_b32 {v(ta + i)}, {(i >> 1) * 32768 + (i & 1) * 512}, {v(V_PQST)}')
    for i in range(4):
        q_ = acc + 4 * i
        rr = v(r1 + 2 * i, 2)
        for j in (0, 2):
            pk('fma', v(tmp + j, 2), (rr, 'h', 'b'), (v(V_CSQ + j, 2), 'p'), (E6, 'p'))
        for j in (0, 2):
            pk('fma', v(q_ + j, 2), (v(q_ + j, 2), 'p'), (rr, 'l'), (v(tmp + j, 2), 'p'))
        phi(q_, tmp)
        for j in (0, 2):
            I(f'v_cvt_pk_bf16_f32 {v(q_ + j // 2)}, {v(q_ + j)}, {v(q_ + j + 1)}')
        I(f'buffer_store_dwordx2 {v(q_, 2)}, {v(ta + i if i else V_PQST)}, {WS}, s{S_T0} offen sc1', tag='pqst')
    stamp(f'p3_{layer}_q')
    P.free(r1, 8), P.free(tmp, 4), P.free(acc, 16), P.free(ta, 4)


P4_UP = int(([x[6:] for x in sys.argv if x.startswith('--p4up')] or ['3'])[0])


P4FL = '' if '--nosc1' in sys.argv else 'sc1'


OUTFL = ([x[6:] for x in sys.argv if x.startswith('--out=')] or [''])[0].replace('+', ' ')


def p4_res():
    res = P.alloc(8, 2)
    for j in range(4):
        I(f'ds_read_b64_tr_b16 {v(res + 2 * j, 2)}, {v(V_RES[j & 1])} offset:{512 * j}')
    return res


def p4_pre(res, layer):
    I(f's_mov_b32 s{S_T1}, {hex(WS_KV[layer])}')
    I(f's_mov_b32 s{S_T2}, {hex(WS_PQ[layer])}')
    I(f's_mov_b32 s{S_T3}, {hex(WS_KV[layer] + 4096)}')
    I(f's_mov_b32 s{S_T4}, {hex(WS_PQ[layer] + 4096)}')
    acc = P.alloc(16, 2)
    ad = [P.alloc() for _ in range(3)]
    for b in range(1, 4):
        I(f'v_xor_b32 {v(ad[b - 1])}, {8192 * b}, {v(V_OFW)}')
    for j in range(8):
        I(f'v_lshlrev_b32 {v(acc + 2 * j)}, 16, {v(res + j)}')
        I(f'v_and_b32 {v(acc + 2 * j + 1)}, 0xffff0000, {v(res + j)}')
    P.free(res, 8)
    return acc, ad


def p4(layer, acc, ad):
    zf = P.alloc(4, 2)
    kv = P.alloc(32, 2)
    pq = P.alloc(32, 2)
    D = [P.alloc(16, 2), P.alloc(16, 2)]
    frs = [P.alloc(4, 2) for _ in range(6)]
    fr = frs[0]

    def loads(pp):
        out = []
        for j in range(2):
            out.append(f'buffer_load_dwordx4 {v(kv + 8 * pp + 4 * j, 4)}, {v(V_KVLD)}, {WS}, s{S_T3 if pp >> 1 else S_T1} offen offset:{2048 * (pp & 1) + 1024 * j} sc1')
        for j in range(2):
            out.append(f'buffer_load_dwordx4 {v(pq + 8 * pp + 4 * j, 4)}, {v(V_PQLD)}, {WS}, s{S_T4 if pp >> 1 else S_T2} offen offset:{2048 * (pp & 1) + 1024 * j} sc1')
        return out
    I(f'buffer_load_dwordx4 {v(fr, 4)}, {v(V_ZLD)}, {WS}, s{S_T1} offen sc1')
    for pp in range(P4_UP):
        for t in loads(pp):
            I(t)
        if pp < P4_UP - 1:
            A.barrier()
    late = [t for pp in range(P4_UP, 4) for t in loads(pp)]
    stamp(f'p4_{layer}_iss')
    for j in range(4):
        I(f'v_cvt_pk_bf16_f32 {v(zf + j)}, {v(fr + 2 * (j & 1))}, {v(fr + 1 + 2 * (j & 1))}')
    stamp(f'p4_{layer}_z')
    MK = s(S_MASK, 2)

    def prep(pp):
        x = kv + 8 * pp
        o = [f'v_cvt_pk_bf16_f32 {v(x + j)}, {v(x + 2 * j)}, {v(x + 2 * j + 1)}' for j in range(4)]
        if pp == 0:
            o += [f'v_permlane16_swap_b32 {v(zf + j)}, {v(zf + 2 + j)}' for j in range(2)]
        o += [f'v_cndmask_b32 {v(x + 4 + j)}, {v(zf + j)}, {v(x + j)}, {MK}' for j in range(4)]
        o += [f'v_cndmask_b32 {v(x + j)}, {v(x + j)}, {v(zf + j)}, {MK}' for j in range(4)]
        return o

    def mm(hh):
        I(f'v_mfma_f32_32x32x16_bf16 {v(D[hh & 1], 16)}, {v(kv + 4 * hh, 4)}, {v(pq + 4 * hh, 4)}, 0')

    def main_mm(hl, r):
        I(f'v_mfma_f32_32x32x16_bf16 {v(acc, 16)}, {wo_reg(hl)}, {v(r, 4)}, {v(acc, 16)}')

    def norm(pp):
        den = [D[o] + 8 * (1 - o) + 2 * pp + o for o in range(2)]
        out = []
        for o in range(2):
            num = D[o] + 8 * o
            of = pq + 8 * pp + 4 * o
            out.append(f'v_add_f32 {v(den[o])}, s{S_E6}, {v(den[o])}')
            out.append(f'v_rcp_f32 {v(den[o])}, {v(den[o])}')
            out += [f'v_mul_f32 {v(num + j)}, {v(den[o])}, {v(num + j)}' for j in range(8)]
            out += [f'v_cvt_pk_bf16_f32 {v(of + j)}, {v(num + 2 * j)}, {v(num + 2 * j + 1)}' for j in range(4)]
            out.append(f'ds_write_b128 {v(V_OFW)}, {v(of, 4)} offset:{2048 * pp + 1024 * o}')
        out[2:2] = [out.pop(15), out.pop(15)]
        return out

    def reads(pp):
        return [f'ds_read_b128 {v(frs[2 * (b - 1) + o], 4)}, {v(ad[b - 1])} offset:{2048 * pp + 1024 * o}' for b in range(1, 4) for o in range(2)]
    for t in prep(0):
        I(t)
    for pp in range(5):
        rd = reads(pp - 1) if pp else []
        tail = []
        if pp:
            tail = [(2 * pp - 2 + o, pq + 8 * pp - 8 + 4 * o) for o in range(2)]
            tail += [(8 * b + 2 * pp - 2 + o, frs[2 * (b - 1) + o]) for b in range(1, 4) for o in range(2)]
        if pp < 4:
            pre = prep(pp + 1) if pp in (1, 2) else []
            for o in range(2):
                mm(2 * pp + o)
                for t in rd[3 * o:3 * o + 3]:
                    I(t)
            while late:
                I(late.pop(0))
            if tail:
                for t in pre[:4]:
                    I(t)
                main_mm(*tail.pop(0))
                for t in pre[4:]:
                    I(t)
            stamp(f'p4_{layer}_m{pp}')
            va = norm(pp) + (prep(1) if pp == 0 else [])
            for i, t in enumerate(va):
                if i in (0, 5, 11, 16, 19, 24, 29) and tail:
                    main_mm(*tail.pop(0))
                I(t)
            A.barrier()
        else:
            for i, x in enumerate(tail):
                for t in rd[2 * i:2 * i + 2]:
                    I(t)
                main_mm(*x)
    P.free(zf, 4), P.free(kv, 32), P.free(pq, 32), P.free(D[0], 16), P.free(D[1], 16)
    for r in frs:
        P.free(r, 4)
    for r in ad:
        P.free(r)
    stamp(f'p4_{layer}_mm')
    o = P.alloc(8, 2)
    if layer == 0:
        I(f's_mov_b32 s{S_T1}, {hex(WS_ST[1])}')
    else:
        ta = P.alloc(3)
        I(f'v_and_b32 {v(ta)}, 31, {v(V_L)}')
        I(f'v_mul_u32_u24 {v(ta)}, 272, {v(ta)}')
        I(f'v_and_b32 {v(ta + 1)}, 0xff, {v(V_TILE)}')
        I(f'v_add_u32 {v(ta)}, {v(ta)}, {v(ta + 1)}')
        I(f'v_lshrrev_b32 {v(ta + 1)}, 4, v0')
        I(f'v_readfirstlane_b32 s{S_T0}, {v(V_TILE)}')
        I(f'v_and_b32 {v(ta + 2)}, 0xf0, {v(V_L16)}')
        I(f's_and_b32 s{S_T0}, s{S_T0}, 0xffffff00')
        I(f'v_mad_u32_u24 {v(o)}, {v(ta + 1)}, 17, 0')
        I(f'v_lshl_add_u32 {v(ta + 1)}, {v(ta + 1)}, 10, s{S_T0}')
        I(f'v_add_u32 {v(ta + 1)}, {v(ta + 1)}, {v(ta + 2)}')
        I(f'v_lshl_add_u32 {v(ta + 2)}, {v(o)}, 4, {v(ta + 2)}')
    for j in range(8):
        I(f'v_cvt_pk_bf16_f32 {v(o + j)}, {v(acc + 2 * j)}, {v(acc + 2 * j + 1)}')
    if layer == 0:
        ss = P.alloc(2, 2)
        for j in range(8):
            I(f'v_dot2_f32_bf16 {v(ss)}, {v(o + j)}, s{S_ONES}, {v(ss) if j else 0}')
            I(f'v_dot2_f32_bf16 {v(ss + 1)}, {v(o + j)}, {v(o + j)}, {v(ss + 1) if j else 0}')
        I(f'v_permlane32_swap_b32 {v(ss)}, {v(ss + 1)}')
        I(f'v_add_f32 {v(ss)}, {v(ss)}, {v(ss + 1)}')
        I(f'buffer_atomic_add_f32 {v(ss)}, {v(V_STAT)}, {WS}, s{S_T1} offen')
        x2store(1, o)
        P.free(ss, 2)
    elif '--dirout' in sys.argv:
        for j in range(2):
            I(f'global_store_dwordx4 {v(V_TILE)}, {v(o + 4 * j, 4)}, {s(S_OUT, 2)} offset:{16 * j} {OUTFL}')
        P.free(ta, 3)
    else:
        for j in range(2):
            I(f'ds_write_b128 {v(ta)}, {v(o + 4 * j, 4)} offset:{L_A + 16 * j}')
        I(f'v_add_u32 {v(ta)}, 16384, {v(ta + 1)}')
        A.barrier()
        for j in range(2):
            I(f'ds_read_b128 {v(o + 4 * j, 4)}, {v(ta + 2)} offset:{L_A + 16 * 272 * j}')
        for j in range(2):
            I(f'global_store_dwordx4 {v(ta + 1 - j)}, {v(o + 4 * j, 4)}, {s(S_OUT, 2)} {OUTFL}')
        P.free(ta, 3)
    P.free(o, 8), P.free(acc, 16)
    stamp(f'p4_{layer}_st')


def main():
    kg, gi = prologue()
    order = [('q', y, st) for st in range(16) for y in (1, 2)] + [('q', 0, st) for st in range(16)] + [('o', h) for h in range(32)]
    wl = wloads(order)

    def take(n):
        out = wl[:n]
        del wl[:n]
        return out
    bar = 1
    for layer in range(2):
        I(f's_lshl_b32 s{S_T3}, s2, 13')
        I(f's_add_u32 s{S_T3}, s{S_T3}, {hex(WS_X2[layer])}')
        I(f's_mov_b32 s{S_T1}, {hex(WS_ST[layer])}')
        I(f's_mov_b32 s{S_T2}, {hex(WS_ST[layer] + 8192)}')
        stamp(f'pre_wait{bar}')
        global_wait(bar, started=(layer == 0))
        stamp(f'wait{bar}')
        conv(layer, kg, gi, take(WN[0]))
        if layer == 0:
            for th in take(WN[1]):
                run_all(th)
            setup_late()
        A.wait_vm('xtst')
        global_arrive()
        bar += 1
        stamp(f'arr{bar}')
        if layer == 0:
            for th in take(WN[2]):
                run_all(th)
            poll_start(bar)
            colsums([1, 2])
            stamp('pre_wait2')
        global_wait(bar, started=(layer == 0))
        stamp(f'wait{bar}')
        p3(layer, take(WN[3]), take(WN[4]))
        for th in take(WN[5]):
            run_all(th)
        A.wait_vm('pqst')
        global_arrive()
        bar += 1
        stamp(f'arr{bar}')
        for th in take(99):
            run_all(th)
        if layer == 0:
            P.free(V_WLD, 2)
        poll_start(bar)
        acc, ad = p4_pre(p4_res(), layer)
        global_wait(bar, started=True)
        stamp(f'wait{bar}')
        p4(layer, acc, ad)
        if layer == 0:
            A.wait_vm()
            global_arrive()
            bar += 1
    if DIAG:
        A.wait_vm()
        stamp('end')
        A._wait(lg=0)
        t = P.alloc(2)
        I(f's_lshl_b32 s{S_T0}, s2, 2')
        I(f's_add_u32 s{S_T0}, s{S_T0}, s{S_W}')
        I(f's_lshl_b32 s{S_T0}, s{S_T0}, 7')
        I(f's_add_u32 s{S_T0}, s{S_T0}, {hex(WS_DIAG)}')
        I(f'v_mov_b32 {v(t + 1)}, 0')
        I('s_mov_b64 exec, 1')
        for k in range(nstamp[0]):
            I(f'v_mov_b32 {v(t)}, s{S_STAMP + 2 * k}')
            I(f'buffer_store_dword {v(t)}, {v(t + 1)}, {WS}, s{S_T0} offen offset:{4 * k}')
        pr = [x for x in sys.argv if x.startswith('--probe=')]
        if pr:
            nm = pr[0][8:]
            k = stamp_names.index(nm)
            I(f's_add_u32 s{S_T1}, s{S_STAMP + 2 * k}, 6000')
            A.label('L_probe')
            I('s_memrealtime s[4:5]')
            A._wait(lg=0)
            I(f's_sub_u32 s{S_T0}, s4, s{S_T1}')
            I(f's_cmp_lt_i32 s{S_T0}, 0')
            I('s_cbranch_scc1 L_probe')
        I(f's_lshl_b32 s{S_T0}, s2, 2')
        I(f's_add_u32 s{S_T0}, s{S_T0}, s{S_W}')
        I(f's_cmp_lg_u32 s{S_T0}, 400')
        I('s_cbranch_scc1 L_end')
        sel = list(range(1, nstamp[0]))
        for j, k in enumerate(sel):
            I(f's_sub_u32 s{S_T0}, s{S_STAMP + 2 * k}, s{S_STAMP}')
            I(f'v_mov_b32 {v(t)}, s{S_T0}')
            I(f'global_store_dword {v(t + 1)}, {v(t)}, {s(S_DBG, 2)} offset:{4 * (j + 1)}')
        print('debug stamps:', [stamp_names[k] for k in sel], file=sys.stderr)
        P.free(t, 2)
    A.label('L_end')
    A.raw('    s_endpgm')

    lines, info = layout(A.out, align='--noalign' not in sys.argv, touch='--notouch' not in sys.argv)
    body = '\n'.join(lines) + '\n'
    print(info, file=sys.stderr)
    ref = open(f'cdna_kernels/{NAME}.s.ref').read().splitlines()
    head = []
    for ln in ref:
        if ln.startswith('; @launch'):
            head.append(f'; @launch grid=(256,1,1) block=(256,1,1) lds={L_END}')
            break
        head.append(ln)
    txt = '\n'.join(head) + f'''
.amdgcn_target "amdgcn-amd-amdhsa--gfx950"
.text
.globl {NAME}_kernel
.p2align 12
.p2align 8
.type {NAME}_kernel,@function
{NAME}_kernel:
''' + body + f'''.section .rodata,"a"
.p2align 6
.amdhsa_kernel {NAME}_kernel
  .amdhsa_next_free_vgpr 512
  .amdhsa_next_free_sgpr 102
  .amdhsa_accum_offset 256
  .amdhsa_group_segment_fixed_size 0
  .amdhsa_kernarg_size 120
  .amdhsa_user_sgpr_count 2
  .amdhsa_user_sgpr_kernarg_segment_ptr 1
  .amdhsa_system_sgpr_workgroup_id_x 1
.end_amdhsa_kernel
'''
    out = [x for x in sys.argv[1:] if not x.startswith('--')]
    path = out[0] if out else f'cdna_kernels/{NAME}.s'
    open(path, 'w').write(txt)
    if DIAG:
        open(path + '.stamps', 'w').write('\n'.join(stamp_names))
    print(f'wrote {path}: {A.ninstr} instrs, {A.nnop} nop states, vgpr peak {P.peak}, lds {L_END}', file=sys.stderr)


main()
```

```python
import sys, struct, math
from emit import *
from layout import layout

NAME = 'interleave_layers__ssm_conv_s4__linear_attn_block__prompt'
DIAG = '--diag' in sys.argv


def f32(x):
    return '0x%08x' % struct.unpack('<I', struct.pack('<f', x))[0]


WS_CNT = 0x0
WS_ZERO = 0x10000
WS_KV = [WS_ZERO, WS_ZERO + 0xC000]
WS_ST = [0x30000, WS_ZERO + 0x18000]
WS_FB = WS_ZERO + 0x1C000
WS_DIAG = 0x40000
WS_X2 = [0x200000, 0x400000]
WS_XT = [0x600000, 0x800000]
WS_PQ = [0xA00000, 0xC00000]
WS_WT = 0xE00000
WS_WTO = WS_WT + 0x180000
WS_SIZE = 0x1000000

L_A = 0
L_B = 65536
L_RK = 131072
L_H = L_RK + 4 * 4160
L_STAT = L_H + 2 * 4608
L_END = L_STAT + 512
KG_ARR = 18
KG_POLL = 36
KG_ROW = 288
KG_W = 54 * KG_ROW

S_U, S_ARE, S_AIM, S_BRE, S_BIM, S_CRE, S_CIM, S_LDT, S_DSK = 4, 6, 8, 10, 12, 14, 16, 18, 20
S_WQKV, S_WO, S_OUT, S_DBG, S_WS = 24, 26, 28, 30, 32
R_WS, R_WQ, R_WO = 36, 40, 44
S_W, S_RB, S_CG, S_NB, S_TH = 48, 49, 50, 51, 52
S_T0, S_T1, S_T2 = 53, 54, 55
S_D = 56
S_MASK = 58
S_ONES = 60
S_SPIN = 61
S_LN = 62
S_EXP = 64
S_E6 = 66
S_T3, S_T4 = 68, 69
S_STAMP = 70
S_REDO = 47
S_W17 = 3
S_M1, S_M2 = 22, 34

A = Asm()
I = A.I
P = Pool(1, 192)
P.force4 = '--al4' in sys.argv
WS = s(R_WS, 4)
nstamp = [0]
stamp_names = []


STSEL = [x[5:].split(',') for x in sys.argv if x.startswith('--st=')]
STSEL = STSEL[0] if STSEL else None


def stamp(name, fine=False):
    if not DIAG:
        return
    if name not in ('entry', 'end'):
        if STSEL is None:
            if fine or not name.startswith(('wait', 'arr')):
                return
        elif not any(name.startswith(p) for p in STSEL):
            return
    k = nstamp[0]
    assert k < 16, 'too many stamps'
    I(f'{"s_memtime" if "--cyc" in sys.argv else "s_memrealtime"} s[{S_STAMP + 2 * k}:{S_STAMP + 2 * k + 1}]')
    stamp_names.append(name)
    nstamp[0] += 1


def pk(op, dst, *srcs):
    sel, selhi, nlo, nhi, txt = [], [], [], [], []
    for sr in srcs:
        t, m = sr[0], sr[1]
        ng = sr[2] if len(sr) > 2 else ''
        txt.append(t)
        sel.append(1 if m in 'hx' else 0)
        selhi.append(1 if m in 'ph' else 0)
        nlo.append(1 if ng in ('l', 'b') else 0)
        nhi.append(1 if ng in ('h', 'b') else 0)
    f = lambda l: '[' + ','.join(map(str, l)) + ']'
    line = f'v_pk_{op}_f32 {dst}, ' + ', '.join(txt) + f' op_sel:{f(sel)} op_sel_hi:{f(selhi)}'
    if any(nlo):
        line += f' neg_lo:{f(nlo)}'
    if any(nhi):
        line += f' neg_hi:{f(nhi)}'
    I(line)


def bc(r):
    return (v(r & ~1, 2), 'h' if r & 1 else 'l')


def cmul(d, x, y, tmp):
    pk('mul', v(tmp, 2), (v(x, 2), 'l'), (v(y, 2), 'p'))
    pk('fma', v(d, 2), (v(x, 2), 'h', 'l'), (v(y, 2), 'x'), (v(tmp, 2), 'p'))


def wq_reg(y, st):
    return a((y * 16 + st) * 4, 4)


def wo_reg(h, n=4, off=0):
    if h < 16:
        return a(192 + 4 * h + off, n)
    return v(192 + 4 * (h - 16) + off, n)


V_L = P.alloc()
V_L16 = P.alloc()
V_XT = [P.alloc() for _ in range(4)]
V_TILE = P.alloc()
V_X2ST = P.alloc()
V_STAT = P.alloc()
V_CVL = P.alloc()
V_HW = P.alloc()
V_CA = [P.alloc() for _ in range(4)]
V_CB = P.alloc()
V_EXW = P.alloc()
V_EXR = P.alloc()
V_XTST = P.alloc()
V_XTLD = P.alloc()
V_PQST = P.alloc()
V_KVST = P.alloc()
V_ZST = P.alloc()
V_PQLD = P.alloc()
V_KVLD = P.alloc()
V_ZLD = P.alloc()
V_OFW = P.alloc()
V_RES = [P.alloc(), P.alloc()]
V_SW = P.alloc()
V_SR4 = P.alloc()
V_SR1 = V_SW
V_ARR = P.alloc()
V_POLL = P.alloc()
V_PA = P.alloc(2)
V_WLD = P.alloc(2)
POLL_GAP = 4
V_CSKV = P.alloc(2)
V_CSQ = P.alloc(4)
V_ONES = P.alloc(4)


def global_arrive(first=None, bar=True, lg=True):
    if bar:
        A.barrier(lg=lg and not first)
    lab = f'L_arr{global_arrive.n}'
    global_arrive.n += 1
    I(f's_cmp_lg_u32 s{S_W}, 0')
    I(f's_cbranch_scc1 {lab}')
    t = P.alloc()
    if first:
        flag, zero = first
        I(f's_mov_b32 s{S_SPIN}, 0x200000')
        A.label(lab + '_init')
        I(f'v_readfirstlane_b32 s{S_T0}, {v(flag)}')
        I(f's_sub_u32 s{S_SPIN}, s{S_SPIN}, 1')
        I(f's_cbranch_scc1 {lab}_go')
        I(f's_cmp_lg_u32 s{S_T0}, 0')
        I(f's_cbranch_scc1 {lab}_go')
        A.cond = True
        I(f'global_load_dword {v(flag)}, {v(zero)}, {s(S_DBG, 2)} sc1')
        A.cond = False
        A._wait(vm=0)
        A.vm.pop()
        I(f's_branch {lab}_init')
        A.label(lab + '_go')
    I(f'v_mov_b32 {v(t)}, 1')
    I('s_mov_b32 exec_hi, 0')
    A.cond = True
    I(f'buffer_atomic_add {v(t)}, {v(V_ARR)}, {WS}, 0 offen')
    A.cond = False
    I('s_mov_b64 exec, -1')
    P.free(t)
    A.label(lab)


global_arrive.n = 0


WLATE = int(([x[8:] for x in sys.argv if x.startswith('--wlate=')] or ['0'])[0])
W1B = '--w1b' in sys.argv
W1B_GAP = int(([x[6:] for x in sys.argv if x.startswith('--g1b=')] or ['14'])[0])


def arrive_1b():
    I(f's_cmp_lg_u32 s{S_W}, 1')
    I('s_cbranch_scc1 L_arr1b')
    A._emit(Ins(f'v_mov_b32 {v(V_PA)}, 0x10000'))
    I('s_mov_b32 exec_hi, 0')
    A.cond = True
    I(f'buffer_atomic_add {v(V_PA)}, {v(V_ARR)}, {WS}, 0 offen')
    A.cond = False
    I('s_mov_b64 exec, -1')
    A.label('L_arr1b')


def wait_1b(nyounger):
    raw = lambda t: A._emit(Ins(t))
    I(f's_cmp_lg_u32 s{S_W}, 0')
    I('s_cbranch_scc1 L_w1b')
    I('s_mov_b64 exec, 0xff')
    I(f's_mov_b32 s{S_SPIN}, 0x200000')
    raw(f's_waitcnt vmcnt({nyounger})')
    raw(f'v_cmp_gt_u32 vcc, s{S_SPIN}, {v(V_PA)}')
    raw('s_cbranch_vccz L_w1b_done')
    I(f's_mov_b32 s{S_REDO}, 0x100000')
    A.label('L_w1b_poll')
    _poll(V_PA)
    raw(f's_sub_u32 s{S_REDO}, s{S_REDO}, 1')
    raw('s_cbranch_scc1 L_w1b_done')
    raw('s_waitcnt vmcnt(0)')
    raw(f'v_cmp_gt_u32 vcc, s{S_SPIN}, {v(V_PA)}')
    raw('s_cbranch_vccnz L_w1b_poll')
    A.label('L_w1b_done')
    I('s_mov_b64 exec, -1')
    A.label('L_w1b')
    A.barrier(lg=False)


def _poll(r):
    A._emit(Ins(f'v_mov_b32 {v(r)}, 0'))
    A._emit(Ins(f'buffer_atomic_add {v(r)}, {v(V_POLL)}, {WS}, 0 offen sc0'))


def poll_start(k):
    lab = f'L_ps{k}'
    I(f's_cmp_lg_u32 s{S_W}, 0')
    I(f's_cbranch_scc1 {lab}')
    I('s_mov_b64 exec, 0xff')
    _poll(V_PA)
    I('s_mov_b64 exec, -1')
    A.label(lab)
    A.vm.append(dict(defs=set(), tag=None, cond=True))


def global_wait(k, started=False, gap=False):
    lab = f'L_wait{k}'
    I(f's_cmp_lg_u32 s{S_W}, 0')
    I(f's_cbranch_scc0 {lab}_w0')
    A.raw(f'#touch s{k}')
    I(f's_branch {lab}')
    A.label(lab + '_w0')
    pa, pb = V_PA, V_PA + 1
    raw = lambda t: A._emit(Ins(t))
    I('s_mov_b64 exec, 0xff')
    if not started:
        _poll(pa)
    I(f's_mov_b32 s{S_SPIN}, 0x100000')
    I(f's_mov_b32 s{S_T0}, {hex(32 * k + (0x200000 if W1B and k > 1 else 0))}')
    msk = (lambda r: raw(f'v_and_b32 {v(r)}, 0xffff, {v(r)}')) if W1B and k == 1 else (lambda r: None)
    if not started or gap:
        raw(f's_sleep {POLL_GAP}')
    A.label(lab + '_poll')
    _poll(pb)
    raw('s_waitcnt vmcnt(1)')
    msk(pa)
    raw(f'v_cmp_gt_u32 vcc, s{S_T0}, {v(pa)}')
    raw(f's_cbranch_vccz {lab}_done')
    _poll(pa)
    raw(f's_sub_u32 s{S_SPIN}, s{S_SPIN}, 1')
    raw(f's_cbranch_scc1 {lab}_done')
    raw('s_waitcnt vmcnt(1)')
    msk(pb)
    raw(f'v_cmp_gt_u32 vcc, s{S_T0}, {v(pb)}')
    raw(f's_cbranch_vccnz {lab}_poll')
    A.label(lab + '_done')
    I('s_mov_b64 exec, -1')
    A.vm.append(dict(defs=set(), tag=None, cond=True))
    A.label(lab)
    A.raw(f'#seg s{k}')
    A.barrier()


WIL = '--nowil' not in sys.argv


def wloads(frags):
    out = []
    for f in frags:
        if f[0] == 'q':
            off, reg, va = WS_WT + (f[1] * 16 + f[2]) * (32768 if WIL else 1024), wq_reg(f[1], f[2]), V_WLD
        else:
            off, reg, va = WS_WTO + f[1] * (16384 if WIL else 1024), wo_reg(f[1]), V_WLD + 1
        th = []
        grp = off & ~4095
        so = S_T4 if f[:2] == ('q', 2) else S_T3
        if wloads.cur.get(so) != grp:
            if f[0] == 'o':
                assert WIL
                th.append(lambda grp=grp, so=so: I(f's_xor_b32 s{so}, s{S_W17}, {hex(grp)}'))
            else:
                th.append(lambda grp=grp, so=so: I(f's_mov_b32 s{so}, {hex(grp)}'))
            wloads.cur[so] = grp

        def ld(off=off, reg=reg, va=va, so=so):
            I(f'buffer_load_dwordx4 {reg}, {v(va)}, {WS}, s{so} offen offset:{off & 4095} sc1')
        ld.lds = True
        th.append(ld)
        out.append(th)
    return out


wloads.cur = {}


def run_all(th):
    for t in th:
        t()


def spread(fill, pieces, start, step, solo=True):
    for i, th in enumerate(pieces):
        at = start + int(i * step)
        for j, t in enumerate(th):
            f = lambda reg, t=t: t()
            f.lds = getattr(t, 'lds', False) and solo
            fill.setdefault(max(0, at - (len(th) - 1 - j)), []).append(f)


def colsums(ys):
    d = {y: V_CSQ if y == 0 else P.alloc(4, 2) for y in ys}
    for y in ys:
        for st in range(16):
            c = '0' if st == 0 else v(d[y], 4)
            if y == 0:
                I(f'v_mfma_f32_16x16x32_bf16 {v(d[y], 4)}, {wq_reg(y, st)}, {v(V_ONES, 4)}, {c}')
            else:
                I(f'v_mfma_f32_16x16x32_bf16 {v(d[y], 4)}, {v(V_ONES, 4)}, {wq_reg(y, st)}, {c}')
    for y in ys:
        if y:
            I(f'v_mov_b32 {v(V_CSKV + y - 1)}, {v(d[y])}')
            P.free(d[y], 4)


def stream(mf, loader, nslots, look, fill=None, gate=None, rate=1, burst=9, pre=None):
    fill = fill or {}
    gate = gate or {}
    first, last, order = {}, {}, []
    for m, (_, keys) in enumerate(mf):
        for k in keys:
            if k not in first:
                first[k] = m
                order.append(k)
            last[k] = m
    slots = [P.alloc(4, 2) for _ in range(nslots)]
    free = list(slots)
    reg = {}
    pend = []
    nxt = [0]

    def start_key():
        k = order[nxt[0]]
        nxt[0] += 1
        if k in gate:
            gate[k]()
        reg[k] = free.pop(0)
        pend.extend(loader(k, reg[k]))

    def issue(n, m, force=False):
        while n > 0:
            if not pend:
                if nxt[0] >= len(order) or not free:
                    return
                if first[order[nxt[0]]] > m + look:
                    return
                start_key()
            I(pend.pop(0))
            n -= 1

    issue(burst, -1)
    if pre:
        pre()
    for m, (em, keys) in enumerate(mf):
        while any(k not in reg for k in keys) or (pend and order[nxt[0] - 1] in keys):
            assert pend or free, 'no free slot'
            if not pend:
                start_key()
            I(pend.pop(0))
        em(reg)
        for k in keys:
            if last[k] == m:
                free.append(reg[k])
        fl = fill.get(m, [])
        solo = any(getattr(th, 'lds', False) for th in fl)
        if not solo:
            issue(1, m)
        for th in fl:
            th(reg)
        if rate > 1 and not solo:
            if m + 1 < len(mf):
                nk = mf[m + 1][1]
                if all(k in reg for k in nk) and not (pend and order[nxt[0] - 1] in nk):
                    A.need(', '.join(v(reg[k], 4) for k in nk))
            issue(rate - 1, m)
    for r in slots:
        P.free(r, 4)


ORDER = int(([x[8:] for x in sys.argv if x.startswith('--order=')] or ['8'])[0])


WPF = int(([x[6:] for x in sys.argv if x.startswith('--wpf=')] or ['2'])[0])


WN = [int(x) for x in ([x[5:] for x in sys.argv if x.startswith('--wn=')] or ['24,8,0,24,0,8'])[0].split(',')]
assert sum(WN[:3]) >= 32 and sum(WN[:4]) >= 48
W_C0 = 16
W_CSTEP = 112 / WN[0]
LATE_IN = '--nolatein' not in sys.argv
CS_C0 = '--nocsc0' not in sys.argv


SPEC = int(([x[7:] for x in sys.argv if x.startswith('--spec=')] or ['1'])[0])


def xt_poison(layer, t):
    out = []
    for i in range(2):
        for c in range(2):
            th = []
            if i == 0 and c == 0:
                th += [lambda j=j: I(f'v_mov_b32 {v(t + j)}, -1') for j in range(2)]
            if c == 0:
                th.append(lambda i=i: I(f's_mov_b32 s{S_T2}, {hex(WS_XT[layer] + 262144 * i)}'))

            def st(c=c):
                I(f'buffer_store_dwordx2 {v(t, 2)}, {v(V_XTST)}, {WS}, s{S_T2} offen offset:{128 * c} sc1', tag='poison')
            st.lds = True
            th.append(st)
            out.append(th)
    return out


class Capture:
    def __enter__(self):
        global I
        self.lines = []
        self.old = I
        I = lambda t, tag=None: self.lines.append(t)
        return self.lines

    def __exit__(self, *a):
        global I
        I = self.old


XPF = int(([x[6:] for x in sys.argv if x.startswith('--xpf=')] or ['0'])[0])
XPF2 = '--xpf2' in sys.argv


NTSEL = ([x[5:] for x in sys.argv if x.startswith('--nt=')] or ['abpw'])[0]
NT = lambda c: ' nt' if c in NTSEL else ''


def lane_fields():
    f = [P.alloc() for _ in range(5)]
    I(f'v_and_b32 {v(f[0])}, 15, {v(V_L)}')
    I(f'v_lshrrev_b32 {v(f[1])}, 4, {v(V_L)}')
    I(f'v_lshrrev_b32 {v(f[2])}, 5, {v(V_L)}')
    return f


def setup_conv(va_, vg, x0, x1):
    I(f'v_lshl_add_u32 {v(V_CVL)}, s{S_W}, 11, {v(V_L16)}')
    I(f'v_lshrrev_b32 {v(V_HW)}, 1, {v(V_CVL)}')
    I(f'v_add_u32 {v(V_HW)}, {L_H + 512}, {v(V_HW)}')
    I(f's_lshr_b32 s{S_T0}, s{S_W}, 1')
    I(f's_and_b32 s{S_T1}, s{S_W}, 1')
    I(f's_mul_i32 s{S_T3}, s{S_T0}, 4608')
    I(f's_lshl_b32 s{S_T4}, s{S_T1}, 8')
    I(f's_sub_u32 s{S_T3}, s{S_T3}, s{S_T4}')
    I(f's_add_u32 s{S_T3}, s{S_T3}, {L_H + 512 - 32 - 192}')
    I(f'v_lshl_add_u32 {v(V_CB)}, {v(va_)}, 5, s{S_T3}')
    I(f'v_lshl_add_u32 {v(V_CB)}, {v(vg)}, 4, {v(V_CB)}')
    I(f's_mul_i32 s{S_T3}, s{S_T0}, 8320')
    I(f's_sub_u32 s{S_T3}, s{S_T3}, s{S_T4}')
    I(f's_add_u32 s{S_T3}, s{S_T3}, {L_RK + 4160 + 4 * (1015 - 176)}')
    I(f'v_and_b32 {v(x0)}, 1, {v(va_)}')
    I(f'v_mul_u32_u24 {v(x0)}, 4160, {v(x0)}')
    I(f'v_lshrrev_b32 {v(x1)}, 1, {v(va_)}')
    I(f'v_lshl_add_u32 {v(x0)}, {v(x1)}, 2, {v(x0)}')
    I(f'v_lshl_add_u32 {v(x1)}, {v(vg)}, 4, s{S_T3}')
    I(f'v_sub_u32 {v(V_CA[0])}, {v(x1)}, {v(x0)}')
    for i in range(1, 4):
        I(f'v_subrev_u32 {v(V_CA[i])}, {1024 * i}, {v(V_CA[0])}')
    I(f's_mul_i32 s{S_T3}, s{S_W}, 10240')
    I(f's_add_u32 s{S_T3}, s{S_T3}, {L_B}')
    I(f'v_lshl_add_u32 {v(V_EXW)}, {v(vg)}, 6, s{S_T3}')
    I(f'v_add_u32 {v(V_EXW)}, {v(V_EXW)}, {v(V_L16)}')
    I(f's_mul_i32 s{S_T3}, s{S_W}, 2560')
    I(f's_add_u32 s{S_T3}, s{S_T3}, {L_B}')
    I(f'v_and_b32 {v(x0)}, 3, {v(V_L)}')
    I(f'v_mul_u32_u24 {v(V_EXR)}, 316, {v(x0)}')
    I(f'v_lshl_add_u32 {v(V_EXR)}, {v(V_L)}, 2, {v(V_EXR)}')
    I(f'v_add_u32 {v(V_EXR)}, s{S_T3}, {v(V_EXR)}')
    I(f's_lshl_b32 s{S_T3}, s{S_W}, 19')
    I(f's_lshl_b32 s{S_T4}, s2, 8')
    I(f's_add_u32 s{S_T3}, s{S_T3}, s{S_T4}')
    I(f'v_lshl_add_u32 {v(V_XTST)}, {v(vg)}, 16, s{S_T3}')
    I(f'v_lshl_add_u32 {v(V_XTST)}, {v(va_)}, 3, {v(V_XTST)}')
    I(f's_and_b32 s{S_T4}, s2, 3')
    I(f's_lshl_b32 s{S_T4}, s{S_T4}, 5')
    I(f'v_xor_b32 {v(V_XTST)}, s{S_T4}, {v(V_XTST)}')
    I(f's_lshl_b32 s{S_T3}, s{S_CG}, 2')
    I(f's_add_u32 s{S_T3}, s{S_T3}, s{S_W}')
    I(f's_mul_i32 s{S_T3}, s{S_T3}, {1024 if WIL else 49152}')
    I(f'v_add_u32 {v(V_WLD)}, s{S_T3}, {v(V_L16)}')
    I(f's_mov_b32 s{S_LN}, {f32(1 / 512)}')
    I(f's_mov_b32 s{S_LN + 1}, {f32(1e-5)}')


def setup_late(free=True):
    va_, vg, vhi, x0, x1 = f = lane_fields()
    T3, T4 = S_T0, S_T1
    for j in range(2):
        I(f's_mov_b32 s{S_MASK + j}, 0xffff0000')
        I(f's_mov_b32 s{S_M1 + j}, 0xaaaaaaaa')
        I(f's_mov_b32 s{S_M2 + j}, 0xcccccccc')
        I(f's_mov_b32 s{S_E6 + j}, {f32(1e-6)}')
    I(f's_mov_b32 s{S_EXP + 1}, {f32(-1e-6 * math.log2(math.e))}')
    I(f'v_lshrrev_b32 {v(x0)}, 2, {v(V_L)}')
    I(f'v_lshlrev_b32 {v(V_XT[0])}, 7, {v(x0)}')
    I(f'v_bfe_u32 {v(x0)}, {v(V_L)}, 3, 2')
    I(f'v_xor_b32 {v(x0)}, s{S_W}, {v(x0)}')
    I(f'v_lshl_add_u32 {v(V_XT[0])}, {v(x0)}, 5, {v(V_XT[0])}')
    I(f'v_and_b32 {v(x0)}, 3, {v(V_L)}')
    I(f'v_lshl_add_u32 {v(V_XT[0])}, {v(x0)}, 3, {v(V_XT[0])}')
    for i in range(1, 4):
        I(f'v_xor_b32 {v(V_XT[i])}, {32 * i}, {v(V_XT[0])}')
    I(f'v_and_b32 {v(V_STAT)}, 0x1fff, {v(V_X2ST)}')
    I(f'v_lshl_add_u32 {v(V_STAT)}, {v(vhi)}, 13, {v(V_STAT)}')
    I(f's_lshl_b32 s{T3}, s{S_RB}, 16')
    I(f's_lshl_b32 s{T4}, s{S_W}, 12')
    I(f's_add_u32 s{T3}, s{T3}, s{T4}')
    I(f'v_add_u32 {v(V_XTLD)}, s{T3}, {v(V_L16)}')
    I(f's_lshl_b32 s{T4}, s{S_CG}, 2')
    I(f's_add_u32 s{T4}, s{T4}, s{S_W}')
    I(f's_lshl_b32 s{T4}, s{T4}, 10')
    I(f's_lshl_b32 s{T3}, s{S_RB}, 16')
    I(f's_add_u32 s{T3}, s{T3}, s{T4}')
    I(f'v_lshl_add_u32 {v(V_PQST)}, {v(va_)}, 5, s{T3}')
    I(f'v_lshl_add_u32 {v(V_PQST)}, {v(vg)}, 3, {v(V_PQST)}')
    I(f's_lshr_b32 s{T3}, s{S_W}, 1')
    I(f'v_lshl_add_u32 {v(V_PQST)}, s{T3}, 15, {v(V_PQST)}')
    I(f's_and_b32 s{T3}, s{S_W}, 1')
    I(f'v_lshl_add_u32 {v(V_PQST)}, s{T3}, 9, {v(V_PQST)}')
    I(f's_mul_i32 s{T3}, s{T3}, 768')
    I(f's_sub_u32 s{T3}, s{T4}, s{T3}')
    I(f'v_lshl_add_u32 {v(V_KVST)}, {v(vg)}, 4, s{T3}')
    I(f'v_and_b32 {v(x0)}, 3, {v(va_)}')
    I(f'v_lshl_add_u32 {v(V_KVST)}, {v(x0)}, 2, {v(V_KVST)}')
    I(f'v_bfe_u32 {v(x0)}, {v(va_)}, 2, 1')
    I(f'v_lshl_add_u32 {v(V_KVST)}, {v(x0)}, 10, {v(V_KVST)}')
    I(f'v_lshrrev_b32 {v(x0)}, 3, {v(va_)}')
    I(f'v_lshl_add_u32 {v(V_KVST)}, {v(x0)}, 9, {v(V_KVST)}')
    I(f's_lshr_b32 s{T3}, s{T4}, 4')
    I(f'v_lshl_add_u32 {v(V_ZST)}, {v(V_L)}, 2, s{T3}')
    I(f's_lshl_b32 s{T3}, s{S_RB}, 1')
    I(f's_add_u32 s{T3}, s{T3}, s{S_TH}')
    I(f's_lshl_b32 s{T3}, s{T3}, 15')
    I(f's_lshl_b32 s{T4}, s{S_W}, 13')
    I(f's_add_u32 s{T3}, s{T3}, s{T4}')
    I(f'v_and_b32 {v(x0)}, 31, {v(V_L)}')
    I(f'v_lshl_add_u32 {v(V_PQLD)}, {v(x0)}, 5, s{T3}')
    I(f'v_lshl_add_u32 {v(V_PQLD)}, {v(vhi)}, 4, {v(V_PQLD)}')
    I(f'v_add_u32 {v(V_KVLD)}, s{T4}, {v(V_L16)}')
    I(f'v_and_b32 {v(x0)}, 3, {v(va_)}')
    I(f'v_lshrrev_b32 {v(x1)}, 3, {v(va_)}')
    I(f's_lshl_b32 s{T3}, s{S_W}, 9')
    I(f's_add_u32 s{T3}, s{T3}, 32768')
    I(f'v_lshl_add_u32 {v(V_ZLD)}, {v(x1)}, 8, s{T3}')
    I(f'v_lshl_add_u32 {v(V_ZLD)}, {v(x0)}, 6, {v(V_ZLD)}')
    I(f'v_lshl_add_u32 {v(V_ZLD)}, {v(vg)}, 4, {v(V_ZLD)}')
    I(f'v_add_u32 {v(V_OFW)}, {L_B}, {v(V_KVLD)}')
    I(f's_lshl_b32 s{T3}, s{S_NB}, 14')
    I(f's_lshl_b32 s{T4}, s{S_W}, 12')
    I(f's_add_u32 s{T3}, s{T3}, s{T4}')
    I(f's_lshl_b32 s{T4}, s{S_TH}, 6')
    I(f's_add_u32 s{T3}, s{T3}, s{T4}')
    I(f'v_lshl_add_u32 {v(V_RES[0])}, {v(vhi)}, 11, s{T3}')
    I(f'v_lshl_add_u32 {v(V_RES[0])}, {v(x0)}, 3, {v(V_RES[0])}')
    I(f'v_lshrrev_b32 {v(x0)}, 2, {v(va_)}')
    I(f'v_lshl_add_u32 {v(V_RES[0])}, {v(x0)}, 7, {v(V_RES[0])}')
    I(f'v_xor_b32 {v(x1)}, {v(x1)}, {v(vg)}')
    I(f'v_and_b32 {v(x1)}, 1, {v(x1)}')
    I(f'v_lshl_add_u32 {v(V_RES[0])}, {v(x1)}, 5, {v(V_RES[0])}')
    I(f'v_xor_b32 {v(V_RES[1])}, 64, {v(V_RES[0])}')
    I(f's_lshl_b32 s{T3}, s{S_W}, 6')
    I(f's_add_u32 s{T3}, s{T3}, {L_STAT}')
    I(f'v_lshl_add_u32 {v(V_SW)}, {v(va_)}, 2, s{T3}')
    I(f'v_lshl_add_u32 {v(V_SR4)}, {v(vg)}, 4, s{T3}')
    I(f's_lshl_b32 s{S_W17}, s{S_W}, 17')
    I(f's_lshl_b32 s{T3}, s{S_NB}, 2')
    I(f's_add_u32 s{T3}, s{T3}, s{S_W}')
    I(f'v_lshl_add_u32 {v(V_WLD + 1)}, s{T3}, {10 if WIL else 15}, {v(V_L16)}')
    if not free:
        return f
    for r in f:
        P.free(r)


TS = [18, 10, 6, 2]
TB = [0, 16 * 18, 16 * 18 + 16 * 10, 16 * 18 + 16 * 10 + 32 * 6]


def rne(o, sh):
    q, r = o >> sh, o & ((1 << sh) - 1)
    if sh == 0:
        return q
    h = 1 << (sh - 1)
    return q + (1 if (r > h or (r == h and q & 1)) else 0)


def setup_kgen(va_, vg, x0, x1):
    kg = dict(w=P.alloc(), a0=P.alloc(), a1=P.alloc(), g=P.alloc(), t1=P.alloc(), t2=P.alloc(), t3=P.alloc(), rk=P.alloc())
    I(f's_lshr_b32 s{S_T0}, s{S_W}, 1')
    I(f's_and_b32 s{S_T1}, s{S_W}, 1')
    I(f's_mul_i32 s{S_T3}, s{S_W}, {KG_W}')
    I(f's_add_u32 s{S_T3}, s{S_T3}, {L_B}')
    I(f'v_lshl_add_u32 {v(kg["w"])}, {v(V_L)}, 2, s{S_T3}')
    I(f's_mul_i32 s{S_T3}, s{S_T0}, {2 * KG_W}')
    I(f's_add_u32 s{S_T3}, s{S_T3}, {L_B}')
    I(f'v_lshl_add_u32 {v(x1)}, {v(vg)}, 4, s{S_T3}')
    I(f'v_mul_u32_u24 {v(kg["a0"])}, {KG_ROW}, {v(va_)}')
    I(f'v_add_u32 {v(kg["a0"])}, {v(kg["a0"])}, {v(x1)}')
    I(f's_mul_i32 s{S_T4}, s{S_T1}, {16 * KG_ROW}')
    I(f'v_add_u32 {v(kg["g"])}, s{S_T4}, {v(kg["a0"])}')
    I(f'v_min_u32 {v(kg["a1"])}, 4, {v(va_)}')
    I(f'v_mul_u32_u24 {v(kg["a1"])}, {KG_ROW}, {v(kg["a1"])}')
    I(f'v_add_u32 {v(kg["a1"])}, {v(kg["a1"])}, {v(x1)}')
    I(f's_mul_i32 s{S_T3}, s{S_T0}, 4608')
    I(f's_add_u32 s{S_T3}, s{S_T3}, {L_H + 512}')
    vj, vw = P.alloc(), P.alloc()
    I(f's_lshl_b32 s{S_T4}, s{S_T1}, 2')
    I(f'v_and_b32 {v(x0)}, 3, {v(va_)}')
    I(f'v_lshl_add_u32 {v(vj)}, {v(x0)}, 3, s{S_T4}')
    I(f'v_lshrrev_b32 {v(x0)}, 2, {v(va_)}')
    I(f'v_add_u32 {v(vj)}, {v(vj)}, {v(x0)}')
    I(f'v_lshl_add_u32 {v(kg["t3"])}, {v(vg)}, 7, {v(vj)}')
    I(f'v_lshl_add_u32 {v(kg["t3"])}, {v(kg["t3"])}, 2, s{S_T3}')
    I(f'v_max_u32 {v(x1)}, 1, {v(vg)}')
    I(f'v_sub_u32 {v(x1)}, 6, {v(x1)}')
    I(f'v_lshlrev_b32 {v(kg["t1"])}, {v(x1)}, {v(vj)}')
    I(f'v_lshrrev_b32 {v(vw)}, 1, {v(vj)}')
    I(f'v_lshl_add_u32 {v(kg["t1"])}, {v(vw)}, 3, {v(kg["t1"])}')
    I(f's_mov_b32 s{S_T4}, {hex(0 | (1 << 8) | ((TB[1] // 4) << 16) | ((TB[2] // 4) << 24))}')
    I(f'v_lshlrev_b32 {v(x1)}, 3, {v(vg)}')
    I(f'v_bfe_u32 {v(x1)}, s{S_T4}, {v(x1)}, 8')
    I(f'v_lshl_add_u32 {v(x1)}, {v(x1)}, 4, s{S_T3}')
    I(f'v_add_u32 {v(kg["t1"])}, {v(kg["t1"])}, {v(x1)}')
    I(f'v_cmp_eq_u32 vcc, 3, {v(vg)}')
    I(f'v_mov_b32 {v(vj)}, {16 * TS[2] * 4}')
    I(f'v_cndmask_b32 {v(x1)}, 8, {v(vj)}, vcc')
    I(f'v_add_u32 {v(kg["t2"])}, {v(kg["t1"])}, {v(x1)}')
    gi = P.alloc(18, 2)
    vn, vs = vj, vw
    I(f'v_and_b32 {v(x0)}, 127, v0')
    I(f'v_sub_u32 {v(vn)}, 127, {v(x0)}')
    I(f'v_or_b32 {v(x1)}, 8, {v(vn)}')
    I(f'v_ffbh_u32 {v(x1)}, {v(x1)}')
    I(f'v_sub_u32 {v(vs)}, 28, {v(x1)}')
    I(f'v_lshlrev_b32 {v(vs)}, 3, {v(vs)}')
    first = [0, 16, 32, 64]
    cb = [TB[q] - first[q] * TS[q] for q in range(4)]
    assert all(c % 4 == 0 and 0 <= c // 4 < 256 for c in cb)
    I(f's_mov_b32 s{S_T4}, {hex(sum(TS[q] << (8 * q) for q in range(4)))}')
    I(f'v_bfe_u32 {v(x1)}, s{S_T4}, {v(vs)}, 8')
    I(f'v_mul_u32_u24 {v(x1)}, {v(x1)}, {v(vn)}')
    I(f's_mov_b32 s{S_T4}, {hex(sum((cb[q] // 4) << (8 * q) for q in range(4)))}')
    I(f'v_bfe_u32 {v(gi + 17)}, s{S_T4}, {v(vs)}, 8')
    I(f'v_lshl_add_u32 {v(x1)}, {v(gi + 17)}, 2, {v(x1)}')
    I(f'v_lshl_add_u32 {v(gi + 15)}, {v(x1)}, 2, s{S_T3}')
    for u in range(15):
        o = 15 - u
        dl = []
        for q in range(4):
            d = rne(o, q)
            dl.append(4 * (d if d < (16 >> q) else TS[q]))
        I(f's_mov_b32 s{S_T4}, {hex(sum(dl[q] << (8 * q) for q in range(4)))}')
        I(f'v_bfe_u32 {v(x1)}, s{S_T4}, {v(vs)}, 8')
        I(f'v_add_u32 {v(gi + u)}, {v(x1)}, {v(gi + 15)}')
    I(f'v_cmp_ge_u32 vcc, 16, {v(vn)}')
    I(f'v_cndmask_b32 {v(x1)}, 0, 12, vcc')
    I(f'v_sub_u32 {v(gi + 16)}, {v(gi + 15)}, {v(x1)}')
    P.free(vj), P.free(vw)
    I(f's_mul_i32 s{S_T4}, s{S_T0}, 8320')
    I(f's_add_u32 s{S_T4}, s{S_T4}, {L_RK}')
    I(f'v_lshl_add_u32 {v(kg["rk"])}, {v(x0)}, 5, s{S_T4}')
    return kg, gi


def prologue():
    I('s_cmp_ge_u32 s2, 256')
    I('s_cbranch_scc1 L_end')
    I('s_load_dwordx16 s[4:19], s[0:1], 0')
    I('s_load_dwordx8 s[20:27], s[0:1], 64')
    I('s_load_dwordx4 s[28:31], s[0:1], 96')
    I('s_load_dwordx2 s[32:33], s[0:1], 112')
    stamp('entry')
    pf = P.alloc(4)
    I(f's_getpc_b64 s[{S_T3}:{S_T4}]')
    A.label('L_pc')
    I(f's_lshr_b32 s{S_T1}, s2, 3')
    I(f'v_lshrrev_b32 {v(pf)}, 4, v0')
    I(f'v_lshl_add_u32 {v(pf)}, {v(pf)}, 5, s{S_T1}')
    I(f'v_lshlrev_b32 {v(pf)}, 7, {v(pf)}')
    I(f'v_min_u32 {v(pf)}, L_end-L_pc, {v(pf)}')
    if '--nocpf' in sys.argv:
        I(f'v_mov_b32 {v(pf)}, 0')
    I(f'global_load_dword {v(pf)}, {v(pf)}, s[{S_T3}:{S_T4}]')
    I(f'v_lshrrev_b32 {v(pf + 1)}, 6, v0')
    I(f'v_and_b32 {v(V_L)}, 63, v0')
    I(f'v_readfirstlane_b32 s{S_W}, {v(pf + 1)}')
    I(f's_and_b32 s{S_T0}, s2, 7')
    I(f's_and_b32 s{S_T2}, s{S_T1}, 3')
    I(f's_lshl_b32 s{S_RB}, s{S_T0}, 2')
    I(f's_add_u32 s{S_RB}, s{S_RB}, s{S_T2}')
    I(f's_lshr_b32 s{S_CG}, s{S_T1}, 2')
    I(f's_lshr_b32 s{S_NB}, s{S_CG}, 1')
    I(f's_and_b32 s{S_TH}, s{S_CG}, 1')
    I(f'v_lshlrev_b32 {v(V_L16)}, 4, {v(V_L)}')
    va_, vg, vhi, x0, x1 = f = lane_fields()
    I(f's_and_b32 s{S_T3}, s{S_T1}, 7')
    I(f's_lshl_b32 s{S_T3}, s{S_T3}, 7')
    I(f'v_lshl_add_u32 {v(V_ARR)}, {v(V_L)}, 10, s{S_T3}')
    I(f's_lshl_b32 s{S_T3}, s{S_T1}, 10')
    I(f'v_lshl_add_u32 {v(V_POLL)}, {v(V_L)}, 7, s{S_T3}')
    vsr, vsa = P.alloc(), P.alloc()
    I(f's_lshl_b32 s{S_T0}, s{S_RB}, 6')
    I(f's_lshl_b32 s{S_T1}, s{S_CG}, 3')
    I(f's_add_u32 s{S_T1}, s{S_T1}, s{S_T0}')
    I(f's_lshl_b32 s{S_T3}, s{S_W}, 1')
    I(f's_add_u32 s{S_T2}, s{S_T1}, s{S_T3}')
    I(f's_lshl_b32 s{S_T1}, s{S_T2}, 10')
    I(f'v_add_u32 {v(vsr)}, s{S_T1}, {v(V_L16)}')
    I(f'v_and_b32 {v(vsa)}, 1, {v(vg)}')
    I(f'v_add_lshl_u32 {v(vsa)}, {v(vsa)}, s{S_T2}, 2')
    I(f'v_lshl_add_u32 {v(vsa)}, {v(vhi)}, 13, {v(vsa)}')
    I(f's_lshl_b32 s{S_T1}, s{S_TH}, 5')
    I(f's_add_u32 s{S_T0}, s{S_T0}, s{S_T1}')
    I(f'v_and_b32 {v(x0)}, 31, {v(V_L)}')
    I(f'v_add_u32 {v(x0)}, s{S_T0}, {v(x0)}')
    I(f's_lshl_b32 s{S_T0}, s{S_NB}, 8')
    I(f's_lshl_b32 s{S_T1}, s{S_W}, 6')
    I(f's_add_u32 s{S_T0}, s{S_T0}, s{S_T1}')
    I(f'v_lshl_add_u32 {v(V_TILE)}, {v(x0)}, 10, s{S_T0}')
    I(f'v_lshl_add_u32 {v(V_TILE)}, {v(vhi)}, 5, {v(V_TILE)}')
    I(f's_lshl_b32 s{S_T0}, s{S_T0}, 11')
    I(f'v_lshl_add_u32 {v(V_X2ST)}, {v(x0)}, 2, s{S_T0}')
    I(f'v_lshl_add_u32 {v(V_X2ST)}, {v(vhi)}, 16, {v(V_X2ST)}')
    vtd, vtr = P.alloc(), P.alloc()
    I(f'v_readfirstlane_b32 s{S_T0}, {v(V_TILE)}')
    I(f'v_lshrrev_b32 {v(x0)}, 2, {v(V_L)}')
    I(f'v_xor_b32 {v(x1)}, {v(V_L)}, {v(vg)}')
    I(f'v_and_b32 {v(x1)}, 3, {v(x1)}')
    I(f'v_lshl_add_u32 {v(vtd)}, {v(x0)}, 10, s{S_T0}')
    I(f'v_lshl_add_u32 {v(vtd)}, {v(x1)}, 4, {v(vtd)}')
    I(f'v_add_u32 {v(vtr)}, {16384 - 1024}, {v(vtd)}')
    I(f's_lshl_b32 m0, s{S_W}, 11')
    vpo = P.alloc()
    I(f's_lshl_b32 s{S_T1}, s2, 9')
    I(f'v_lshl_add_u32 {v(vpo)}, v0, 1, s{S_T1}')
    sinit = S_SPIN
    I(f's_lshl_b32 s{S_T2}, s2, 2')
    I(f's_add_u32 s{sinit}, s{S_T2}, s{S_W}')
    vws = P.alloc(2)
    SA, SB, SC = S_MASK, S_MASK + 1, S_E6
    I(f's_cmp_ge_u32 s2, 192')
    I('s_cbranch_scc1 L_wo_src')
    I(f's_bfe_u32 s{SA}, s2, 0x30003')
    I(f's_lshl_b32 s{SA}, s{SA}, 1')
    I(f's_lshr_b32 s{SB}, s{S_W}, 1')
    I(f's_add_u32 s{SA}, s{SA}, s{SB}')
    I(f's_lshr_b32 s{SB}, s2, 6')
    I(f's_lshl_b32 s{SC}, s{SB}, 4')
    I(f's_add_u32 s{SC}, s{SC}, s{SA}')
    I(f's_lshl_b32 s{SC}, s{SC}, {15 if WIL else 10}')
    I(f's_mul_i32 s{SA}, s{SA}, {32 * 3072}')
    I(f's_lshl_b32 s{SB}, s{SB}, 10')
    I(f's_add_u32 s{SA}, s{SA}, s{SB}')
    I(f's_and_b32 s{SB}, s2, 7')
    I(f's_lshl_b32 s{SB}, s{SB}, 1')
    I(f's_and_b32 s{S_T1}, s{S_W}, 1')
    I(f's_add_u32 s{SB}, s{SB}, s{S_T1}')
    I(f's_mul_i32 s{S_T1}, s{SB}, {2048 if WIL else 2 * 49152}')
    I(f's_add_u32 s{SC}, s{SC}, s{S_T1}')
    I(f's_add_u32 s{SC}, s{SC}, {hex(WS_WT)}')
    I(f's_add_u32 s{SC + 1}, s{SC}, {1024 if WIL else 49152}')
    I(f's_lshl_b32 s{SB}, s{SB}, 6')
    I(f's_add_u32 s{SA}, s{SA}, s{SB}')
    I(f's_movk_i32 s{SB}, 3072')
    I('s_branch L_w_src')
    A.label('L_wo_src')
    I(f's_bfe_u32 s{SA}, s2, 0x40002')
    I(f's_and_b32 s{SB}, s2, 3')
    I(f's_lshl_b32 s{SB}, s{SB}, 2')
    I(f's_add_u32 s{SB}, s{SB}, s{S_W}')
    if WIL:
        I(f's_lshl_b32 s{SC}, s{SA}, 5')
        I(f's_add_u32 s{SC}, s{SC}, s{SB}')
        I(f's_lshl_b32 s{SC}, s{SC}, 10')
    else:
        I(f's_lshl_b32 s{SC}, s{SB}, 4')
        I(f's_add_u32 s{SC}, s{SC}, s{SA}')
        I(f's_lshl_b32 s{SC}, s{SC}, 11')
    I(f's_add_u32 s{SC}, s{SC}, {hex(WS_WTO)}')
    I(f's_add_u32 s{SC + 1}, s{SC}, {16384 if WIL else 1024}')
    I(f's_lshl_b32 s{SA}, s{SA}, 15')
    I(f's_lshl_b32 s{SB}, s{SB}, 6')
    I(f's_add_u32 s{SA}, s{SA}, s{SB}')
    I(f's_movk_i32 s{SB}, 1024')
    A.label('L_w_src')
    I(f'v_mul_u32_u24 {v(vws)}, s{SB}, {v(x0)}')
    I(f'v_and_b32 {v(x1)}, 3, {v(V_L)}')
    I(f'v_lshl_add_u32 {v(x1)}, {v(x1)}, 4, s{SA}')
    I(f'v_add_u32 {v(vws)}, {v(vws)}, {v(x1)}')
    I(f's_lshl_b32 s{SB}, s{SB}, 4')
    I(f's_sub_u32 s{SB}, s{SB}, 1024')
    I(f'v_add_u32 {v(vws + 1)}, s{SB}, {v(vws)}')
    zero4 = P.alloc(4, 2)
    for i in range(4):
        I(f'v_mov_b32 {v(zero4 + i)}, 0')
    for r, n in ((R_WS, WS_SIZE),):
        I(f's_mov_b32 s{r + 2}, {hex(n)}')
        I(f's_mov_b32 s{r + 3}, 0x20000')
    xs = P.alloc(8, 2)
    xt = P.alloc(8, 2)
    par = P.alloc(8, 2)
    vtc = par + 7
    I(f's_cmp_eq_u32 s{S_W}, 0')
    I(f's_cselect_b32 s{S_T1}, 1, 0x100')
    I(f'v_lshlrev_b32_e64 {v(vtc)}, 7, s{S_T1}')
    A._wait(lg=0)
    stamp('a_karg')
    I(f's_cmp_lg_u32 s{sinit}, 0')
    I('s_cbranch_scc1 L_noinit')
    I(f'v_lshlrev_b32 {v(x0)}, 9, {v(V_L)}')
    A.cond = True
    for j in range(4):
        I(f'global_store_dword {v(x0)}, {v(zero4)}, {s(S_WS, 2)} offset:{128 * j} sc1')
    A.cond = False
    A.label('L_noinit')
    nld = 0

    def ld_x(j):
        if j < 2:
            I(f'global_load_dwordx4 {v(xs + 4 * j, 4)}, {v(vsr)}, {s(S_U, 2)} offset:{1024 * j}{NT("a")}')
        else:
            I(f'global_load_lds_dwordx4 {v(vtd if j == 2 else vtr)}, {s(S_U, 2)} offset:{1024 * (j - 2)}{NT("b")}', tag='xt')

    def ld_par():
        for i, sp in enumerate((S_ARE, S_AIM, S_BRE, S_BIM, S_CRE, S_CIM)):
            I(f'global_load_ushort {v(par + i)}, {v(vpo)}, {s(sp, 2)}{NT("p")}')

    def touch():
        I(f's_cmp_eq_u32 s{S_W}, 0')
        I(f's_cselect_b64 s[{S_T3}:{S_T4}], {s(S_DBG, 2)}, {s(S_WS, 2)}')
        I(f'global_load_dword {v(pf + 3)}, {v(vtc)}, s[{S_T3}:{S_T4}]')

    I(f's_cmp_ge_u32 s2, 192')
    I(f's_cselect_b64 s[{R_WQ}:{R_WQ + 1}], {s(S_WO, 2)}, {s(S_WQKV, 2)}')

    def touch2():
        I('s_mov_b64 exec, 1')
        I(f'global_load_dword {v(pf + 1)}, {v(vsr)}, {s(S_U, 2)}')
        I(f'global_load_dword {v(pf + 2)}, {v(vws)}, s[{R_WQ}:{R_WQ + 1}]')
        I('s_mov_b64 exec, -1')

    def ld_w():
        I('s_add_u32 m0, m0, 8192')
        for j in range(2):
            I(f'global_load_lds_dwordx4 {v(vws + j)}, s[{R_WQ}:{R_WQ + 1}] offset:{1024 * j}{NT("w")}', tag='wt')
    nld = 13
    if ORDER == 1:
        ld_x(0), touch(), ld_par(), ld_x(1), ld_x(2), ld_x(3), ld_w()
    elif ORDER == 2:
        touch(), ld_x(0), ld_x(1), ld_x(2), ld_x(3), ld_w(), ld_par()
    elif ORDER == 3:
        touch(), ld_x(0), ld_x(1), ld_x(2), ld_x(3), ld_par(), ld_w()
    elif ORDER == 4:
        ld_x(0), ld_x(1), ld_x(2), ld_x(3)
        A._wait(vm=2)
        stamp('b_xs')
        A._wait(vm=0)
        stamp('b_xt')
        touch(), ld_w(), ld_par()
        A._wait(vm=8)
        stamp('b_touch')
        A._wait(vm=6)
        stamp('b_w')
        A._wait(vm=0)
        stamp('b_par')
    elif ORDER >= 10:
        grp = {'1': ('x', lambda: [ld_x(j) for j in range(4)]), '2': ('touch', touch), '3': ('w', ld_w), '4': ('par', ld_par)}
        for c in str(ORDER):
            grp[c][1]()
            A._wait(vm=0)
            stamp('b_' + grp[c][0])
            A.barrier()
            stamp('b_bar' + c)
    elif ORDER in (7, 8, 9):
        touch2(), touch(), ld_par()
        if ORDER == 8:
            A.barrier()
        ld_x(0), ld_x(1), ld_x(2), ld_x(3)
        nld = 13
        if not WLATE:
            if ORDER == 8:
                A.barrier()
            ld_w()
            nld = 15
        if ORDER == 9:
            stamp('b_iss')
            for nm, n in (('code', 15), ('tu', 14), ('tw', 13), ('touch', 12), ('par', 6), ('xs', 4), ('xt', 2), ('w', 0)):
                A._wait(vm=n)
                stamp('b_' + nm)
    elif ORDER == 5:
        touch(), ld_x(0), ld_x(1), ld_x(2), ld_x(3), ld_w(), ld_par()
        stamp('b_iss')
        for nm, n in (('code', 13), ('touch', 12), ('xs', 10), ('xt', 8), ('w', 6), ('par', 0)):
            A._wait(vm=n)
            stamp('b_' + nm)
    elif ORDER == 6:
        touch(), ld_par(), ld_x(0), ld_x(1), ld_x(2), ld_x(3), ld_w()
        stamp('b_iss')
        for nm, n in (('code', 13), ('touch', 12), ('par', 6), ('xs', 4), ('xt', 2), ('w', 0)):
            A._wait(vm=n)
            stamp('b_' + nm)
    I(f's_load_dword s{S_D}, {s(S_LDT, 2)}, s{S_T2}')
    I(f's_load_dword s{S_D + 1}, {s(S_DSK, 2)}, s{S_T2}')
    for r, p in ((R_WS, S_WS),):
        I(f's_mov_b64 s[{r}:{r + 1}], s[{p}:{p + 1}]')
    if XPF:
        I(f'v_xor_b32 {v(vsr)}, {XPF << 18}, {v(vsr)}')
        I(f'v_mul_u32_u24 {v(x0)}, 112, {v(va_)}')
        I(f'v_add_u32 {v(vsr)}, {v(vsr)}, {v(x0)}')
        I('s_mov_b64 exec, 0xffff')
        I(f'global_load_dword {v(pf + 1)}, {v(vsr)}, {s(S_U, 2)}')
        if XPF2:
            I(f'v_xor_b32 {v(vpo)}, {XPF << 9}, {v(vpo)}')
            I('s_mov_b64 exec, 1')
            for i, sp in enumerate((S_ARE, S_AIM, S_BRE, S_BIM, S_CRE, S_CIM)):
                I(f'global_load_ushort {v(V_CSQ + (i & 3) if i < 4 else V_CSKV + i - 4)}, {v(vpo)}, {s(sp, 2)}')
            nld += 6
        I('s_mov_b64 exec, -1')
        nld += 1
    stamp('a_ldiss')
    P.free(vsr), P.free(vpo), P.free(vtd)
    I(f'v_and_b32 {v(x0)}, 31, {v(V_L)}')
    I(f'v_lshlrev_b32 {v(vtr)}, 6, {v(x0)}')
    I(f'v_lshl_add_u32 {v(vtr)}, s{S_W}, 11, {v(vtr)}')
    I(f'v_bfe_u32 {v(x0)}, {v(V_L)}, 2, 2')
    I(f'v_lshlrev_b32 {v(x1)}, 1, {v(vhi)}')
    I(f'v_xor_b32 {v(x0)}, {v(x0)}, {v(x1)}')
    I(f'v_lshl_add_u32 {v(vtr)}, {v(x0)}, 4, {v(vtr)}')
    kg, gi = setup_kgen(va_, vg, x0, x1)
    I(f's_cmp_lg_u32 s{sinit}, 0')
    I('s_cbranch_scc1 L_noflag')
    I(f'v_mov_b32 {v(x1)}, 1')
    A._wait(vm=nld)
    A.cond = True
    I(f'global_store_dword {v(zero4)}, {v(x1)}, {s(S_DBG, 2)} sc1')
    A.cond = False
    A.label('L_noflag')
    I(f'v_lshl_add_u32 {v(x1)}, {v(x0)}, 2, s{S_T3}')
    I(f'v_subrev_u32 {v(x1)}, 512, {v(x1)}')
    I(f'ds_write_b32 {v(x1)}, {v(zero4)}')
    I(f's_mul_i32 s{S_T3}, s{S_W}, 4160')
    I(f's_add_u32 s{S_T3}, s{S_T3}, {L_RK + 4096}')
    I(f'v_lshl_add_u32 {v(x1)}, {v(va_)}, 2, s{S_T3}')
    I(f'ds_write_b32 {v(x1)}, {v(zero4)}')
    stamp('a_kgset')
    I(f's_lshl_b32 s{S_T0}, s{sinit}, 7')
    I(f's_add_u32 s{S_T0}, s{S_T0}, {hex(WS_ZERO)}')
    I('s_mov_b64 exec, 0xff')
    I(f'buffer_store_dwordx4 {v(zero4, 4)}, {v(V_L16)}, {WS}, s{S_T0} offen sc1')
    I('s_mov_b64 exec, -1')
    setup_conv(va_, vg, x0, x1)
    vwr = P.alloc(2)
    I(f's_lshl_b32 s{S_T3}, s{S_W}, 11')
    I(f's_add_u32 s{S_T3}, s{S_T3}, 8192')
    I(f'v_and_b32 {v(x0)}, 3, {v(V_L)}')
    I(f'v_lshl_add_u32 {v(vwr)}, {v(V_L)}, 4, s{S_T3}')
    I(f'v_lshlrev_b32 {v(x0)}, 3, {v(x0)}')
    I(f'v_sub_u32 {v(vwr)}, {v(vwr)}, {v(x0)}')
    I(f'v_lshrrev_b32 {v(x0)}, 2, {v(va_)}')
    I(f'v_lshl_add_u32 {v(vwr + 1)}, {v(x0)}, 8, s{S_T3}')
    I(f'v_lshl_add_u32 {v(vwr + 1)}, {v(vhi)}, 6, {v(vwr + 1)}')
    I(f'v_and_b32 {v(x0)}, 1, {v(V_L)}')
    I(f'v_lshl_add_u32 {v(vwr + 1)}, {v(x0)}, 5, {v(vwr + 1)}')
    I(f'v_and_b32 {v(x0)}, 1, {v(vg)}')
    I(f'v_lshl_add_u32 {v(vwr + 1)}, {v(x0)}, 4, {v(vwr + 1)}')
    I(f'v_bfe_u32 {v(x0)}, {v(V_L)}, 1, 1')
    I(f'v_lshl_add_u32 {v(vwr + 1)}, {v(x0)}, 3, {v(vwr + 1)}')
    I(f's_mov_b32 s{S_ONES}, 0x3f803f80')
    I(f's_mov_b32 s{S_EXP}, {f32(math.log2(math.e))}')
    for i in range(4):
        I(f'v_mov_b32 {v(V_ONES + i)}, s{S_ONES}')
    I(f'v_xor_b32 {v(x1)}, 16, {v(vtr)}')
    if '--latepage' not in sys.argv:
        A.raw('#page')
        A.raw('#seg s0')
        A.raw('#touch s0')
    stamp('a_setup')
    st = P.alloc(4, 2)
    for i in range(4):
        for r in range(2):
            c = '0' if i == 0 else v(st + r)
            I(f'v_dot2_f32_bf16 {v(st + r)}, {v(xs + 4 * r + i)}, s{S_ONES}, {c}')
            c = '0' if i == 0 else v(st + 2 + r)
            I(f'v_dot2_f32_bf16 {v(st + 2 + r)}, {v(xs + 4 * r + i)}, {v(xs + 4 * r + i)}, {c}')
    stamp('a_xs')
    A.wait_vm('xt')
    I(f'ds_read_b128 {v(xt, 4)}, {v(vtr)}')
    I(f'ds_read_b128 {v(xt + 4, 4)}, {v(x1)}')
    I(f's_mov_b32 s{S_T0}, {hex(WS_ST[0])}')
    I(f'v_permlane32_swap_b32 {v(st)}, {v(st + 2)}')
    I(f'v_permlane32_swap_b32 {v(st + 1)}, {v(st + 3)}')
    I(f'v_add_f32 {v(st)}, {v(st)}, {v(st + 2)}')
    I(f'v_add_f32 {v(st + 1)}, {v(st + 1)}, {v(st + 3)}')
    I(f'v_permlane16_swap_b32 {v(st)}, {v(st + 1)}')
    I(f'v_add_f32 {v(st)}, {v(st)}, {v(st + 1)}')
    for sh in (8, 4, 2, 1):
        I(f'v_add_f32_dpp {v(st)}, {v(st)}, {v(st)} row_ror:{sh} row_mask:0xf bank_mask:0xf')
    I('s_mov_b32 exec_lo, 0x00010001')
    I('s_mov_b32 exec_hi, 0x00010001')
    I(f'buffer_store_dword {v(st)}, {v(vsa)}, {WS}, s{S_T0} offen sc1')
    I('s_mov_b64 exec, -1')
    x2store(0, xt)

    def wtrans():
        A.wait_vm('wt')
        A.wait_lg()
        I(f's_cmp_ge_u32 s2, 192')
        I('s_cbranch_scc1 L_wo_rd')
        for f_ in range(2):
            for z in range(2):
                A._emit(Ins(f'ds_read_b64_tr_b16 {v(xs + 4 * f_ + 2 * z, 2)}, {v(vwr)} offset:{1024 * z + 32 * f_}'))
        I('s_branch L_w_rd')
        A.label('L_wo_rd')
        for f_ in range(2):
            for z in range(2):
                I(f'ds_read_b64_tr_b16 {v(xs + 4 * f_ + 2 * z, 2)}, {v(vwr + 1)} offset:{1024 * f_ + 128 * z}')
        A.label('L_w_rd')
        for f_ in range(2):
            I(f'buffer_store_dwordx4 {v(xs + 4 * f_, 4)}, {v(V_L16)}, {WS}, s{SC + f_} offen sc1', tag='wtst')
    if not W1B:
        wtrans()
    flag = pf + 3
    I(f'global_load_dword {v(flag)}, {v(zero4)}, {s(S_DBG, 2)} sc1', tag='flag')
    if WLATE:
        ld_w()
    stamp('a_stored')
    if '--latepage' in sys.argv:
        A.raw('#page')
        A.raw('#seg s0')
        A.raw('#touch s0')

    if '--seq' in sys.argv:
        for nm, n in (('par', 13), ('wpf', 11), ('zero', 10), ('st', 9), ('x2', 1), ('flag', 0)):
            A._wait(vm=n)
            stamp('b_' + nm)

    def arrive1():
        stamp('b_pre')
        A.wait_vm('flag')
        stamp('a_drained')
        global_arrive(first=(flag, zero4))
        stamp('arr1')
    hooks = {KG_ARR: [arrive1]}
    kgen(par, kg, hooks)
    if W1B and WLATE < 2:
        wtrans()
        stamp('a_wtr')
    P.free(st, 4), P.free(xt, 8), P.free(zero4, 4), P.free(pf, 4), P.free(vws, 2), P.free(vsa), P.free(vtr)
    for r in f:
        P.free(r)
    poll_start(1)
    A.barrier()
    kgen2(kg)
    A.wait_vm('wtst')

    def fin():
        if W1B and WLATE == 2:
            wtrans()
            stamp('a_wtr')
        P.free(xs, 8), P.free(vwr, 2)
    return kg, gi, fin


def x2store(layer, d):
    I(f's_mov_b32 s{S_T0}, {hex(WS_X2[layer])}')
    for i in range(8):
        I(f'buffer_store_dword {v(d + i)}, {v(V_X2ST)}, {WS}, s{S_T0} offen sc1')
        if i < 7:
            I(f's_add_u32 s{S_T0}, s{S_T0}, 8192')


def kgen(par, kg, hooks):
    LOG2E = math.log2(math.e)
    A.wait_lg()
    I(f's_lshl_b32 s{S_T0}, s{S_D}, 16')
    I(f's_and_b32 s{S_T1}, s{S_D}, 0xffff0000')
    I(f's_lshl_b32 s{S_D}, s{S_D + 1}, 16')
    I(f's_and_b32 s{S_D + 1}, s{S_D + 1}, 0xffff0000')
    I(f's_cmp_ge_u32 s{S_W}, 2')
    I(f's_cselect_b32 s{S_T0}, s{S_T1}, s{S_T0}')
    dt = par + 6
    I(f'v_mov_b32 {v(dt)}, s{S_T0}')
    I(f'v_mul_f32 {v(dt)}, s{S_EXP}, {v(dt)}')
    I(f'v_exp_f32 {v(dt)}, {v(dt)}')
    for i in range(6):
        I(f'v_lshlrev_b32 {v(par + i)}, 16, {v(par + i)}')
    I(f'v_cvt_pk_bf16_f32 {v(dt)}, {v(dt)}, {v(dt)}')
    I(f'v_and_b32 {v(dt)}, 0xffff0000, {v(dt)}')
    z, Bc, Cc = par, par + 2, par + 4
    pk('mul', v(z, 2), (v(z, 2), 'p'), bc(dt))
    pk('mul', v(Bc, 2), (v(Bc, 2), 'p'), bc(dt))
    tmp = P.alloc(2, 2)
    CB = P.alloc(2, 2)
    cmul(CB, Cc, Bc, tmp)
    E = {}
    for rho in (1, 8, 64, 256):
        e = P.alloc(2, 2)
        E[rho] = e
        I(f'v_mul_f32 {v(tmp)}, {f32(rho * LOG2E)}, {v(z)}')
        I(f'v_mul_f32 {v(tmp + 1)}, {f32(rho / (2 * math.pi))}, {v(z + 1)}')
        I(f'v_exp_f32 {v(tmp)}, {v(tmp)}')
        I(f'v_fract_f32 {v(tmp + 1)}, {v(tmp + 1)}')
        I(f'v_cos_f32 {v(e)}, {v(tmp + 1)}')
        I(f'v_sin_f32 {v(e + 1)}, {v(tmp + 1)}')
        pk('mul', v(e, 2), (v(e, 2), 'p'), bc(tmp))
    pkr = [P.alloc() for _ in range(2)]
    cnt = [0]

    def put(r, neg):
        row = cnt[0]
        cnt[0] += 1
        if r is None:
            I(f'v_mov_b32 {v(pkr[row & 1])}, 0x3f80')
        else:
            I(f'v_cvt_pk_bf16_f32 {v(pkr[row & 1])}, {v(r)}, {"-" if neg else ""}{v(r + 1)}')
        if row & 1:
            o0 = (KG_ROW // 4) * (row & 2)
            I(f'ds_write2_b32 {v(kg["w"])}, {v(pkr[0])}, {v(pkr[1])} offset0:{o0} offset1:{o0 + KG_ROW // 4}')
            if row & 2:
                I(f'v_add_u32 {v(kg["w"])}, {4 * KG_ROW}, {v(kg["w"])}')
        elif row == 52:
            I(f'ds_write_b32 {v(kg["w"])}, {v(pkr[0])}')
        for th in hooks.pop(cnt[0], []):
            th()
    for rho, x, y in ((128, 64, 64), (192, 128, 64), (2, 1, 1), (4, 2, 2)):
        E[rho] = P.alloc(2, 2)
        cmul(E[rho], E[x], E[y], tmp)
    cur = P.alloc(2, 2)
    o = P.alloc(2, 2)
    put(None, False)
    for m in (1, 2, 3):
        put(E[64 * m], False)
    for j in range(1, 8):
        if j == 1:
            g = E[8]
        elif j == 2:
            cmul(cur, E[8], E[8], tmp)
            g = cur
        else:
            cmul(cur, cur, E[8], tmp)
        put(g, False)
        for m in (1, 2, 3):
            cmul(o, g, E[64 * m], tmp)
            put(o, False)
    put(CB, True)
    for j in range(1, 8):
        cmul(cur, CB if j == 1 else cur, E[1], tmp)
        put(cur, True)
    U = CB
    cmul(U, U, E[256], tmp)
    put(U, True)
    for j in range(1, 4):
        cmul(cur, U if j == 1 else cur, E[2], tmp)
        put(cur, True)
    for j in range(2):
        cmul(U, U, E[256], tmp)
        put(U, True)
        cmul(cur, U, E[4], tmp)
        put(cur, True)
    for j in range(5):
        cmul(U, U, E[256], tmp)
        put(U, True)
    for r in list(E.values()) + [tmp, CB, cur, o]:
        P.free(r, 2)
    P.free(pkr[0]), P.free(pkr[1])
    P.free(par, 8)
    assert not hooks
    stamp('a_kg1')


def kgen2(kg):
    d0, d1 = P.alloc(4, 2), P.alloc(4, 2)
    mf = []
    for st in range(8):
        for tl, d in ((0, d0), (1, d1)):
            def em(reg, st=st, tl=tl, d=d):
                c = '0' if st == 0 else v(d, 4)
                I(f'v_mfma_f32_16x16x32_bf16 {v(d, 4)}, {v(reg[("a", tl, st)], 4)}, {v(reg[("g", st)], 4)}, {c}')
            mf.append((em, [('a', tl, st), ('g', st)]))

    def loader(k, r):
        ko = KG_W * (k[-1] >> 2) + 64 * (k[-1] & 3)
        if k[0] == 'g':
            return [f'ds_read_b128 {v(r, 4)}, {v(kg["g"])} offset:{ko}']
        base = kg['a0'] if k[1] == 0 else kg['a1']
        return [f'ds_read_b128 {v(r, 4)}, {v(base)} offset:{(32 + 16 * k[1]) * KG_ROW + ko}']
    stream(mf, loader, 15, 12, rate=2, burst=15)
    I(f'ds_write_b64 {v(kg["t1"])}, {v(d0, 2)}')
    I(f'ds_write_b64 {v(kg["t2"])}, {v(d0 + 2, 2)}')
    I(f'v_add_u32 {v(kg["t3"])}, {4 * TB[3]}, {v(kg["t3"])}')
    I('s_mov_b32 exec_hi, 0')
    for r in (0, 2):
        I(f'ds_write2_b32 {v(kg["t3"])}, {v(d1 + r)}, {v(d1 + r + 1)} offset0:{32 * r} offset1:{32 * r + 32}')
    I('s_mov_b64 exec, -1')
    P.free(d0, 4), P.free(d1, 4)
    stamp('a_kg2')


def kgen3(kg, gi):
    for u in range(17):
        I(f'ds_read_b32 {v(gi + u)}, {v(gi + u)}')
    c = P.alloc(16, 2)
    for cp in range(2):
        for m in range(8):
            I(f'v_cvt_pk_bf16_f32 {v(c + 8 * cp + m)}, {v(gi + 2 * m + cp)}, {v(gi + 2 * m + cp + 1)}')
        for hq in range(2):
            I(f'ds_write_b128 {v(kg["rk"])}, {v(c + 8 * cp + 4 * hq, 4)} offset:{4160 * cp + 16 * hq}')
    A.barrier(lg=False)
    P.free(c, 16), P.free(gi, 18)
    for r in kg.values():
        P.free(r)
    stamp('a_kgen')


def conv(layer, kg, gi, wl):
    xd = P.alloc(8, 2)
    sm = P.alloc(8, 2)
    sq = P.alloc(8, 2)
    for i in range(2):
        I(f'buffer_load_dwordx4 {v(sm + 4 * i, 4)}, {v(V_CVL)}, {WS}, s{S_T1} offen offset:{1024 * i} sc1')
        I(f'buffer_load_dwordx4 {v(sq + 4 * i, 4)}, {v(V_CVL)}, {WS}, s{S_T2} offen offset:{1024 * i} sc1')
        I(f'buffer_load_dwordx4 {v(xd + 4 * i, 4)}, {v(V_CVL)}, {WS}, s{S_T3} offen offset:{1024 * i} sc1')
        if i == 0 and '--nocvb' not in sys.argv:
            A.barrier()
    stamp(f'conv{layer}_iss')
    if layer == 0:
        kg.pop('fin')()
        if W1B and WLATE < 2:
            arrive_1b()
        kgen3(kg, gi)
    base = P.alloc(16, 2)
    hh = P.alloc(4, 2)
    hp = P.alloc(4, 2)
    LN = s(S_LN, 2)
    for i in range(2):
        m, q, x = sm + 4 * i, sq + 4 * i, xd + 4 * i
        for j in (0, 2):
            pk('mul', v(m + j, 2), (v(m + j, 2), 'p'), (LN, 'l'))
        for j in (0, 2):
            pk('fma', v(q + j, 2), (v(q + j, 2), 'p'), (LN, 'l'), (LN, 'h'))
        for j in (0, 2):
            pk('fma', v(q + j, 2), (v(m + j, 2), 'p', 'b'), (v(m + j, 2), 'p'), (v(q + j, 2), 'p'))
        for j in range(4):
            I(f'v_max_f32 {v(q + j)}, s{S_LN + 1}, {v(q + j)}')
        for j in range(4):
            I(f'v_rsq_f32 {v(q + j)}, {v(q + j)}')
        for c in range(2):
            b = base + 8 * i + 4 * c
            for j in range(4):
                if c == 0:
                    I(f'v_lshlrev_b32 {v(b + j)}, 16, {v(x + j)}')
                else:
                    I(f'v_and_b32 {v(b + j)}, 0xffff0000, {v(x + j)}')
            for j in (0, 2):
                pk('add', v(hh + j, 2), (v(b + j, 2), 'p'), (v(m + j, 2), 'p', 'b'))
            for j in (0, 2):
                pk('mul', v(hh + j, 2), (v(hh + j, 2), 'p'), (v(q + j, 2), 'p'))
            for j in (0, 2):
                I(f'v_cvt_pk_bf16_f32 {v(hp + 2 * c + j // 2)}, {v(hh + j)}, {v(hh + j + 1)}')
            I(f'ds_write_b64 {v(V_HW)}, {v(hp + 2 * c, 2)} offset:{4608 * c + 512 * i}')
            for j in (0, 2):
                pk('fma', v(b + j, 2), (v(hh + j, 2), 'p'), (s(S_D, 2), 'h' if c else 'l'), (v(b + j, 2), 'p'))
    P.free(xd, 8), P.free(sm, 8), P.free(sq, 8), P.free(hh, 4), P.free(hp, 4)
    if layer == 0 and W1B and WLATE < 2:
        poll_start('1b')
    A.wait_vm('wtst')
    A.barrier()
    if layer == 0 and W1B and WLATE == 2:
        arrive_1b()
    stamp(f'conv{layer}_h')
    acc = P.alloc(32, 2)
    mf = []
    seen = set()
    fin = {}
    for cc in range(4):
        if cc < 3:
            seq = [(p, n) for p in range(7, -1, -1) for n in range(p, 8)]
        else:
            seq = [(p, n) for n in range(8) for p in range(n + 1)]
        for (p, n) in seq:
            def em(reg, cc=cc, p=p, n=n, fst=(n not in seen)):
                d = v(acc + 4 * n, 4)
                I(f'v_mfma_f32_16x16x32_bf16 {d}, {v(reg[("A", cc, p)], 4)}, {v(reg[("B", cc, n - p)], 4)}, {"0" if fst else d}')
            seen.add(n)
            mf.append((em, [('A', cc, p), ('B', cc, n - p)]))
            fin[n] = len(mf) - 1

    def loader(k, r):
        _, cc, x = k
        if k[0] == 'B':
            return [f'ds_read_b128 {v(r, 4)}, {v(V_CB)} offset:{512 * x + 64 * (3 - cc)}']
        o = 128 * (1 - (x & 1)) + 16 * (3 - cc)
        return [f'ds_read2_b32 {v(r, 2)}, {v(V_CA[x >> 1])} offset0:{o} offset1:{o + 1}',
                f'ds_read2_b32 {v(r + 2, 2)}, {v(V_CA[x >> 1])} offset0:{o + 2} offset1:{o + 3}']
    fill = {}
    for n in range(8):
        at = min(fin[n] + 7, len(mf) - 1)
        fill.setdefault(at, []).append(lambda reg, n=n: I(f'ds_write_b128 {v(V_EXW)}, {v(acc + 4 * n, 4)} offset:{1280 * n}'))
    if SPEC:
        pz = P.alloc(2, 2)
        spread(fill, xt_poison(layer, pz), 3, 3)

        def early(reg):
            A.wait_vm('poison')
            global_arrive(lg=False)
        if SPEC > 9:
            fill.setdefault(SPEC, []).append(early)
    if wl and W1B:
        if WLATE == 2:
            fill.setdefault(W1B_GAP - 38, []).append(lambda reg: poll_start('1b'))
        fill.setdefault(W1B_GAP, []).append(lambda reg: wait_1b(4 if SPEC and WLATE < 2 else 0))
        spread(fill, wl, W1B_GAP + 2, (126 - W1B_GAP) / len(wl))
    elif wl:
        spread(fill, wl, W_C0, W_CSTEP)
    if layer == 0 and LATE_IN:
        with Capture() as ls:
            keep = setup_late(free=False)
        free_gaps = [m for m in range(14, 140) if m not in fill]
        for i, t in enumerate(ls):
            fill.setdefault(free_gaps[(i * len(free_gaps)) // len(ls)], []).append(lambda reg, t=t: I(t))
    stream(mf, loader, 20, 40, fill=fill, burst=12)
    P.free(acc, 32)
    if SPEC:
        P.free(pz, 2)
        A.wait_vm('poison')
    if layer == 0 and LATE_IN:
        for r in keep:
            P.free(r)
    A.barrier()
    stamp(f'conv{layer}_mm')
    ex = P.alloc(32, 2)
    for i in range(2):
        for u in range(4):
            I(f'ds_read_b128 {v(ex + 16 * i + 4 * u, 4)}, {v(V_EXR)} offset:{10240 * u + 1280 * i}')
    if SPEC == 1:
        global_arrive(bar=False)
    I(f's_mov_b32 s{S_T0}, {hex(WS_XT[layer])}')
    I(f's_mov_b32 s{S_T1}, {hex(WS_XT[layer] + 262144)}')
    for i in range(2):
        for c in range(2):
            b = base + 8 * i + 4 * c
            e = ex + 16 * i + 8 * c
            for j in (0, 2):
                pk('add', v(b + j, 2), (v(b + j, 2), 'p'), (v(e + j, 2), 'p'))
            for j in (0, 2):
                pk('add', v(b + j, 2), (v(b + j, 2), 'p'), (v(e + 4 + j, 2), 'p'))
            for j in (0, 2):
                I(f'v_cvt_pk_bf16_f32 {v(e + j // 2)}, {v(b + j)}, {v(b + j + 1)}')
            I(f'buffer_store_dwordx2 {v(e, 2)}, {v(V_XTST)}, {WS}, s{S_T0 + i} offen offset:{128 * c} sc1', tag='xtst')
    P.free(ex, 32), P.free(base, 16)
    stamp(f'conv{layer}_st')


def phi(x, tmp):
    EX = s(S_EXP, 2)
    for j in (0, 2):
        pk('fma', v(tmp + j, 2), (v(x + j, 2), 'p'), (EX, 'l'), (EX, 'h'))
    for j in range(4):
        I(f'v_exp_f32_e64 {v(tmp + j)}, {v(tmp + j)} clamp')
    for j in range(4):
        I(f'v_max_f32 {v(x + j)}, s{S_E6}, {v(x + j)}')
    for j in (0, 2):
        pk('add', v(x + j, 2), (v(x + j, 2), 'p'), (v(tmp + j, 2), 'p'))


DOTSTATS = '--dot' in sys.argv


def p3(layer, wl1, wl2):
    A.label(f'L_redo{layer}')
    for ck in range(4):
        if ck == 0:
            I(f's_lshl_b32 m0, s{S_W}, 12')
        else:
            I('s_add_u32 m0, m0, 16384')
        I(f's_mov_b32 s{S_T0}, {hex(WS_XT[layer] + ck * 16384)}')
        for j in range(4):
            I(f'buffer_load_dwordx4 {v(V_XTLD)}, {WS}, s{S_T0} offen offset:{1024 * j} sc1 lds', tag=f'xt{ck}')
        if layer == 0 and CS_C0 and ck in (1, 2):
            colsums([ck])
    acc = P.alloc(32, 4)
    ss = P.alloc(8, 4)

    def loader(k, r):
        st, i = k
        return [f'ds_read_b64_tr_b16 {v(r + 2 * z, 2)}, {v(V_XT[i])} offset:{4096 * st + 2048 * z}' for z in range(2)]
    mf = []
    fill = {}
    for st in range(16):
        for i in range(4):
            for y in (1, 2):
                def em(reg, st=st, i=i, y=y):
                    d = v(acc + 16 * (y - 1) + 4 * i, 4)
                    I(f'v_mfma_f32_16x16x32_bf16 {d}, {v(reg[(st, i)], 4)}, {wq_reg(y, st)}, {"0" if st == 0 else d}')
                mf.append((em, [(st, i)]))
            if i == 0 and not DOTSTATS:
                for y in range(2):
                    def em(reg, st=st, y=y):
                        d = v(ss + 4 * y, 4)
                        x = v(reg[(st, 0)], 4)
                        I(f'v_mfma_f32_16x16x32_bf16 {d}, {v(V_ONES, 4) if y else x}, {x}, {"0" if st == 0 else d}')
                    mf.append((em, [(st, 0)]))
            if i == 0 and DOTSTATS:
                def dots(reg, st=st):
                    for j in range(8):
                        x = v(reg[(st, 0)] + j // 2)
                        d = v(ss + (j & 1))
                        c = '0' if (st == 0 and j < 2) else d
                        I(f'v_dot2_f32_bf16 {d}, {x}, {x if j & 1 else s(S_ONES)}, {c}')
                fill.setdefault(len(mf) - 2, []).append(dots)
    per = len(mf) // 16
    if wl1:
        spread(fill, wl1, 5 * per + 3, (10.5 * per) / len(wl1))

    def mkgate(ck):
        def g():
            A.wait_vm(f'xt{ck}')
            A.barrier(lg=(ck == 0))
            if ck == 0:
                stamp(f'p3_{layer}_c0')
            if ck == 1 and SPEC:
                I(f's_cmp_lg_u32 s{S_REDO}, 1')
                I(f's_cbranch_scc1 L_nofb{layer}')
                I(f's_mov_b32 s{S_T0}, {hex(WS_FB)}')
                A._emit(Ins(f'v_mov_b32 {v(V_PA)}, 1'))
                I('s_mov_b64 exec, 1')
                A.cond = True
                I(f'buffer_atomic_add {v(V_PA)}, {v(V_ARR)}, {WS}, s{S_T0} offen')
                A.cond = False
                I('s_mov_b64 exec, -1')
                A.label(f'L_nofb{layer}')
        return g
    gate = {(4 * ck, 0): mkgate(ck) for ck in range(4)}
    stream(mf, loader, 9, per + 2, fill=fill, gate=gate, burst=8)
    stamp(f'p3_{layer}_mm')
    if DOTSTATS:
        for r in (0, 1):
            I(f'v_mov_b32 {v(ss + 2 + r)}, {v(ss + r)}')
        for r in (0, 1):
            I(f'v_permlane32_swap_b32 {v(ss + r)}, {v(ss + 2 + r)}')
        pk('add', v(ss, 2), (v(ss, 2), 'p'), (v(ss + 2, 2), 'p'))
        for r in (0, 1):
            I(f'v_mov_b32 {v(ss + 2 + r)}, {v(ss + r)}')
        for r in (0, 1):
            I(f'v_permlane16_swap_b32 {v(ss + r)}, {v(ss + 2 + r)}')
        pk('add', v(ss, 2), (v(ss, 2), 'p'), (v(ss + 2, 2), 'p'))
        pk('mul', v(ss, 2), (v(ss, 2), 'p'), (s(S_LN, 2), 'l'))
        I(f'v_fma_f32 {v(ss + 1)}, -{v(ss)}, {v(ss)}, {v(ss + 1)}')
        I(f'v_max_f32 {v(ss + 1)}, 0, {v(ss + 1)}')
        I(f'v_add_f32 {v(ss + 1)}, s{S_LN + 1}, {v(ss + 1)}')
        I(f'v_rsq_f32 {v(ss + 1)}, {v(ss + 1)}')
        I(f'v_mul_f32 {v(ss)}, {v(ss)}, {v(ss + 1)}')
        I(f'ds_write2st64_b32 {v(V_SW)}, {v(ss + 1)}, {v(ss)} offset0:0 offset1:1')
    else:
        I(f'v_cndmask_b32 {v(ss)}, {v(ss)}, {v(ss + 1)}, {s(S_M1, 2)}')
        I(f'v_cndmask_b32 {v(ss + 2)}, {v(ss + 2)}, {v(ss + 3)}, {s(S_M1, 2)}')
        I(f'v_mul_f32 {v(ss + 4)}, s{S_LN}, {v(ss + 4)}')
        I(f'v_cndmask_b32 {v(ss)}, {v(ss)}, {v(ss + 2)}, {s(S_M2, 2)}')
        I(f'v_mul_f32 {v(ss + 1)}, {v(ss + 4)}, {v(ss + 4)}')
        I(f'v_fma_f32 {v(ss + 1)}, {v(ss)}, s{S_LN}, -{v(ss + 1)}')
        I(f'v_max_f32 {v(ss + 1)}, 0, {v(ss + 1)}')
        I(f'v_add_f32 {v(ss + 1)}, s{S_LN + 1}, {v(ss + 1)}')
        I(f'v_rsq_f32 {v(ss + 1)}, {v(ss + 1)}')
        I('s_mov_b32 exec_lo, 0x00f0000f')
        I('s_mov_b32 exec_hi, 0xf0000f00')
        I(f'v_mul_f32 {v(ss)}, {v(ss + 4)}, {v(ss + 1)}')
        I(f'ds_write2st64_b32 {v(V_SW)}, {v(ss + 1)}, {v(ss)} offset0:0 offset1:1')
        I('s_mov_b64 exec, -1')
    ta = P.alloc(6, 2)
    for i in range(1, 4):
        I(f'v_xor_b32 {v(ta + 2 * i - 2)}, {64 * i}, {v(V_SR4)}')
        I(f'v_xor_b32 {v(ta + 2 * i - 1)}, {64 * i}, {v(V_SR1)}')


    def csq(lo, hi):
        if layer == 0:
            for st in range(lo, hi):
                I(f'v_mfma_f32_16x16x32_bf16 {v(V_CSQ, 4)}, {wq_reg(0, st)}, {v(V_ONES, 4)}, {v(V_CSQ, 4) if st else 0}')
    csq(0, 6)
    A.barrier()
    stamp(f'p3_{layer}_st')
    P.free(ss, 8)
    r4 = P.alloc(32, 4)
    r1 = P.alloc(8, 2)
    for i in range(4):
        a4 = ta + 2 * i - 2 if i else V_SR4
        I(f'ds_read_b128 {v(r4 + 8 * i + 4, 4)}, {v(a4)} offset:256')
        I(f'ds_read_b128 {v(r4 + 8 * i, 4)}, {v(a4)}')
    for i in range(4):
        a1 = ta + 2 * i - 1 if i else V_SR1
        I(f'ds_read2st64_b32 {v(r1 + 2 * i, 2)}, {v(a1)} offset0:0 offset1:1')
    P.free(ta, 6)
    csq(6, 16)
    tmp = P.alloc(4, 2)
    fk = P.alloc(8, 4)
    fv = P.alloc(8, 4)
    dkv, dz = P.alloc(4, 4), P.alloc(4, 4)
    E6 = s(S_E6, 2)
    for i in range(4):
        r, rm = r4 + 8 * i, r4 + 8 * i + 4
        k_, v_ = acc + 4 * i, acc + 16 + 4 * i
        for j in (0, 2):
            pk('fma', v(tmp + j, 2), (v(rm + j, 2), 'p', 'b'), bc(V_CSKV), (E6, 'p'))
        for j in (0, 2):
            pk('fma', v(k_ + j, 2), (v(k_ + j, 2), 'p'), (v(r + j, 2), 'p'), (v(tmp + j, 2), 'p'))
        for j in (0, 2):
            pk('mul', v(v_ + j, 2), (v(v_ + j, 2), 'p'), (v(r + j, 2), 'p'))
        for j in (0, 2):
            pk('fma', v(v_ + j, 2), (v(rm + j, 2), 'p', 'b'), bc(V_CSKV + 1), (v(v_ + j, 2), 'p'))
        phi(k_, tmp)
        for j in (0, 2):
            I(f'v_cvt_pk_bf16_f32 {v(fv + 2 * i + j // 2)}, {v(v_ + j)}, {v(v_ + j + 1)}')
        for j in (0, 2):
            I(f'v_cvt_pk_bf16_f32 {v(fk + 2 * i + j // 2)}, {v(k_ + j)}, {v(k_ + j + 1)}')
    if SPEC:
        I(f'v_cmp_u_f32 vcc, {v(r1 + 1)}, {v(r1 + 3)}')
        I(f'v_cmp_u_f32 s[{R_WQ}:{R_WQ + 1}], {v(r1 + 5)}, {v(r1 + 7)}')
        I(f's_or_b64 vcc, vcc, s[{R_WQ}:{R_WQ + 1}]')
        I(f's_cbranch_scc1 L_slow{layer}')
        A.label(f'L_ok{layer}')
    stamp(f'p3_{layer}_kv')
    I(f's_mov_b32 s{S_T2}, {hex(WS_KV[layer])}')
    I(f's_mov_b32 s{S_T0}, {hex(WS_KV[layer] + 32768)}')
    for hf in range(2):
        I(f'v_mfma_f32_16x16x32_bf16 {v(dkv, 4)}, {v(fv + 4 * hf, 4)}, {v(fk + 4 * hf, 4)}, {v(dkv, 4) if hf else 0}')
    for hf in range(2):
        I(f'v_mfma_f32_16x16x32_bf16 {v(dz, 4)}, {v(V_ONES, 4)}, {v(fk + 4 * hf, 4)}, {v(dz, 4) if hf else 0}')
    P.free(r4, 32), P.free(fk, 8), P.free(fv, 8), P.free(acc, 32)

    def atomics():
        for r in range(4):
            I(f'buffer_atomic_add_f32 {v(dkv + r)}, {v(V_KVST)}, {WS}, s{S_T2} offen offset:{64 * r}')
        I('s_mov_b64 exec, 0xffff')
        I(f'buffer_atomic_add_f32 {v(dz)}, {v(V_ZST)}, {WS}, s{S_T0} offen')
        I('s_mov_b64 exec, -1')
        stamp(f'p3_{layer}_atom')
    acc = P.alloc(16, 4)
    mf = []
    fill = {}
    for st in range(16):
        for i in range(4):
            def em(reg, st=st, i=i):
                d = v(acc + 4 * i, 4)
                I(f'v_mfma_f32_16x16x32_bf16 {d}, {wq_reg(0, st)}, {v(reg[(st, i)], 4)}, {"0" if st == 0 else d}')
            mf.append((em, [(st, i)]))
    if wl2:
        spread(fill, wl2, 4, 56 / len(wl2), solo=False)
    stream(mf, loader, 8, 6, fill=fill, rate=2, burst=10, pre=atomics)
    P.free(dkv, 4), P.free(dz, 4)
    stamp(f'p3_{layer}_qmm')
    I(f's_mov_b32 s{S_T0}, {hex(WS_PQ[layer])}')
    ta = P.alloc(4)
    for i in range(1, 4):
        I(f'v_xor_b32 {v(ta + i)}, {(i >> 1) * 32768 + (i & 1) * 512}, {v(V_PQST)}')
    for i in range(4):
        q_ = acc + 4 * i
        rr = v(r1 + 2 * i, 2)
        for j in (0, 2):
            pk('fma', v(tmp + j, 2), (rr, 'h', 'b'), (v(V_CSQ + j, 2), 'p'), (E6, 'p'))
        for j in (0, 2):
            pk('fma', v(q_ + j, 2), (v(q_ + j, 2), 'p'), (rr, 'l'), (v(tmp + j, 2), 'p'))
        phi(q_, tmp)
        for j in (0, 2):
            I(f'v_cvt_pk_bf16_f32 {v(q_ + j // 2)}, {v(q_ + j)}, {v(q_ + j + 1)}')
        I(f'buffer_store_dwordx2 {v(q_, 2)}, {v(ta + i if i else V_PQST)}, {WS}, s{S_T0} offen sc1', tag='pqst')
    stamp(f'p3_{layer}_q')
    P.free(r1, 8), P.free(tmp, 4), P.free(acc, 16), P.free(ta, 4)


P4_UP = int(([x[6:] for x in sys.argv if x.startswith('--p4up')] or ['3'])[0])


P4FL = '' if '--nosc1' in sys.argv else 'sc1'


OUTFL = ([x[6:] for x in sys.argv if x.startswith('--out=')] or [''])[0].replace('+', ' ')


P4_EARLY = [int(c) for c in ([x[8:] for x in sys.argv if x.startswith('--p4ear=')] or ['9'])[0]]


def p4_res():
    res = P.alloc(8, 2)
    for j in range(4):
        I(f'ds_read_b64_tr_b16 {v(res + 2 * j, 2)}, {v(V_RES[j & 1])} offset:{512 * j}')
    return res


def p4_pre(res, layer):
    I(f's_mov_b32 s{S_T1}, {hex(WS_KV[layer])}')
    I(f's_mov_b32 s{S_T2}, {hex(WS_PQ[layer])}')
    I(f's_mov_b32 s{S_T3}, {hex(WS_KV[layer] + 4096)}')
    I(f's_mov_b32 s{S_T4}, {hex(WS_PQ[layer] + 4096)}')
    acc = P.alloc(16, 2)
    ad = [P.alloc() for _ in range(3)]
    for b in range(1, 4):
        I(f'v_xor_b32 {v(ad[b - 1])}, {8192 * b}, {v(V_OFW)}')
    for j in range(8):
        I(f'v_lshlrev_b32 {v(acc + 2 * j)}, 16, {v(res + j)}')
        I(f'v_and_b32 {v(acc + 2 * j + 1)}, 0xffff0000, {v(res + j)}')
    P.free(res, 8)
    return acc, ad


def p4(layer, acc, ad):
    zf = P.alloc(4, 2)
    kv = P.alloc(32, 2)
    pq = P.alloc(32, 2)
    D = [P.alloc(16, 2), P.alloc(16, 2)]
    frs = [P.alloc(4, 2) for _ in range(6)]
    fr = frs[0]

    def loads(pp):
        out = []
        for j in range(2):
            out.append(f'buffer_load_dwordx4 {v(kv + 8 * pp + 4 * j, 4)}, {v(V_KVLD)}, {WS}, s{S_T3 if pp >> 1 else S_T1} offen offset:{2048 * (pp & 1) + 1024 * j} sc1')
        for j in range(2):
            out.append(f'buffer_load_dwordx4 {v(pq + 8 * pp + 4 * j, 4)}, {v(V_PQLD)}, {WS}, s{S_T4 if pp >> 1 else S_T2} offen offset:{2048 * (pp & 1) + 1024 * j} sc1')
        return out
    I(f'buffer_load_dwordx4 {v(fr, 4)}, {v(V_ZLD)}, {WS}, s{S_T1} offen sc1')
    for pp in range(P4_UP):
        for i, t in enumerate(loads(pp)):
            I(t)
            if pp == 0 and i == 1:
                A.barrier()
        if pp < P4_UP - 1:
            A.barrier()
    late = [t for pp in range(P4_UP, 4) for t in loads(pp)]
    stamp(f'p4_{layer}_iss')
    for j in range(4):
        I(f'v_cvt_pk_bf16_f32 {v(zf + j)}, {v(fr + 2 * (j & 1))}, {v(fr + 1 + 2 * (j & 1))}')
    stamp(f'p4_{layer}_z')
    MK = s(S_MASK, 2)

    def prep(pp):
        x = kv + 8 * pp
        o = [f'v_cvt_pk_bf16_f32 {v(x + j)}, {v(x + 2 * j)}, {v(x + 2 * j + 1)}' for j in range(4)]
        if pp == 0:
            o += [f'v_permlane16_swap_b32 {v(zf + j)}, {v(zf + 2 + j)}' for j in range(2)]
        o += [f'v_cndmask_b32 {v(x + 4 + j)}, {v(zf + j)}, {v(x + j)}, {MK}' for j in range(4)]
        o += [f'v_cndmask_b32 {v(x + j)}, {v(x + j)}, {v(zf + j)}, {MK}' for j in range(4)]
        return o

    def mm(hh):
        I(f'v_mfma_f32_32x32x16_bf16 {v(D[hh & 1], 16)}, {v(kv + 4 * hh, 4)}, {v(pq + 4 * hh, 4)}, 0')

    def main_mm(hl, r):
        I(f'v_mfma_f32_32x32x16_bf16 {v(acc, 16)}, {wo_reg(hl)}, {v(r, 4)}, {v(acc, 16)}')

    def norm(pp):
        den = [D[o] + 8 * (1 - o) + 2 * pp + o for o in range(2)]
        out = []
        for o in range(2):
            num = D[o] + 8 * o
            of = pq + 8 * pp + 4 * o
            out.append(f'v_add_f32 {v(den[o])}, s{S_E6}, {v(den[o])}')
            out.append(f'v_rcp_f32 {v(den[o])}, {v(den[o])}')
            out += [f'v_mul_f32 {v(num + j)}, {v(den[o])}, {v(num + j)}' for j in range(8)]
            out += [f'v_cvt_pk_bf16_f32 {v(of + j)}, {v(num + 2 * j)}, {v(num + 2 * j + 1)}' for j in range(4)]
            out.append(f'ds_write_b128 {v(V_OFW)}, {v(of, 4)} offset:{2048 * pp + 1024 * o}')
        out[2:2] = [out.pop(15), out.pop(15)]
        return out

    def reads(pp):
        return [f'ds_read_b128 {v(frs[2 * (b - 1) + o], 4)}, {v(ad[b - 1])} offset:{2048 * pp + 1024 * o}' for b in range(1, 4) for o in range(2)]
    for t in prep(0):
        I(t)
    for pp in range(5):
        rd = reads(pp - 1) if pp else []
        tail = []
        if pp:
            tail = [(2 * pp - 2 + o, pq + 8 * pp - 8 + 4 * o) for o in range(2)]
            tail += [(8 * b + 2 * pp - 2 + o, frs[2 * (b - 1) + o]) for b in range(1, 4) for o in range(2)]
        if pp < 4:
            for o in range(2):
                mm(2 * pp + o)
                for t in rd[3 * o:3 * o + 3]:
                    I(t)
            while late:
                I(late.pop(0))
            stamp(f'p4_{layer}_m{pp}')
            va = norm(pp)
            nx = prep(pp + 1) if pp < 3 else []
            if pp in P4_EARLY:
                va = nx[:4] + va + nx[4:]
                cuts = (0, 6, 11, 16, 20, 21, 27, 33)
            else:
                va = va + nx
                cuts = (0, 1, 6, 11, 16, 22, 29, 34) if pp < 3 else (0, 1, 7, 12, 16, 22, 29)
            for i, t in enumerate(va):
                if i in cuts and tail:
                    if len(tail) == 6:
                        A.need(v(frs[2], 4))
                    if len(tail) == 3:
                        A.need(v(frs[5], 4))
                    main_mm(*tail.pop(0))
                I(t)
            for x in tail:
                main_mm(*x)
            A.barrier()
        else:
            for i, x in enumerate(tail):
                for t in rd[2 * i:2 * i + 2]:
                    I(t)
                main_mm(*x)
    P.free(zf, 4), P.free(kv, 32), P.free(pq, 32), P.free(D[0], 16), P.free(D[1], 16)
    for r in frs:
        P.free(r, 4)
    for r in ad:
        P.free(r)
    stamp(f'p4_{layer}_mm')
    o = P.alloc(8, 2)
    if layer == 0:
        I(f's_mov_b32 s{S_T1}, {hex(WS_ST[1])}')
    else:
        ta = P.alloc(3)
        I(f'v_and_b32 {v(ta)}, 31, {v(V_L)}')
        I(f'v_mul_u32_u24 {v(ta)}, 272, {v(ta)}')
        I(f'v_and_b32 {v(ta + 1)}, 0xff, {v(V_TILE)}')
        I(f'v_add_u32 {v(ta)}, {v(ta)}, {v(ta + 1)}')
        I(f'v_lshrrev_b32 {v(ta + 1)}, 4, v0')
        I(f'v_readfirstlane_b32 s{S_T0}, {v(V_TILE)}')
        I(f'v_and_b32 {v(ta + 2)}, 0xf0, {v(V_L16)}')
        I(f's_and_b32 s{S_T0}, s{S_T0}, 0xffffff00')
        I(f'v_mad_u32_u24 {v(o)}, {v(ta + 1)}, 17, 0')
        I(f'v_lshl_add_u32 {v(ta + 1)}, {v(ta + 1)}, 10, s{S_T0}')
        I(f'v_add_u32 {v(ta + 1)}, {v(ta + 1)}, {v(ta + 2)}')
        I(f'v_lshl_add_u32 {v(ta + 2)}, {v(o)}, 4, {v(ta + 2)}')
    for j in range(8):
        I(f'v_cvt_pk_bf16_f32 {v(o + j)}, {v(acc + 2 * j)}, {v(acc + 2 * j + 1)}')
    if layer == 0:
        ss = P.alloc(2, 2)
        for j in range(8):
            I(f'v_dot2_f32_bf16 {v(ss)}, {v(o + j)}, s{S_ONES}, {v(ss) if j else 0}')
            I(f'v_dot2_f32_bf16 {v(ss + 1)}, {v(o + j)}, {v(o + j)}, {v(ss + 1) if j else 0}')
        I(f'v_permlane32_swap_b32 {v(ss)}, {v(ss + 1)}')
        I(f'v_add_f32 {v(ss)}, {v(ss)}, {v(ss + 1)}')
        I(f'buffer_atomic_add_f32 {v(ss)}, {v(V_STAT)}, {WS}, s{S_T1} offen')
        x2store(1, o)
        P.free(ss, 2)
    elif '--dirout' in sys.argv:
        for j in range(2):
            I(f'global_store_dwordx4 {v(V_TILE)}, {v(o + 4 * j, 4)}, {s(S_OUT, 2)} offset:{16 * j} {OUTFL}')
        P.free(ta, 3)
    else:
        for j in range(2):
            I(f'ds_write_b128 {v(ta)}, {v(o + 4 * j, 4)} offset:{L_A + 16 * j}')
        I(f'v_add_u32 {v(ta)}, 16384, {v(ta + 1)}')
        A.barrier()
        for j in range(2):
            I(f'ds_read_b128 {v(o + 4 * j, 4)}, {v(ta + 2)} offset:{L_A + 16 * 272 * j}')
        for j in range(2):
            I(f'global_store_dwordx4 {v(ta + 1 - j)}, {v(o + 4 * j, 4)}, {s(S_OUT, 2)} {OUTFL}')
        P.free(ta, 3)
    P.free(o, 8), P.free(acc, 16)
    stamp(f'p4_{layer}_st')


def main():
    kg, gi, fin = prologue()
    kg['fin'] = fin
    order = [('q', y, st) for st in range(16) for y in (1, 2)] + [('q', 0, st) for st in range(16)] + [('o', h) for h in range(32)]
    wl = wloads(order)

    def take(n):
        out = wl[:n]
        del wl[:n]
        return out
    bar = 1
    for layer in range(2):
        I(f's_lshl_b32 s{S_T3}, s2, 13')
        I(f's_add_u32 s{S_T3}, s{S_T3}, {hex(WS_X2[layer])}')
        I(f's_mov_b32 s{S_T1}, {hex(WS_ST[layer])}')
        I(f's_mov_b32 s{S_T2}, {hex(WS_ST[layer] + 8192)}')
        stamp(f'pre_wait{bar}')
        global_wait(bar, started=(layer == 0))
        stamp(f'wait{bar}')
        conv(layer, kg, gi, take(WN[0]))
        if SPEC:
            poll_start(bar + 1)
        if layer == 0:
            for th in take(WN[1]):
                run_all(th)
            if not LATE_IN:
                setup_late()
        if not SPEC:
            A.wait_vm('xtst')
            global_arrive()
        bar += 1
        stamp(f'arr{bar}')
        if layer == 0:
            for th in take(WN[2]):
                run_all(th)
        if not SPEC:
            poll_start(bar)
        if layer == 0 and not CS_C0:
            colsums([1, 2])
        stamp(f'pre_wait{bar}')
        I(f's_mov_b32 s{S_REDO}, s{S_W}')
        global_wait(bar, started=True, gap=True)
        stamp(f'wait{bar}')
        p3(layer, take(WN[3]), take(WN[4]))
        for th in take(WN[5]):
            run_all(th)
        A.wait_vm('pqst')
        global_arrive()
        bar += 1
        stamp(f'arr{bar}')
        for th in take(99):
            run_all(th)
        if layer == 0:
            P.free(V_WLD, 2)
        poll_start(bar)
        acc, ad = p4_pre(p4_res(), layer)
        global_wait(bar, started=True)
        stamp(f'wait{bar}')
        p4(layer, acc, ad)
        if layer == 0:
            A.wait_vm()
            global_arrive()
            bar += 1
    if DIAG:
        A.wait_vm()
        stamp('end')
        A._wait(lg=0)
        t = P.alloc(2)
        I(f's_lshl_b32 s{S_T0}, s2, 2')
        I(f's_add_u32 s{S_T0}, s{S_T0}, s{S_W}')
        I(f's_lshl_b32 s{S_T0}, s{S_T0}, 7')
        I(f's_add_u32 s{S_T0}, s{S_T0}, {hex(WS_DIAG)}')
        I(f'v_mov_b32 {v(t + 1)}, 0')
        I('s_mov_b64 exec, 1')
        for k in range(nstamp[0]):
            I(f'v_mov_b32 {v(t)}, s{S_STAMP + 2 * k}')
            I(f'buffer_store_dword {v(t)}, {v(t + 1)}, {WS}, s{S_T0} offen offset:{4 * k}')
        pr = [x for x in sys.argv if x.startswith('--probe=')]
        if pr:
            nm = pr[0][8:]
            k = stamp_names.index(nm)
            I(f's_add_u32 s{S_T1}, s{S_STAMP + 2 * k}, 6000')
            A.label('L_probe')
            I('s_memrealtime s[4:5]')
            A._wait(lg=0)
            I(f's_sub_u32 s{S_T0}, s4, s{S_T1}')
            I(f's_cmp_lt_i32 s{S_T0}, 0')
            I('s_cbranch_scc1 L_probe')
        I(f's_lshl_b32 s{S_T0}, s2, 2')
        I(f's_add_u32 s{S_T0}, s{S_T0}, s{S_W}')
        I(f's_cmp_lg_u32 s{S_T0}, 400')
        I('s_cbranch_scc1 L_end')
        sel = list(range(1, nstamp[0]))
        for j, k in enumerate(sel):
            I(f's_sub_u32 s{S_T0}, s{S_STAMP + 2 * k}, s{S_STAMP}')
            I(f'v_mov_b32 {v(t)}, s{S_T0}')
            I(f'global_store_dword {v(t + 1)}, {v(t)}, {s(S_DBG, 2)} offset:{4 * (j + 1)}')
        print('debug stamps:', [stamp_names[k] for k in sel], file=sys.stderr)
        P.free(t, 2)
    A.label('L_end')
    A.raw('    s_endpgm')
    A.raw('#seg -')
    for layer in range(2 if SPEC else 0):
        raw = lambda t: A._emit(Ins(t))
        A.label(f'L_slow{layer}')
        raw(f's_cmp_ge_u32 s{S_REDO}, 12')
        raw(f's_cbranch_scc1 L_ok{layer}')
        raw(f's_add_u32 s{S_REDO}, s{S_REDO}, 4')
        raw('s_waitcnt vmcnt(0) lgkmcnt(0)')
        raw(f's_cmp_lg_u32 s{S_W}, 0')
        raw(f's_cbranch_scc1 L_slowb{layer}')
        if DIAG:
            raw(f'v_mov_b32 {v(V_PA)}, 1')
            raw(f'v_mov_b32 {v(V_PA + 1)}, 0')
            raw('s_mov_b64 exec, 1')
            raw(f'global_atomic_add {v(V_PA + 1)}, {v(V_PA)}, {s(S_DBG, 2)} offset:{128 + 4 * layer}')
        raw(f's_mov_b32 s{S_SPIN}, 0x100000')
        raw(f's_mov_b32 s{S_T0}, {hex(WS_FB)}')
        raw(f's_movk_i32 s{S_T1}, {32 * (layer + 1)}')
        raw('s_mov_b64 exec, 0xff')
        raw(f'v_lshlrev_b32 {v(V_PA + 1)}, 7, {v(V_L)}')
        A.label(f'L_slowp{layer}')
        raw(f'v_mov_b32 {v(V_PA)}, 0')
        raw(f'buffer_atomic_add {v(V_PA)}, {v(V_PA + 1)}, {WS}, s{S_T0} offen sc0')
        raw(f's_sub_u32 s{S_SPIN}, s{S_SPIN}, 1')
        raw(f's_cbranch_scc1 L_slowd{layer}')
        raw('s_waitcnt vmcnt(0)')
        raw(f'v_cmp_gt_u32 vcc, s{S_T1}, {v(V_PA)}')
        raw(f's_cbranch_vccnz L_slowp{layer}')
        A.label(f'L_slowd{layer}')
        raw('s_mov_b64 exec, -1')
        raw('s_waitcnt vmcnt(0)')
        A.label(f'L_slowb{layer}')
        raw('s_barrier')
        raw(f's_branch L_redo{layer}')

    lines, info = layout(A.out, align='--noalign' not in sys.argv, touch='--notouch' not in sys.argv)
    body = '\n'.join(lines) + '\n'
    print(info, file=sys.stderr)
    ref = open(f'cdna_kernels/{NAME}.s.ref').read().splitlines()
    head = []
    for ln in ref:
        if ln.startswith('; @launch'):
            head.append(f'; @launch grid=(256,1,1) block=(256,1,1) lds={L_END}')
            break
        head.append(ln)
    txt = '\n'.join(head) + f'''
.amdgcn_target "amdgcn-amd-amdhsa--gfx950"
.text
.globl {NAME}_kernel
.p2align 12
.p2align 8
.type {NAME}_kernel,@function
{NAME}_kernel:
''' + body + f'''.section .rodata,"a"
.p2align 6
.amdhsa_kernel {NAME}_kernel
  .amdhsa_next_free_vgpr 512
  .amdhsa_next_free_sgpr 102
  .amdhsa_accum_offset 256
  .amdhsa_group_segment_fixed_size 0
  .amdhsa_kernarg_size 120
  .amdhsa_user_sgpr_count 2
  .amdhsa_user_sgpr_kernarg_segment_ptr 1
  .amdhsa_system_sgpr_workgroup_id_x 1
.end_amdhsa_kernel
'''
    out = [x for x in sys.argv[1:] if not x.startswith('--')]
    path = out[0] if out else f'cdna_kernels/{NAME}.s'
    open(path, 'w').write(txt)
    if DIAG:
        open(path + '.stamps', 'w').write('\n'.join(stamp_names))
    print(f'wrote {path}: {A.ninstr} instrs, {A.nnop} nop states, vgpr peak {P.peak}, lds {L_END}', file=sys.stderr)


main()
```

```python
import sys, struct, math
from emit import *
from layout import layout

NAME = 'interleave_layers__ssm_conv_s4__linear_attn_block__prompt'
DIAG = '--diag' in sys.argv


def f32(x):
    return '0x%08x' % struct.unpack('<I', struct.pack('<f', x))[0]


WS_CNT = 0x0
WS_ZERO = 0x10000
WS_KV = [WS_ZERO, WS_ZERO + 0xC000]
WS_ST = [0x30000, WS_ZERO + 0x18000]
WS_FB = WS_ZERO + 0x1C000
WS_DIAG = 0x40000
WS_X2 = [0x200000, 0x400000]
WS_XT = [0x600000, 0x800000]
WS_PQ = [0xA00000, 0xC00000]
WS_WT = 0xE00000
WS_WTO = WS_WT + 0x180000
WS_SIZE = 0x1000000

L_A = 0
L_B = 65536
L_RK = 131072
L_H = L_RK + 4 * 4160
L_STAT = L_H + 2 * 4608
L_END = L_STAT + 512
KG_ARR = 18
KG_POLL = 36
KG_ROW = 288
KG_W = 54 * KG_ROW

S_U, S_ARE, S_AIM, S_BRE, S_BIM, S_CRE, S_CIM, S_LDT, S_DSK = 4, 6, 8, 10, 12, 14, 16, 18, 20
S_WQKV, S_WO, S_OUT, S_DBG, S_WS = 24, 26, 28, 30, 32
R_WS, R_WQ, R_WO = 36, 40, 44
S_W, S_RB, S_CG, S_NB, S_TH = 48, 49, 50, 51, 52
S_T0, S_T1, S_T2 = 53, 54, 55
S_D = 56
S_MASK = 58
S_ONES = 60
S_SPIN = 61
S_LN = 62
S_EXP = 64
S_E6 = 66
S_T3, S_T4 = 68, 69
S_STAMP = 70
S_REDO = 47
S_W17 = 3
S_M1, S_M2 = 22, 34

A = Asm()
I = A.I
P = Pool(1, 192)
P.force4 = '--al4' in sys.argv
WS = s(R_WS, 4)
nstamp = [0]
stamp_names = []


STSEL = [x[5:].split(',') for x in sys.argv if x.startswith('--st=')]
STSEL = STSEL[0] if STSEL else None


def stamp(name, fine=False):
    if not DIAG:
        return
    if name not in ('entry', 'end'):
        if STSEL is None:
            if fine or not name.startswith(('wait', 'arr')):
                return
        elif not any(name.startswith(p) for p in STSEL):
            return
    k = nstamp[0]
    assert k < 16, 'too many stamps'
    I(f'{"s_memtime" if "--cyc" in sys.argv else "s_memrealtime"} s[{S_STAMP + 2 * k}:{S_STAMP + 2 * k + 1}]')
    stamp_names.append(name)
    nstamp[0] += 1


def pk(op, dst, *srcs):
    sel, selhi, nlo, nhi, txt = [], [], [], [], []
    for sr in srcs:
        t, m = sr[0], sr[1]
        ng = sr[2] if len(sr) > 2 else ''
        txt.append(t)
        sel.append(1 if m in 'hx' else 0)
        selhi.append(1 if m in 'ph' else 0)
        nlo.append(1 if ng in ('l', 'b') else 0)
        nhi.append(1 if ng in ('h', 'b') else 0)
    f = lambda l: '[' + ','.join(map(str, l)) + ']'
    line = f'v_pk_{op}_f32 {dst}, ' + ', '.join(txt) + f' op_sel:{f(sel)} op_sel_hi:{f(selhi)}'
    if any(nlo):
        line += f' neg_lo:{f(nlo)}'
    if any(nhi):
        line += f' neg_hi:{f(nhi)}'
    I(line)


def bc(r):
    return (v(r & ~1, 2), 'h' if r & 1 else 'l')


def cmul(d, x, y, tmp):
    pk('mul', v(tmp, 2), (v(x, 2), 'l'), (v(y, 2), 'p'))
    pk('fma', v(d, 2), (v(x, 2), 'h', 'l'), (v(y, 2), 'x'), (v(tmp, 2), 'p'))


def wq_reg(y, st):
    return a((y * 16 + st) * 4, 4)


def wo_reg(h, n=4, off=0):
    if h < 16:
        return a(192 + 4 * h + off, n)
    return v(192 + 4 * (h - 16) + off, n)


V_L = P.alloc()
V_L16 = P.alloc()
V_XT = [P.alloc() for _ in range(4)]
V_TILE = P.alloc()
V_X2ST = P.alloc()
V_STAT = P.alloc()
V_CVL = P.alloc()
V_HW = P.alloc()
V_CA = [P.alloc() for _ in range(4)]
V_CB = P.alloc()
V_EXW = P.alloc()
V_EXR = P.alloc()
V_XTST = P.alloc()
V_XTLD = P.alloc()
V_PQST = P.alloc()
V_KVST = P.alloc()
V_ZST = P.alloc()
V_PQLD = P.alloc()
V_KVLD = P.alloc()
V_ZLD = P.alloc()
V_OFW = P.alloc()
V_RES = [P.alloc(), P.alloc()]
V_SW = P.alloc()
V_SR4 = P.alloc()
V_SR1 = V_SW
V_ARR = P.alloc()
V_POLL = P.alloc()
V_PA = P.alloc(2)
V_WLD = P.alloc(2)
POLL_GAP = 4
V_CSKV = P.alloc(2)
V_CSQ = P.alloc(4)
V_ONES = P.alloc(4)


def global_arrive(first=None, bar=True, lg=True):
    if bar:
        A.barrier(lg=lg and not first)
    lab = f'L_arr{global_arrive.n}'
    global_arrive.n += 1
    I(f's_cmp_lg_u32 s{S_W}, 0')
    I(f's_cbranch_scc1 {lab}')
    t = P.alloc()
    if first:
        flag, zero = first
        I(f's_mov_b32 s{S_SPIN}, 0x200000')
        A.label(lab + '_init')
        I(f'v_readfirstlane_b32 s{S_T0}, {v(flag)}')
        I(f's_sub_u32 s{S_SPIN}, s{S_SPIN}, 1')
        I(f's_cbranch_scc1 {lab}_go')
        I(f's_cmp_lg_u32 s{S_T0}, 0')
        I(f's_cbranch_scc1 {lab}_go')
        A.cond = True
        I(f'global_load_dword {v(flag)}, {v(zero)}, {s(S_DBG, 2)} sc1')
        A.cond = False
        A._wait(vm=0)
        A.vm.pop()
        I(f's_branch {lab}_init')
        A.label(lab + '_go')
    I(f'v_mov_b32 {v(t)}, 1')
    I('s_mov_b32 exec_hi, 0')
    A.cond = True
    I(f'buffer_atomic_add {v(t)}, {v(V_ARR)}, {WS}, 0 offen')
    A.cond = False
    I('s_mov_b64 exec, -1')
    P.free(t)
    A.label(lab)


global_arrive.n = 0


WLATE = int(([x[8:] for x in sys.argv if x.startswith('--wlate=')] or ['0'])[0])
W1B = '--w1b' in sys.argv
W1B_GAP = int(([x[6:] for x in sys.argv if x.startswith('--g1b=')] or ['14'])[0])


def arrive_1b():
    I(f's_cmp_lg_u32 s{S_W}, 1')
    I('s_cbranch_scc1 L_arr1b')
    A._emit(Ins(f'v_mov_b32 {v(V_PA)}, 0x10000'))
    I('s_mov_b32 exec_hi, 0')
    A.cond = True
    I(f'buffer_atomic_add {v(V_PA)}, {v(V_ARR)}, {WS}, 0 offen')
    A.cond = False
    I('s_mov_b64 exec, -1')
    A.label('L_arr1b')


def wait_1b(nyounger):
    raw = lambda t: A._emit(Ins(t))
    I(f's_cmp_lg_u32 s{S_W}, 0')
    I('s_cbranch_scc1 L_w1b')
    I('s_mov_b64 exec, 0xff')
    I(f's_mov_b32 s{S_SPIN}, 0x200000')
    raw(f's_waitcnt vmcnt({nyounger})')
    raw(f'v_cmp_gt_u32 vcc, s{S_SPIN}, {v(V_PA)}')
    raw('s_cbranch_vccz L_w1b_done')
    I(f's_mov_b32 s{S_REDO}, 0x100000')
    A.label('L_w1b_poll')
    _poll(V_PA)
    raw(f's_sub_u32 s{S_REDO}, s{S_REDO}, 1')
    raw('s_cbranch_scc1 L_w1b_done')
    raw('s_waitcnt vmcnt(0)')
    raw(f'v_cmp_gt_u32 vcc, s{S_SPIN}, {v(V_PA)}')
    raw('s_cbranch_vccnz L_w1b_poll')
    A.label('L_w1b_done')
    I('s_mov_b64 exec, -1')
    A.label('L_w1b')
    A.barrier(lg=False)


def _poll(r):
    A._emit(Ins(f'v_mov_b32 {v(r)}, 0'))
    A._emit(Ins(f'buffer_atomic_add {v(r)}, {v(V_POLL)}, {WS}, 0 offen sc0'))


def poll_start(k):
    lab = f'L_ps{k}'
    I(f's_cmp_lg_u32 s{S_W}, 0')
    I(f's_cbranch_scc1 {lab}')
    I('s_mov_b64 exec, 0xff')
    _poll(V_PA)
    I('s_mov_b64 exec, -1')
    A.label(lab)
    A.vm.append(dict(defs=set(), tag=None, cond=True))


def global_wait(k, started=False, gap=False):
    lab = f'L_wait{k}'
    I(f's_cmp_lg_u32 s{S_W}, 0')
    I(f's_cbranch_scc0 {lab}_w0')
    A.raw(f'#touch s{k}')
    I(f's_branch {lab}')
    A.label(lab + '_w0')
    pa, pb = V_PA, V_PA + 1
    raw = lambda t: A._emit(Ins(t))
    I('s_mov_b64 exec, 0xff')
    if not started:
        _poll(pa)
    I(f's_mov_b32 s{S_SPIN}, 0x100000')
    I(f's_mov_b32 s{S_T0}, {hex(32 * k + (0x200000 if W1B and k > 1 else 0))}')
    msk = (lambda r: raw(f'v_and_b32 {v(r)}, 0xffff, {v(r)}')) if W1B and k == 1 else (lambda r: None)
    if not started or gap:
        raw(f's_sleep {POLL_GAP}')
    A.label(lab + '_poll')
    _poll(pb)
    raw('s_waitcnt vmcnt(1)')
    msk(pa)
    raw(f'v_cmp_gt_u32 vcc, s{S_T0}, {v(pa)}')
    raw(f's_cbranch_vccz {lab}_done')
    _poll(pa)
    raw(f's_sub_u32 s{S_SPIN}, s{S_SPIN}, 1')
    raw(f's_cbranch_scc1 {lab}_done')
    raw('s_waitcnt vmcnt(1)')
    msk(pb)
    raw(f'v_cmp_gt_u32 vcc, s{S_T0}, {v(pb)}')
    raw(f's_cbranch_vccnz {lab}_poll')
    A.label(lab + '_done')
    I('s_mov_b64 exec, -1')
    A.vm.append(dict(defs=set(), tag=None, cond=True))
    A.label(lab)
    A.raw(f'#seg s{k}')
    A.barrier()


WIL = '--nowil' not in sys.argv


def wloads(frags):
    out = []
    for f in frags:
        if f[0] == 'q':
            off, reg, va = WS_WT + (f[1] * 16 + f[2]) * (32768 if WIL else 1024), wq_reg(f[1], f[2]), V_WLD
        else:
            off, reg, va = WS_WTO + f[1] * (16384 if WIL else 1024), wo_reg(f[1]), V_WLD + 1
        th = []
        grp = off & ~4095
        so = S_T4 if f[:2] == ('q', 2) else S_T3
        if wloads.cur.get(so) != grp:
            if f[0] == 'o':
                assert WIL
                th.append(lambda grp=grp, so=so: I(f's_xor_b32 s{so}, s{S_W17}, {hex(grp)}'))
            else:
                th.append(lambda grp=grp, so=so: I(f's_mov_b32 s{so}, {hex(grp)}'))
            wloads.cur[so] = grp

        def ld(off=off, reg=reg, va=va, so=so):
            I(f'buffer_load_dwordx4 {reg}, {v(va)}, {WS}, s{so} offen offset:{off & 4095} sc1')
        ld.lds = True
        th.append(ld)
        out.append(th)
    return out


wloads.cur = {}


def run_all(th):
    for t in th:
        t()


def spread(fill, pieces, start, step, solo=True):
    for i, th in enumerate(pieces):
        at = start + int(i * step)
        for j, t in enumerate(th):
            f = lambda reg, t=t: t()
            f.lds = getattr(t, 'lds', False) and solo
            fill.setdefault(max(0, at - (len(th) - 1 - j)), []).append(f)


def colsums(ys):
    d = {y: V_CSQ if y == 0 else P.alloc(4, 2) for y in ys}
    for y in ys:
        for st in range(16):
            c = '0' if st == 0 else v(d[y], 4)
            if y == 0:
                I(f'v_mfma_f32_16x16x32_bf16 {v(d[y], 4)}, {wq_reg(y, st)}, {v(V_ONES, 4)}, {c}')
            else:
                I(f'v_mfma_f32_16x16x32_bf16 {v(d[y], 4)}, {v(V_ONES, 4)}, {wq_reg(y, st)}, {c}')
    for y in ys:
        if y:
            I(f'v_mov_b32 {v(V_CSKV + y - 1)}, {v(d[y])}')
            P.free(d[y], 4)


def stream(mf, loader, nslots, look, fill=None, gate=None, rate=1, burst=9, pre=None):
    fill = fill or {}
    gate = gate or {}
    first, last, order = {}, {}, []
    for m, (_, keys) in enumerate(mf):
        for k in keys:
            if k not in first:
                first[k] = m
                order.append(k)
            last[k] = m
    slots = [P.alloc(4, 2) for _ in range(nslots)]
    free = list(slots)
    reg = {}
    pend = []
    nxt = [0]

    def start_key():
        k = order[nxt[0]]
        nxt[0] += 1
        if k in gate:
            gate[k]()
        reg[k] = free.pop(0)
        pend.extend(loader(k, reg[k]))

    def issue(n, m, force=False):
        while n > 0:
            if not pend:
                if nxt[0] >= len(order) or not free:
                    return
                if first[order[nxt[0]]] > m + look:
                    return
                start_key()
            I(pend.pop(0))
            n -= 1

    issue(burst, -1)
    if pre:
        pre()
    for m, (em, keys) in enumerate(mf):
        while any(k not in reg for k in keys) or (pend and order[nxt[0] - 1] in keys):
            assert pend or free, 'no free slot'
            if not pend:
                start_key()
            I(pend.pop(0))
        em(reg)
        for k in keys:
            if last[k] == m:
                free.append(reg[k])
        fl = fill.get(m, [])
        solo = any(getattr(th, 'lds', False) for th in fl)
        if not solo:
            issue(1, m)
        for th in fl:
            th(reg)
        if rate > 1 and not solo:
            if m + 1 < len(mf):
                nk = mf[m + 1][1]
                if all(k in reg for k in nk) and not (pend and order[nxt[0] - 1] in nk):
                    A.need(', '.join(v(reg[k], 4) for k in nk))
            issue(rate - 1, m)
    for r in slots:
        P.free(r, 4)


ORDER = int(([x[8:] for x in sys.argv if x.startswith('--order=')] or ['8'])[0])


WPF = int(([x[6:] for x in sys.argv if x.startswith('--wpf=')] or ['2'])[0])


WN = [int(x) for x in ([x[5:] for x in sys.argv if x.startswith('--wn=')] or ['24,8,0,24,0,8'])[0].split(',')]
assert sum(WN[:3]) >= 32 and sum(WN[:4]) >= 48
W_C0 = 16
W_CSTEP = 112 / WN[0]
LATE_IN = '--nolatein' not in sys.argv
CS_C0 = '--nocsc0' not in sys.argv


SPEC = int(([x[7:] for x in sys.argv if x.startswith('--spec=')] or ['1'])[0])


def xt_poison(layer, t):
    out = []
    for i in range(2):
        for c in range(2):
            th = []
            if i == 0 and c == 0:
                th += [lambda j=j: I(f'v_mov_b32 {v(t + j)}, -1') for j in range(2)]
            if c == 0:
                th.append(lambda i=i: I(f's_mov_b32 s{S_T2}, {hex(WS_XT[layer] + 262144 * i)}'))

            def st(c=c):
                I(f'buffer_store_dwordx2 {v(t, 2)}, {v(V_XTST)}, {WS}, s{S_T2} offen offset:{128 * c} sc1', tag='poison')
            st.lds = True
            th.append(st)
            out.append(th)
    return out


class Capture:
    def __enter__(self):
        global I
        self.lines = []
        self.old = I
        I = lambda t, tag=None: self.lines.append(t)
        return self.lines

    def __exit__(self, *a):
        global I
        I = self.old


XPF = int(([x[6:] for x in sys.argv if x.startswith('--xpf=')] or ['0'])[0])
XPF2 = '--xpf2' in sys.argv


NTSEL = ([x[5:] for x in sys.argv if x.startswith('--nt=')] or ['abpw'])[0]
NT = lambda c: ' nt' if c in NTSEL else ''


def lane_fields():
    f = [P.alloc() for _ in range(5)]
    I(f'v_and_b32 {v(f[0])}, 15, {v(V_L)}')
    I(f'v_lshrrev_b32 {v(f[1])}, 4, {v(V_L)}')
    I(f'v_lshrrev_b32 {v(f[2])}, 5, {v(V_L)}')
    return f


def setup_conv(va_, vg, x0, x1):
    I(f'v_lshl_add_u32 {v(V_CVL)}, s{S_W}, 11, {v(V_L16)}')
    I(f'v_lshrrev_b32 {v(V_HW)}, 1, {v(V_CVL)}')
    I(f'v_add_u32 {v(V_HW)}, {L_H + 512}, {v(V_HW)}')
    I(f's_lshr_b32 s{S_T0}, s{S_W}, 1')
    I(f's_and_b32 s{S_T1}, s{S_W}, 1')
    I(f's_mul_i32 s{S_T3}, s{S_T0}, 4608')
    I(f's_lshl_b32 s{S_T4}, s{S_T1}, 8')
    I(f's_sub_u32 s{S_T3}, s{S_T3}, s{S_T4}')
    I(f's_add_u32 s{S_T3}, s{S_T3}, {L_H + 512 - 32 - 192}')
    I(f'v_lshl_add_u32 {v(V_CB)}, {v(va_)}, 5, s{S_T3}')
    I(f'v_lshl_add_u32 {v(V_CB)}, {v(vg)}, 4, {v(V_CB)}')
    I(f's_mul_i32 s{S_T3}, s{S_T0}, 8320')
    I(f's_sub_u32 s{S_T3}, s{S_T3}, s{S_T4}')
    I(f's_add_u32 s{S_T3}, s{S_T3}, {L_RK + 4160 + 4 * (1015 - 176)}')
    I(f'v_and_b32 {v(x0)}, 1, {v(va_)}')
    I(f'v_mul_u32_u24 {v(x0)}, 4160, {v(x0)}')
    I(f'v_lshrrev_b32 {v(x1)}, 1, {v(va_)}')
    I(f'v_lshl_add_u32 {v(x0)}, {v(x1)}, 2, {v(x0)}')
    I(f'v_lshl_add_u32 {v(x1)}, {v(vg)}, 4, s{S_T3}')
    I(f'v_sub_u32 {v(V_CA[0])}, {v(x1)}, {v(x0)}')
    for i in range(1, 4):
        I(f'v_subrev_u32 {v(V_CA[i])}, {1024 * i}, {v(V_CA[0])}')
    I(f's_mul_i32 s{S_T3}, s{S_W}, 10240')
    I(f's_add_u32 s{S_T3}, s{S_T3}, {L_B}')
    I(f'v_lshl_add_u32 {v(V_EXW)}, {v(vg)}, 6, s{S_T3}')
    I(f'v_add_u32 {v(V_EXW)}, {v(V_EXW)}, {v(V_L16)}')
    I(f's_mul_i32 s{S_T3}, s{S_W}, 2560')
    I(f's_add_u32 s{S_T3}, s{S_T3}, {L_B}')
    I(f'v_and_b32 {v(x0)}, 3, {v(V_L)}')
    I(f'v_mul_u32_u24 {v(V_EXR)}, 316, {v(x0)}')
    I(f'v_lshl_add_u32 {v(V_EXR)}, {v(V_L)}, 2, {v(V_EXR)}')
    I(f'v_add_u32 {v(V_EXR)}, s{S_T3}, {v(V_EXR)}')
    I(f's_lshl_b32 s{S_T3}, s{S_W}, 19')
    I(f's_lshl_b32 s{S_T4}, s2, 8')
    I(f's_add_u32 s{S_T3}, s{S_T3}, s{S_T4}')
    I(f'v_lshl_add_u32 {v(V_XTST)}, {v(vg)}, 16, s{S_T3}')
    I(f'v_lshl_add_u32 {v(V_XTST)}, {v(va_)}, 3, {v(V_XTST)}')
    I(f's_and_b32 s{S_T4}, s2, 3')
    I(f's_lshl_b32 s{S_T4}, s{S_T4}, 5')
    I(f'v_xor_b32 {v(V_XTST)}, s{S_T4}, {v(V_XTST)}')
    I(f's_lshl_b32 s{S_T3}, s{S_CG}, 2')
    I(f's_add_u32 s{S_T3}, s{S_T3}, s{S_W}')
    I(f's_mul_i32 s{S_T3}, s{S_T3}, {1024 if WIL else 49152}')
    I(f'v_add_u32 {v(V_WLD)}, s{S_T3}, {v(V_L16)}')
    I(f's_mov_b32 s{S_LN}, {f32(1 / 512)}')
    I(f's_mov_b32 s{S_LN + 1}, {f32(1e-5)}')


def setup_late(free=True):
    va_, vg, vhi, x0, x1 = f = lane_fields()
    T3, T4 = S_T0, S_T1
    for j in range(2):
        I(f's_mov_b32 s{S_MASK + j}, 0xffff0000')
        I(f's_mov_b32 s{S_M1 + j}, 0xaaaaaaaa')
        I(f's_mov_b32 s{S_M2 + j}, 0xcccccccc')
        I(f's_mov_b32 s{S_E6 + j}, {f32(1e-6)}')
    I(f's_mov_b32 s{S_EXP + 1}, {f32(-1e-6 * math.log2(math.e))}')
    I(f'v_lshrrev_b32 {v(x0)}, 2, {v(V_L)}')
    I(f'v_lshlrev_b32 {v(V_XT[0])}, 7, {v(x0)}')
    I(f'v_bfe_u32 {v(x0)}, {v(V_L)}, 3, 2')
    I(f'v_xor_b32 {v(x0)}, s{S_W}, {v(x0)}')
    I(f'v_lshl_add_u32 {v(V_XT[0])}, {v(x0)}, 5, {v(V_XT[0])}')
    I(f'v_and_b32 {v(x0)}, 3, {v(V_L)}')
    I(f'v_lshl_add_u32 {v(V_XT[0])}, {v(x0)}, 3, {v(V_XT[0])}')
    for i in range(1, 4):
        I(f'v_xor_b32 {v(V_XT[i])}, {32 * i}, {v(V_XT[0])}')
    I(f'v_and_b32 {v(V_STAT)}, 0x1fff, {v(V_X2ST)}')
    I(f'v_lshl_add_u32 {v(V_STAT)}, {v(vhi)}, 13, {v(V_STAT)}')
    I(f's_lshl_b32 s{T3}, s{S_RB}, 16')
    I(f's_lshl_b32 s{T4}, s{S_W}, 12')
    I(f's_add_u32 s{T3}, s{T3}, s{T4}')
    I(f'v_add_u32 {v(V_XTLD)}, s{T3}, {v(V_L16)}')
    I(f's_lshl_b32 s{T4}, s{S_CG}, 2')
    I(f's_add_u32 s{T4}, s{T4}, s{S_W}')
    I(f's_lshl_b32 s{T4}, s{T4}, 10')
    I(f's_lshl_b32 s{T3}, s{S_RB}, 16')
    I(f's_add_u32 s{T3}, s{T3}, s{T4}')
    I(f'v_lshl_add_u32 {v(V_PQST)}, {v(va_)}, 5, s{T3}')
    I(f'v_lshl_add_u32 {v(V_PQST)}, {v(vg)}, 3, {v(V_PQST)}')
    I(f's_lshr_b32 s{T3}, s{S_W}, 1')
    I(f'v_lshl_add_u32 {v(V_PQST)}, s{T3}, 15, {v(V_PQST)}')
    I(f's_and_b32 s{T3}, s{S_W}, 1')
    I(f'v_lshl_add_u32 {v(V_PQST)}, s{T3}, 9, {v(V_PQST)}')
    I(f's_mul_i32 s{T3}, s{T3}, 768')
    I(f's_sub_u32 s{T3}, s{T4}, s{T3}')
    I(f'v_lshl_add_u32 {v(V_KVST)}, {v(vg)}, 4, s{T3}')
    I(f'v_and_b32 {v(x0)}, 3, {v(va_)}')
    I(f'v_lshl_add_u32 {v(V_KVST)}, {v(x0)}, 2, {v(V_KVST)}')
    I(f'v_bfe_u32 {v(x0)}, {v(va_)}, 2, 1')
    I(f'v_lshl_add_u32 {v(V_KVST)}, {v(x0)}, 10, {v(V_KVST)}')
    I(f'v_lshrrev_b32 {v(x0)}, 3, {v(va_)}')
    I(f'v_lshl_add_u32 {v(V_KVST)}, {v(x0)}, 9, {v(V_KVST)}')
    I(f's_lshr_b32 s{T3}, s{T4}, 4')
    I(f'v_lshl_add_u32 {v(V_ZST)}, {v(V_L)}, 2, s{T3}')
    I(f's_lshl_b32 s{T3}, s{S_RB}, 1')
    I(f's_add_u32 s{T3}, s{T3}, s{S_TH}')
    I(f's_lshl_b32 s{T3}, s{T3}, 15')
    I(f's_lshl_b32 s{T4}, s{S_W}, 13')
    I(f's_add_u32 s{T3}, s{T3}, s{T4}')
    I(f'v_and_b32 {v(x0)}, 31, {v(V_L)}')
    I(f'v_lshl_add_u32 {v(V_PQLD)}, {v(x0)}, 5, s{T3}')
    I(f'v_lshl_add_u32 {v(V_PQLD)}, {v(vhi)}, 4, {v(V_PQLD)}')
    I(f'v_add_u32 {v(V_KVLD)}, s{T4}, {v(V_L16)}')
    I(f'v_and_b32 {v(x0)}, 3, {v(va_)}')
    I(f'v_lshrrev_b32 {v(x1)}, 3, {v(va_)}')
    I(f's_lshl_b32 s{T3}, s{S_W}, 9')
    I(f's_add_u32 s{T3}, s{T3}, 32768')
    I(f'v_lshl_add_u32 {v(V_ZLD)}, {v(x1)}, 8, s{T3}')
    I(f'v_lshl_add_u32 {v(V_ZLD)}, {v(x0)}, 6, {v(V_ZLD)}')
    I(f'v_lshl_add_u32 {v(V_ZLD)}, {v(vg)}, 4, {v(V_ZLD)}')
    I(f'v_add_u32 {v(V_OFW)}, {L_B}, {v(V_KVLD)}')
    I(f's_lshl_b32 s{T3}, s{S_NB}, 14')
    I(f's_lshl_b32 s{T4}, s{S_W}, 12')
    I(f's_add_u32 s{T3}, s{T3}, s{T4}')
    I(f's_lshl_b32 s{T4}, s{S_TH}, 6')
    I(f's_add_u32 s{T3}, s{T3}, s{T4}')
    I(f'v_lshl_add_u32 {v(V_RES[0])}, {v(vhi)}, 11, s{T3}')
    I(f'v_lshl_add_u32 {v(V_RES[0])}, {v(x0)}, 3, {v(V_RES[0])}')
    I(f'v_lshrrev_b32 {v(x0)}, 2, {v(va_)}')
    I(f'v_lshl_add_u32 {v(V_RES[0])}, {v(x0)}, 7, {v(V_RES[0])}')
    I(f'v_xor_b32 {v(x1)}, {v(x1)}, {v(vg)}')
    I(f'v_and_b32 {v(x1)}, 1, {v(x1)}')
    I(f'v_lshl_add_u32 {v(V_RES[0])}, {v(x1)}, 5, {v(V_RES[0])}')
    I(f'v_xor_b32 {v(V_RES[1])}, 64, {v(V_RES[0])}')
    I(f's_lshl_b32 s{T3}, s{S_W}, 6')
    I(f's_add_u32 s{T3}, s{T3}, {L_STAT}')
    I(f'v_lshl_add_u32 {v(V_SW)}, {v(va_)}, 2, s{T3}')
    I(f'v_lshl_add_u32 {v(V_SR4)}, {v(vg)}, 4, s{T3}')
    I(f's_lshl_b32 s{S_W17}, s{S_W}, 17')
    I(f's_lshl_b32 s{T3}, s{S_NB}, 2')
    I(f's_add_u32 s{T3}, s{T3}, s{S_W}')
    I(f'v_lshl_add_u32 {v(V_WLD + 1)}, s{T3}, {10 if WIL else 15}, {v(V_L16)}')
    if not free:
        return f
    for r in f:
        P.free(r)


TS = [18, 10, 6, 2]
TB = [0, 16 * 18, 16 * 18 + 16 * 10, 16 * 18 + 16 * 10 + 32 * 6]


def rne(o, sh):
    q, r = o >> sh, o & ((1 << sh) - 1)
    if sh == 0:
        return q
    h = 1 << (sh - 1)
    return q + (1 if (r > h or (r == h and q & 1)) else 0)


def setup_kgen(va_, vg, x0, x1):
    kg = dict(w=P.alloc(), a0=P.alloc(), a1=P.alloc(), g=P.alloc(), t1=P.alloc(), t2=P.alloc(), t3=P.alloc(), rk=P.alloc())
    I(f's_lshr_b32 s{S_T0}, s{S_W}, 1')
    I(f's_and_b32 s{S_T1}, s{S_W}, 1')
    I(f's_mul_i32 s{S_T3}, s{S_W}, {KG_W}')
    I(f's_add_u32 s{S_T3}, s{S_T3}, {L_B}')
    I(f'v_lshl_add_u32 {v(kg["w"])}, {v(V_L)}, 2, s{S_T3}')
    I(f's_mul_i32 s{S_T3}, s{S_T0}, {2 * KG_W}')
    I(f's_add_u32 s{S_T3}, s{S_T3}, {L_B}')
    I(f'v_lshl_add_u32 {v(x1)}, {v(vg)}, 4, s{S_T3}')
    I(f'v_mul_u32_u24 {v(kg["a0"])}, {KG_ROW}, {v(va_)}')
    I(f'v_add_u32 {v(kg["a0"])}, {v(kg["a0"])}, {v(x1)}')
    I(f's_mul_i32 s{S_T4}, s{S_T1}, {16 * KG_ROW}')
    I(f'v_add_u32 {v(kg["g"])}, s{S_T4}, {v(kg["a0"])}')
    I(f'v_min_u32 {v(kg["a1"])}, 4, {v(va_)}')
    I(f'v_mul_u32_u24 {v(kg["a1"])}, {KG_ROW}, {v(kg["a1"])}')
    I(f'v_add_u32 {v(kg["a1"])}, {v(kg["a1"])}, {v(x1)}')
    I(f's_mul_i32 s{S_T3}, s{S_T0}, 4608')
    I(f's_add_u32 s{S_T3}, s{S_T3}, {L_H + 512}')
    vj, vw = P.alloc(), P.alloc()
    I(f's_lshl_b32 s{S_T4}, s{S_T1}, 2')
    I(f'v_and_b32 {v(x0)}, 3, {v(va_)}')
    I(f'v_lshl_add_u32 {v(vj)}, {v(x0)}, 3, s{S_T4}')
    I(f'v_lshrrev_b32 {v(x0)}, 2, {v(va_)}')
    I(f'v_add_u32 {v(vj)}, {v(vj)}, {v(x0)}')
    I(f'v_lshl_add_u32 {v(kg["t3"])}, {v(vg)}, 7, {v(vj)}')
    I(f'v_lshl_add_u32 {v(kg["t3"])}, {v(kg["t3"])}, 2, s{S_T3}')
    I(f'v_max_u32 {v(x1)}, 1, {v(vg)}')
    I(f'v_sub_u32 {v(x1)}, 6, {v(x1)}')
    I(f'v_lshlrev_b32 {v(kg["t1"])}, {v(x1)}, {v(vj)}')
    I(f'v_lshrrev_b32 {v(vw)}, 1, {v(vj)}')
    I(f'v_lshl_add_u32 {v(kg["t1"])}, {v(vw)}, 3, {v(kg["t1"])}')
    I(f's_mov_b32 s{S_T4}, {hex(0 | (1 << 8) | ((TB[1] // 4) << 16) | ((TB[2] // 4) << 24))}')
    I(f'v_lshlrev_b32 {v(x1)}, 3, {v(vg)}')
    I(f'v_bfe_u32 {v(x1)}, s{S_T4}, {v(x1)}, 8')
    I(f'v_lshl_add_u32 {v(x1)}, {v(x1)}, 4, s{S_T3}')
    I(f'v_add_u32 {v(kg["t1"])}, {v(kg["t1"])}, {v(x1)}')
    I(f'v_cmp_eq_u32 vcc, 3, {v(vg)}')
    I(f'v_mov_b32 {v(vj)}, {16 * TS[2] * 4}')
    I(f'v_cndmask_b32 {v(x1)}, 8, {v(vj)}, vcc')
    I(f'v_add_u32 {v(kg["t2"])}, {v(kg["t1"])}, {v(x1)}')
    gi = P.alloc(18, 2)
    vn, vs = vj, vw
    I(f'v_and_b32 {v(x0)}, 127, v0')
    I(f'v_sub_u32 {v(vn)}, 127, {v(x0)}')
    I(f'v_or_b32 {v(x1)}, 8, {v(vn)}')
    I(f'v_ffbh_u32 {v(x1)}, {v(x1)}')
    I(f'v_sub_u32 {v(vs)}, 28, {v(x1)}')
    I(f'v_lshlrev_b32 {v(vs)}, 3, {v(vs)}')
    first = [0, 16, 32, 64]
    cb = [TB[q] - first[q] * TS[q] for q in range(4)]
    assert all(c % 4 == 0 and 0 <= c // 4 < 256 for c in cb)
    I(f's_mov_b32 s{S_T4}, {hex(sum(TS[q] << (8 * q) for q in range(4)))}')
    I(f'v_bfe_u32 {v(x1)}, s{S_T4}, {v(vs)}, 8')
    I(f'v_mul_u32_u24 {v(x1)}, {v(x1)}, {v(vn)}')
    I(f's_mov_b32 s{S_T4}, {hex(sum((cb[q] // 4) << (8 * q) for q in range(4)))}')
    I(f'v_bfe_u32 {v(gi + 17)}, s{S_T4}, {v(vs)}, 8')
    I(f'v_lshl_add_u32 {v(x1)}, {v(gi + 17)}, 2, {v(x1)}')
    I(f'v_lshl_add_u32 {v(gi + 15)}, {v(x1)}, 2, s{S_T3}')
    for u in range(15):
        o = 15 - u
        dl = []
        for q in range(4):
            d = rne(o, q)
            dl.append(4 * (d if d < (16 >> q) else TS[q]))
        I(f's_mov_b32 s{S_T4}, {hex(sum(dl[q] << (8 * q) for q in range(4)))}')
        I(f'v_bfe_u32 {v(x1)}, s{S_T4}, {v(vs)}, 8')
        I(f'v_add_u32 {v(gi + u)}, {v(x1)}, {v(gi + 15)}')
    I(f'v_cmp_ge_u32 vcc, 16, {v(vn)}')
    I(f'v_cndmask_b32 {v(x1)}, 0, 12, vcc')
    I(f'v_sub_u32 {v(gi + 16)}, {v(gi + 15)}, {v(x1)}')
    P.free(vj), P.free(vw)
    I(f's_mul_i32 s{S_T4}, s{S_T0}, 8320')
    I(f's_add_u32 s{S_T4}, s{S_T4}, {L_RK}')
    I(f'v_lshl_add_u32 {v(kg["rk"])}, {v(x0)}, 5, s{S_T4}')
    return kg, gi


def prologue():
    I('s_cmp_ge_u32 s2, 256')
    I('s_cbranch_scc1 L_end')
    I('s_load_dwordx16 s[4:19], s[0:1], 0')
    I('s_load_dwordx8 s[20:27], s[0:1], 64')
    I('s_load_dwordx4 s[28:31], s[0:1], 96')
    I('s_load_dwordx2 s[32:33], s[0:1], 112')
    stamp('entry')
    pf = P.alloc(4)
    I(f's_getpc_b64 s[{S_T3}:{S_T4}]')
    A.label('L_pc')
    I(f's_lshr_b32 s{S_T1}, s2, 3')
    I(f'v_lshrrev_b32 {v(pf)}, 4, v0')
    I(f'v_lshl_add_u32 {v(pf)}, {v(pf)}, 5, s{S_T1}')
    I(f'v_lshlrev_b32 {v(pf)}, 7, {v(pf)}')
    I(f'v_min_u32 {v(pf)}, L_end-L_pc, {v(pf)}')
    if '--nocpf' in sys.argv:
        I(f'v_mov_b32 {v(pf)}, 0')
    I(f'global_load_dword {v(pf)}, {v(pf)}, s[{S_T3}:{S_T4}]')
    I(f'v_lshrrev_b32 {v(pf + 1)}, 6, v0')
    I(f'v_and_b32 {v(V_L)}, 63, v0')
    I(f'v_readfirstlane_b32 s{S_W}, {v(pf + 1)}')
    I(f's_and_b32 s{S_T0}, s2, 7')
    I(f's_and_b32 s{S_T2}, s{S_T1}, 3')
    I(f's_lshl_b32 s{S_RB}, s{S_T0}, 2')
    I(f's_add_u32 s{S_RB}, s{S_RB}, s{S_T2}')
    I(f's_lshr_b32 s{S_CG}, s{S_T1}, 2')
    I(f's_lshr_b32 s{S_NB}, s{S_CG}, 1')
    I(f's_and_b32 s{S_TH}, s{S_CG}, 1')
    I(f'v_lshlrev_b32 {v(V_L16)}, 4, {v(V_L)}')
    va_, vg, vhi, x0, x1 = f = lane_fields()
    I(f's_and_b32 s{S_T3}, s{S_T1}, 7')
    I(f's_lshl_b32 s{S_T3}, s{S_T3}, 7')
    I(f'v_lshl_add_u32 {v(V_ARR)}, {v(V_L)}, 10, s{S_T3}')
    I(f's_lshl_b32 s{S_T3}, s{S_T1}, 10')
    I(f'v_lshl_add_u32 {v(V_POLL)}, {v(V_L)}, 7, s{S_T3}')
    vsr, vsa = P.alloc(), P.alloc()
    I(f's_lshl_b32 s{S_T0}, s{S_RB}, 6')
    I(f's_lshl_b32 s{S_T1}, s{S_CG}, 3')
    I(f's_add_u32 s{S_T1}, s{S_T1}, s{S_T0}')
    I(f's_lshl_b32 s{S_T3}, s{S_W}, 1')
    I(f's_add_u32 s{S_T2}, s{S_T1}, s{S_T3}')
    I(f's_lshl_b32 s{S_T1}, s{S_T2}, 10')
    I(f'v_add_u32 {v(vsr)}, s{S_T1}, {v(V_L16)}')
    I(f'v_and_b32 {v(vsa)}, 1, {v(vg)}')
    I(f'v_add_lshl_u32 {v(vsa)}, {v(vsa)}, s{S_T2}, 2')
    I(f'v_lshl_add_u32 {v(vsa)}, {v(vhi)}, 13, {v(vsa)}')
    I(f's_lshl_b32 s{S_T1}, s{S_TH}, 5')
    I(f's_add_u32 s{S_T0}, s{S_T0}, s{S_T1}')
    I(f'v_and_b32 {v(x0)}, 31, {v(V_L)}')
    I(f'v_add_u32 {v(x0)}, s{S_T0}, {v(x0)}')
    I(f's_lshl_b32 s{S_T0}, s{S_NB}, 8')
    I(f's_lshl_b32 s{S_T1}, s{S_W}, 6')
    I(f's_add_u32 s{S_T0}, s{S_T0}, s{S_T1}')
    I(f'v_lshl_add_u32 {v(V_TILE)}, {v(x0)}, 10, s{S_T0}')
    I(f'v_lshl_add_u32 {v(V_TILE)}, {v(vhi)}, 5, {v(V_TILE)}')
    I(f's_lshl_b32 s{S_T0}, s{S_T0}, 11')
    I(f'v_lshl_add_u32 {v(V_X2ST)}, {v(x0)}, 2, s{S_T0}')
    I(f'v_lshl_add_u32 {v(V_X2ST)}, {v(vhi)}, 16, {v(V_X2ST)}')
    vtd, vtr = P.alloc(), P.alloc()
    I(f'v_readfirstlane_b32 s{S_T0}, {v(V_TILE)}')
    I(f'v_lshrrev_b32 {v(x0)}, 2, {v(V_L)}')
    I(f'v_xor_b32 {v(x1)}, {v(V_L)}, {v(vg)}')
    I(f'v_and_b32 {v(x1)}, 3, {v(x1)}')
    I(f'v_lshl_add_u32 {v(vtd)}, {v(x0)}, 10, s{S_T0}')
    I(f'v_lshl_add_u32 {v(vtd)}, {v(x1)}, 4, {v(vtd)}')
    I(f'v_add_u32 {v(vtr)}, {16384 - 1024}, {v(vtd)}')
    I(f's_lshl_b32 m0, s{S_W}, 11')
    vpo = P.alloc()
    I(f's_lshl_b32 s{S_T1}, s2, 9')
    I(f'v_lshl_add_u32 {v(vpo)}, v0, 1, s{S_T1}')
    sinit = S_SPIN
    I(f's_lshl_b32 s{S_T2}, s2, 2')
    I(f's_add_u32 s{sinit}, s{S_T2}, s{S_W}')
    vws = P.alloc(2)
    SA, SB, SC = S_MASK, S_MASK + 1, S_E6
    I(f's_cmp_ge_u32 s2, 192')
    I('s_cbranch_scc1 L_wo_src')
    I(f's_bfe_u32 s{SA}, s2, 0x30003')
    I(f's_lshl_b32 s{SA}, s{SA}, 1')
    I(f's_lshr_b32 s{SB}, s{S_W}, 1')
    I(f's_add_u32 s{SA}, s{SA}, s{SB}')
    I(f's_lshr_b32 s{SB}, s2, 6')
    I(f's_lshl_b32 s{SC}, s{SB}, 4')
    I(f's_add_u32 s{SC}, s{SC}, s{SA}')
    I(f's_lshl_b32 s{SC}, s{SC}, {15 if WIL else 10}')
    I(f's_mul_i32 s{SA}, s{SA}, {32 * 3072}')
    I(f's_lshl_b32 s{SB}, s{SB}, 10')
    I(f's_add_u32 s{SA}, s{SA}, s{SB}')
    I(f's_and_b32 s{SB}, s2, 7')
    I(f's_lshl_b32 s{SB}, s{SB}, 1')
    I(f's_and_b32 s{S_T1}, s{S_W}, 1')
    I(f's_add_u32 s{SB}, s{SB}, s{S_T1}')
    I(f's_mul_i32 s{S_T1}, s{SB}, {2048 if WIL else 2 * 49152}')
    I(f's_add_u32 s{SC}, s{SC}, s{S_T1}')
    I(f's_add_u32 s{SC}, s{SC}, {hex(WS_WT)}')
    I(f's_add_u32 s{SC + 1}, s{SC}, {1024 if WIL else 49152}')
    I(f's_lshl_b32 s{SB}, s{SB}, 6')
    I(f's_add_u32 s{SA}, s{SA}, s{SB}')
    I(f's_movk_i32 s{SB}, 3072')
    I('s_branch L_w_src')
    A.label('L_wo_src')
    I(f's_bfe_u32 s{SA}, s2, 0x40002')
    I(f's_and_b32 s{SB}, s2, 3')
    I(f's_lshl_b32 s{SB}, s{SB}, 2')
    I(f's_add_u32 s{SB}, s{SB}, s{S_W}')
    if WIL:
        I(f's_lshl_b32 s{SC}, s{SA}, 5')
        I(f's_add_u32 s{SC}, s{SC}, s{SB}')
        I(f's_lshl_b32 s{SC}, s{SC}, 10')
    else:
        I(f's_lshl_b32 s{SC}, s{SB}, 4')
        I(f's_add_u32 s{SC}, s{SC}, s{SA}')
        I(f's_lshl_b32 s{SC}, s{SC}, 11')
    I(f's_add_u32 s{SC}, s{SC}, {hex(WS_WTO)}')
    I(f's_add_u32 s{SC + 1}, s{SC}, {16384 if WIL else 1024}')
    I(f's_lshl_b32 s{SA}, s{SA}, 15')
    I(f's_lshl_b32 s{SB}, s{SB}, 6')
    I(f's_add_u32 s{SA}, s{SA}, s{SB}')
    I(f's_movk_i32 s{SB}, 1024')
    A.label('L_w_src')
    I(f'v_mul_u32_u24 {v(vws)}, s{SB}, {v(x0)}')
    I(f'v_and_b32 {v(x1)}, 3, {v(V_L)}')
    I(f'v_lshl_add_u32 {v(x1)}, {v(x1)}, 4, s{SA}')
    I(f'v_add_u32 {v(vws)}, {v(vws)}, {v(x1)}')
    I(f's_lshl_b32 s{SB}, s{SB}, 4')
    I(f's_sub_u32 s{SB}, s{SB}, 1024')
    I(f'v_add_u32 {v(vws + 1)}, s{SB}, {v(vws)}')
    zero4 = P.alloc(4, 2)
    for i in range(4):
        I(f'v_mov_b32 {v(zero4 + i)}, 0')
    for r, n in ((R_WS, WS_SIZE),):
        I(f's_mov_b32 s{r + 2}, {hex(n)}')
        I(f's_mov_b32 s{r + 3}, 0x20000')
    xs = P.alloc(8, 2)
    xt = P.alloc(8, 2)
    par = P.alloc(8, 2)
    vtc = par + 7
    I(f's_cmp_eq_u32 s{S_W}, 0')
    I(f's_cselect_b32 s{S_T1}, 1, 0x100')
    I(f'v_lshlrev_b32_e64 {v(vtc)}, 7, s{S_T1}')
    A._wait(lg=0)
    stamp('a_karg')
    I(f's_cmp_lg_u32 s{sinit}, 0')
    I('s_cbranch_scc1 L_noinit')
    I(f'v_lshlrev_b32 {v(x0)}, 9, {v(V_L)}')
    A.cond = True
    for j in range(4):
        I(f'global_store_dword {v(x0)}, {v(zero4)}, {s(S_WS, 2)} offset:{128 * j} sc1')
    A.cond = False
    A.label('L_noinit')
    nld = 0

    def ld_x(j):
        if j < 2:
            I(f'global_load_dwordx4 {v(xs + 4 * j, 4)}, {v(vsr)}, {s(S_U, 2)} offset:{1024 * j}{NT("a")}')
        else:
            I(f'global_load_lds_dwordx4 {v(vtd if j == 2 else vtr)}, {s(S_U, 2)} offset:{1024 * (j - 2)}{NT("b")}', tag='xt')

    def ld_par():
        for i, sp in enumerate((S_ARE, S_AIM, S_BRE, S_BIM, S_CRE, S_CIM)):
            I(f'global_load_ushort {v(par + i)}, {v(vpo)}, {s(sp, 2)}{NT("p")}')

    def touch():
        I(f's_cmp_eq_u32 s{S_W}, 0')
        I(f's_cselect_b64 s[{S_T3}:{S_T4}], {s(S_DBG, 2)}, {s(S_WS, 2)}')
        I(f'global_load_dword {v(pf + 3)}, {v(vtc)}, s[{S_T3}:{S_T4}]')

    I(f's_cmp_ge_u32 s2, 192')
    I(f's_cselect_b64 s[{R_WQ}:{R_WQ + 1}], {s(S_WO, 2)}, {s(S_WQKV, 2)}')

    def touch2():
        I('s_mov_b64 exec, 1')
        I(f'global_load_dword {v(pf + 1)}, {v(vsr)}, {s(S_U, 2)}')
        I(f'global_load_dword {v(pf + 2)}, {v(vws)}, s[{R_WQ}:{R_WQ + 1}]')
        I('s_mov_b64 exec, -1')

    def ld_w():
        I('s_add_u32 m0, m0, 8192')
        for j in range(2):
            I(f'global_load_lds_dwordx4 {v(vws + j)}, s[{R_WQ}:{R_WQ + 1}] offset:{1024 * j}{NT("w")}', tag='wt')
    nld = 13
    if ORDER == 1:
        ld_x(0), touch(), ld_par(), ld_x(1), ld_x(2), ld_x(3), ld_w()
    elif ORDER == 2:
        touch(), ld_x(0), ld_x(1), ld_x(2), ld_x(3), ld_w(), ld_par()
    elif ORDER == 3:
        touch(), ld_x(0), ld_x(1), ld_x(2), ld_x(3), ld_par(), ld_w()
    elif ORDER == 4:
        ld_x(0), ld_x(1), ld_x(2), ld_x(3)
        A._wait(vm=2)
        stamp('b_xs')
        A._wait(vm=0)
        stamp('b_xt')
        touch(), ld_w(), ld_par()
        A._wait(vm=8)
        stamp('b_touch')
        A._wait(vm=6)
        stamp('b_w')
        A._wait(vm=0)
        stamp('b_par')
    elif ORDER >= 10:
        grp = {'1': ('x', lambda: [ld_x(j) for j in range(4)]), '2': ('touch', touch), '3': ('w', ld_w), '4': ('par', ld_par)}
        for c in str(ORDER):
            grp[c][1]()
            A._wait(vm=0)
            stamp('b_' + grp[c][0])
            A.barrier()
            stamp('b_bar' + c)
    elif ORDER in (7, 8, 9):
        touch2(), touch(), ld_par()
        if ORDER == 8:
            A.barrier()
        ld_x(0), ld_x(1), ld_x(2), ld_x(3)
        nld = 13
        if not WLATE:
            if ORDER == 8:
                A.barrier()
            ld_w()
            nld = 15
        if ORDER == 9:
            stamp('b_iss')
            for nm, n in (('code', 15), ('tu', 14), ('tw', 13), ('touch', 12), ('par', 6), ('xs', 4), ('xt', 2), ('w', 0)):
                A._wait(vm=n)
                stamp('b_' + nm)
    elif ORDER == 5:
        touch(), ld_x(0), ld_x(1), ld_x(2), ld_x(3), ld_w(), ld_par()
        stamp('b_iss')
        for nm, n in (('code', 13), ('touch', 12), ('xs', 10), ('xt', 8), ('w', 6), ('par', 0)):
            A._wait(vm=n)
            stamp('b_' + nm)
    elif ORDER == 6:
        touch(), ld_par(), ld_x(0), ld_x(1), ld_x(2), ld_x(3), ld_w()
        stamp('b_iss')
        for nm, n in (('code', 13), ('touch', 12), ('par', 6), ('xs', 4), ('xt', 2), ('w', 0)):
            A._wait(vm=n)
            stamp('b_' + nm)
    I(f's_load_dword s{S_D}, {s(S_LDT, 2)}, s{S_T2}')
    I(f's_load_dword s{S_D + 1}, {s(S_DSK, 2)}, s{S_T2}')
    for r, p in ((R_WS, S_WS),):
        I(f's_mov_b64 s[{r}:{r + 1}], s[{p}:{p + 1}]')
    if XPF:
        I(f'v_xor_b32 {v(vsr)}, {XPF << 18}, {v(vsr)}')
        I(f'v_mul_u32_u24 {v(x0)}, 112, {v(va_)}')
        I(f'v_add_u32 {v(vsr)}, {v(vsr)}, {v(x0)}')
        I('s_mov_b64 exec, 0xffff')
        I(f'global_load_dword {v(pf + 1)}, {v(vsr)}, {s(S_U, 2)}')
        if XPF2:
            I(f'v_xor_b32 {v(vpo)}, {XPF << 9}, {v(vpo)}')
            I('s_mov_b64 exec, 1')
            for i, sp in enumerate((S_ARE, S_AIM, S_BRE, S_BIM, S_CRE, S_CIM)):
                I(f'global_load_ushort {v(V_CSQ + (i & 3) if i < 4 else V_CSKV + i - 4)}, {v(vpo)}, {s(sp, 2)}')
            nld += 6
        I('s_mov_b64 exec, -1')
        nld += 1
    stamp('a_ldiss')
    P.free(vsr), P.free(vpo), P.free(vtd)
    I(f'v_and_b32 {v(x0)}, 31, {v(V_L)}')
    I(f'v_lshlrev_b32 {v(vtr)}, 6, {v(x0)}')
    I(f'v_lshl_add_u32 {v(vtr)}, s{S_W}, 11, {v(vtr)}')
    I(f'v_bfe_u32 {v(x0)}, {v(V_L)}, 2, 2')
    I(f'v_lshlrev_b32 {v(x1)}, 1, {v(vhi)}')
    I(f'v_xor_b32 {v(x0)}, {v(x0)}, {v(x1)}')
    I(f'v_lshl_add_u32 {v(vtr)}, {v(x0)}, 4, {v(vtr)}')
    kg, gi = setup_kgen(va_, vg, x0, x1)
    I(f's_cmp_lg_u32 s{sinit}, 0')
    I('s_cbranch_scc1 L_noflag')
    I(f'v_mov_b32 {v(x1)}, 1')
    A._wait(vm=nld)
    A.cond = True
    I(f'global_store_dword {v(zero4)}, {v(x1)}, {s(S_DBG, 2)} sc1')
    A.cond = False
    A.label('L_noflag')
    I(f'v_lshl_add_u32 {v(x1)}, {v(x0)}, 2, s{S_T3}')
    I(f'v_subrev_u32 {v(x1)}, 512, {v(x1)}')
    I(f'ds_write_b32 {v(x1)}, {v(zero4)}')
    I(f's_mul_i32 s{S_T3}, s{S_W}, 4160')
    I(f's_add_u32 s{S_T3}, s{S_T3}, {L_RK + 4096}')
    I(f'v_lshl_add_u32 {v(x1)}, {v(va_)}, 2, s{S_T3}')
    I(f'ds_write_b32 {v(x1)}, {v(zero4)}')
    stamp('a_kgset')
    I(f's_lshl_b32 s{S_T0}, s{sinit}, 7')
    I(f's_add_u32 s{S_T0}, s{S_T0}, {hex(WS_ZERO)}')
    I('s_mov_b64 exec, 0xff')
    I(f'buffer_store_dwordx4 {v(zero4, 4)}, {v(V_L16)}, {WS}, s{S_T0} offen sc1')
    I('s_mov_b64 exec, -1')
    setup_conv(va_, vg, x0, x1)
    vwr = P.alloc(2)
    I(f's_lshl_b32 s{S_T3}, s{S_W}, 11')
    I(f's_add_u32 s{S_T3}, s{S_T3}, 8192')
    I(f'v_and_b32 {v(x0)}, 3, {v(V_L)}')
    I(f'v_lshl_add_u32 {v(vwr)}, {v(V_L)}, 4, s{S_T3}')
    I(f'v_lshlrev_b32 {v(x0)}, 3, {v(x0)}')
    I(f'v_sub_u32 {v(vwr)}, {v(vwr)}, {v(x0)}')
    I(f'v_lshrrev_b32 {v(x0)}, 2, {v(va_)}')
    I(f'v_lshl_add_u32 {v(vwr + 1)}, {v(x0)}, 8, s{S_T3}')
    I(f'v_lshl_add_u32 {v(vwr + 1)}, {v(vhi)}, 6, {v(vwr + 1)}')
    I(f'v_and_b32 {v(x0)}, 1, {v(V_L)}')
    I(f'v_lshl_add_u32 {v(vwr + 1)}, {v(x0)}, 5, {v(vwr + 1)}')
    I(f'v_and_b32 {v(x0)}, 1, {v(vg)}')
    I(f'v_lshl_add_u32 {v(vwr + 1)}, {v(x0)}, 4, {v(vwr + 1)}')
    I(f'v_bfe_u32 {v(x0)}, {v(V_L)}, 1, 1')
    I(f'v_lshl_add_u32 {v(vwr + 1)}, {v(x0)}, 3, {v(vwr + 1)}')
    I(f's_mov_b32 s{S_ONES}, 0x3f803f80')
    I(f's_mov_b32 s{S_EXP}, {f32(math.log2(math.e))}')
    for i in range(4):
        I(f'v_mov_b32 {v(V_ONES + i)}, s{S_ONES}')
    I(f'v_xor_b32 {v(x1)}, 16, {v(vtr)}')
    if '--latepage' not in sys.argv:
        A.raw('#page')
        A.raw('#seg s0')
        A.raw('#touch s0')
    stamp('a_setup')
    st = P.alloc(4, 2)
    for i in range(4):
        for r in range(2):
            c = '0' if i == 0 else v(st + r)
            I(f'v_dot2_f32_bf16 {v(st + r)}, {v(xs + 4 * r + i)}, s{S_ONES}, {c}')
            c = '0' if i == 0 else v(st + 2 + r)
            I(f'v_dot2_f32_bf16 {v(st + 2 + r)}, {v(xs + 4 * r + i)}, {v(xs + 4 * r + i)}, {c}')
    stamp('a_xs')
    A.wait_vm('xt')
    I(f'ds_read_b128 {v(xt, 4)}, {v(vtr)}')
    I(f'ds_read_b128 {v(xt + 4, 4)}, {v(x1)}')
    I(f's_mov_b32 s{S_T0}, {hex(WS_ST[0])}')
    I(f'v_permlane32_swap_b32 {v(st)}, {v(st + 2)}')
    I(f'v_permlane32_swap_b32 {v(st + 1)}, {v(st + 3)}')
    I(f'v_add_f32 {v(st)}, {v(st)}, {v(st + 2)}')
    I(f'v_add_f32 {v(st + 1)}, {v(st + 1)}, {v(st + 3)}')
    I(f'v_permlane16_swap_b32 {v(st)}, {v(st + 1)}')
    I(f'v_add_f32 {v(st)}, {v(st)}, {v(st + 1)}')
    for sh in (8, 4, 2, 1):
        I(f'v_add_f32_dpp {v(st)}, {v(st)}, {v(st)} row_ror:{sh} row_mask:0xf bank_mask:0xf')
    I('s_mov_b32 exec_lo, 0x00010001')
    I('s_mov_b32 exec_hi, 0x00010001')
    I(f'buffer_store_dword {v(st)}, {v(vsa)}, {WS}, s{S_T0} offen sc1')
    I('s_mov_b64 exec, -1')
    x2store(0, xt)

    def wtrans():
        A.wait_vm('wt')
        A.wait_lg()
        I(f's_cmp_ge_u32 s2, 192')
        I('s_cbranch_scc1 L_wo_rd')
        for f_ in range(2):
            for z in range(2):
                A._emit(Ins(f'ds_read_b64_tr_b16 {v(xs + 4 * f_ + 2 * z, 2)}, {v(vwr)} offset:{1024 * z + 32 * f_}'))
        I('s_branch L_w_rd')
        A.label('L_wo_rd')
        for f_ in range(2):
            for z in range(2):
                I(f'ds_read_b64_tr_b16 {v(xs + 4 * f_ + 2 * z, 2)}, {v(vwr + 1)} offset:{1024 * f_ + 128 * z}')
        A.label('L_w_rd')
        for f_ in range(2):
            I(f'buffer_store_dwordx4 {v(xs + 4 * f_, 4)}, {v(V_L16)}, {WS}, s{SC + f_} offen sc1', tag='wtst')
    if not W1B:
        wtrans()
    flag = pf + 3
    I(f'global_load_dword {v(flag)}, {v(zero4)}, {s(S_DBG, 2)} sc1', tag='flag')
    if WLATE:
        ld_w()
    stamp('a_stored')
    if '--latepage' in sys.argv:
        A.raw('#page')
        A.raw('#seg s0')
        A.raw('#touch s0')

    if '--seq' in sys.argv:
        for nm, n in (('par', 13), ('wpf', 11), ('zero', 10), ('st', 9), ('x2', 1), ('flag', 0)):
            A._wait(vm=n)
            stamp('b_' + nm)

    def arrive1():
        stamp('b_pre')
        A.wait_vm('flag')
        stamp('a_drained')
        global_arrive(first=(flag, zero4))
        stamp('arr1')
    hooks = {KG_ARR: [arrive1]}
    kgen(par, kg, hooks)
    if W1B and WLATE < 2:
        wtrans()
        stamp('a_wtr')
    P.free(st, 4), P.free(xt, 8), P.free(zero4, 4), P.free(pf, 4), P.free(vws, 2), P.free(vsa), P.free(vtr)
    for r in f:
        P.free(r)
    poll_start(1)
    A.barrier()
    kgen2(kg)
    A.wait_vm('wtst')

    def fin():
        if W1B and WLATE == 2:
            wtrans()
            stamp('a_wtr')
        P.free(xs, 8), P.free(vwr, 2)
    return kg, gi, fin


def x2store(layer, d):
    I(f's_mov_b32 s{S_T0}, {hex(WS_X2[layer])}')
    for i in range(8):
        I(f'buffer_store_dword {v(d + i)}, {v(V_X2ST)}, {WS}, s{S_T0} offen sc1')
        if i < 7:
            I(f's_add_u32 s{S_T0}, s{S_T0}, 8192')


def kgen(par, kg, hooks):
    LOG2E = math.log2(math.e)
    A.wait_lg()
    I(f's_lshl_b32 s{S_T0}, s{S_D}, 16')
    I(f's_and_b32 s{S_T1}, s{S_D}, 0xffff0000')
    I(f's_lshl_b32 s{S_D}, s{S_D + 1}, 16')
    I(f's_and_b32 s{S_D + 1}, s{S_D + 1}, 0xffff0000')
    I(f's_cmp_ge_u32 s{S_W}, 2')
    I(f's_cselect_b32 s{S_T0}, s{S_T1}, s{S_T0}')
    dt = par + 6
    I(f'v_mov_b32 {v(dt)}, s{S_T0}')
    I(f'v_mul_f32 {v(dt)}, s{S_EXP}, {v(dt)}')
    I(f'v_exp_f32 {v(dt)}, {v(dt)}')
    for i in range(6):
        I(f'v_lshlrev_b32 {v(par + i)}, 16, {v(par + i)}')
    I(f'v_cvt_pk_bf16_f32 {v(dt)}, {v(dt)}, {v(dt)}')
    I(f'v_and_b32 {v(dt)}, 0xffff0000, {v(dt)}')
    z, Bc, Cc = par, par + 2, par + 4
    pk('mul', v(z, 2), (v(z, 2), 'p'), bc(dt))
    pk('mul', v(Bc, 2), (v(Bc, 2), 'p'), bc(dt))
    tmp = P.alloc(2, 2)
    CB = P.alloc(2, 2)
    cmul(CB, Cc, Bc, tmp)
    E = {}
    for rho in (1, 8, 64, 256):
        e = P.alloc(2, 2)
        E[rho] = e
        I(f'v_mul_f32 {v(tmp)}, {f32(rho * LOG2E)}, {v(z)}')
        I(f'v_mul_f32 {v(tmp + 1)}, {f32(rho / (2 * math.pi))}, {v(z + 1)}')
        I(f'v_exp_f32 {v(tmp)}, {v(tmp)}')
        I(f'v_fract_f32 {v(tmp + 1)}, {v(tmp + 1)}')
        I(f'v_cos_f32 {v(e)}, {v(tmp + 1)}')
        I(f'v_sin_f32 {v(e + 1)}, {v(tmp + 1)}')
        pk('mul', v(e, 2), (v(e, 2), 'p'), bc(tmp))
    pkr = [P.alloc() for _ in range(2)]
    cnt = [0]

    def put(r, neg):
        row = cnt[0]
        cnt[0] += 1
        if r is None:
            I(f'v_mov_b32 {v(pkr[row & 1])}, 0x3f80')
        else:
            I(f'v_cvt_pk_bf16_f32 {v(pkr[row & 1])}, {v(r)}, {"-" if neg else ""}{v(r + 1)}')
        if row & 1:
            o0 = (KG_ROW // 4) * (row & 2)
            I(f'ds_write2_b32 {v(kg["w"])}, {v(pkr[0])}, {v(pkr[1])} offset0:{o0} offset1:{o0 + KG_ROW // 4}')
            if row & 2:
                I(f'v_add_u32 {v(kg["w"])}, {4 * KG_ROW}, {v(kg["w"])}')
        elif row == 52:
            I(f'ds_write_b32 {v(kg["w"])}, {v(pkr[0])}')
        for th in hooks.pop(cnt[0], []):
            th()
    for rho, x, y in ((128, 64, 64), (192, 128, 64), (2, 1, 1), (4, 2, 2)):
        E[rho] = P.alloc(2, 2)
        cmul(E[rho], E[x], E[y], tmp)
    cur = P.alloc(2, 2)
    o = P.alloc(2, 2)
    put(None, False)
    for m in (1, 2, 3):
        put(E[64 * m], False)
    for j in range(1, 8):
        if j == 1:
            g = E[8]
        elif j == 2:
            cmul(cur, E[8], E[8], tmp)
            g = cur
        else:
            cmul(cur, cur, E[8], tmp)
        put(g, False)
        for m in (1, 2, 3):
            cmul(o, g, E[64 * m], tmp)
            put(o, False)
    put(CB, True)
    for j in range(1, 8):
        cmul(cur, CB if j == 1 else cur, E[1], tmp)
        put(cur, True)
    U = CB
    cmul(U, U, E[256], tmp)
    put(U, True)
    for j in range(1, 4):
        cmul(cur, U if j == 1 else cur, E[2], tmp)
        put(cur, True)
    for j in range(2):
        cmul(U, U, E[256], tmp)
        put(U, True)
        cmul(cur, U, E[4], tmp)
        put(cur, True)
    for j in range(5):
        cmul(U, U, E[256], tmp)
        put(U, True)
    for r in list(E.values()) + [tmp, CB, cur, o]:
        P.free(r, 2)
    P.free(pkr[0]), P.free(pkr[1])
    P.free(par, 8)
    assert not hooks
    stamp('a_kg1')


def kgen2(kg):
    d0, d1 = P.alloc(4, 2), P.alloc(4, 2)
    mf = []
    for st in range(8):
        for tl, d in ((0, d0), (1, d1)):
            def em(reg, st=st, tl=tl, d=d):
                c = '0' if st == 0 else v(d, 4)
                I(f'v_mfma_f32_16x16x32_bf16 {v(d, 4)}, {v(reg[("a", tl, st)], 4)}, {v(reg[("g", st)], 4)}, {c}')
            mf.append((em, [('a', tl, st), ('g', st)]))

    def loader(k, r):
        ko = KG_W * (k[-1] >> 2) + 64 * (k[-1] & 3)
        if k[0] == 'g':
            return [f'ds_read_b128 {v(r, 4)}, {v(kg["g"])} offset:{ko}']
        base = kg['a0'] if k[1] == 0 else kg['a1']
        return [f'ds_read_b128 {v(r, 4)}, {v(base)} offset:{(32 + 16 * k[1]) * KG_ROW + ko}']
    stream(mf, loader, 15, 12, rate=2, burst=15)
    I(f'ds_write_b64 {v(kg["t1"])}, {v(d0, 2)}')
    I(f'ds_write_b64 {v(kg["t2"])}, {v(d0 + 2, 2)}')
    I(f'v_add_u32 {v(kg["t3"])}, {4 * TB[3]}, {v(kg["t3"])}')
    I('s_mov_b32 exec_hi, 0')
    for r in (0, 2):
        I(f'ds_write2_b32 {v(kg["t3"])}, {v(d1 + r)}, {v(d1 + r + 1)} offset0:{32 * r} offset1:{32 * r + 32}')
    I('s_mov_b64 exec, -1')
    P.free(d0, 4), P.free(d1, 4)
    stamp('a_kg2')


def kgen3(kg, gi):
    for u in range(17):
        I(f'ds_read_b32 {v(gi + u)}, {v(gi + u)}')
    c = P.alloc(16, 2)
    for cp in range(2):
        for m in range(8):
            I(f'v_cvt_pk_bf16_f32 {v(c + 8 * cp + m)}, {v(gi + 2 * m + cp)}, {v(gi + 2 * m + cp + 1)}')
        for hq in range(2):
            I(f'ds_write_b128 {v(kg["rk"])}, {v(c + 8 * cp + 4 * hq, 4)} offset:{4160 * cp + 16 * hq}')
    A.barrier(lg=False)
    P.free(c, 16), P.free(gi, 18)
    for r in kg.values():
        P.free(r)
    stamp('a_kgen')


def conv(layer, kg, gi, wl):
    xd = P.alloc(8, 2)
    sm = P.alloc(8, 2)
    sq = P.alloc(8, 2)
    for i in range(2):
        I(f'buffer_load_dwordx4 {v(sm + 4 * i, 4)}, {v(V_CVL)}, {WS}, s{S_T1} offen offset:{1024 * i} sc1')
        I(f'buffer_load_dwordx4 {v(sq + 4 * i, 4)}, {v(V_CVL)}, {WS}, s{S_T2} offen offset:{1024 * i} sc1')
        I(f'buffer_load_dwordx4 {v(xd + 4 * i, 4)}, {v(V_CVL)}, {WS}, s{S_T3} offen offset:{1024 * i} sc1')
        if i == 0 and '--nocvb' not in sys.argv:
            A.barrier()
    stamp(f'conv{layer}_iss')
    if layer == 0:
        kg.pop('fin')()
        if W1B and WLATE < 2:
            arrive_1b()
        kgen3(kg, gi)
    base = P.alloc(16, 2)
    hh = P.alloc(4, 2)
    hp = P.alloc(4, 2)
    LN = s(S_LN, 2)
    for i in range(2):
        m, q, x = sm + 4 * i, sq + 4 * i, xd + 4 * i
        for j in (0, 2):
            pk('mul', v(m + j, 2), (v(m + j, 2), 'p'), (LN, 'l'))
        for j in (0, 2):
            pk('fma', v(q + j, 2), (v(q + j, 2), 'p'), (LN, 'l'), (LN, 'h'))
        for j in (0, 2):
            pk('fma', v(q + j, 2), (v(m + j, 2), 'p', 'b'), (v(m + j, 2), 'p'), (v(q + j, 2), 'p'))
        for j in range(4):
            I(f'v_max_f32 {v(q + j)}, s{S_LN + 1}, {v(q + j)}')
        for j in range(4):
            I(f'v_rsq_f32 {v(q + j)}, {v(q + j)}')
        for c in range(2):
            b = base + 8 * i + 4 * c
            for j in range(4):
                if c == 0:
                    I(f'v_lshlrev_b32 {v(b + j)}, 16, {v(x + j)}')
                else:
                    I(f'v_and_b32 {v(b + j)}, 0xffff0000, {v(x + j)}')
            for j in (0, 2):
                pk('add', v(hh + j, 2), (v(b + j, 2), 'p'), (v(m + j, 2), 'p', 'b'))
            for j in (0, 2):
                pk('mul', v(hh + j, 2), (v(hh + j, 2), 'p'), (v(q + j, 2), 'p'))
            for j in (0, 2):
                I(f'v_cvt_pk_bf16_f32 {v(hp + 2 * c + j // 2)}, {v(hh + j)}, {v(hh + j + 1)}')
            I(f'ds_write_b64 {v(V_HW)}, {v(hp + 2 * c, 2)} offset:{4608 * c + 512 * i}')
            for j in (0, 2):
                pk('fma', v(b + j, 2), (v(hh + j, 2), 'p'), (s(S_D, 2), 'h' if c else 'l'), (v(b + j, 2), 'p'))
    P.free(xd, 8), P.free(sm, 8), P.free(sq, 8), P.free(hh, 4), P.free(hp, 4)
    if layer == 0 and W1B and WLATE < 2:
        poll_start('1b')
    A.wait_vm('wtst')
    A.barrier()
    if layer == 0 and W1B and WLATE == 2:
        arrive_1b()
    stamp(f'conv{layer}_h')
    acc = P.alloc(32, 2)
    mf = []
    seen = set()
    fin = {}
    for cc in range(4):
        if cc < 3:
            seq = [(p, n) for p in range(7, -1, -1) for n in range(p, 8)]
        else:
            seq = [(p, n) for n in range(8) for p in range(n + 1)]
        for (p, n) in seq:
            def em(reg, cc=cc, p=p, n=n, fst=(n not in seen)):
                d = v(acc + 4 * n, 4)
                I(f'v_mfma_f32_16x16x32_bf16 {d}, {v(reg[("A", cc, p)], 4)}, {v(reg[("B", cc, n - p)], 4)}, {"0" if fst else d}')
            seen.add(n)
            mf.append((em, [('A', cc, p), ('B', cc, n - p)]))
            fin[n] = len(mf) - 1

    def loader(k, r):
        _, cc, x = k
        if k[0] == 'B':
            return [f'ds_read_b128 {v(r, 4)}, {v(V_CB)} offset:{512 * x + 64 * (3 - cc)}']
        o = 128 * (1 - (x & 1)) + 16 * (3 - cc)
        return [f'ds_read2_b32 {v(r, 2)}, {v(V_CA[x >> 1])} offset0:{o} offset1:{o + 1}',
                f'ds_read2_b32 {v(r + 2, 2)}, {v(V_CA[x >> 1])} offset0:{o + 2} offset1:{o + 3}']
    fill = {}
    for n in range(8):
        at = min(fin[n] + 7, len(mf) - 1)
        fill.setdefault(at, []).append(lambda reg, n=n: I(f'ds_write_b128 {v(V_EXW)}, {v(acc + 4 * n, 4)} offset:{1280 * n}'))
    if SPEC:
        pz = P.alloc(2, 2)
        spread(fill, xt_poison(layer, pz), 3, 3)

        def early(reg):
            A.wait_vm('poison')
            global_arrive(lg=False)
        if SPEC > 9:
            fill.setdefault(SPEC, []).append(early)
    if wl and W1B:
        if WLATE == 2:
            fill.setdefault(W1B_GAP - 38, []).append(lambda reg: poll_start('1b'))
        fill.setdefault(W1B_GAP, []).append(lambda reg: wait_1b(4 if SPEC and WLATE < 2 else 0))
        spread(fill, wl, W1B_GAP + 2, (126 - W1B_GAP) / len(wl))
    elif wl:
        spread(fill, wl, W_C0, W_CSTEP)
    if layer == 0 and LATE_IN:
        with Capture() as ls:
            keep = setup_late(free=False)
        free_gaps = [m for m in range(14, 140) if m not in fill]
        for i, t in enumerate(ls):
            fill.setdefault(free_gaps[(i * len(free_gaps)) // len(ls)], []).append(lambda reg, t=t: I(t))
    stream(mf, loader, 20, 40, fill=fill, burst=12)
    P.free(acc, 32)
    if SPEC:
        P.free(pz, 2)
        A.wait_vm('poison')
    if layer == 0 and LATE_IN:
        for r in keep:
            P.free(r)
    A.barrier()
    stamp(f'conv{layer}_mm')
    ex = P.alloc(32, 2)
    for i in range(2):
        for u in range(4):
            I(f'ds_read_b128 {v(ex + 16 * i + 4 * u, 4)}, {v(V_EXR)} offset:{10240 * u + 1280 * i}')
    if SPEC == 1:
        global_arrive(bar=False)
    I(f's_mov_b32 s{S_T0}, {hex(WS_XT[layer])}')
    I(f's_mov_b32 s{S_T1}, {hex(WS_XT[layer] + 262144)}')
    for i in range(2):
        for c in range(2):
            b = base + 8 * i + 4 * c
            e = ex + 16 * i + 8 * c
            for j in (0, 2):
                pk('add', v(b + j, 2), (v(b + j, 2), 'p'), (v(e + j, 2), 'p'))
            for j in (0, 2):
                pk('add', v(b + j, 2), (v(b + j, 2), 'p'), (v(e + 4 + j, 2), 'p'))
            for j in (0, 2):
                I(f'v_cvt_pk_bf16_f32 {v(e + j // 2)}, {v(b + j)}, {v(b + j + 1)}')
            I(f'buffer_store_dwordx2 {v(e, 2)}, {v(V_XTST)}, {WS}, s{S_T0 + i} offen offset:{128 * c} sc1', tag='xtst')
    P.free(ex, 32), P.free(base, 16)
    stamp(f'conv{layer}_st')


def phi(x, tmp):
    EX = s(S_EXP, 2)
    for j in (0, 2):
        pk('fma', v(tmp + j, 2), (v(x + j, 2), 'p'), (EX, 'l'), (EX, 'h'))
    for j in range(4):
        I(f'v_exp_f32_e64 {v(tmp + j)}, {v(tmp + j)} clamp')
    for j in range(4):
        I(f'v_max_f32 {v(x + j)}, s{S_E6}, {v(x + j)}')
    for j in (0, 2):
        pk('add', v(x + j, 2), (v(x + j, 2), 'p'), (v(tmp + j, 2), 'p'))


DOTSTATS = '--dot' in sys.argv


def p3(layer, wl1, wl2):
    A.label(f'L_redo{layer}')
    for ck in range(4):
        if ck == 0:
            I(f's_lshl_b32 m0, s{S_W}, 12')
        else:
            I('s_add_u32 m0, m0, 16384')
        I(f's_mov_b32 s{S_T0}, {hex(WS_XT[layer] + ck * 16384)}')
        for j in range(4):
            I(f'buffer_load_dwordx4 {v(V_XTLD)}, {WS}, s{S_T0} offen offset:{1024 * j} sc1 lds', tag=f'xt{ck}')
        if layer == 0 and CS_C0 and ck in (1, 2):
            colsums([ck])
    acc = P.alloc(32, 4)
    ss = P.alloc(8, 4)

    def loader(k, r):
        st, i = k
        return [f'ds_read_b64_tr_b16 {v(r + 2 * z, 2)}, {v(V_XT[i])} offset:{4096 * st + 2048 * z}' for z in range(2)]
    mf = []
    fill = {}
    for st in range(16):
        for i in range(4):
            for y in (1, 2):
                def em(reg, st=st, i=i, y=y):
                    d = v(acc + 16 * (y - 1) + 4 * i, 4)
                    I(f'v_mfma_f32_16x16x32_bf16 {d}, {v(reg[(st, i)], 4)}, {wq_reg(y, st)}, {"0" if st == 0 else d}')
                mf.append((em, [(st, i)]))
            if i == 0 and not DOTSTATS:
                for y in range(2):
                    def em(reg, st=st, y=y):
                        d = v(ss + 4 * y, 4)
                        x = v(reg[(st, 0)], 4)
                        I(f'v_mfma_f32_16x16x32_bf16 {d}, {v(V_ONES, 4) if y else x}, {x}, {"0" if st == 0 else d}')
                    mf.append((em, [(st, 0)]))
            if i == 0 and DOTSTATS:
                def dots(reg, st=st):
                    for j in range(8):
                        x = v(reg[(st, 0)] + j // 2)
                        d = v(ss + (j & 1))
                        c = '0' if (st == 0 and j < 2) else d
                        I(f'v_dot2_f32_bf16 {d}, {x}, {x if j & 1 else s(S_ONES)}, {c}')
                fill.setdefault(len(mf) - 2, []).append(dots)
    per = len(mf) // 16
    if wl1:
        spread(fill, wl1, 5 * per + 3, (10.5 * per) / len(wl1))

    def mkgate(ck):
        def g():
            A.wait_vm(f'xt{ck}')
            A.barrier(lg=(ck == 0))
            if ck == 0:
                stamp(f'p3_{layer}_c0')
            if ck == 1 and SPEC:
                I(f's_cmp_lg_u32 s{S_REDO}, 1')
                I(f's_cbranch_scc1 L_nofb{layer}')
                I(f's_mov_b32 s{S_T0}, {hex(WS_FB)}')
                A._emit(Ins(f'v_mov_b32 {v(V_PA)}, 1'))
                I('s_mov_b64 exec, 1')
                A.cond = True
                I(f'buffer_atomic_add {v(V_PA)}, {v(V_ARR)}, {WS}, s{S_T0} offen')
                A.cond = False
                I('s_mov_b64 exec, -1')
                A.label(f'L_nofb{layer}')
        return g
    gate = {(4 * ck, 0): mkgate(ck) for ck in range(4)}
    stream(mf, loader, 9, per + 2, fill=fill, gate=gate, burst=8)
    stamp(f'p3_{layer}_mm')
    if DOTSTATS:
        for r in (0, 1):
            I(f'v_mov_b32 {v(ss + 2 + r)}, {v(ss + r)}')
        for r in (0, 1):
            I(f'v_permlane32_swap_b32 {v(ss + r)}, {v(ss + 2 + r)}')
        pk('add', v(ss, 2), (v(ss, 2), 'p'), (v(ss + 2, 2), 'p'))
        for r in (0, 1):
            I(f'v_mov_b32 {v(ss + 2 + r)}, {v(ss + r)}')
        for r in (0, 1):
            I(f'v_permlane16_swap_b32 {v(ss + r)}, {v(ss + 2 + r)}')
        pk('add', v(ss, 2), (v(ss, 2), 'p'), (v(ss + 2, 2), 'p'))
        pk('mul', v(ss, 2), (v(ss, 2), 'p'), (s(S_LN, 2), 'l'))
        I(f'v_fma_f32 {v(ss + 1)}, -{v(ss)}, {v(ss)}, {v(ss + 1)}')
        I(f'v_max_f32 {v(ss + 1)}, 0, {v(ss + 1)}')
        I(f'v_add_f32 {v(ss + 1)}, s{S_LN + 1}, {v(ss + 1)}')
        I(f'v_rsq_f32 {v(ss + 1)}, {v(ss + 1)}')
        I(f'v_mul_f32 {v(ss)}, {v(ss)}, {v(ss + 1)}')
        I(f'ds_write2st64_b32 {v(V_SW)}, {v(ss + 1)}, {v(ss)} offset0:0 offset1:1')
    else:
        I(f'v_cndmask_b32 {v(ss)}, {v(ss)}, {v(ss + 1)}, {s(S_M1, 2)}')
        I(f'v_cndmask_b32 {v(ss + 2)}, {v(ss + 2)}, {v(ss + 3)}, {s(S_M1, 2)}')
        I(f'v_mul_f32 {v(ss + 4)}, s{S_LN}, {v(ss + 4)}')
        I(f'v_cndmask_b32 {v(ss)}, {v(ss)}, {v(ss + 2)}, {s(S_M2, 2)}')
        I(f'v_mul_f32 {v(ss + 1)}, {v(ss + 4)}, {v(ss + 4)}')
        I(f'v_fma_f32 {v(ss + 1)}, {v(ss)}, s{S_LN}, -{v(ss + 1)}')
        I(f'v_max_f32 {v(ss + 1)}, 0, {v(ss + 1)}')
        I(f'v_add_f32 {v(ss + 1)}, s{S_LN + 1}, {v(ss + 1)}')
        I(f'v_rsq_f32 {v(ss + 1)}, {v(ss + 1)}')
        I('s_mov_b32 exec_lo, 0x00f0000f')
        I('s_mov_b32 exec_hi, 0xf0000f00')
        I(f'v_mul_f32 {v(ss)}, {v(ss + 4)}, {v(ss + 1)}')
        I(f'ds_write2st64_b32 {v(V_SW)}, {v(ss + 1)}, {v(ss)} offset0:0 offset1:1')
        I('s_mov_b64 exec, -1')
    ta = P.alloc(6, 2)
    for i in range(1, 4):
        I(f'v_xor_b32 {v(ta + 2 * i - 2)}, {64 * i}, {v(V_SR4)}')
        I(f'v_xor_b32 {v(ta + 2 * i - 1)}, {64 * i}, {v(V_SR1)}')


    def csq(lo, hi):
        if layer == 0:
            for st in range(lo, hi):
                I(f'v_mfma_f32_16x16x32_bf16 {v(V_CSQ, 4)}, {wq_reg(0, st)}, {v(V_ONES, 4)}, {v(V_CSQ, 4) if st else 0}')
    csq(0, 6)
    A.barrier()
    stamp(f'p3_{layer}_st')
    P.free(ss, 8)
    r4 = P.alloc(32, 4)
    r1 = P.alloc(8, 2)
    for i in range(4):
        a4 = ta + 2 * i - 2 if i else V_SR4
        I(f'ds_read_b128 {v(r4 + 8 * i + 4, 4)}, {v(a4)} offset:256')
        I(f'ds_read_b128 {v(r4 + 8 * i, 4)}, {v(a4)}')
    for i in range(4):
        a1 = ta + 2 * i - 1 if i else V_SR1
        I(f'ds_read2st64_b32 {v(r1 + 2 * i, 2)}, {v(a1)} offset0:0 offset1:1')
    P.free(ta, 6)
    csq(6, 16)
    tmp = P.alloc(4, 2)
    fk = P.alloc(8, 4)
    fv = P.alloc(8, 4)
    dkv, dz = P.alloc(4, 4), P.alloc(4, 4)
    E6 = s(S_E6, 2)
    for i in range(4):
        r, rm = r4 + 8 * i, r4 + 8 * i + 4
        k_, v_ = acc + 4 * i, acc + 16 + 4 * i
        for j in (0, 2):
            pk('fma', v(tmp + j, 2), (v(rm + j, 2), 'p', 'b'), bc(V_CSKV), (E6, 'p'))
        for j in (0, 2):
            pk('fma', v(k_ + j, 2), (v(k_ + j, 2), 'p'), (v(r + j, 2), 'p'), (v(tmp + j, 2), 'p'))
        for j in (0, 2):
            pk('mul', v(v_ + j, 2), (v(v_ + j, 2), 'p'), (v(r + j, 2), 'p'))
        for j in (0, 2):
            pk('fma', v(v_ + j, 2), (v(rm + j, 2), 'p', 'b'), bc(V_CSKV + 1), (v(v_ + j, 2), 'p'))
        phi(k_, tmp)
        for j in (0, 2):
            I(f'v_cvt_pk_bf16_f32 {v(fv + 2 * i + j // 2)}, {v(v_ + j)}, {v(v_ + j + 1)}')
        for j in (0, 2):
            I(f'v_cvt_pk_bf16_f32 {v(fk + 2 * i + j // 2)}, {v(k_ + j)}, {v(k_ + j + 1)}')
    if SPEC:
        I(f'v_cmp_u_f32 vcc, {v(r1 + 1)}, {v(r1 + 3)}')
        I(f'v_cmp_u_f32 s[{R_WQ}:{R_WQ + 1}], {v(r1 + 5)}, {v(r1 + 7)}')
        I(f's_or_b64 vcc, vcc, s[{R_WQ}:{R_WQ + 1}]')
        I(f's_cbranch_scc1 L_slow{layer}')
        A.label(f'L_ok{layer}')
    stamp(f'p3_{layer}_kv')
    I(f's_mov_b32 s{S_T2}, {hex(WS_KV[layer])}')
    I(f's_mov_b32 s{S_T0}, {hex(WS_KV[layer] + 32768)}')
    for hf in range(2):
        I(f'v_mfma_f32_16x16x32_bf16 {v(dkv, 4)}, {v(fv + 4 * hf, 4)}, {v(fk + 4 * hf, 4)}, {v(dkv, 4) if hf else 0}')
    for hf in range(2):
        I(f'v_mfma_f32_16x16x32_bf16 {v(dz, 4)}, {v(V_ONES, 4)}, {v(fk + 4 * hf, 4)}, {v(dz, 4) if hf else 0}')
    P.free(r4, 32), P.free(fk, 8), P.free(fv, 8), P.free(acc, 32)

    def atomics():
        for r in range(4):
            I(f'buffer_atomic_add_f32 {v(dkv + r)}, {v(V_KVST)}, {WS}, s{S_T2} offen offset:{64 * r}')
        I('s_mov_b64 exec, 0xffff')
        I(f'buffer_atomic_add_f32 {v(dz)}, {v(V_ZST)}, {WS}, s{S_T0} offen')
        I('s_mov_b64 exec, -1')
        stamp(f'p3_{layer}_atom')
    acc = P.alloc(16, 4)
    mf = []
    fill = {}
    for st in range(16):
        for i in range(4):
            def em(reg, st=st, i=i):
                d = v(acc + 4 * i, 4)
                I(f'v_mfma_f32_16x16x32_bf16 {d}, {wq_reg(0, st)}, {v(reg[(st, i)], 4)}, {"0" if st == 0 else d}')
            mf.append((em, [(st, i)]))
    if wl2:
        spread(fill, wl2, 4, 56 / len(wl2), solo=False)
    stream(mf, loader, 8, 6, fill=fill, rate=2, burst=10, pre=atomics)
    P.free(dkv, 4), P.free(dz, 4)
    stamp(f'p3_{layer}_qmm')
    I(f's_mov_b32 s{S_T0}, {hex(WS_PQ[layer])}')
    ta = P.alloc(4)
    for i in range(1, 4):
        I(f'v_xor_b32 {v(ta + i)}, {(i >> 1) * 32768 + (i & 1) * 512}, {v(V_PQST)}')
    for i in range(4):
        q_ = acc + 4 * i
        rr = v(r1 + 2 * i, 2)
        for j in (0, 2):
            pk('fma', v(tmp + j, 2), (rr, 'h', 'b'), (v(V_CSQ + j, 2), 'p'), (E6, 'p'))
        for j in (0, 2):
            pk('fma', v(q_ + j, 2), (v(q_ + j, 2), 'p'), (rr, 'l'), (v(tmp + j, 2), 'p'))
        phi(q_, tmp)
        for j in (0, 2):
            I(f'v_cvt_pk_bf16_f32 {v(q_ + j // 2)}, {v(q_ + j)}, {v(q_ + j + 1)}')
        I(f'buffer_store_dwordx2 {v(q_, 2)}, {v(ta + i if i else V_PQST)}, {WS}, s{S_T0} offen sc1', tag='pqst')
    stamp(f'p3_{layer}_q')
    P.free(r1, 8), P.free(tmp, 4), P.free(acc, 16), P.free(ta, 4)


P4_UP = int(([x[6:] for x in sys.argv if x.startswith('--p4up')] or ['3'])[0])


P4FL = '' if '--nosc1' in sys.argv else 'sc1'


OUTFL = ([x[6:] for x in sys.argv if x.startswith('--out=')] or [''])[0].replace('+', ' ')


P4_EARLY = [int(c) for c in ([x[8:] for x in sys.argv if x.startswith('--p4ear=')] or ['9'])[0]]


def p4_res():
    res = P.alloc(8, 2)
    for j in range(4):
        I(f'ds_read_b64_tr_b16 {v(res + 2 * j, 2)}, {v(V_RES[j & 1])} offset:{512 * j}')
    return res


def p4_pre(res, layer):
    I(f's_mov_b32 s{S_T1}, {hex(WS_KV[layer])}')
    I(f's_mov_b32 s{S_T2}, {hex(WS_PQ[layer])}')
    I(f's_mov_b32 s{S_T3}, {hex(WS_KV[layer] + 4096)}')
    I(f's_mov_b32 s{S_T4}, {hex(WS_PQ[layer] + 4096)}')
    acc = P.alloc(16, 2)
    ad = [P.alloc() for _ in range(3)]
    for b in range(1, 4):
        I(f'v_xor_b32 {v(ad[b - 1])}, {8192 * b}, {v(V_OFW)}')
    for j in range(8):
        I(f'v_lshlrev_b32 {v(acc + 2 * j)}, 16, {v(res + j)}')
        I(f'v_and_b32 {v(acc + 2 * j + 1)}, 0xffff0000, {v(res + j)}')
    P.free(res, 8)
    return acc, ad


def p4(layer, acc, ad):
    zf = P.alloc(4, 2)
    kv = P.alloc(32, 2)
    pq = P.alloc(32, 2)
    D = [P.alloc(16, 2), P.alloc(16, 2)]
    frs = [P.alloc(4, 2) for _ in range(6)]
    fr = frs[0]

    def loads(pp):
        out = []
        for j in range(2):
            out.append(f'buffer_load_dwordx4 {v(kv + 8 * pp + 4 * j, 4)}, {v(V_KVLD)}, {WS}, s{S_T3 if pp >> 1 else S_T1} offen offset:{2048 * (pp & 1) + 1024 * j} sc1')
        for j in range(2):
            out.append(f'buffer_load_dwordx4 {v(pq + 8 * pp + 4 * j, 4)}, {v(V_PQLD)}, {WS}, s{S_T4 if pp >> 1 else S_T2} offen offset:{2048 * (pp & 1) + 1024 * j} sc1')
        return out
    I(f'buffer_load_dwordx4 {v(fr, 4)}, {v(V_ZLD)}, {WS}, s{S_T1} offen sc1')
    for pp in range(P4_UP):
        for i, t in enumerate(loads(pp)):
            I(t)
            if pp == 0 and i == 1:
                A.barrier()
        if pp < P4_UP - 1:
            A.barrier()
    late = [t for pp in range(P4_UP, 4) for t in loads(pp)]
    stamp(f'p4_{layer}_iss')
    for j in range(4):
        I(f'v_cvt_pk_bf16_f32 {v(zf + j)}, {v(fr + 2 * (j & 1))}, {v(fr + 1 + 2 * (j & 1))}')
    stamp(f'p4_{layer}_z')
    MK = s(S_MASK, 2)

    def prep(pp):
        x = kv + 8 * pp
        o = [f'v_cvt_pk_bf16_f32 {v(x + j)}, {v(x + 2 * j)}, {v(x + 2 * j + 1)}' for j in range(4)]
        if pp == 0:
            o += [f'v_permlane16_swap_b32 {v(zf + j)}, {v(zf + 2 + j)}' for j in range(2)]
        o += [f'v_cndmask_b32 {v(x + 4 + j)}, {v(zf + j)}, {v(x + j)}, {MK}' for j in range(4)]
        o += [f'v_cndmask_b32 {v(x + j)}, {v(x + j)}, {v(zf + j)}, {MK}' for j in range(4)]
        return o

    def mm(hh):
        I(f'v_mfma_f32_32x32x16_bf16 {v(D[hh & 1], 16)}, {v(kv + 4 * hh, 4)}, {v(pq + 4 * hh, 4)}, 0')

    def main_mm(hl, r):
        I(f'v_mfma_f32_32x32x16_bf16 {v(acc, 16)}, {wo_reg(hl)}, {v(r, 4)}, {v(acc, 16)}')

    def norm(pp):
        den = [D[o] + 8 * (1 - o) + 2 * pp + o for o in range(2)]
        out = []
        for o in range(2):
            num = D[o] + 8 * o
            of = pq + 8 * pp + 4 * o
            out.append(f'v_add_f32 {v(den[o])}, s{S_E6}, {v(den[o])}')
            out.append(f'v_rcp_f32 {v(den[o])}, {v(den[o])}')
            out += [f'v_mul_f32 {v(num + j)}, {v(den[o])}, {v(num + j)}' for j in range(8)]
            out += [f'v_cvt_pk_bf16_f32 {v(of + j)}, {v(num + 2 * j)}, {v(num + 2 * j + 1)}' for j in range(4)]
            out.append(f'ds_write_b128 {v(V_OFW)}, {v(of, 4)} offset:{2048 * pp + 1024 * o}')
        out[2:2] = [out.pop(15), out.pop(15)]
        return out

    def reads(pp):
        return [f'ds_read_b128 {v(frs[2 * (b - 1) + o], 4)}, {v(ad[b - 1])} offset:{2048 * pp + 1024 * o}' for b in range(1, 4) for o in range(2)]
    for t in prep(0):
        I(t)
    for pp in range(5):
        rd = reads(pp - 1) if pp else []
        tail = []
        if pp:
            tail = [(2 * pp - 2 + o, pq + 8 * pp - 8 + 4 * o) for o in range(2)]
            tail += [(8 * b + 2 * pp - 2 + o, frs[2 * (b - 1) + o]) for b in range(1, 4) for o in range(2)]
        if pp < 4:
            for o in range(2):
                mm(2 * pp + o)
                for t in rd[3 * o:3 * o + 3]:
                    I(t)
            while late:
                I(late.pop(0))
            stamp(f'p4_{layer}_m{pp}')
            va = norm(pp)
            nx = prep(pp + 1) if pp < 3 else []
            if pp in P4_EARLY:
                va = nx[:4] + va + nx[4:]
                cuts = (0, 6, 11, 16, 20, 21, 27, 33)
            else:
                va = va + nx
                cuts = (0, 1, 6, 11, 16, 22, 29, 34) if pp < 3 else (0, 1, 7, 12, 16, 22, 29)
            for i, t in enumerate(va):
                if i in cuts and tail:
                    if len(tail) == 6:
                        A.need(v(frs[2], 4))
                    if len(tail) == 3:
                        A.need(v(frs[5], 4))
                    main_mm(*tail.pop(0))
                I(t)
            for x in tail:
                main_mm(*x)
            A.barrier()
        else:
            for i, x in enumerate(tail):
                for t in rd[2 * i:2 * i + 2]:
                    I(t)
                main_mm(*x)
    P.free(zf, 4), P.free(kv, 32), P.free(pq, 32), P.free(D[0], 16), P.free(D[1], 16)
    for r in frs:
        P.free(r, 4)
    for r in ad:
        P.free(r)
    stamp(f'p4_{layer}_mm')
    o = P.alloc(8, 2)
    if layer == 0:
        I(f's_mov_b32 s{S_T1}, {hex(WS_ST[1])}')
    else:
        ta = P.alloc(3)
        I(f'v_and_b32 {v(ta)}, 31, {v(V_L)}')
        I(f'v_mul_u32_u24 {v(ta)}, 272, {v(ta)}')
        I(f'v_and_b32 {v(ta + 1)}, 0xff, {v(V_TILE)}')
        I(f'v_add_u32 {v(ta)}, {v(ta)}, {v(ta + 1)}')
        I(f'v_lshrrev_b32 {v(ta + 1)}, 4, v0')
        I(f'v_readfirstlane_b32 s{S_T0}, {v(V_TILE)}')
        I(f'v_and_b32 {v(ta + 2)}, 0xf0, {v(V_L16)}')
        I(f's_and_b32 s{S_T0}, s{S_T0}, 0xffffff00')
        I(f'v_mad_u32_u24 {v(o)}, {v(ta + 1)}, 17, 0')
        I(f'v_lshl_add_u32 {v(ta + 1)}, {v(ta + 1)}, 10, s{S_T0}')
        I(f'v_add_u32 {v(ta + 1)}, {v(ta + 1)}, {v(ta + 2)}')
        I(f'v_lshl_add_u32 {v(ta + 2)}, {v(o)}, 4, {v(ta + 2)}')
    for j in range(8):
        I(f'v_cvt_pk_bf16_f32 {v(o + j)}, {v(acc + 2 * j)}, {v(acc + 2 * j + 1)}')
    if layer == 0:
        ss = P.alloc(2, 2)
        for j in range(8):
            I(f'v_dot2_f32_bf16 {v(ss)}, {v(o + j)}, s{S_ONES}, {v(ss) if j else 0}')
            I(f'v_dot2_f32_bf16 {v(ss + 1)}, {v(o + j)}, {v(o + j)}, {v(ss + 1) if j else 0}')
        I(f'v_permlane32_swap_b32 {v(ss)}, {v(ss + 1)}')
        I(f'v_add_f32 {v(ss)}, {v(ss)}, {v(ss + 1)}')
        I(f'buffer_atomic_add_f32 {v(ss)}, {v(V_STAT)}, {WS}, s{S_T1} offen')
        x2store(1, o)
        P.free(ss, 2)
    elif '--dirout' in sys.argv:
        for j in range(2):
            I(f'global_store_dwordx4 {v(V_TILE)}, {v(o + 4 * j, 4)}, {s(S_OUT, 2)} offset:{16 * j} {OUTFL}')
        P.free(ta, 3)
    else:
        for j in range(2):
            I(f'ds_write_b128 {v(ta)}, {v(o + 4 * j, 4)} offset:{L_A + 16 * j}')
        I(f'v_add_u32 {v(ta)}, 16384, {v(ta + 1)}')
        A.barrier()
        for j in range(2):
            I(f'ds_read_b128 {v(o + 4 * j, 4)}, {v(ta + 2)} offset:{L_A + 16 * 272 * j}')
        for j in range(2):
            I(f'global_store_dwordx4 {v(ta + 1 - j)}, {v(o + 4 * j, 4)}, {s(S_OUT, 2)} {OUTFL}')
        P.free(ta, 3)
    P.free(o, 8), P.free(acc, 16)
    stamp(f'p4_{layer}_st')


def main():
    kg, gi, fin = prologue()
    kg['fin'] = fin
    order = [('q', y, st) for st in range(16) for y in (1, 2)] + [('q', 0, st) for st in range(16)] + [('o', h) for h in range(32)]
    wl = wloads(order)

    def take(n):
        out = wl[:n]
        del wl[:n]
        return out
    bar = 1
    for layer in range(2):
        I(f's_lshl_b32 s{S_T3}, s2, 13')
        I(f's_add_u32 s{S_T3}, s{S_T3}, {hex(WS_X2[layer])}')
        I(f's_mov_b32 s{S_T1}, {hex(WS_ST[layer])}')
        I(f's_mov_b32 s{S_T2}, {hex(WS_ST[layer] + 8192)}')
        stamp(f'pre_wait{bar}')
        global_wait(bar, started=(layer == 0))
        stamp(f'wait{bar}')
        conv(layer, kg, gi, take(WN[0]))
        if SPEC:
            poll_start(bar + 1)
        if layer == 0:
            for th in take(WN[1]):
                run_all(th)
            if not LATE_IN:
                setup_late()
        if not SPEC:
            A.wait_vm('xtst')
            global_arrive()
        bar += 1
        stamp(f'arr{bar}')
        if layer == 0:
            for th in take(WN[2]):
                run_all(th)
        if not SPEC:
            poll_start(bar)
        if layer == 0 and not CS_C0:
            colsums([1, 2])
        stamp(f'pre_wait{bar}')
        I(f's_mov_b32 s{S_REDO}, s{S_W}')
        global_wait(bar, started=True, gap=True)
        stamp(f'wait{bar}')
        p3(layer, take(WN[3]), take(WN[4]))
        for th in take(WN[5]):
            run_all(th)
        A.wait_vm('pqst')
        global_arrive()
        bar += 1
        stamp(f'arr{bar}')
        for th in take(99):
            run_all(th)
        if layer == 0:
            P.free(V_WLD, 2)
        poll_start(bar)
        acc, ad = p4_pre(p4_res(), layer)
        global_wait(bar, started=True)
        stamp(f'wait{bar}')
        p4(layer, acc, ad)
        if layer == 0:
            A.wait_vm()
            global_arrive()
            bar += 1
    if DIAG:
        A.wait_vm()
        stamp('end')
        A._wait(lg=0)
        t = P.alloc(2)
        I(f's_lshl_b32 s{S_T0}, s2, 2')
        I(f's_add_u32 s{S_T0}, s{S_T0}, s{S_W}')
        I(f's_lshl_b32 s{S_T0}, s{S_T0}, 7')
        I(f's_add_u32 s{S_T0}, s{S_T0}, {hex(WS_DIAG)}')
        I(f'v_mov_b32 {v(t + 1)}, 0')
        I('s_mov_b64 exec, 1')
        for k in range(nstamp[0]):
            I(f'v_mov_b32 {v(t)}, s{S_STAMP + 2 * k}')
            I(f'buffer_store_dword {v(t)}, {v(t + 1)}, {WS}, s{S_T0} offen offset:{4 * k}')
        pr = [x for x in sys.argv if x.startswith('--probe=')]
        if pr:
            nm = pr[0][8:]
            if ':' in nm:
                a_, b_ = [stamp_names.index(x) for x in nm.split(':')]
                I(f's_sub_u32 s{S_T1}, s{S_STAMP + 2 * b_}, s{S_STAMP + 2 * a_}')
                I(f's_mul_i32 s{S_T1}, s{S_T1}, 10')
                I(f's_cmp_eq_u32 s2, 100')
                I(f's_cselect_b32 s{S_T1}, s{S_T1}, 0')
                I(f's_add_u32 s{S_T1}, s{S_T1}, s{S_STAMP}')
                I(f's_add_u32 s{S_T1}, s{S_T1}, 6000')
            else:
                k = stamp_names.index(nm)
                I(f's_add_u32 s{S_T1}, s{S_STAMP + 2 * k}, 6000')
            A.label('L_probe')
            I('s_memrealtime s[4:5]')
            A._wait(lg=0)
            I(f's_sub_u32 s{S_T0}, s4, s{S_T1}')
            I(f's_cmp_lt_i32 s{S_T0}, 0')
            I('s_cbranch_scc1 L_probe')
        I(f's_lshl_b32 s{S_T0}, s2, 2')
        I(f's_add_u32 s{S_T0}, s{S_T0}, s{S_W}')
        I(f's_cmp_lg_u32 s{S_T0}, 400')
        I('s_cbranch_scc1 L_end')
        sel = list(range(1, nstamp[0]))
        for j, k in enumerate(sel):
            I(f's_sub_u32 s{S_T0}, s{S_STAMP + 2 * k}, s{S_STAMP}')
            I(f'v_mov_b32 {v(t)}, s{S_T0}')
            I(f'global_store_dword {v(t + 1)}, {v(t)}, {s(S_DBG, 2)} offset:{4 * (j + 1)}')
        print('debug stamps:', [stamp_names[k] for k in sel], file=sys.stderr)
        P.free(t, 2)
    A.label('L_end')
    A.raw('    s_endpgm')
    A.raw('#seg -')
    for layer in range(2 if SPEC else 0):
        raw = lambda t: A._emit(Ins(t))
        A.label(f'L_slow{layer}')
        raw(f's_cmp_ge_u32 s{S_REDO}, 12')
        raw(f's_cbranch_scc1 L_ok{layer}')
        raw(f's_add_u32 s{S_REDO}, s{S_REDO}, 4')
        raw('s_waitcnt vmcnt(0) lgkmcnt(0)')
        raw(f's_cmp_lg_u32 s{S_W}, 0')
        raw(f's_cbranch_scc1 L_slowb{layer}')
        if DIAG:
            raw(f'v_mov_b32 {v(V_PA)}, 1')
            raw(f'v_mov_b32 {v(V_PA + 1)}, 0')
            raw('s_mov_b64 exec, 1')
            raw(f'global_atomic_add {v(V_PA + 1)}, {v(V_PA)}, {s(S_DBG, 2)} offset:{128 + 4 * layer}')
        raw(f's_mov_b32 s{S_SPIN}, 0x100000')
        raw(f's_mov_b32 s{S_T0}, {hex(WS_FB)}')
        raw(f's_movk_i32 s{S_T1}, {32 * (layer + 1)}')
        raw('s_mov_b64 exec, 0xff')
        raw(f'v_lshlrev_b32 {v(V_PA + 1)}, 7, {v(V_L)}')
        A.label(f'L_slowp{layer}')
        raw(f'v_mov_b32 {v(V_PA)}, 0')
        raw(f'buffer_atomic_add {v(V_PA)}, {v(V_PA + 1)}, {WS}, s{S_T0} offen sc0')
        raw(f's_sub_u32 s{S_SPIN}, s{S_SPIN}, 1')
        raw(f's_cbranch_scc1 L_slowd{layer}')
        raw('s_waitcnt vmcnt(0)')
        raw(f'v_cmp_gt_u32 vcc, s{S_T1}, {v(V_PA)}')
        raw(f's_cbranch_vccnz L_slowp{layer}')
        A.label(f'L_slowd{layer}')
        raw('s_mov_b64 exec, -1')
        raw('s_waitcnt vmcnt(0)')
        A.label(f'L_slowb{layer}')
        raw('s_barrier')
        raw(f's_branch L_redo{layer}')

    lines, info = layout(A.out, align='--noalign' not in sys.argv, touch='--notouch' not in sys.argv)
    body = '\n'.join(lines) + '\n'
    print(info, file=sys.stderr)
    ref = open(f'cdna_kernels/{NAME}.s.ref').read().splitlines()
    head = []
    for ln in ref:
        if ln.startswith('; @launch'):
            head.append(f'; @launch grid=(256,1,1) block=(256,1,1) lds={L_END}')
            break
        head.append(ln)
    txt = '\n'.join(head) + f'''
.amdgcn_target "amdgcn-amd-amdhsa--gfx950"
.text
.globl {NAME}_kernel
.p2align 12
.p2align 8
.type {NAME}_kernel,@function
{NAME}_kernel:
''' + body + f'''.section .rodata,"a"
.p2align 6
.amdhsa_kernel {NAME}_kernel
  .amdhsa_next_free_vgpr 512
  .amdhsa_next_free_sgpr 102
  .amdhsa_accum_offset 256
  .amdhsa_group_segment_fixed_size 0
  .amdhsa_kernarg_size 120
  .amdhsa_user_sgpr_count 2
  .amdhsa_user_sgpr_kernarg_segment_ptr 1
  .amdhsa_system_sgpr_workgroup_id_x 1
.end_amdhsa_kernel
'''
    out = [x for x in sys.argv[1:] if not x.startswith('--')]
    path = out[0] if out else f'cdna_kernels/{NAME}.s'
    open(path, 'w').write(txt)
    if DIAG:
        open(path + '.stamps', 'w').write('\n'.join(stamp_names))
    print(f'wrote {path}: {A.ninstr} instrs, {A.nnop} nop states, vgpr peak {P.peak}, lds {L_END}', file=sys.stderr)


main()
```

```python
import sys, struct, math
from emit import *
from layout import layout

NAME = 'interleave_layers__ssm_conv_s4__linear_attn_block__prompt'
DIAG = '--diag' in sys.argv


def f32(x):
    return '0x%08x' % struct.unpack('<I', struct.pack('<f', x))[0]


WS_CNT = 0x0
WS_ZERO = 0x10000
WS_KV = [WS_ZERO, WS_ZERO + 0xC000]
WS_ST = [0x30000, WS_ZERO + 0x18000]
WS_FB = WS_ZERO + 0x1C000
WS_DIAG = 0x40000
WS_X2 = [0x200000, 0x400000]
WS_XT = [0x600000, 0x800000]
WS_PQ = [0xA00000, 0xC00000]
WS_WT = 0xE00000
WS_WTO = WS_WT + 0x180000
WS_SIZE = 0x1000000

L_A = 0
L_B = 65536
L_RK = 131072
L_H = L_RK + 4 * 4160
L_STAT = L_H + 2 * 4608
L_END = L_STAT + 512
KG_ARR = 18
KG_POLL = 36
KG_ROW = 288
KG_W = 54 * KG_ROW

S_U, S_ARE, S_AIM, S_BRE, S_BIM, S_CRE, S_CIM, S_LDT, S_DSK = 4, 6, 8, 10, 12, 14, 16, 18, 20
S_WQKV, S_WO, S_OUT, S_DBG, S_WS = 24, 26, 28, 30, 32
R_WS, R_WQ, R_WO = 36, 40, 44
S_W, S_RB, S_CG, S_NB, S_TH = 48, 49, 50, 51, 52
S_T0, S_T1, S_T2 = 53, 54, 55
S_D = 56
S_MASK = 58
S_ONES = 60
S_SPIN = 61
S_LN = 62
S_EXP = 64
S_E6 = 66
S_T3, S_T4 = 68, 69
S_STAMP = 70
S_REDO = 47
S_W17 = 3
S_M1, S_M2 = 22, 34

A = Asm()
I = A.I
P = Pool(1, 192)
P.force4 = '--al4' in sys.argv
WS = s(R_WS, 4)
nstamp = [0]
stamp_names = []


STSEL = [x[5:].split(',') for x in sys.argv if x.startswith('--st=')]
STSEL = STSEL[0] if STSEL else None


def stamp(name, fine=False):
    if not DIAG:
        return
    if name not in ('entry', 'end'):
        if STSEL is None:
            if fine or not name.startswith(('wait', 'arr')):
                return
        elif not any(name.startswith(p) for p in STSEL):
            return
    k = nstamp[0]
    assert k < 16, 'too many stamps'
    I(f'{"s_memtime" if "--cyc" in sys.argv else "s_memrealtime"} s[{S_STAMP + 2 * k}:{S_STAMP + 2 * k + 1}]')
    stamp_names.append(name)
    nstamp[0] += 1


def pk(op, dst, *srcs):
    sel, selhi, nlo, nhi, txt = [], [], [], [], []
    for sr in srcs:
        t, m = sr[0], sr[1]
        ng = sr[2] if len(sr) > 2 else ''
        txt.append(t)
        sel.append(1 if m in 'hx' else 0)
        selhi.append(1 if m in 'ph' else 0)
        nlo.append(1 if ng in ('l', 'b') else 0)
        nhi.append(1 if ng in ('h', 'b') else 0)
    f = lambda l: '[' + ','.join(map(str, l)) + ']'
    line = f'v_pk_{op}_f32 {dst}, ' + ', '.join(txt) + f' op_sel:{f(sel)} op_sel_hi:{f(selhi)}'
    if any(nlo):
        line += f' neg_lo:{f(nlo)}'
    if any(nhi):
        line += f' neg_hi:{f(nhi)}'
    I(line)


def bc(r):
    return (v(r & ~1, 2), 'h' if r & 1 else 'l')


def cmul(d, x, y, tmp):
    pk('mul', v(tmp, 2), (v(x, 2), 'l'), (v(y, 2), 'p'))
    pk('fma', v(d, 2), (v(x, 2), 'h', 'l'), (v(y, 2), 'x'), (v(tmp, 2), 'p'))


def wq_reg(y, st):
    return a((y * 16 + st) * 4, 4)


def wo_reg(h, n=4, off=0):
    if h < 16:
        return a(192 + 4 * h + off, n)
    return v(192 + 4 * (h - 16) + off, n)


V_L = P.alloc()
V_L16 = P.alloc()
V_XT = [P.alloc() for _ in range(4)]
V_TILE = P.alloc()
V_X2ST = P.alloc()
V_STAT = P.alloc()
V_CVL = P.alloc()
V_HW = P.alloc()
V_CA = [P.alloc() for _ in range(4)]
V_CB = P.alloc()
V_EXW = P.alloc()
V_EXR = P.alloc()
V_XTST = P.alloc()
V_XTLD = P.alloc()
V_PQST = P.alloc()
V_KVST = P.alloc()
V_ZST = P.alloc()
V_PQLD = P.alloc()
V_KVLD = P.alloc()
V_ZLD = P.alloc()
V_OFW = P.alloc()
V_RES = [P.alloc(), P.alloc()]
V_SW = P.alloc()
V_SR4 = P.alloc()
V_SR1 = V_SW
V_ARR = P.alloc()
V_POLL = P.alloc()
V_PA = P.alloc(2)
V_WLD = P.alloc(2)
POLL_GAP = 4
V_CSKV = P.alloc(2)
V_CSQ = P.alloc(4)
V_ONES = P.alloc(4)


def global_arrive(first=None, bar=True, lg=True):
    if bar:
        A.barrier(lg=lg and not first)
    lab = f'L_arr{global_arrive.n}'
    global_arrive.n += 1
    I(f's_cmp_lg_u32 s{S_W}, 0')
    I(f's_cbranch_scc1 {lab}')
    t = P.alloc()
    if first:
        flag, zero = first
        I(f's_mov_b32 s{S_SPIN}, 0x200000')
        A.label(lab + '_init')
        I(f'v_readfirstlane_b32 s{S_T0}, {v(flag)}')
        I(f's_sub_u32 s{S_SPIN}, s{S_SPIN}, 1')
        I(f's_cbranch_scc1 {lab}_go')
        I(f's_cmp_lg_u32 s{S_T0}, 0')
        I(f's_cbranch_scc1 {lab}_go')
        A.cond = True
        I(f'global_load_dword {v(flag)}, {v(zero)}, {s(S_DBG, 2)} sc1')
        A.cond = False
        A._wait(vm=0)
        A.vm.pop()
        I(f's_branch {lab}_init')
        A.label(lab + '_go')
    I(f'v_mov_b32 {v(t)}, 1')
    I('s_mov_b32 exec_hi, 0')
    A.cond = True
    I(f'buffer_atomic_add {v(t)}, {v(V_ARR)}, {WS}, 0 offen')
    A.cond = False
    I('s_mov_b64 exec, -1')
    P.free(t)
    A.label(lab)


global_arrive.n = 0


WLATE = int(([x[8:] for x in sys.argv if x.startswith('--wlate=')] or ['0'])[0])
W1B = '--w1b' in sys.argv
W1B_GAP = int(([x[6:] for x in sys.argv if x.startswith('--g1b=')] or ['14'])[0])


def arrive_1b():
    I(f's_cmp_lg_u32 s{S_W}, 1')
    I('s_cbranch_scc1 L_arr1b')
    A._emit(Ins(f'v_mov_b32 {v(V_PA)}, 0x10000'))
    I('s_mov_b32 exec_hi, 0')
    A.cond = True
    I(f'buffer_atomic_add {v(V_PA)}, {v(V_ARR)}, {WS}, 0 offen')
    A.cond = False
    I('s_mov_b64 exec, -1')
    A.label('L_arr1b')


def wait_1b(nyounger):
    raw = lambda t: A._emit(Ins(t))
    I(f's_cmp_lg_u32 s{S_W}, 0')
    I('s_cbranch_scc1 L_w1b')
    I('s_mov_b64 exec, 0xff')
    I(f's_mov_b32 s{S_SPIN}, 0x200000')
    raw(f's_waitcnt vmcnt({nyounger})')
    raw(f'v_cmp_gt_u32 vcc, s{S_SPIN}, {v(V_PA)}')
    raw('s_cbranch_vccz L_w1b_done')
    I(f's_mov_b32 s{S_REDO}, 0x100000')
    A.label('L_w1b_poll')
    _poll(V_PA)
    raw(f's_sub_u32 s{S_REDO}, s{S_REDO}, 1')
    raw('s_cbranch_scc1 L_w1b_done')
    raw('s_waitcnt vmcnt(0)')
    raw(f'v_cmp_gt_u32 vcc, s{S_SPIN}, {v(V_PA)}')
    raw('s_cbranch_vccnz L_w1b_poll')
    A.label('L_w1b_done')
    I('s_mov_b64 exec, -1')
    A.label('L_w1b')
    A.barrier(lg=False)


def _poll(r):
    A._emit(Ins(f'v_mov_b32 {v(r)}, 0'))
    A._emit(Ins(f'buffer_atomic_add {v(r)}, {v(V_POLL)}, {WS}, 0 offen sc0'))


def poll_start(k):
    lab = f'L_ps{k}'
    I(f's_cmp_lg_u32 s{S_W}, 0')
    I(f's_cbranch_scc1 {lab}')
    I('s_mov_b64 exec, 0xff')
    _poll(V_PA)
    I('s_mov_b64 exec, -1')
    A.label(lab)
    A.vm.append(dict(defs=set(), tag=None, cond=True))


def global_wait(k, started=False, gap=False):
    lab = f'L_wait{k}'
    I(f's_cmp_lg_u32 s{S_W}, 0')
    I(f's_cbranch_scc0 {lab}_w0')
    A.raw(f'#touch s{k}')
    I(f's_branch {lab}')
    A.label(lab + '_w0')
    pa, pb = V_PA, V_PA + 1
    raw = lambda t: A._emit(Ins(t))
    I('s_mov_b64 exec, 0xff')
    if not started:
        _poll(pa)
    I(f's_mov_b32 s{S_SPIN}, 0x100000')
    I(f's_mov_b32 s{S_T0}, {hex(32 * k + (0x200000 if W1B and k > 1 else 0))}')
    msk = (lambda r: raw(f'v_and_b32 {v(r)}, 0xffff, {v(r)}')) if W1B and k == 1 else (lambda r: None)
    if not started or gap:
        raw(f's_sleep {POLL_GAP}')
    A.label(lab + '_poll')
    _poll(pb)
    raw('s_waitcnt vmcnt(1)')
    msk(pa)
    raw(f'v_cmp_gt_u32 vcc, s{S_T0}, {v(pa)}')
    raw(f's_cbranch_vccz {lab}_done')
    _poll(pa)
    raw(f's_sub_u32 s{S_SPIN}, s{S_SPIN}, 1')
    raw(f's_cbranch_scc1 {lab}_done')
    raw('s_waitcnt vmcnt(1)')
    msk(pb)
    raw(f'v_cmp_gt_u32 vcc, s{S_T0}, {v(pb)}')
    raw(f's_cbranch_vccnz {lab}_poll')
    A.label(lab + '_done')
    I('s_mov_b64 exec, -1')
    A.vm.append(dict(defs=set(), tag=None, cond=True))
    A.label(lab)
    A.raw(f'#seg s{k}')
    A.barrier()


WIL = '--nowil' not in sys.argv


def wloads(frags):
    out = []
    for f in frags:
        if f[0] == 'q':
            off, reg, va = WS_WT + (f[1] * 16 + f[2]) * (32768 if WIL else 1024), wq_reg(f[1], f[2]), V_WLD
        else:
            off, reg, va = WS_WTO + f[1] * (16384 if WIL else 1024), wo_reg(f[1]), V_WLD + 1
        th = []
        grp = off & ~4095
        so = S_T4 if f[:2] == ('q', 2) else S_T3
        if wloads.cur.get(so) != grp:
            if f[0] == 'o':
                assert WIL
                th.append(lambda grp=grp, so=so: I(f's_xor_b32 s{so}, s{S_W17}, {hex(grp)}'))
            else:
                th.append(lambda grp=grp, so=so: I(f's_mov_b32 s{so}, {hex(grp)}'))
            wloads.cur[so] = grp

        def ld(off=off, reg=reg, va=va, so=so):
            I(f'buffer_load_dwordx4 {reg}, {v(va)}, {WS}, s{so} offen offset:{off & 4095} sc1')
        ld.lds = True
        th.append(ld)
        out.append(th)
    return out


wloads.cur = {}


def run_all(th):
    for t in th:
        t()


def spread(fill, pieces, start, step, solo=True):
    for i, th in enumerate(pieces):
        at = start + int(i * step)
        for j, t in enumerate(th):
            f = lambda reg, t=t: t()
            f.lds = getattr(t, 'lds', False) and solo
            fill.setdefault(max(0, at - (len(th) - 1 - j)), []).append(f)


def colsums(ys):
    d = {y: V_CSQ if y == 0 else P.alloc(4, 2) for y in ys}
    for y in ys:
        for st in range(16):
            c = '0' if st == 0 else v(d[y], 4)
            if y == 0:
                I(f'v_mfma_f32_16x16x32_bf16 {v(d[y], 4)}, {wq_reg(y, st)}, {v(V_ONES, 4)}, {c}')
            else:
                I(f'v_mfma_f32_16x16x32_bf16 {v(d[y], 4)}, {v(V_ONES, 4)}, {wq_reg(y, st)}, {c}')
    for y in ys:
        if y:
            I(f'v_mov_b32 {v(V_CSKV + y - 1)}, {v(d[y])}')
            P.free(d[y], 4)


def stream(mf, loader, nslots, look, fill=None, gate=None, rate=1, burst=9, pre=None):
    fill = fill or {}
    gate = gate or {}
    first, last, order = {}, {}, []
    for m, (_, keys) in enumerate(mf):
        for k in keys:
            if k not in first:
                first[k] = m
                order.append(k)
            last[k] = m
    slots = [P.alloc(4, 2) for _ in range(nslots)]
    free = list(slots)
    reg = {}
    pend = []
    nxt = [0]

    def start_key():
        k = order[nxt[0]]
        nxt[0] += 1
        if k in gate:
            gate[k]()
        reg[k] = free.pop(0)
        pend.extend(loader(k, reg[k]))

    def issue(n, m, force=False):
        while n > 0:
            if not pend:
                if nxt[0] >= len(order) or not free:
                    return
                if first[order[nxt[0]]] > m + look:
                    return
                start_key()
            I(pend.pop(0))
            n -= 1

    issue(burst, -1)
    if pre:
        pre()
    for m, (em, keys) in enumerate(mf):
        while any(k not in reg for k in keys) or (pend and order[nxt[0] - 1] in keys):
            assert pend or free, 'no free slot'
            if not pend:
                start_key()
            I(pend.pop(0))
        em(reg)
        for k in keys:
            if last[k] == m:
                free.append(reg[k])
        fl = fill.get(m, [])
        solo = any(getattr(th, 'lds', False) for th in fl)
        if not solo:
            issue(1, m)
        for th in fl:
            th(reg)
        if rate > 1 and not solo:
            if m + 1 < len(mf):
                nk = mf[m + 1][1]
                if all(k in reg for k in nk) and not (pend and order[nxt[0] - 1] in nk):
                    A.need(', '.join(v(reg[k], 4) for k in nk))
            issue(rate - 1, m)
    for r in slots:
        P.free(r, 4)


ORDER = int(([x[8:] for x in sys.argv if x.startswith('--order=')] or ['8'])[0])


WPF = int(([x[6:] for x in sys.argv if x.startswith('--wpf=')] or ['2'])[0])


WN = [int(x) for x in ([x[5:] for x in sys.argv if x.startswith('--wn=')] or ['24,8,0,24,0,8'])[0].split(',')]
assert sum(WN[:3]) >= 32 and sum(WN[:4]) >= 48
W_C0 = 16
W_CSTEP = 112 / WN[0]
LATE_IN = '--nolatein' not in sys.argv
CS_C0 = '--nocsc0' not in sys.argv


SPEC = int(([x[7:] for x in sys.argv if x.startswith('--spec=')] or ['1'])[0])


def xt_poison(layer, t):
    out = []
    for i in range(2):
        for c in range(2):
            th = []
            if i == 0 and c == 0:
                th += [lambda j=j: I(f'v_mov_b32 {v(t + j)}, -1') for j in range(2)]
            if c == 0:
                th.append(lambda i=i: I(f's_mov_b32 s{S_T2}, {hex(WS_XT[layer] + 262144 * i)}'))

            def st(c=c):
                I(f'buffer_store_dwordx2 {v(t, 2)}, {v(V_XTST)}, {WS}, s{S_T2} offen offset:{128 * c} sc1', tag='poison')
            st.lds = True
            th.append(st)
            out.append(th)
    return out


class Capture:
    def __enter__(self):
        global I
        self.lines = []
        self.old = I
        I = lambda t, tag=None: self.lines.append(t)
        return self.lines

    def __exit__(self, *a):
        global I
        I = self.old


XPF = int(([x[6:] for x in sys.argv if x.startswith('--xpf=')] or ['0'])[0])
XPF2 = '--xpf2' in sys.argv


NTSEL = ([x[5:] for x in sys.argv if x.startswith('--nt=')] or ['abpw'])[0]
NT = lambda c: ' nt' if c in NTSEL else ''


def lane_fields():
    f = [P.alloc() for _ in range(5)]
    I(f'v_and_b32 {v(f[0])}, 15, {v(V_L)}')
    I(f'v_lshrrev_b32 {v(f[1])}, 4, {v(V_L)}')
    I(f'v_lshrrev_b32 {v(f[2])}, 5, {v(V_L)}')
    return f


def setup_conv(va_, vg, x0, x1):
    I(f'v_lshl_add_u32 {v(V_CVL)}, s{S_W}, 11, {v(V_L16)}')
    I(f'v_lshrrev_b32 {v(V_HW)}, 1, {v(V_CVL)}')
    I(f'v_add_u32 {v(V_HW)}, {L_H + 512}, {v(V_HW)}')
    I(f's_lshr_b32 s{S_T0}, s{S_W}, 1')
    I(f's_and_b32 s{S_T1}, s{S_W}, 1')
    I(f's_mul_i32 s{S_T3}, s{S_T0}, 4608')
    I(f's_lshl_b32 s{S_T4}, s{S_T1}, 8')
    I(f's_sub_u32 s{S_T3}, s{S_T3}, s{S_T4}')
    I(f's_add_u32 s{S_T3}, s{S_T3}, {L_H + 512 - 32 - 192}')
    I(f'v_lshl_add_u32 {v(V_CB)}, {v(va_)}, 5, s{S_T3}')
    I(f'v_lshl_add_u32 {v(V_CB)}, {v(vg)}, 4, {v(V_CB)}')
    I(f's_mul_i32 s{S_T3}, s{S_T0}, 8320')
    I(f's_sub_u32 s{S_T3}, s{S_T3}, s{S_T4}')
    I(f's_add_u32 s{S_T3}, s{S_T3}, {L_RK + 4160 + 4 * (1015 - 176)}')
    I(f'v_and_b32 {v(x0)}, 1, {v(va_)}')
    I(f'v_mul_u32_u24 {v(x0)}, 4160, {v(x0)}')
    I(f'v_lshrrev_b32 {v(x1)}, 1, {v(va_)}')
    I(f'v_lshl_add_u32 {v(x0)}, {v(x1)}, 2, {v(x0)}')
    I(f'v_lshl_add_u32 {v(x1)}, {v(vg)}, 4, s{S_T3}')
    I(f'v_sub_u32 {v(V_CA[0])}, {v(x1)}, {v(x0)}')
    for i in range(1, 4):
        I(f'v_subrev_u32 {v(V_CA[i])}, {1024 * i}, {v(V_CA[0])}')
    I(f's_mul_i32 s{S_T3}, s{S_W}, 10240')
    I(f's_add_u32 s{S_T3}, s{S_T3}, {L_B}')
    I(f'v_lshl_add_u32 {v(V_EXW)}, {v(vg)}, 6, s{S_T3}')
    I(f'v_add_u32 {v(V_EXW)}, {v(V_EXW)}, {v(V_L16)}')
    I(f's_mul_i32 s{S_T3}, s{S_W}, 2560')
    I(f's_add_u32 s{S_T3}, s{S_T3}, {L_B}')
    I(f'v_and_b32 {v(x0)}, 3, {v(V_L)}')
    I(f'v_mul_u32_u24 {v(V_EXR)}, 316, {v(x0)}')
    I(f'v_lshl_add_u32 {v(V_EXR)}, {v(V_L)}, 2, {v(V_EXR)}')
    I(f'v_add_u32 {v(V_EXR)}, s{S_T3}, {v(V_EXR)}')
    I(f's_lshl_b32 s{S_T3}, s{S_W}, 19')
    I(f's_lshl_b32 s{S_T4}, s2, 8')
    I(f's_add_u32 s{S_T3}, s{S_T3}, s{S_T4}')
    I(f'v_lshl_add_u32 {v(V_XTST)}, {v(vg)}, 16, s{S_T3}')
    I(f'v_lshl_add_u32 {v(V_XTST)}, {v(va_)}, 3, {v(V_XTST)}')
    I(f's_and_b32 s{S_T4}, s2, 3')
    I(f's_lshl_b32 s{S_T4}, s{S_T4}, 5')
    I(f'v_xor_b32 {v(V_XTST)}, s{S_T4}, {v(V_XTST)}')
    I(f's_lshl_b32 s{S_T3}, s{S_CG}, 2')
    I(f's_add_u32 s{S_T3}, s{S_T3}, s{S_W}')
    I(f's_mul_i32 s{S_T3}, s{S_T3}, {1024 if WIL else 49152}')
    I(f'v_add_u32 {v(V_WLD)}, s{S_T3}, {v(V_L16)}')
    I(f's_mov_b32 s{S_LN}, {f32(1 / 512)}')
    I(f's_mov_b32 s{S_LN + 1}, {f32(1e-5)}')


def setup_late(free=True):
    va_, vg, vhi, x0, x1 = f = lane_fields()
    T3, T4 = S_T0, S_T1
    for j in range(2):
        I(f's_mov_b32 s{S_MASK + j}, 0xffff0000')
        I(f's_mov_b32 s{S_M1 + j}, 0xaaaaaaaa')
        I(f's_mov_b32 s{S_M2 + j}, 0xcccccccc')
        I(f's_mov_b32 s{S_E6 + j}, {f32(1e-6)}')
    I(f's_mov_b32 s{S_EXP + 1}, {f32(-1e-6 * math.log2(math.e))}')
    I(f'v_lshrrev_b32 {v(x0)}, 2, {v(V_L)}')
    I(f'v_lshlrev_b32 {v(V_XT[0])}, 7, {v(x0)}')
    I(f'v_bfe_u32 {v(x0)}, {v(V_L)}, 3, 2')
    I(f'v_xor_b32 {v(x0)}, s{S_W}, {v(x0)}')
    I(f'v_lshl_add_u32 {v(V_XT[0])}, {v(x0)}, 5, {v(V_XT[0])}')
    I(f'v_and_b32 {v(x0)}, 3, {v(V_L)}')
    I(f'v_lshl_add_u32 {v(V_XT[0])}, {v(x0)}, 3, {v(V_XT[0])}')
    for i in range(1, 4):
        I(f'v_xor_b32 {v(V_XT[i])}, {32 * i}, {v(V_XT[0])}')
    I(f'v_and_b32 {v(V_STAT)}, 0x1fff, {v(V_X2ST)}')
    I(f'v_lshl_add_u32 {v(V_STAT)}, {v(vhi)}, 13, {v(V_STAT)}')
    I(f's_lshl_b32 s{T3}, s{S_RB}, 16')
    I(f's_lshl_b32 s{T4}, s{S_W}, 12')
    I(f's_add_u32 s{T3}, s{T3}, s{T4}')
    I(f'v_add_u32 {v(V_XTLD)}, s{T3}, {v(V_L16)}')
    I(f's_lshl_b32 s{T4}, s{S_CG}, 2')
    I(f's_add_u32 s{T4}, s{T4}, s{S_W}')
    I(f's_lshl_b32 s{T4}, s{T4}, 10')
    I(f's_lshl_b32 s{T3}, s{S_RB}, 16')
    I(f's_add_u32 s{T3}, s{T3}, s{T4}')
    I(f'v_lshl_add_u32 {v(V_PQST)}, {v(va_)}, 5, s{T3}')
    I(f'v_lshl_add_u32 {v(V_PQST)}, {v(vg)}, 3, {v(V_PQST)}')
    I(f's_lshr_b32 s{T3}, s{S_W}, 1')
    I(f'v_lshl_add_u32 {v(V_PQST)}, s{T3}, 15, {v(V_PQST)}')
    I(f's_and_b32 s{T3}, s{S_W}, 1')
    I(f'v_lshl_add_u32 {v(V_PQST)}, s{T3}, 9, {v(V_PQST)}')
    I(f's_mul_i32 s{T3}, s{T3}, 768')
    I(f's_sub_u32 s{T3}, s{T4}, s{T3}')
    I(f'v_lshl_add_u32 {v(V_KVST)}, {v(vg)}, 4, s{T3}')
    I(f'v_and_b32 {v(x0)}, 3, {v(va_)}')
    I(f'v_lshl_add_u32 {v(V_KVST)}, {v(x0)}, 2, {v(V_KVST)}')
    I(f'v_bfe_u32 {v(x0)}, {v(va_)}, 2, 1')
    I(f'v_lshl_add_u32 {v(V_KVST)}, {v(x0)}, 10, {v(V_KVST)}')
    I(f'v_lshrrev_b32 {v(x0)}, 3, {v(va_)}')
    I(f'v_lshl_add_u32 {v(V_KVST)}, {v(x0)}, 9, {v(V_KVST)}')
    I(f's_lshr_b32 s{T3}, s{T4}, 4')
    I(f'v_lshl_add_u32 {v(V_ZST)}, {v(V_L)}, 2, s{T3}')
    I(f's_lshl_b32 s{T3}, s{S_RB}, 1')
    I(f's_add_u32 s{T3}, s{T3}, s{S_TH}')
    I(f's_lshl_b32 s{T3}, s{T3}, 15')
    I(f's_lshl_b32 s{T4}, s{S_W}, 13')
    I(f's_add_u32 s{T3}, s{T3}, s{T4}')
    I(f'v_and_b32 {v(x0)}, 31, {v(V_L)}')
    I(f'v_lshl_add_u32 {v(V_PQLD)}, {v(x0)}, 5, s{T3}')
    I(f'v_lshl_add_u32 {v(V_PQLD)}, {v(vhi)}, 4, {v(V_PQLD)}')
    I(f'v_add_u32 {v(V_KVLD)}, s{T4}, {v(V_L16)}')
    I(f'v_and_b32 {v(x0)}, 3, {v(va_)}')
    I(f'v_lshrrev_b32 {v(x1)}, 3, {v(va_)}')
    I(f's_lshl_b32 s{T3}, s{S_W}, 9')
    I(f's_add_u32 s{T3}, s{T3}, 32768')
    I(f'v_lshl_add_u32 {v(V_ZLD)}, {v(x1)}, 8, s{T3}')
    I(f'v_lshl_add_u32 {v(V_ZLD)}, {v(x0)}, 6, {v(V_ZLD)}')
    I(f'v_lshl_add_u32 {v(V_ZLD)}, {v(vg)}, 4, {v(V_ZLD)}')
    I(f'v_add_u32 {v(V_OFW)}, {L_B}, {v(V_KVLD)}')
    I(f's_lshl_b32 s{T3}, s{S_NB}, 14')
    I(f's_lshl_b32 s{T4}, s{S_W}, 12')
    I(f's_add_u32 s{T3}, s{T3}, s{T4}')
    I(f's_lshl_b32 s{T4}, s{S_TH}, 6')
    I(f's_add_u32 s{T3}, s{T3}, s{T4}')
    I(f'v_lshl_add_u32 {v(V_RES[0])}, {v(vhi)}, 11, s{T3}')
    I(f'v_lshl_add_u32 {v(V_RES[0])}, {v(x0)}, 3, {v(V_RES[0])}')
    I(f'v_lshrrev_b32 {v(x0)}, 2, {v(va_)}')
    I(f'v_lshl_add_u32 {v(V_RES[0])}, {v(x0)}, 7, {v(V_RES[0])}')
    I(f'v_xor_b32 {v(x1)}, {v(x1)}, {v(vg)}')
    I(f'v_and_b32 {v(x1)}, 1, {v(x1)}')
    I(f'v_lshl_add_u32 {v(V_RES[0])}, {v(x1)}, 5, {v(V_RES[0])}')
    I(f'v_xor_b32 {v(V_RES[1])}, 64, {v(V_RES[0])}')
    I(f's_lshl_b32 s{T3}, s{S_W}, 6')
    I(f's_add_u32 s{T3}, s{T3}, {L_STAT}')
    I(f'v_lshl_add_u32 {v(V_SW)}, {v(va_)}, 2, s{T3}')
    I(f'v_lshl_add_u32 {v(V_SR4)}, {v(vg)}, 4, s{T3}')
    I(f's_lshl_b32 s{S_W17}, s{S_W}, 17')
    I(f's_lshl_b32 s{T3}, s{S_NB}, 2')
    I(f's_add_u32 s{T3}, s{T3}, s{S_W}')
    I(f'v_lshl_add_u32 {v(V_WLD + 1)}, s{T3}, {10 if WIL else 15}, {v(V_L16)}')
    if not free:
        return f
    for r in f:
        P.free(r)


TS = [18, 10, 6, 2]
TB = [0, 16 * 18, 16 * 18 + 16 * 10, 16 * 18 + 16 * 10 + 32 * 6]


def rne(o, sh):
    q, r = o >> sh, o & ((1 << sh) - 1)
    if sh == 0:
        return q
    h = 1 << (sh - 1)
    return q + (1 if (r > h or (r == h and q & 1)) else 0)


def setup_kgen(va_, vg, x0, x1):
    kg = dict(w=P.alloc(), a0=P.alloc(), a1=P.alloc(), g=P.alloc(), t1=P.alloc(), t2=P.alloc(), t3=P.alloc(), rk=P.alloc())
    I(f's_lshr_b32 s{S_T0}, s{S_W}, 1')
    I(f's_and_b32 s{S_T1}, s{S_W}, 1')
    I(f's_mul_i32 s{S_T3}, s{S_W}, {KG_W}')
    I(f's_add_u32 s{S_T3}, s{S_T3}, {L_B}')
    I(f'v_lshl_add_u32 {v(kg["w"])}, {v(V_L)}, 2, s{S_T3}')
    I(f's_mul_i32 s{S_T3}, s{S_T0}, {2 * KG_W}')
    I(f's_add_u32 s{S_T3}, s{S_T3}, {L_B}')
    I(f'v_lshl_add_u32 {v(x1)}, {v(vg)}, 4, s{S_T3}')
    I(f'v_mul_u32_u24 {v(kg["a0"])}, {KG_ROW}, {v(va_)}')
    I(f'v_add_u32 {v(kg["a0"])}, {v(kg["a0"])}, {v(x1)}')
    I(f's_mul_i32 s{S_T4}, s{S_T1}, {16 * KG_ROW}')
    I(f'v_add_u32 {v(kg["g"])}, s{S_T4}, {v(kg["a0"])}')
    I(f'v_min_u32 {v(kg["a1"])}, 4, {v(va_)}')
    I(f'v_mul_u32_u24 {v(kg["a1"])}, {KG_ROW}, {v(kg["a1"])}')
    I(f'v_add_u32 {v(kg["a1"])}, {v(kg["a1"])}, {v(x1)}')
    I(f's_mul_i32 s{S_T3}, s{S_T0}, 4608')
    I(f's_add_u32 s{S_T3}, s{S_T3}, {L_H + 512}')
    vj, vw = P.alloc(), P.alloc()
    I(f's_lshl_b32 s{S_T4}, s{S_T1}, 2')
    I(f'v_and_b32 {v(x0)}, 3, {v(va_)}')
    I(f'v_lshl_add_u32 {v(vj)}, {v(x0)}, 3, s{S_T4}')
    I(f'v_lshrrev_b32 {v(x0)}, 2, {v(va_)}')
    I(f'v_add_u32 {v(vj)}, {v(vj)}, {v(x0)}')
    I(f'v_lshl_add_u32 {v(kg["t3"])}, {v(vg)}, 7, {v(vj)}')
    I(f'v_lshl_add_u32 {v(kg["t3"])}, {v(kg["t3"])}, 2, s{S_T3}')
    I(f'v_max_u32 {v(x1)}, 1, {v(vg)}')
    I(f'v_sub_u32 {v(x1)}, 6, {v(x1)}')
    I(f'v_lshlrev_b32 {v(kg["t1"])}, {v(x1)}, {v(vj)}')
    I(f'v_lshrrev_b32 {v(vw)}, 1, {v(vj)}')
    I(f'v_lshl_add_u32 {v(kg["t1"])}, {v(vw)}, 3, {v(kg["t1"])}')
    I(f's_mov_b32 s{S_T4}, {hex(0 | (1 << 8) | ((TB[1] // 4) << 16) | ((TB[2] // 4) << 24))}')
    I(f'v_lshlrev_b32 {v(x1)}, 3, {v(vg)}')
    I(f'v_bfe_u32 {v(x1)}, s{S_T4}, {v(x1)}, 8')
    I(f'v_lshl_add_u32 {v(x1)}, {v(x1)}, 4, s{S_T3}')
    I(f'v_add_u32 {v(kg["t1"])}, {v(kg["t1"])}, {v(x1)}')
    I(f'v_cmp_eq_u32 vcc, 3, {v(vg)}')
    I(f'v_mov_b32 {v(vj)}, {16 * TS[2] * 4}')
    I(f'v_cndmask_b32 {v(x1)}, 8, {v(vj)}, vcc')
    I(f'v_add_u32 {v(kg["t2"])}, {v(kg["t1"])}, {v(x1)}')
    gi = P.alloc(18, 2)
    vn, vs = vj, vw
    I(f'v_and_b32 {v(x0)}, 127, v0')
    I(f'v_sub_u32 {v(vn)}, 127, {v(x0)}')
    I(f'v_or_b32 {v(x1)}, 8, {v(vn)}')
    I(f'v_ffbh_u32 {v(x1)}, {v(x1)}')
    I(f'v_sub_u32 {v(vs)}, 28, {v(x1)}')
    I(f'v_lshlrev_b32 {v(vs)}, 3, {v(vs)}')
    first = [0, 16, 32, 64]
    cb = [TB[q] - first[q] * TS[q] for q in range(4)]
    assert all(c % 4 == 0 and 0 <= c // 4 < 256 for c in cb)
    I(f's_mov_b32 s{S_T4}, {hex(sum(TS[q] << (8 * q) for q in range(4)))}')
    I(f'v_bfe_u32 {v(x1)}, s{S_T4}, {v(vs)}, 8')
    I(f'v_mul_u32_u24 {v(x1)}, {v(x1)}, {v(vn)}')
    I(f's_mov_b32 s{S_T4}, {hex(sum((cb[q] // 4) << (8 * q) for q in range(4)))}')
    I(f'v_bfe_u32 {v(gi + 17)}, s{S_T4}, {v(vs)}, 8')
    I(f'v_lshl_add_u32 {v(x1)}, {v(gi + 17)}, 2, {v(x1)}')
    I(f'v_lshl_add_u32 {v(gi + 15)}, {v(x1)}, 2, s{S_T3}')
    for u in range(15):
        o = 15 - u
        dl = []
        for q in range(4):
            d = rne(o, q)
            dl.append(4 * (d if d < (16 >> q) else TS[q]))
        I(f's_mov_b32 s{S_T4}, {hex(sum(dl[q] << (8 * q) for q in range(4)))}')
        I(f'v_bfe_u32 {v(x1)}, s{S_T4}, {v(vs)}, 8')
        I(f'v_add_u32 {v(gi + u)}, {v(x1)}, {v(gi + 15)}')
    I(f'v_cmp_ge_u32 vcc, 16, {v(vn)}')
    I(f'v_cndmask_b32 {v(x1)}, 0, 12, vcc')
    I(f'v_sub_u32 {v(gi + 16)}, {v(gi + 15)}, {v(x1)}')
    P.free(vj), P.free(vw)
    I(f's_mul_i32 s{S_T4}, s{S_T0}, 8320')
    I(f's_add_u32 s{S_T4}, s{S_T4}, {L_RK}')
    I(f'v_lshl_add_u32 {v(kg["rk"])}, {v(x0)}, 5, s{S_T4}')
    return kg, gi


def prologue():
    I('s_cmp_ge_u32 s2, 256')
    I('s_cbranch_scc1 L_end')
    I('s_load_dwordx16 s[4:19], s[0:1], 0')
    I('s_load_dwordx8 s[20:27], s[0:1], 64')
    I('s_load_dwordx4 s[28:31], s[0:1], 96')
    I('s_load_dwordx2 s[32:33], s[0:1], 112')
    stamp('entry')
    pf = P.alloc(4)
    I(f's_getpc_b64 s[{S_T3}:{S_T4}]')
    A.label('L_pc')
    I(f's_lshr_b32 s{S_T1}, s2, 3')
    I(f'v_lshrrev_b32 {v(pf)}, 4, v0')
    I(f'v_lshl_add_u32 {v(pf)}, {v(pf)}, 5, s{S_T1}')
    I(f'v_lshlrev_b32 {v(pf)}, 7, {v(pf)}')
    I(f'v_min_u32 {v(pf)}, L_end-L_pc, {v(pf)}')
    if '--nocpf' in sys.argv:
        I(f'v_mov_b32 {v(pf)}, 0')
    I(f'global_load_dword {v(pf)}, {v(pf)}, s[{S_T3}:{S_T4}]')
    I(f'v_lshrrev_b32 {v(pf + 1)}, 6, v0')
    I(f'v_and_b32 {v(V_L)}, 63, v0')
    I(f'v_readfirstlane_b32 s{S_W}, {v(pf + 1)}')
    I(f's_and_b32 s{S_T0}, s2, 7')
    I(f's_and_b32 s{S_T2}, s{S_T1}, 3')
    I(f's_lshl_b32 s{S_RB}, s{S_T0}, 2')
    I(f's_add_u32 s{S_RB}, s{S_RB}, s{S_T2}')
    I(f's_lshr_b32 s{S_CG}, s{S_T1}, 2')
    I(f's_lshr_b32 s{S_NB}, s{S_CG}, 1')
    I(f's_and_b32 s{S_TH}, s{S_CG}, 1')
    I(f'v_lshlrev_b32 {v(V_L16)}, 4, {v(V_L)}')
    va_, vg, vhi, x0, x1 = f = lane_fields()
    I(f's_and_b32 s{S_T3}, s{S_T1}, 7')
    I(f's_lshl_b32 s{S_T3}, s{S_T3}, 7')
    I(f'v_lshl_add_u32 {v(V_ARR)}, {v(V_L)}, 10, s{S_T3}')
    I(f's_lshl_b32 s{S_T3}, s{S_T1}, 10')
    I(f'v_lshl_add_u32 {v(V_POLL)}, {v(V_L)}, 7, s{S_T3}')
    vsr, vsa = P.alloc(), P.alloc()
    I(f's_lshl_b32 s{S_T0}, s{S_RB}, 6')
    I(f's_lshl_b32 s{S_T1}, s{S_CG}, 3')
    I(f's_add_u32 s{S_T1}, s{S_T1}, s{S_T0}')
    I(f's_lshl_b32 s{S_T3}, s{S_W}, 1')
    I(f's_add_u32 s{S_T2}, s{S_T1}, s{S_T3}')
    I(f's_lshl_b32 s{S_T1}, s{S_T2}, 10')
    I(f'v_add_u32 {v(vsr)}, s{S_T1}, {v(V_L16)}')
    I(f'v_and_b32 {v(vsa)}, 1, {v(vg)}')
    I(f'v_add_lshl_u32 {v(vsa)}, {v(vsa)}, s{S_T2}, 2')
    I(f'v_lshl_add_u32 {v(vsa)}, {v(vhi)}, 13, {v(vsa)}')
    I(f's_lshl_b32 s{S_T1}, s{S_TH}, 5')
    I(f's_add_u32 s{S_T0}, s{S_T0}, s{S_T1}')
    I(f'v_and_b32 {v(x0)}, 31, {v(V_L)}')
    I(f'v_add_u32 {v(x0)}, s{S_T0}, {v(x0)}')
    I(f's_lshl_b32 s{S_T0}, s{S_NB}, 8')
    I(f's_lshl_b32 s{S_T1}, s{S_W}, 6')
    I(f's_add_u32 s{S_T0}, s{S_T0}, s{S_T1}')
    I(f'v_lshl_add_u32 {v(V_TILE)}, {v(x0)}, 10, s{S_T0}')
    I(f'v_lshl_add_u32 {v(V_TILE)}, {v(vhi)}, 5, {v(V_TILE)}')
    I(f's_lshl_b32 s{S_T0}, s{S_T0}, 11')
    I(f'v_lshl_add_u32 {v(V_X2ST)}, {v(x0)}, 2, s{S_T0}')
    I(f'v_lshl_add_u32 {v(V_X2ST)}, {v(vhi)}, 16, {v(V_X2ST)}')
    vtd, vtr = P.alloc(), P.alloc()
    I(f'v_readfirstlane_b32 s{S_T0}, {v(V_TILE)}')
    I(f'v_lshrrev_b32 {v(x0)}, 2, {v(V_L)}')
    I(f'v_xor_b32 {v(x1)}, {v(V_L)}, {v(vg)}')
    I(f'v_and_b32 {v(x1)}, 3, {v(x1)}')
    I(f'v_lshl_add_u32 {v(vtd)}, {v(x0)}, 10, s{S_T0}')
    I(f'v_lshl_add_u32 {v(vtd)}, {v(x1)}, 4, {v(vtd)}')
    I(f'v_add_u32 {v(vtr)}, {16384 - 1024}, {v(vtd)}')
    I(f's_lshl_b32 m0, s{S_W}, 11')
    vpo = P.alloc()
    I(f's_lshl_b32 s{S_T1}, s2, 9')
    I(f'v_lshl_add_u32 {v(vpo)}, v0, 1, s{S_T1}')
    sinit = S_SPIN
    I(f's_lshl_b32 s{S_T2}, s2, 2')
    I(f's_add_u32 s{sinit}, s{S_T2}, s{S_W}')
    vws = P.alloc(2)
    SA, SB, SC = S_MASK, S_MASK + 1, S_E6
    I(f's_cmp_ge_u32 s2, 192')
    I('s_cbranch_scc1 L_wo_src')
    I(f's_bfe_u32 s{SA}, s2, 0x30003')
    I(f's_lshl_b32 s{SA}, s{SA}, 1')
    I(f's_lshr_b32 s{SB}, s{S_W}, 1')
    I(f's_add_u32 s{SA}, s{SA}, s{SB}')
    I(f's_lshr_b32 s{SB}, s2, 6')
    I(f's_lshl_b32 s{SC}, s{SB}, 4')
    I(f's_add_u32 s{SC}, s{SC}, s{SA}')
    I(f's_lshl_b32 s{SC}, s{SC}, {15 if WIL else 10}')
    I(f's_mul_i32 s{SA}, s{SA}, {32 * 3072}')
    I(f's_lshl_b32 s{SB}, s{SB}, 10')
    I(f's_add_u32 s{SA}, s{SA}, s{SB}')
    I(f's_and_b32 s{SB}, s2, 7')
    I(f's_lshl_b32 s{SB}, s{SB}, 1')
    I(f's_and_b32 s{S_T1}, s{S_W}, 1')
    I(f's_add_u32 s{SB}, s{SB}, s{S_T1}')
    I(f's_mul_i32 s{S_T1}, s{SB}, {2048 if WIL else 2 * 49152}')
    I(f's_add_u32 s{SC}, s{SC}, s{S_T1}')
    I(f's_add_u32 s{SC}, s{SC}, {hex(WS_WT)}')
    I(f's_add_u32 s{SC + 1}, s{SC}, {1024 if WIL else 49152}')
    I(f's_lshl_b32 s{SB}, s{SB}, 6')
    I(f's_add_u32 s{SA}, s{SA}, s{SB}')
    I(f's_movk_i32 s{SB}, 3072')
    I('s_branch L_w_src')
    A.label('L_wo_src')
    I(f's_bfe_u32 s{SA}, s2, 0x40002')
    I(f's_and_b32 s{SB}, s2, 3')
    I(f's_lshl_b32 s{SB}, s{SB}, 2')
    I(f's_add_u32 s{SB}, s{SB}, s{S_W}')
    if WIL:
        I(f's_lshl_b32 s{SC}, s{SA}, 5')
        I(f's_add_u32 s{SC}, s{SC}, s{SB}')
        I(f's_lshl_b32 s{SC}, s{SC}, 10')
    else:
        I(f's_lshl_b32 s{SC}, s{SB}, 4')
        I(f's_add_u32 s{SC}, s{SC}, s{SA}')
        I(f's_lshl_b32 s{SC}, s{SC}, 11')
    I(f's_add_u32 s{SC}, s{SC}, {hex(WS_WTO)}')
    I(f's_add_u32 s{SC + 1}, s{SC}, {16384 if WIL else 1024}')
    I(f's_lshl_b32 s{SA}, s{SA}, 15')
    I(f's_lshl_b32 s{SB}, s{SB}, 6')
    I(f's_add_u32 s{SA}, s{SA}, s{SB}')
    I(f's_movk_i32 s{SB}, 1024')
    A.label('L_w_src')
    I(f'v_mul_u32_u24 {v(vws)}, s{SB}, {v(x0)}')
    I(f'v_and_b32 {v(x1)}, 3, {v(V_L)}')
    I(f'v_lshl_add_u32 {v(x1)}, {v(x1)}, 4, s{SA}')
    I(f'v_add_u32 {v(vws)}, {v(vws)}, {v(x1)}')
    I(f's_lshl_b32 s{SB}, s{SB}, 4')
    I(f's_sub_u32 s{SB}, s{SB}, 1024')
    I(f'v_add_u32 {v(vws + 1)}, s{SB}, {v(vws)}')
    zero4 = P.alloc(4, 2)
    for i in range(4):
        I(f'v_mov_b32 {v(zero4 + i)}, 0')
    for r, n in ((R_WS, WS_SIZE),):
        I(f's_mov_b32 s{r + 2}, {hex(n)}')
        I(f's_mov_b32 s{r + 3}, 0x20000')
    xs = P.alloc(8, 2)
    xt = P.alloc(8, 2)
    par = P.alloc(8, 2)
    vtc = par + 7
    I(f's_cmp_eq_u32 s{S_W}, 0')
    I(f's_cselect_b32 s{S_T1}, 1, 0x100')
    I(f'v_lshlrev_b32_e64 {v(vtc)}, 7, s{S_T1}')
    A._wait(lg=0)
    stamp('a_karg')
    I(f's_cmp_lg_u32 s{sinit}, 0')
    I('s_cbranch_scc1 L_noinit')
    I(f'v_lshlrev_b32 {v(x0)}, 9, {v(V_L)}')
    A.cond = True
    for j in range(4):
        I(f'global_store_dword {v(x0)}, {v(zero4)}, {s(S_WS, 2)} offset:{128 * j} sc1')
    A.cond = False
    A.label('L_noinit')
    nld = 0

    def ld_x(j):
        if j < 2:
            I(f'global_load_dwordx4 {v(xs + 4 * j, 4)}, {v(vsr)}, {s(S_U, 2)} offset:{1024 * j}{NT("a")}')
        else:
            I(f'global_load_lds_dwordx4 {v(vtd if j == 2 else vtr)}, {s(S_U, 2)} offset:{1024 * (j - 2)}{NT("b")}', tag='xt')

    def ld_par():
        for i, sp in enumerate((S_ARE, S_AIM, S_BRE, S_BIM, S_CRE, S_CIM)):
            I(f'global_load_ushort {v(par + i)}, {v(vpo)}, {s(sp, 2)}{NT("p")}')

    def touch():
        I(f's_cmp_eq_u32 s{S_W}, 0')
        I(f's_cselect_b64 s[{S_T3}:{S_T4}], {s(S_DBG, 2)}, {s(S_WS, 2)}')
        I(f'global_load_dword {v(pf + 3)}, {v(vtc)}, s[{S_T3}:{S_T4}]')

    I(f's_cmp_ge_u32 s2, 192')
    I(f's_cselect_b64 s[{R_WQ}:{R_WQ + 1}], {s(S_WO, 2)}, {s(S_WQKV, 2)}')

    def touch2():
        I('s_mov_b64 exec, 1')
        I(f'global_load_dword {v(pf + 1)}, {v(vsr)}, {s(S_U, 2)}')
        I(f'global_load_dword {v(pf + 2)}, {v(vws)}, s[{R_WQ}:{R_WQ + 1}]')
        I('s_mov_b64 exec, -1')

    def ld_w():
        I('s_add_u32 m0, m0, 8192')
        for j in range(2):
            I(f'global_load_lds_dwordx4 {v(vws + j)}, s[{R_WQ}:{R_WQ + 1}] offset:{1024 * j}{NT("w")}', tag='wt')
    nld = 13
    if ORDER == 1:
        ld_x(0), touch(), ld_par(), ld_x(1), ld_x(2), ld_x(3), ld_w()
    elif ORDER == 2:
        touch(), ld_x(0), ld_x(1), ld_x(2), ld_x(3), ld_w(), ld_par()
    elif ORDER == 3:
        touch(), ld_x(0), ld_x(1), ld_x(2), ld_x(3), ld_par(), ld_w()
    elif ORDER == 4:
        ld_x(0), ld_x(1), ld_x(2), ld_x(3)
        A._wait(vm=2)
        stamp('b_xs')
        A._wait(vm=0)
        stamp('b_xt')
        touch(), ld_w(), ld_par()
        A._wait(vm=8)
        stamp('b_touch')
        A._wait(vm=6)
        stamp('b_w')
        A._wait(vm=0)
        stamp('b_par')
    elif ORDER >= 10:
        grp = {'1': ('x', lambda: [ld_x(j) for j in range(4)]), '2': ('touch', touch), '3': ('w', ld_w), '4': ('par', ld_par)}
        for c in str(ORDER):
            grp[c][1]()
            A._wait(vm=0)
            stamp('b_' + grp[c][0])
            A.barrier()
            stamp('b_bar' + c)
    elif ORDER in (7, 8, 9):
        touch2(), touch(), ld_par()
        if ORDER == 8:
            A.barrier()
        ld_x(0), ld_x(1), ld_x(2), ld_x(3)
        nld = 13
        if not WLATE:
            if ORDER == 8:
                A.barrier()
            ld_w()
            nld = 15
        if ORDER == 9:
            stamp('b_iss')
            for nm, n in (('code', 15), ('tu', 14), ('tw', 13), ('touch', 12), ('par', 6), ('xs', 4), ('xt', 2), ('w', 0)):
                A._wait(vm=n)
                stamp('b_' + nm)
    elif ORDER == 5:
        touch(), ld_x(0), ld_x(1), ld_x(2), ld_x(3), ld_w(), ld_par()
        stamp('b_iss')
        for nm, n in (('code', 13), ('touch', 12), ('xs', 10), ('xt', 8), ('w', 6), ('par', 0)):
            A._wait(vm=n)
            stamp('b_' + nm)
    elif ORDER == 6:
        touch(), ld_par(), ld_x(0), ld_x(1), ld_x(2), ld_x(3), ld_w()
        stamp('b_iss')
        for nm, n in (('code', 13), ('touch', 12), ('par', 6), ('xs', 4), ('xt', 2), ('w', 0)):
            A._wait(vm=n)
            stamp('b_' + nm)
    I(f's_load_dword s{S_D}, {s(S_LDT, 2)}, s{S_T2}')
    I(f's_load_dword s{S_D + 1}, {s(S_DSK, 2)}, s{S_T2}')
    for r, p in ((R_WS, S_WS),):
        I(f's_mov_b64 s[{r}:{r + 1}], s[{p}:{p + 1}]')
    if XPF:
        I(f'v_xor_b32 {v(vsr)}, {XPF << 18}, {v(vsr)}')
        I(f'v_mul_u32_u24 {v(x0)}, 112, {v(va_)}')
        I(f'v_add_u32 {v(vsr)}, {v(vsr)}, {v(x0)}')
        I('s_mov_b64 exec, 0xffff')
        I(f'global_load_dword {v(pf + 1)}, {v(vsr)}, {s(S_U, 2)}')
        if XPF2:
            I(f'v_xor_b32 {v(vpo)}, {XPF << 9}, {v(vpo)}')
            I('s_mov_b64 exec, 1')
            for i, sp in enumerate((S_ARE, S_AIM, S_BRE, S_BIM, S_CRE, S_CIM)):
                I(f'global_load_ushort {v(V_CSQ + (i & 3) if i < 4 else V_CSKV + i - 4)}, {v(vpo)}, {s(sp, 2)}')
            nld += 6
        I('s_mov_b64 exec, -1')
        nld += 1
    stamp('a_ldiss')
    P.free(vsr), P.free(vpo), P.free(vtd)
    I(f'v_and_b32 {v(x0)}, 31, {v(V_L)}')
    I(f'v_lshlrev_b32 {v(vtr)}, 6, {v(x0)}')
    I(f'v_lshl_add_u32 {v(vtr)}, s{S_W}, 11, {v(vtr)}')
    I(f'v_bfe_u32 {v(x0)}, {v(V_L)}, 2, 2')
    I(f'v_lshlrev_b32 {v(x1)}, 1, {v(vhi)}')
    I(f'v_xor_b32 {v(x0)}, {v(x0)}, {v(x1)}')
    I(f'v_lshl_add_u32 {v(vtr)}, {v(x0)}, 4, {v(vtr)}')
    kg, gi = setup_kgen(va_, vg, x0, x1)
    I(f's_cmp_lg_u32 s{sinit}, 0')
    I('s_cbranch_scc1 L_noflag')
    I(f'v_mov_b32 {v(x1)}, 1')
    A._wait(vm=nld)
    A.cond = True
    I(f'global_store_dword {v(zero4)}, {v(x1)}, {s(S_DBG, 2)} sc1')
    A.cond = False
    A.label('L_noflag')
    I(f'v_lshl_add_u32 {v(x1)}, {v(x0)}, 2, s{S_T3}')
    I(f'v_subrev_u32 {v(x1)}, 512, {v(x1)}')
    I(f'ds_write_b32 {v(x1)}, {v(zero4)}')
    I(f's_mul_i32 s{S_T3}, s{S_W}, 4160')
    I(f's_add_u32 s{S_T3}, s{S_T3}, {L_RK + 4096}')
    I(f'v_lshl_add_u32 {v(x1)}, {v(va_)}, 2, s{S_T3}')
    I(f'ds_write_b32 {v(x1)}, {v(zero4)}')
    stamp('a_kgset')
    if '--pre0' in sys.argv:
        I(f's_mov_b32 s{S_T0}, {hex(WS_X2[0])}')
        for i in range(8):
            I(f'buffer_store_dword {v(zero4)}, {v(V_X2ST)}, {WS}, s{S_T0} offen sc1')
            I(f's_add_u32 s{S_T0}, s{S_T0}, 8192')
        for f_ in range(2):
            I(f'buffer_store_dwordx4 {v(zero4, 4)}, {v(V_L16)}, {WS}, s{SC + f_} offen sc1')
    I(f's_lshl_b32 s{S_T0}, s{sinit}, 7')
    I(f's_add_u32 s{S_T0}, s{S_T0}, {hex(WS_ZERO)}')
    I('s_mov_b64 exec, 0xff')
    I(f'buffer_store_dwordx4 {v(zero4, 4)}, {v(V_L16)}, {WS}, s{S_T0} offen sc1')
    I('s_mov_b64 exec, -1')
    setup_conv(va_, vg, x0, x1)
    vwr = P.alloc(2)
    I(f's_lshl_b32 s{S_T3}, s{S_W}, 11')
    I(f's_add_u32 s{S_T3}, s{S_T3}, 8192')
    I(f'v_and_b32 {v(x0)}, 3, {v(V_L)}')
    I(f'v_lshl_add_u32 {v(vwr)}, {v(V_L)}, 4, s{S_T3}')
    I(f'v_lshlrev_b32 {v(x0)}, 3, {v(x0)}')
    I(f'v_sub_u32 {v(vwr)}, {v(vwr)}, {v(x0)}')
    I(f'v_lshrrev_b32 {v(x0)}, 2, {v(va_)}')
    I(f'v_lshl_add_u32 {v(vwr + 1)}, {v(x0)}, 8, s{S_T3}')
    I(f'v_lshl_add_u32 {v(vwr + 1)}, {v(vhi)}, 6, {v(vwr + 1)}')
    I(f'v_and_b32 {v(x0)}, 1, {v(V_L)}')
    I(f'v_lshl_add_u32 {v(vwr + 1)}, {v(x0)}, 5, {v(vwr + 1)}')
    I(f'v_and_b32 {v(x0)}, 1, {v(vg)}')
    I(f'v_lshl_add_u32 {v(vwr + 1)}, {v(x0)}, 4, {v(vwr + 1)}')
    I(f'v_bfe_u32 {v(x0)}, {v(V_L)}, 1, 1')
    I(f'v_lshl_add_u32 {v(vwr + 1)}, {v(x0)}, 3, {v(vwr + 1)}')
    I(f's_mov_b32 s{S_ONES}, 0x3f803f80')
    I(f's_mov_b32 s{S_EXP}, {f32(math.log2(math.e))}')
    for i in range(4):
        I(f'v_mov_b32 {v(V_ONES + i)}, s{S_ONES}')
    I(f'v_xor_b32 {v(x1)}, 16, {v(vtr)}')
    if '--latepage' not in sys.argv:
        A.raw('#page')
        A.raw('#seg s0')
        A.raw('#touch s0')
    stamp('a_setup')
    st = P.alloc(4, 2)
    for i in range(4):
        for r in range(2):
            c = '0' if i == 0 else v(st + r)
            I(f'v_dot2_f32_bf16 {v(st + r)}, {v(xs + 4 * r + i)}, s{S_ONES}, {c}')
            c = '0' if i == 0 else v(st + 2 + r)
            I(f'v_dot2_f32_bf16 {v(st + 2 + r)}, {v(xs + 4 * r + i)}, {v(xs + 4 * r + i)}, {c}')
    stamp('a_xs')
    A.wait_vm('xt')
    I(f'ds_read_b128 {v(xt, 4)}, {v(vtr)}')
    I(f'ds_read_b128 {v(xt + 4, 4)}, {v(x1)}')
    I(f's_mov_b32 s{S_T0}, {hex(WS_ST[0])}')
    I(f'v_permlane32_swap_b32 {v(st)}, {v(st + 2)}')
    I(f'v_permlane32_swap_b32 {v(st + 1)}, {v(st + 3)}')
    I(f'v_add_f32 {v(st)}, {v(st)}, {v(st + 2)}')
    I(f'v_add_f32 {v(st + 1)}, {v(st + 1)}, {v(st + 3)}')
    I(f'v_permlane16_swap_b32 {v(st)}, {v(st + 1)}')
    I(f'v_add_f32 {v(st)}, {v(st)}, {v(st + 1)}')
    for sh in (8, 4, 2, 1):
        I(f'v_add_f32_dpp {v(st)}, {v(st)}, {v(st)} row_ror:{sh} row_mask:0xf bank_mask:0xf')
    I('s_mov_b32 exec_lo, 0x00010001')
    I('s_mov_b32 exec_hi, 0x00010001')
    I(f'buffer_store_dword {v(st)}, {v(vsa)}, {WS}, s{S_T0} offen sc1')
    I('s_mov_b64 exec, -1')
    x2store(0, xt)

    def wtrans():
        A.wait_vm('wt')
        A.wait_lg()
        I(f's_cmp_ge_u32 s2, 192')
        I('s_cbranch_scc1 L_wo_rd')
        for f_ in range(2):
            for z in range(2):
                A._emit(Ins(f'ds_read_b64_tr_b16 {v(xs + 4 * f_ + 2 * z, 2)}, {v(vwr)} offset:{1024 * z + 32 * f_}'))
        I('s_branch L_w_rd')
        A.label('L_wo_rd')
        for f_ in range(2):
            for z in range(2):
                I(f'ds_read_b64_tr_b16 {v(xs + 4 * f_ + 2 * z, 2)}, {v(vwr + 1)} offset:{1024 * f_ + 128 * z}')
        A.label('L_w_rd')
        for f_ in range(2):
            I(f'buffer_store_dwordx4 {v(xs + 4 * f_, 4)}, {v(V_L16)}, {WS}, s{SC + f_} offen sc1', tag='wtst')
    if not W1B:
        wtrans()
    flag = pf + 3
    I(f'global_load_dword {v(flag)}, {v(zero4)}, {s(S_DBG, 2)} sc1', tag='flag')
    if WLATE:
        ld_w()
    stamp('a_stored')
    if '--latepage' in sys.argv:
        A.raw('#page')
        A.raw('#seg s0')
        A.raw('#touch s0')

    if '--seq' in sys.argv:
        for nm, n in (('par', 13), ('wpf', 11), ('zero', 10), ('st', 9), ('x2', 1), ('flag', 0)):
            A._wait(vm=n)
            stamp('b_' + nm)

    def arrive1():
        stamp('b_pre')
        A.wait_vm('flag')
        stamp('a_drained')
        global_arrive(first=(flag, zero4))
        stamp('arr1')
    hooks = {KG_ARR: [arrive1]}
    kgen(par, kg, hooks)
    if W1B and WLATE < 2:
        wtrans()
        stamp('a_wtr')
    P.free(st, 4), P.free(xt, 8), P.free(zero4, 4), P.free(pf, 4), P.free(vws, 2), P.free(vsa), P.free(vtr)
    for r in f:
        P.free(r)
    poll_start(1)
    A.barrier()
    kgen2(kg)
    A.wait_vm('wtst')

    def fin():
        if W1B and WLATE == 2:
            wtrans()
            stamp('a_wtr')
        P.free(xs, 8), P.free(vwr, 2)
    return kg, gi, fin


def x2store(layer, d):
    I(f's_mov_b32 s{S_T0}, {hex(WS_X2[layer])}')
    for i in range(8):
        I(f'buffer_store_dword {v(d + i)}, {v(V_X2ST)}, {WS}, s{S_T0} offen sc1')
        if i < 7:
            I(f's_add_u32 s{S_T0}, s{S_T0}, 8192')


def kgen(par, kg, hooks):
    LOG2E = math.log2(math.e)
    A.wait_lg()
    I(f's_lshl_b32 s{S_T0}, s{S_D}, 16')
    I(f's_and_b32 s{S_T1}, s{S_D}, 0xffff0000')
    I(f's_lshl_b32 s{S_D}, s{S_D + 1}, 16')
    I(f's_and_b32 s{S_D + 1}, s{S_D + 1}, 0xffff0000')
    I(f's_cmp_ge_u32 s{S_W}, 2')
    I(f's_cselect_b32 s{S_T0}, s{S_T1}, s{S_T0}')
    dt = par + 6
    I(f'v_mov_b32 {v(dt)}, s{S_T0}')
    I(f'v_mul_f32 {v(dt)}, s{S_EXP}, {v(dt)}')
    I(f'v_exp_f32 {v(dt)}, {v(dt)}')
    for i in range(6):
        I(f'v_lshlrev_b32 {v(par + i)}, 16, {v(par + i)}')
    I(f'v_cvt_pk_bf16_f32 {v(dt)}, {v(dt)}, {v(dt)}')
    I(f'v_and_b32 {v(dt)}, 0xffff0000, {v(dt)}')
    z, Bc, Cc = par, par + 2, par + 4
    pk('mul', v(z, 2), (v(z, 2), 'p'), bc(dt))
    pk('mul', v(Bc, 2), (v(Bc, 2), 'p'), bc(dt))
    tmp = P.alloc(2, 2)
    CB = P.alloc(2, 2)
    cmul(CB, Cc, Bc, tmp)
    E = {}
    for rho in (1, 8, 64, 256):
        e = P.alloc(2, 2)
        E[rho] = e
        I(f'v_mul_f32 {v(tmp)}, {f32(rho * LOG2E)}, {v(z)}')
        I(f'v_mul_f32 {v(tmp + 1)}, {f32(rho / (2 * math.pi))}, {v(z + 1)}')
        I(f'v_exp_f32 {v(tmp)}, {v(tmp)}')
        I(f'v_fract_f32 {v(tmp + 1)}, {v(tmp + 1)}')
        I(f'v_cos_f32 {v(e)}, {v(tmp + 1)}')
        I(f'v_sin_f32 {v(e + 1)}, {v(tmp + 1)}')
        pk('mul', v(e, 2), (v(e, 2), 'p'), bc(tmp))
    pkr = [P.alloc() for _ in range(2)]
    cnt = [0]

    def put(r, neg):
        row = cnt[0]
        cnt[0] += 1
        if r is None:
            I(f'v_mov_b32 {v(pkr[row & 1])}, 0x3f80')
        else:
            I(f'v_cvt_pk_bf16_f32 {v(pkr[row & 1])}, {v(r)}, {"-" if neg else ""}{v(r + 1)}')
        if row & 1:
            o0 = (KG_ROW // 4) * (row & 2)
            I(f'ds_write2_b32 {v(kg["w"])}, {v(pkr[0])}, {v(pkr[1])} offset0:{o0} offset1:{o0 + KG_ROW // 4}')
            if row & 2:
                I(f'v_add_u32 {v(kg["w"])}, {4 * KG_ROW}, {v(kg["w"])}')
        elif row == 52:
            I(f'ds_write_b32 {v(kg["w"])}, {v(pkr[0])}')
        for th in hooks.pop(cnt[0], []):
            th()
    for rho, x, y in ((128, 64, 64), (192, 128, 64), (2, 1, 1), (4, 2, 2)):
        E[rho] = P.alloc(2, 2)
        cmul(E[rho], E[x], E[y], tmp)
    cur = P.alloc(2, 2)
    o = P.alloc(2, 2)
    put(None, False)
    for m in (1, 2, 3):
        put(E[64 * m], False)
    for j in range(1, 8):
        if j == 1:
            g = E[8]
        elif j == 2:
            cmul(cur, E[8], E[8], tmp)
            g = cur
        else:
            cmul(cur, cur, E[8], tmp)
        put(g, False)
        for m in (1, 2, 3):
            cmul(o, g, E[64 * m], tmp)
            put(o, False)
    put(CB, True)
    for j in range(1, 8):
        cmul(cur, CB if j == 1 else cur, E[1], tmp)
        put(cur, True)
    U = CB
    cmul(U, U, E[256], tmp)
    put(U, True)
    for j in range(1, 4):
        cmul(cur, U if j == 1 else cur, E[2], tmp)
        put(cur, True)
    for j in range(2):
        cmul(U, U, E[256], tmp)
        put(U, True)
        cmul(cur, U, E[4], tmp)
        put(cur, True)
    for j in range(5):
        cmul(U, U, E[256], tmp)
        put(U, True)
    for r in list(E.values()) + [tmp, CB, cur, o]:
        P.free(r, 2)
    P.free(pkr[0]), P.free(pkr[1])
    P.free(par, 8)
    assert not hooks
    stamp('a_kg1')


def kgen2(kg):
    d0, d1 = P.alloc(4, 2), P.alloc(4, 2)
    mf = []
    for st in range(8):
        for tl, d in ((0, d0), (1, d1)):
            def em(reg, st=st, tl=tl, d=d):
                c = '0' if st == 0 else v(d, 4)
                I(f'v_mfma_f32_16x16x32_bf16 {v(d, 4)}, {v(reg[("a", tl, st)], 4)}, {v(reg[("g", st)], 4)}, {c}')
            mf.append((em, [('a', tl, st), ('g', st)]))

    def loader(k, r):
        ko = KG_W * (k[-1] >> 2) + 64 * (k[-1] & 3)
        if k[0] == 'g':
            return [f'ds_read_b128 {v(r, 4)}, {v(kg["g"])} offset:{ko}']
        base = kg['a0'] if k[1] == 0 else kg['a1']
        return [f'ds_read_b128 {v(r, 4)}, {v(base)} offset:{(32 + 16 * k[1]) * KG_ROW + ko}']
    stream(mf, loader, 15, 12, rate=2, burst=15)
    I(f'ds_write_b64 {v(kg["t1"])}, {v(d0, 2)}')
    I(f'ds_write_b64 {v(kg["t2"])}, {v(d0 + 2, 2)}')
    I(f'v_add_u32 {v(kg["t3"])}, {4 * TB[3]}, {v(kg["t3"])}')
    I('s_mov_b32 exec_hi, 0')
    for r in (0, 2):
        I(f'ds_write2_b32 {v(kg["t3"])}, {v(d1 + r)}, {v(d1 + r + 1)} offset0:{32 * r} offset1:{32 * r + 32}')
    I('s_mov_b64 exec, -1')
    P.free(d0, 4), P.free(d1, 4)
    stamp('a_kg2')


def kgen3(kg, gi):
    for u in range(17):
        I(f'ds_read_b32 {v(gi + u)}, {v(gi + u)}')
    c = P.alloc(16, 2)
    for cp in range(2):
        for m in range(8):
            I(f'v_cvt_pk_bf16_f32 {v(c + 8 * cp + m)}, {v(gi + 2 * m + cp)}, {v(gi + 2 * m + cp + 1)}')
        for hq in range(2):
            I(f'ds_write_b128 {v(kg["rk"])}, {v(c + 8 * cp + 4 * hq, 4)} offset:{4160 * cp + 16 * hq}')
    A.barrier(lg=False)
    P.free(c, 16), P.free(gi, 18)
    for r in kg.values():
        P.free(r)
    stamp('a_kgen')


def conv(layer, kg, gi, wl):
    xd = P.alloc(8, 2)
    sm = P.alloc(8, 2)
    sq = P.alloc(8, 2)
    for i in range(2):
        I(f'buffer_load_dwordx4 {v(sm + 4 * i, 4)}, {v(V_CVL)}, {WS}, s{S_T1} offen offset:{1024 * i} sc1')
        I(f'buffer_load_dwordx4 {v(sq + 4 * i, 4)}, {v(V_CVL)}, {WS}, s{S_T2} offen offset:{1024 * i} sc1')
        I(f'buffer_load_dwordx4 {v(xd + 4 * i, 4)}, {v(V_CVL)}, {WS}, s{S_T3} offen offset:{1024 * i} sc1')
        if i == 0 and '--nocvb' not in sys.argv:
            A.barrier()
    stamp(f'conv{layer}_iss')
    if layer == 0:
        kg.pop('fin')()
        if W1B and WLATE < 2:
            arrive_1b()
        kgen3(kg, gi)
    base = P.alloc(16, 2)
    hh = P.alloc(4, 2)
    hp = P.alloc(4, 2)
    LN = s(S_LN, 2)
    for i in range(2):
        m, q, x = sm + 4 * i, sq + 4 * i, xd + 4 * i
        for j in (0, 2):
            pk('mul', v(m + j, 2), (v(m + j, 2), 'p'), (LN, 'l'))
        for j in (0, 2):
            pk('fma', v(q + j, 2), (v(q + j, 2), 'p'), (LN, 'l'), (LN, 'h'))
        for j in (0, 2):
            pk('fma', v(q + j, 2), (v(m + j, 2), 'p', 'b'), (v(m + j, 2), 'p'), (v(q + j, 2), 'p'))
        for j in range(4):
            I(f'v_max_f32 {v(q + j)}, s{S_LN + 1}, {v(q + j)}')
        for j in range(4):
            I(f'v_rsq_f32 {v(q + j)}, {v(q + j)}')
        for c in range(2):
            b = base + 8 * i + 4 * c
            for j in range(4):
                if c == 0:
                    I(f'v_lshlrev_b32 {v(b + j)}, 16, {v(x + j)}')
                else:
                    I(f'v_and_b32 {v(b + j)}, 0xffff0000, {v(x + j)}')
            for j in (0, 2):
                pk('add', v(hh + j, 2), (v(b + j, 2), 'p'), (v(m + j, 2), 'p', 'b'))
            for j in (0, 2):
                pk('mul', v(hh + j, 2), (v(hh + j, 2), 'p'), (v(q + j, 2), 'p'))
            for j in (0, 2):
                I(f'v_cvt_pk_bf16_f32 {v(hp + 2 * c + j // 2)}, {v(hh + j)}, {v(hh + j + 1)}')
            I(f'ds_write_b64 {v(V_HW)}, {v(hp + 2 * c, 2)} offset:{4608 * c + 512 * i}')
            for j in (0, 2):
                pk('fma', v(b + j, 2), (v(hh + j, 2), 'p'), (s(S_D, 2), 'h' if c else 'l'), (v(b + j, 2), 'p'))
    P.free(xd, 8), P.free(sm, 8), P.free(sq, 8), P.free(hh, 4), P.free(hp, 4)
    if layer == 0 and W1B and WLATE < 2:
        poll_start('1b')
    A.wait_vm('wtst')
    A.barrier()
    if layer == 0 and W1B and WLATE == 2:
        arrive_1b()
    stamp(f'conv{layer}_h')
    acc = P.alloc(32, 2)
    mf = []
    seen = set()
    fin = {}
    for cc in range(4):
        if cc < 3:
            seq = [(p, n) for p in range(7, -1, -1) for n in range(p, 8)]
        else:
            seq = [(p, n) for n in range(8) for p in range(n + 1)]
        for (p, n) in seq:
            def em(reg, cc=cc, p=p, n=n, fst=(n not in seen)):
                d = v(acc + 4 * n, 4)
                I(f'v_mfma_f32_16x16x32_bf16 {d}, {v(reg[("A", cc, p)], 4)}, {v(reg[("B", cc, n - p)], 4)}, {"0" if fst else d}')
            seen.add(n)
            mf.append((em, [('A', cc, p), ('B', cc, n - p)]))
            fin[n] = len(mf) - 1

    def loader(k, r):
        _, cc, x = k
        if k[0] == 'B':
            return [f'ds_read_b128 {v(r, 4)}, {v(V_CB)} offset:{512 * x + 64 * (3 - cc)}']
        o = 128 * (1 - (x & 1)) + 16 * (3 - cc)
        return [f'ds_read2_b32 {v(r, 2)}, {v(V_CA[x >> 1])} offset0:{o} offset1:{o + 1}',
                f'ds_read2_b32 {v(r + 2, 2)}, {v(V_CA[x >> 1])} offset0:{o + 2} offset1:{o + 3}']
    fill = {}
    for n in range(8):
        at = min(fin[n] + 7, len(mf) - 1)
        fill.setdefault(at, []).append(lambda reg, n=n: I(f'ds_write_b128 {v(V_EXW)}, {v(acc + 4 * n, 4)} offset:{1280 * n}'))
    if SPEC:
        pz = P.alloc(2, 2)
        spread(fill, xt_poison(layer, pz), 3, 3)

        def early(reg):
            A.wait_vm('poison')
            global_arrive(lg=False)
        if SPEC > 9:
            fill.setdefault(SPEC, []).append(early)
    if wl and W1B:
        if WLATE == 2:
            fill.setdefault(W1B_GAP - 38, []).append(lambda reg: poll_start('1b'))
        fill.setdefault(W1B_GAP, []).append(lambda reg: wait_1b(4 if SPEC and WLATE < 2 else 0))
        spread(fill, wl, W1B_GAP + 2, (126 - W1B_GAP) / len(wl))
    elif wl:
        spread(fill, wl, W_C0, W_CSTEP)
    if layer == 0 and LATE_IN:
        with Capture() as ls:
            keep = setup_late(free=False)
        free_gaps = [m for m in range(14, 140) if m not in fill]
        for i, t in enumerate(ls):
            fill.setdefault(free_gaps[(i * len(free_gaps)) // len(ls)], []).append(lambda reg, t=t: I(t))
    stream(mf, loader, 20, 40, fill=fill, burst=12)
    P.free(acc, 32)
    if SPEC:
        P.free(pz, 2)
        A.wait_vm('poison')
    if layer == 0 and LATE_IN:
        for r in keep:
            P.free(r)
    A.barrier()
    stamp(f'conv{layer}_mm')
    ex = P.alloc(32, 2)
    for i in range(2):
        for u in range(4):
            I(f'ds_read_b128 {v(ex + 16 * i + 4 * u, 4)}, {v(V_EXR)} offset:{10240 * u + 1280 * i}')
    if SPEC == 1:
        global_arrive(bar=False)
    I(f's_mov_b32 s{S_T0}, {hex(WS_XT[layer])}')
    I(f's_mov_b32 s{S_T1}, {hex(WS_XT[layer] + 262144)}')
    for i in range(2):
        for c in range(2):
            b = base + 8 * i + 4 * c
            e = ex + 16 * i + 8 * c
            for j in (0, 2):
                pk('add', v(b + j, 2), (v(b + j, 2), 'p'), (v(e + j, 2), 'p'))
            for j in (0, 2):
                pk('add', v(b + j, 2), (v(b + j, 2), 'p'), (v(e + 4 + j, 2), 'p'))
            for j in (0, 2):
                I(f'v_cvt_pk_bf16_f32 {v(e + j // 2)}, {v(b + j)}, {v(b + j + 1)}')
            I(f'buffer_store_dwordx2 {v(e, 2)}, {v(V_XTST)}, {WS}, s{S_T0 + i} offen offset:{128 * c} sc1', tag='xtst')
    P.free(ex, 32), P.free(base, 16)
    stamp(f'conv{layer}_st')


def phi(x, tmp):
    EX = s(S_EXP, 2)
    for j in (0, 2):
        pk('fma', v(tmp + j, 2), (v(x + j, 2), 'p'), (EX, 'l'), (EX, 'h'))
    for j in range(4):
        I(f'v_exp_f32_e64 {v(tmp + j)}, {v(tmp + j)} clamp')
    for j in range(4):
        I(f'v_max_f32 {v(x + j)}, s{S_E6}, {v(x + j)}')
    for j in (0, 2):
        pk('add', v(x + j, 2), (v(x + j, 2), 'p'), (v(tmp + j, 2), 'p'))


DOTSTATS = '--dot' in sys.argv


def p3(layer, wl1, wl2):
    A.label(f'L_redo{layer}')
    for ck in range(4):
        if ck == 0:
            I(f's_lshl_b32 m0, s{S_W}, 12')
        else:
            I('s_add_u32 m0, m0, 16384')
        I(f's_mov_b32 s{S_T0}, {hex(WS_XT[layer] + ck * 16384)}')
        for j in range(4):
            I(f'buffer_load_dwordx4 {v(V_XTLD)}, {WS}, s{S_T0} offen offset:{1024 * j} sc1 lds', tag=f'xt{ck}')
        if layer == 0 and CS_C0 and ck in (1, 2):
            colsums([ck])
    acc = P.alloc(32, 4)
    ss = P.alloc(8, 4)

    def loader(k, r):
        st, i = k
        return [f'ds_read_b64_tr_b16 {v(r + 2 * z, 2)}, {v(V_XT[i])} offset:{4096 * st + 2048 * z}' for z in range(2)]
    mf = []
    fill = {}
    for st in range(16):
        for i in range(4):
            for y in (1, 2):
                def em(reg, st=st, i=i, y=y):
                    d = v(acc + 16 * (y - 1) + 4 * i, 4)
                    I(f'v_mfma_f32_16x16x32_bf16 {d}, {v(reg[(st, i)], 4)}, {wq_reg(y, st)}, {"0" if st == 0 else d}')
                mf.append((em, [(st, i)]))
            if i == 0 and not DOTSTATS:
                for y in range(2):
                    def em(reg, st=st, y=y):
                        d = v(ss + 4 * y, 4)
                        x = v(reg[(st, 0)], 4)
                        I(f'v_mfma_f32_16x16x32_bf16 {d}, {v(V_ONES, 4) if y else x}, {x}, {"0" if st == 0 else d}')
                    mf.append((em, [(st, 0)]))
            if i == 0 and DOTSTATS:
                def dots(reg, st=st):
                    for j in range(8):
                        x = v(reg[(st, 0)] + j // 2)
                        d = v(ss + (j & 1))
                        c = '0' if (st == 0 and j < 2) else d
                        I(f'v_dot2_f32_bf16 {d}, {x}, {x if j & 1 else s(S_ONES)}, {c}')
                fill.setdefault(len(mf) - 2, []).append(dots)
    per = len(mf) // 16
    if wl1:
        spread(fill, wl1, 5 * per + 3, (10.5 * per) / len(wl1))

    def mkgate(ck):
        def g():
            A.wait_vm(f'xt{ck}')
            A.barrier(lg=(ck == 0))
            if ck == 0:
                stamp(f'p3_{layer}_c0')
            if ck == 1 and SPEC:
                I(f's_cmp_lg_u32 s{S_REDO}, 1')
                I(f's_cbranch_scc1 L_nofb{layer}')
                I(f's_mov_b32 s{S_T0}, {hex(WS_FB)}')
                A._emit(Ins(f'v_mov_b32 {v(V_PA)}, 1'))
                I('s_mov_b64 exec, 1')
                A.cond = True
                I(f'buffer_atomic_add {v(V_PA)}, {v(V_ARR)}, {WS}, s{S_T0} offen')
                A.cond = False
                I('s_mov_b64 exec, -1')
                A.label(f'L_nofb{layer}')
        return g
    gate = {(4 * ck, 0): mkgate(ck) for ck in range(4)}
    stream(mf, loader, 9, per + 2, fill=fill, gate=gate, burst=8)
    stamp(f'p3_{layer}_mm')
    if DOTSTATS:
        for r in (0, 1):
            I(f'v_mov_b32 {v(ss + 2 + r)}, {v(ss + r)}')
        for r in (0, 1):
            I(f'v_permlane32_swap_b32 {v(ss + r)}, {v(ss + 2 + r)}')
        pk('add', v(ss, 2), (v(ss, 2), 'p'), (v(ss + 2, 2), 'p'))
        for r in (0, 1):
            I(f'v_mov_b32 {v(ss + 2 + r)}, {v(ss + r)}')
        for r in (0, 1):
            I(f'v_permlane16_swap_b32 {v(ss + r)}, {v(ss + 2 + r)}')
        pk('add', v(ss, 2), (v(ss, 2), 'p'), (v(ss + 2, 2), 'p'))
        pk('mul', v(ss, 2), (v(ss, 2), 'p'), (s(S_LN, 2), 'l'))
        I(f'v_fma_f32 {v(ss + 1)}, -{v(ss)}, {v(ss)}, {v(ss + 1)}')
        I(f'v_max_f32 {v(ss + 1)}, 0, {v(ss + 1)}')
        I(f'v_add_f32 {v(ss + 1)}, s{S_LN + 1}, {v(ss + 1)}')
        I(f'v_rsq_f32 {v(ss + 1)}, {v(ss + 1)}')
        I(f'v_mul_f32 {v(ss)}, {v(ss)}, {v(ss + 1)}')
        I(f'ds_write2st64_b32 {v(V_SW)}, {v(ss + 1)}, {v(ss)} offset0:0 offset1:1')
    else:
        I(f'v_cndmask_b32 {v(ss)}, {v(ss)}, {v(ss + 1)}, {s(S_M1, 2)}')
        I(f'v_cndmask_b32 {v(ss + 2)}, {v(ss + 2)}, {v(ss + 3)}, {s(S_M1, 2)}')
        I(f'v_mul_f32 {v(ss + 4)}, s{S_LN}, {v(ss + 4)}')
        I(f'v_cndmask_b32 {v(ss)}, {v(ss)}, {v(ss + 2)}, {s(S_M2, 2)}')
        I(f'v_mul_f32 {v(ss + 1)}, {v(ss + 4)}, {v(ss + 4)}')
        I(f'v_fma_f32 {v(ss + 1)}, {v(ss)}, s{S_LN}, -{v(ss + 1)}')
        I(f'v_max_f32 {v(ss + 1)}, 0, {v(ss + 1)}')
        I(f'v_add_f32 {v(ss + 1)}, s{S_LN + 1}, {v(ss + 1)}')
        I(f'v_rsq_f32 {v(ss + 1)}, {v(ss + 1)}')
        I('s_mov_b32 exec_lo, 0x00f0000f')
        I('s_mov_b32 exec_hi, 0xf0000f00')
        I(f'v_mul_f32 {v(ss)}, {v(ss + 4)}, {v(ss + 1)}')
        I(f'ds_write2st64_b32 {v(V_SW)}, {v(ss + 1)}, {v(ss)} offset0:0 offset1:1')
        I('s_mov_b64 exec, -1')
    ta = P.alloc(6, 2)
    for i in range(1, 4):
        I(f'v_xor_b32 {v(ta + 2 * i - 2)}, {64 * i}, {v(V_SR4)}')
        I(f'v_xor_b32 {v(ta + 2 * i - 1)}, {64 * i}, {v(V_SR1)}')


    def csq(lo, hi):
        if layer == 0:
            for st in range(lo, hi):
                I(f'v_mfma_f32_16x16x32_bf16 {v(V_CSQ, 4)}, {wq_reg(0, st)}, {v(V_ONES, 4)}, {v(V_CSQ, 4) if st else 0}')
    csq(0, 6)
    A.barrier()
    stamp(f'p3_{layer}_st')
    P.free(ss, 8)
    r4 = P.alloc(32, 4)
    r1 = P.alloc(8, 2)
    for i in range(4):
        a4 = ta + 2 * i - 2 if i else V_SR4
        I(f'ds_read_b128 {v(r4 + 8 * i + 4, 4)}, {v(a4)} offset:256')
        I(f'ds_read_b128 {v(r4 + 8 * i, 4)}, {v(a4)}')
    for i in range(4):
        a1 = ta + 2 * i - 1 if i else V_SR1
        I(f'ds_read2st64_b32 {v(r1 + 2 * i, 2)}, {v(a1)} offset0:0 offset1:1')
    P.free(ta, 6)
    csq(6, 16)
    tmp = P.alloc(4, 2)
    fk = P.alloc(8, 4)
    fv = P.alloc(8, 4)
    dkv, dz = P.alloc(4, 4), P.alloc(4, 4)
    E6 = s(S_E6, 2)
    for i in range(4):
        r, rm = r4 + 8 * i, r4 + 8 * i + 4
        k_, v_ = acc + 4 * i, acc + 16 + 4 * i
        for j in (0, 2):
            pk('fma', v(tmp + j, 2), (v(rm + j, 2), 'p', 'b'), bc(V_CSKV), (E6, 'p'))
        for j in (0, 2):
            pk('fma', v(k_ + j, 2), (v(k_ + j, 2), 'p'), (v(r + j, 2), 'p'), (v(tmp + j, 2), 'p'))
        for j in (0, 2):
            pk('mul', v(v_ + j, 2), (v(v_ + j, 2), 'p'), (v(r + j, 2), 'p'))
        for j in (0, 2):
            pk('fma', v(v_ + j, 2), (v(rm + j, 2), 'p', 'b'), bc(V_CSKV + 1), (v(v_ + j, 2), 'p'))
        phi(k_, tmp)
        for j in (0, 2):
            I(f'v_cvt_pk_bf16_f32 {v(fv + 2 * i + j // 2)}, {v(v_ + j)}, {v(v_ + j + 1)}')
        for j in (0, 2):
            I(f'v_cvt_pk_bf16_f32 {v(fk + 2 * i + j // 2)}, {v(k_ + j)}, {v(k_ + j + 1)}')
    if SPEC:
        I(f'v_cmp_u_f32 vcc, {v(r1 + 1)}, {v(r1 + 3)}')
        I(f'v_cmp_u_f32 s[{R_WQ}:{R_WQ + 1}], {v(r1 + 5)}, {v(r1 + 7)}')
        I(f's_or_b64 vcc, vcc, s[{R_WQ}:{R_WQ + 1}]')
        I(f's_cbranch_scc1 L_slow{layer}')
        A.label(f'L_ok{layer}')
    stamp(f'p3_{layer}_kv')
    I(f's_mov_b32 s{S_T2}, {hex(WS_KV[layer])}')
    I(f's_mov_b32 s{S_T0}, {hex(WS_KV[layer] + 32768)}')
    for hf in range(2):
        I(f'v_mfma_f32_16x16x32_bf16 {v(dkv, 4)}, {v(fv + 4 * hf, 4)}, {v(fk + 4 * hf, 4)}, {v(dkv, 4) if hf else 0}')
    for hf in range(2):
        I(f'v_mfma_f32_16x16x32_bf16 {v(dz, 4)}, {v(V_ONES, 4)}, {v(fk + 4 * hf, 4)}, {v(dz, 4) if hf else 0}')
    P.free(r4, 32), P.free(fk, 8), P.free(fv, 8), P.free(acc, 32)

    def atomics():
        for r in range(4):
            I(f'buffer_atomic_add_f32 {v(dkv + r)}, {v(V_KVST)}, {WS}, s{S_T2} offen offset:{64 * r}')
        I('s_mov_b64 exec, 0xffff')
        I(f'buffer_atomic_add_f32 {v(dz)}, {v(V_ZST)}, {WS}, s{S_T0} offen')
        I('s_mov_b64 exec, -1')
        stamp(f'p3_{layer}_atom')
    acc = P.alloc(16, 4)
    mf = []
    fill = {}
    for st in range(16):
        for i in range(4):
            def em(reg, st=st, i=i):
                d = v(acc + 4 * i, 4)
                I(f'v_mfma_f32_16x16x32_bf16 {d}, {wq_reg(0, st)}, {v(reg[(st, i)], 4)}, {"0" if st == 0 else d}')
            mf.append((em, [(st, i)]))
    if layer == 0 and '--prex2' in sys.argv:
        pcs = []
        for i in range(8):
            pcs.append([lambda i=i: I(f's_mov_b32 s{S_T1}, {hex(WS_X2[1] + 8192 * i)}'),
                        lambda: I(f'buffer_store_dword {v(V_L)}, {v(V_X2ST)}, {WS}, s{S_T1} offen sc1')])
        spread(fill, pcs, 6, 4, solo=False)
    if wl2:
        spread(fill, wl2, 4, 56 / len(wl2), solo=False)
    stream(mf, loader, 8, 6, fill=fill, rate=2, burst=10, pre=atomics)
    P.free(dkv, 4), P.free(dz, 4)
    stamp(f'p3_{layer}_qmm')
    I(f's_mov_b32 s{S_T0}, {hex(WS_PQ[layer])}')
    ta = P.alloc(4)
    for i in range(1, 4):
        I(f'v_xor_b32 {v(ta + i)}, {(i >> 1) * 32768 + (i & 1) * 512}, {v(V_PQST)}')
    for i in range(4):
        q_ = acc + 4 * i
        rr = v(r1 + 2 * i, 2)
        for j in (0, 2):
            pk('fma', v(tmp + j, 2), (rr, 'h', 'b'), (v(V_CSQ + j, 2), 'p'), (E6, 'p'))
        for j in (0, 2):
            pk('fma', v(q_ + j, 2), (v(q_ + j, 2), 'p'), (rr, 'l'), (v(tmp + j, 2), 'p'))
        phi(q_, tmp)
        for j in (0, 2):
            I(f'v_cvt_pk_bf16_f32 {v(q_ + j // 2)}, {v(q_ + j)}, {v(q_ + j + 1)}')
        I(f'buffer_store_dwordx2 {v(q_, 2)}, {v(ta + i if i else V_PQST)}, {WS}, s{S_T0} offen sc1', tag='pqst')
    stamp(f'p3_{layer}_q')
    P.free(r1, 8), P.free(tmp, 4), P.free(acc, 16), P.free(ta, 4)


P4_UP = int(([x[6:] for x in sys.argv if x.startswith('--p4up')] or ['3'])[0])


P4FL = '' if '--nosc1' in sys.argv else 'sc1'


OUTFL = ([x[6:] for x in sys.argv if x.startswith('--out=')] or [''])[0].replace('+', ' ')


P4_EARLY = [int(c) for c in ([x[8:] for x in sys.argv if x.startswith('--p4ear=')] or ['9'])[0]]


def p4_res():
    res = P.alloc(8, 2)
    for j in range(4):
        I(f'ds_read_b64_tr_b16 {v(res + 2 * j, 2)}, {v(V_RES[j & 1])} offset:{512 * j}')
    return res


def p4_pre(res, layer):
    I(f's_mov_b32 s{S_T1}, {hex(WS_KV[layer])}')
    I(f's_mov_b32 s{S_T2}, {hex(WS_PQ[layer])}')
    I(f's_mov_b32 s{S_T3}, {hex(WS_KV[layer] + 4096)}')
    I(f's_mov_b32 s{S_T4}, {hex(WS_PQ[layer] + 4096)}')
    acc = P.alloc(16, 2)
    ad = [P.alloc() for _ in range(3)]
    for b in range(1, 4):
        I(f'v_xor_b32 {v(ad[b - 1])}, {8192 * b}, {v(V_OFW)}')
    for j in range(8):
        I(f'v_lshlrev_b32 {v(acc + 2 * j)}, 16, {v(res + j)}')
        I(f'v_and_b32 {v(acc + 2 * j + 1)}, 0xffff0000, {v(res + j)}')
    P.free(res, 8)
    return acc, ad


def p4(layer, acc, ad):
    zf = P.alloc(4, 2)
    kv = P.alloc(32, 2)
    pq = P.alloc(32, 2)
    D = [P.alloc(16, 2), P.alloc(16, 2)]
    frs = [P.alloc(4, 2) for _ in range(6)]
    fr = frs[0]

    def loads(pp):
        out = []
        for j in range(2):
            out.append(f'buffer_load_dwordx4 {v(kv + 8 * pp + 4 * j, 4)}, {v(V_KVLD)}, {WS}, s{S_T3 if pp >> 1 else S_T1} offen offset:{2048 * (pp & 1) + 1024 * j} sc1')
        for j in range(2):
            out.append(f'buffer_load_dwordx4 {v(pq + 8 * pp + 4 * j, 4)}, {v(V_PQLD)}, {WS}, s{S_T4 if pp >> 1 else S_T2} offen offset:{2048 * (pp & 1) + 1024 * j} sc1')
        return out
    I(f'buffer_load_dwordx4 {v(fr, 4)}, {v(V_ZLD)}, {WS}, s{S_T1} offen sc1')
    for pp in range(P4_UP):
        for i, t in enumerate(loads(pp)):
            I(t)
            if pp == 0 and i == 1:
                A.barrier()
        if pp < P4_UP - 1:
            A.barrier()
    late = [t for pp in range(P4_UP, 4) for t in loads(pp)]
    stamp(f'p4_{layer}_iss')
    for j in range(4):
        I(f'v_cvt_pk_bf16_f32 {v(zf + j)}, {v(fr + 2 * (j & 1))}, {v(fr + 1 + 2 * (j & 1))}')
    stamp(f'p4_{layer}_z')
    MK = s(S_MASK, 2)

    def prep(pp):
        x = kv + 8 * pp
        o = [f'v_cvt_pk_bf16_f32 {v(x + j)}, {v(x + 2 * j)}, {v(x + 2 * j + 1)}' for j in range(4)]
        if pp == 0:
            o += [f'v_permlane16_swap_b32 {v(zf + j)}, {v(zf + 2 + j)}' for j in range(2)]
        o += [f'v_cndmask_b32 {v(x + 4 + j)}, {v(zf + j)}, {v(x + j)}, {MK}' for j in range(4)]
        o += [f'v_cndmask_b32 {v(x + j)}, {v(x + j)}, {v(zf + j)}, {MK}' for j in range(4)]
        return o

    def mm(hh):
        I(f'v_mfma_f32_32x32x16_bf16 {v(D[hh & 1], 16)}, {v(kv + 4 * hh, 4)}, {v(pq + 4 * hh, 4)}, 0')

    def main_mm(hl, r):
        I(f'v_mfma_f32_32x32x16_bf16 {v(acc, 16)}, {wo_reg(hl)}, {v(r, 4)}, {v(acc, 16)}')

    def norm(pp):
        den = [D[o] + 8 * (1 - o) + 2 * pp + o for o in range(2)]
        out = []
        for o in range(2):
            num = D[o] + 8 * o
            of = pq + 8 * pp + 4 * o
            out.append(f'v_add_f32 {v(den[o])}, s{S_E6}, {v(den[o])}')
            out.append(f'v_rcp_f32 {v(den[o])}, {v(den[o])}')
            out += [f'v_mul_f32 {v(num + j)}, {v(den[o])}, {v(num + j)}' for j in range(8)]
            out += [f'v_cvt_pk_bf16_f32 {v(of + j)}, {v(num + 2 * j)}, {v(num + 2 * j + 1)}' for j in range(4)]
            out.append(f'ds_write_b128 {v(V_OFW)}, {v(of, 4)} offset:{2048 * pp + 1024 * o}')
        out[2:2] = [out.pop(15), out.pop(15)]
        return out

    def reads(pp):
        return [f'ds_read_b128 {v(frs[2 * (b - 1) + o], 4)}, {v(ad[b - 1])} offset:{2048 * pp + 1024 * o}' for b in range(1, 4) for o in range(2)]
    for t in prep(0):
        I(t)
    for pp in range(5):
        rd = reads(pp - 1) if pp else []
        tail = []
        if pp:
            tail = [(2 * pp - 2 + o, pq + 8 * pp - 8 + 4 * o) for o in range(2)]
            tail += [(8 * b + 2 * pp - 2 + o, frs[2 * (b - 1) + o]) for b in range(1, 4) for o in range(2)]
        if pp < 4:
            for o in range(2):
                mm(2 * pp + o)
                for t in rd[3 * o:3 * o + 3]:
                    I(t)
            while late:
                I(late.pop(0))
            stamp(f'p4_{layer}_m{pp}')
            va = norm(pp)
            nx = prep(pp + 1) if pp < 3 else []
            if pp in P4_EARLY:
                va = nx[:4] + va + nx[4:]
                cuts = (0, 6, 11, 16, 20, 21, 27, 33)
            else:
                va = va + nx
                cuts = (0, 1, 6, 11, 16, 22, 29, 34) if pp < 3 else (0, 1, 7, 12, 16, 22, 29)
            for i, t in enumerate(va):
                if i in cuts and tail:
                    if len(tail) == 6:
                        A.need(v(frs[2], 4))
                    if len(tail) == 3:
                        A.need(v(frs[5], 4))
                    main_mm(*tail.pop(0))
                I(t)
            for x in tail:
                main_mm(*x)
            A.barrier()
        else:
            for i, x in enumerate(tail):
                for t in rd[2 * i:2 * i + 2]:
                    I(t)
                main_mm(*x)
    P.free(zf, 4), P.free(kv, 32), P.free(pq, 32), P.free(D[0], 16), P.free(D[1], 16)
    for r in frs:
        P.free(r, 4)
    for r in ad:
        P.free(r)
    stamp(f'p4_{layer}_mm')
    o = P.alloc(8, 2)
    if layer == 0:
        I(f's_mov_b32 s{S_T1}, {hex(WS_ST[1])}')
    else:
        ta = P.alloc(3)
        I(f'v_and_b32 {v(ta)}, 31, {v(V_L)}')
        I(f'v_mul_u32_u24 {v(ta)}, 272, {v(ta)}')
        I(f'v_and_b32 {v(ta + 1)}, 0xff, {v(V_TILE)}')
        I(f'v_add_u32 {v(ta)}, {v(ta)}, {v(ta + 1)}')
        I(f'v_lshrrev_b32 {v(ta + 1)}, 4, v0')
        I(f'v_readfirstlane_b32 s{S_T0}, {v(V_TILE)}')
        I(f'v_and_b32 {v(ta + 2)}, 0xf0, {v(V_L16)}')
        I(f's_and_b32 s{S_T0}, s{S_T0}, 0xffffff00')
        I(f'v_mad_u32_u24 {v(o)}, {v(ta + 1)}, 17, 0')
        I(f'v_lshl_add_u32 {v(ta + 1)}, {v(ta + 1)}, 10, s{S_T0}')
        I(f'v_add_u32 {v(ta + 1)}, {v(ta + 1)}, {v(ta + 2)}')
        I(f'v_lshl_add_u32 {v(ta + 2)}, {v(o)}, 4, {v(ta + 2)}')
    for j in range(8):
        I(f'v_cvt_pk_bf16_f32 {v(o + j)}, {v(acc + 2 * j)}, {v(acc + 2 * j + 1)}')
    if layer == 0:
        ss = P.alloc(2, 2)
        for j in range(8):
            I(f'v_dot2_f32_bf16 {v(ss)}, {v(o + j)}, s{S_ONES}, {v(ss) if j else 0}')
            I(f'v_dot2_f32_bf16 {v(ss + 1)}, {v(o + j)}, {v(o + j)}, {v(ss + 1) if j else 0}')
        I(f'v_permlane32_swap_b32 {v(ss)}, {v(ss + 1)}')
        I(f'v_add_f32 {v(ss)}, {v(ss)}, {v(ss + 1)}')
        I(f'buffer_atomic_add_f32 {v(ss)}, {v(V_STAT)}, {WS}, s{S_T1} offen')
        x2store(1, o)
        P.free(ss, 2)
    elif '--dirout' in sys.argv:
        for j in range(2):
            I(f'global_store_dwordx4 {v(V_TILE)}, {v(o + 4 * j, 4)}, {s(S_OUT, 2)} offset:{16 * j} {OUTFL}')
        P.free(ta, 3)
    else:
        for j in range(2):
            I(f'ds_write_b128 {v(ta)}, {v(o + 4 * j, 4)} offset:{L_A + 16 * j}')
        I(f'v_add_u32 {v(ta)}, 16384, {v(ta + 1)}')
        A.barrier()
        for j in range(2):
            I(f'ds_read_b128 {v(o + 4 * j, 4)}, {v(ta + 2)} offset:{L_A + 16 * 272 * j}')
        for j in range(2):
            I(f'global_store_dwordx4 {v(ta + 1 - j)}, {v(o + 4 * j, 4)}, {s(S_OUT, 2)} {OUTFL}')
        P.free(ta, 3)
    P.free(o, 8), P.free(acc, 16)
    stamp(f'p4_{layer}_st')


def main():
    kg, gi, fin = prologue()
    kg['fin'] = fin
    order = [('q', y, st) for st in range(16) for y in (1, 2)] + [('q', 0, st) for st in range(16)] + [('o', h) for h in range(32)]
    wl = wloads(order)

    def take(n):
        out = wl[:n]
        del wl[:n]
        return out
    bar = 1
    for layer in range(2):
        I(f's_lshl_b32 s{S_T3}, s2, 13')
        I(f's_add_u32 s{S_T3}, s{S_T3}, {hex(WS_X2[layer])}')
        I(f's_mov_b32 s{S_T1}, {hex(WS_ST[layer])}')
        I(f's_mov_b32 s{S_T2}, {hex(WS_ST[layer] + 8192)}')
        stamp(f'pre_wait{bar}')
        global_wait(bar, started=(layer == 0))
        stamp(f'wait{bar}')
        conv(layer, kg, gi, take(WN[0]))
        if SPEC:
            poll_start(bar + 1)
        if layer == 0:
            for th in take(WN[1]):
                run_all(th)
            if not LATE_IN:
                setup_late()
        if not SPEC:
            A.wait_vm('xtst')
            global_arrive()
        bar += 1
        stamp(f'arr{bar}')
        if layer == 0:
            for th in take(WN[2]):
                run_all(th)
        if not SPEC:
            poll_start(bar)
        if layer == 0 and not CS_C0:
            colsums([1, 2])
        stamp(f'pre_wait{bar}')
        I(f's_mov_b32 s{S_REDO}, s{S_W}')
        global_wait(bar, started=True, gap=True)
        stamp(f'wait{bar}')
        p3(layer, take(WN[3]), take(WN[4]))
        for th in take(WN[5]):
            run_all(th)
        A.wait_vm('pqst')
        global_arrive()
        bar += 1
        stamp(f'arr{bar}')
        for th in take(99):
            run_all(th)
        if layer == 0:
            P.free(V_WLD, 2)
        poll_start(bar)
        acc, ad = p4_pre(p4_res(), layer)
        global_wait(bar, started=True)
        stamp(f'wait{bar}')
        p4(layer, acc, ad)
        if layer == 0:
            A.wait_vm()
            global_arrive()
            bar += 1
    if DIAG:
        A.wait_vm()
        stamp('end')
        A._wait(lg=0)
        t = P.alloc(2)
        I(f's_lshl_b32 s{S_T0}, s2, 2')
        I(f's_add_u32 s{S_T0}, s{S_T0}, s{S_W}')
        I(f's_lshl_b32 s{S_T0}, s{S_T0}, 7')
        I(f's_add_u32 s{S_T0}, s{S_T0}, {hex(WS_DIAG)}')
        I(f'v_mov_b32 {v(t + 1)}, 0')
        I('s_mov_b64 exec, 1')
        for k in range(nstamp[0]):
            I(f'v_mov_b32 {v(t)}, s{S_STAMP + 2 * k}')
            I(f'buffer_store_dword {v(t)}, {v(t + 1)}, {WS}, s{S_T0} offen offset:{4 * k}')
        pr = [x for x in sys.argv if x.startswith('--probe=')]
        if pr:
            nm = pr[0][8:]
            if ':' in nm:
                a_, b_ = [stamp_names.index(x) for x in nm.split(':')]
                I(f's_sub_u32 s{S_T1}, s{S_STAMP + 2 * b_}, s{S_STAMP + 2 * a_}')
                I(f's_mul_i32 s{S_T1}, s{S_T1}, 10')
                I(f's_cmp_eq_u32 s2, {([x[6:] for x in sys.argv if x.startswith("--pwg=")] or [100])[0]}')
                I(f's_cselect_b32 s{S_T1}, s{S_T1}, 0')
                I(f's_add_u32 s{S_T1}, s{S_T1}, s{S_STAMP}')
                I(f's_add_u32 s{S_T1}, s{S_T1}, 6000')
            else:
                k = stamp_names.index(nm)
                I(f's_add_u32 s{S_T1}, s{S_STAMP + 2 * k}, 6000')
            A.label('L_probe')
            I('s_memrealtime s[4:5]')
            A._wait(lg=0)
            I(f's_sub_u32 s{S_T0}, s4, s{S_T1}')
            I(f's_cmp_lt_i32 s{S_T0}, 0')
            I('s_cbranch_scc1 L_probe')
        I(f's_lshl_b32 s{S_T0}, s2, 2')
        I(f's_add_u32 s{S_T0}, s{S_T0}, s{S_W}')
        I(f's_cmp_lg_u32 s{S_T0}, 400')
        I('s_cbranch_scc1 L_end')
        sel = list(range(1, nstamp[0]))
        for j, k in enumerate(sel):
            I(f's_sub_u32 s{S_T0}, s{S_STAMP + 2 * k}, s{S_STAMP}')
            I(f'v_mov_b32 {v(t)}, s{S_T0}')
            I(f'global_store_dword {v(t + 1)}, {v(t)}, {s(S_DBG, 2)} offset:{4 * (j + 1)}')
        print('debug stamps:', [stamp_names[k] for k in sel], file=sys.stderr)
        P.free(t, 2)
    A.label('L_end')
    A.raw('    s_endpgm')
    A.raw('#seg -')
    for layer in range(2 if SPEC else 0):
        raw = lambda t: A._emit(Ins(t))
        A.label(f'L_slow{layer}')
        raw(f's_cmp_ge_u32 s{S_REDO}, 12')
        raw(f's_cbranch_scc1 L_ok{layer}')
        raw(f's_add_u32 s{S_REDO}, s{S_REDO}, 4')
        raw('s_waitcnt vmcnt(0) lgkmcnt(0)')
        raw(f's_cmp_lg_u32 s{S_W}, 0')
        raw(f's_cbranch_scc1 L_slowb{layer}')
        if DIAG:
            raw(f'v_mov_b32 {v(V_PA)}, 1')
            raw(f'v_mov_b32 {v(V_PA + 1)}, 0')
            raw('s_mov_b64 exec, 1')
            raw(f'global_atomic_add {v(V_PA + 1)}, {v(V_PA)}, {s(S_DBG, 2)} offset:{128 + 4 * layer}')
        raw(f's_mov_b32 s{S_SPIN}, 0x100000')
        raw(f's_mov_b32 s{S_T0}, {hex(WS_FB)}')
        raw(f's_movk_i32 s{S_T1}, {32 * (layer + 1)}')
        raw('s_mov_b64 exec, 0xff')
        raw(f'v_lshlrev_b32 {v(V_PA + 1)}, 7, {v(V_L)}')
        A.label(f'L_slowp{layer}')
        raw(f'v_mov_b32 {v(V_PA)}, 0')
        raw(f'buffer_atomic_add {v(V_PA)}, {v(V_PA + 1)}, {WS}, s{S_T0} offen sc0')
        raw(f's_sub_u32 s{S_SPIN}, s{S_SPIN}, 1')
        raw(f's_cbranch_scc1 L_slowd{layer}')
        raw('s_waitcnt vmcnt(0)')
        raw(f'v_cmp_gt_u32 vcc, s{S_T1}, {v(V_PA)}')
        raw(f's_cbranch_vccnz L_slowp{layer}')
        A.label(f'L_slowd{layer}')
        raw('s_mov_b64 exec, -1')
        raw('s_waitcnt vmcnt(0)')
        A.label(f'L_slowb{layer}')
        raw('s_barrier')
        raw(f's_branch L_redo{layer}')

    lines, info = layout(A.out, align='--noalign' not in sys.argv, touch='--notouch' not in sys.argv)
    body = '\n'.join(lines) + '\n'
    print(info, file=sys.stderr)
    ref = open(f'cdna_kernels/{NAME}.s.ref').read().splitlines()
    head = []
    for ln in ref:
        if ln.startswith('; @launch'):
            head.append(f'; @launch grid=(256,1,1) block=(256,1,1) lds={L_END}')
            break
        head.append(ln)
    txt = '\n'.join(head) + f'''
.amdgcn_target "amdgcn-amd-amdhsa--gfx950"
.text
.globl {NAME}_kernel
.p2align 12
.p2align 8
.type {NAME}_kernel,@function
{NAME}_kernel:
''' + body + f'''.section .rodata,"a"
.p2align 6
.amdhsa_kernel {NAME}_kernel
  .amdhsa_next_free_vgpr 512
  .amdhsa_next_free_sgpr 102
  .amdhsa_accum_offset 256
  .amdhsa_group_segment_fixed_size 0
  .amdhsa_kernarg_size 120
  .amdhsa_user_sgpr_count 2
  .amdhsa_user_sgpr_kernarg_segment_ptr 1
  .amdhsa_system_sgpr_workgroup_id_x 1
.end_amdhsa_kernel
'''
    out = [x for x in sys.argv[1:] if not x.startswith('--')]
    path = out[0] if out else f'cdna_kernels/{NAME}.s'
    open(path, 'w').write(txt)
    if DIAG:
        open(path + '.stamps', 'w').write('\n'.join(stamp_names))
    print(f'wrote {path}: {A.ninstr} instrs, {A.nnop} nop states, vgpr peak {P.peak}, lds {L_END}', file=sys.stderr)


main()
```

```python
import sys, struct, math
from emit import *
from layout import layout

NAME = 'interleave_layers__ssm_conv_s4__linear_attn_block__prompt'
DIAG = '--diag' in sys.argv


def f32(x):
    return '0x%08x' % struct.unpack('<I', struct.pack('<f', x))[0]


WS_CNT = 0x0
WS_ZERO = 0x10000
WS_KV = [WS_ZERO, WS_ZERO + 0xC000]
WS_ST = [0x30000, WS_ZERO + 0x18000]
WS_FB = WS_ZERO + 0x1C000
WS_DIAG = 0x40000
WS_X2 = [0x200000, 0x400000]
WS_XT = [0x600000, 0x800000]
WS_PQ = [0xA00000, 0xC00000]
WS_WT = 0xE00000
WS_WTO = WS_WT + 0x180000
WS_SIZE = 0x1000000

L_A = 0
L_B = 65536
L_RK = 131072
L_H = L_RK + 4 * 4160
L_STAT = L_H + 2 * 4608
L_END = L_STAT + 512
KG_ARR = 18
KG_POLL = 36
KG_ROW = 288
KG_W = 54 * KG_ROW

S_U, S_ARE, S_AIM, S_BRE, S_BIM, S_CRE, S_CIM, S_LDT, S_DSK = 4, 6, 8, 10, 12, 14, 16, 18, 20
S_WQKV, S_WO, S_OUT, S_DBG, S_WS = 24, 26, 28, 30, 32
R_WS, R_WQ, R_WO = 36, 40, 44
S_W, S_RB, S_CG, S_NB, S_TH = 48, 49, 50, 51, 52
S_T0, S_T1, S_T2 = 53, 54, 55
S_D = 56
S_MASK = 58
S_ONES = 60
S_SPIN = 61
S_LN = 62
S_EXP = 64
S_E6 = 66
S_T3, S_T4 = 68, 69
S_STAMP = 70
S_REDO = 47
S_W17 = 3
S_M1, S_M2 = 22, 34

A = Asm()
I = A.I
P = Pool(1, 192)
P.force4 = '--al4' in sys.argv
WS = s(R_WS, 4)
nstamp = [0]
stamp_names = []


STSEL = [x[5:].split(',') for x in sys.argv if x.startswith('--st=')]
STSEL = STSEL[0] if STSEL else None


def stamp(name, fine=False):
    if not DIAG:
        return
    if name not in ('entry', 'end'):
        if STSEL is None:
            if fine or not name.startswith(('wait', 'arr')):
                return
        elif not any(name.startswith(p) for p in STSEL):
            return
    k = nstamp[0]
    assert k < 16, 'too many stamps'
    I(f'{"s_memtime" if "--cyc" in sys.argv else "s_memrealtime"} s[{S_STAMP + 2 * k}:{S_STAMP + 2 * k + 1}]')
    stamp_names.append(name)
    nstamp[0] += 1


def pk(op, dst, *srcs):
    sel, selhi, nlo, nhi, txt = [], [], [], [], []
    for sr in srcs:
        t, m = sr[0], sr[1]
        ng = sr[2] if len(sr) > 2 else ''
        txt.append(t)
        sel.append(1 if m in 'hx' else 0)
        selhi.append(1 if m in 'ph' else 0)
        nlo.append(1 if ng in ('l', 'b') else 0)
        nhi.append(1 if ng in ('h', 'b') else 0)
    f = lambda l: '[' + ','.join(map(str, l)) + ']'
    line = f'v_pk_{op}_f32 {dst}, ' + ', '.join(txt) + f' op_sel:{f(sel)} op_sel_hi:{f(selhi)}'
    if any(nlo):
        line += f' neg_lo:{f(nlo)}'
    if any(nhi):
        line += f' neg_hi:{f(nhi)}'
    I(line)


def bc(r):
    return (v(r & ~1, 2), 'h' if r & 1 else 'l')


def cmul(d, x, y, tmp):
    pk('mul', v(tmp, 2), (v(x, 2), 'l'), (v(y, 2), 'p'))
    pk('fma', v(d, 2), (v(x, 2), 'h', 'l'), (v(y, 2), 'x'), (v(tmp, 2), 'p'))


def wq_reg(y, st):
    return a((y * 16 + st) * 4, 4)


def wo_reg(h, n=4, off=0):
    if h < 16:
        return a(192 + 4 * h + off, n)
    return v(192 + 4 * (h - 16) + off, n)


V_L = P.alloc()
V_L16 = P.alloc()
V_XT = [P.alloc() for _ in range(4)]
V_TILE = P.alloc()
V_X2ST = P.alloc()
V_STAT = P.alloc()
V_CVL = P.alloc()
V_HW = P.alloc()
V_CA = [P.alloc() for _ in range(4)]
V_CB = P.alloc()
V_EXW = P.alloc()
V_EXR = P.alloc()
V_XTST = P.alloc()
V_XTLD = P.alloc()
V_PQST = P.alloc()
V_KVST = P.alloc()
V_ZST = P.alloc()
V_PQLD = P.alloc()
V_KVLD = P.alloc()
V_ZLD = P.alloc()
V_OFW = P.alloc()
V_RES = [P.alloc(), P.alloc()]
V_SW = P.alloc()
V_SR4 = P.alloc()
V_SR1 = V_SW
V_ARR = P.alloc()
V_POLL = P.alloc()
V_PA = P.alloc(2)
V_WLD = P.alloc(2)
POLL_GAP = 4
V_CSKV = P.alloc(2)
V_CSQ = P.alloc(4)
V_ONES = P.alloc(4)


def global_arrive(first=None, bar=True, lg=True):
    if bar:
        A.barrier(lg=lg and not first)
    lab = f'L_arr{global_arrive.n}'
    global_arrive.n += 1
    I(f's_cmp_lg_u32 s{S_W}, 0')
    I(f's_cbranch_scc1 {lab}')
    t = P.alloc()
    if first:
        flag, zero = first
        I(f's_mov_b32 s{S_SPIN}, 0x200000')
        A.label(lab + '_init')
        I(f'v_readfirstlane_b32 s{S_T0}, {v(flag)}')
        I(f's_sub_u32 s{S_SPIN}, s{S_SPIN}, 1')
        I(f's_cbranch_scc1 {lab}_go')
        I(f's_cmp_lg_u32 s{S_T0}, 0')
        I(f's_cbranch_scc1 {lab}_go')
        A.cond = True
        I(f'global_load_dword {v(flag)}, {v(zero)}, {s(S_DBG, 2)} sc1')
        A.cond = False
        A._wait(vm=0)
        A.vm.pop()
        I(f's_branch {lab}_init')
        A.label(lab + '_go')
    I(f'v_mov_b32 {v(t)}, 1')
    I('s_mov_b32 exec_hi, 0')
    A.cond = True
    I(f'buffer_atomic_add {v(t)}, {v(V_ARR)}, {WS}, 0 offen')
    A.cond = False
    I('s_mov_b64 exec, -1')
    P.free(t)
    A.label(lab)


global_arrive.n = 0


WLATE = int(([x[8:] for x in sys.argv if x.startswith('--wlate=')] or ['0'])[0])
W1B = '--w1b' in sys.argv
W1B_GAP = int(([x[6:] for x in sys.argv if x.startswith('--g1b=')] or ['14'])[0])


def arrive_1b():
    I(f's_cmp_lg_u32 s{S_W}, 1')
    I('s_cbranch_scc1 L_arr1b')
    A._emit(Ins(f'v_mov_b32 {v(V_PA)}, 0x10000'))
    I('s_mov_b32 exec_hi, 0')
    A.cond = True
    I(f'buffer_atomic_add {v(V_PA)}, {v(V_ARR)}, {WS}, 0 offen')
    A.cond = False
    I('s_mov_b64 exec, -1')
    A.label('L_arr1b')


def wait_1b(nyounger):
    raw = lambda t: A._emit(Ins(t))
    I(f's_cmp_lg_u32 s{S_W}, 0')
    I('s_cbranch_scc1 L_w1b')
    I('s_mov_b64 exec, 0xff')
    I(f's_mov_b32 s{S_SPIN}, 0x200000')
    raw(f's_waitcnt vmcnt({nyounger})')
    raw(f'v_cmp_gt_u32 vcc, s{S_SPIN}, {v(V_PA)}')
    raw('s_cbranch_vccz L_w1b_done')
    I(f's_mov_b32 s{S_REDO}, 0x100000')
    A.label('L_w1b_poll')
    _poll(V_PA)
    raw(f's_sub_u32 s{S_REDO}, s{S_REDO}, 1')
    raw('s_cbranch_scc1 L_w1b_done')
    raw('s_waitcnt vmcnt(0)')
    raw(f'v_cmp_gt_u32 vcc, s{S_SPIN}, {v(V_PA)}')
    raw('s_cbranch_vccnz L_w1b_poll')
    A.label('L_w1b_done')
    I('s_mov_b64 exec, -1')
    A.label('L_w1b')
    A.barrier(lg=False)


def _poll(r):
    A._emit(Ins(f'v_mov_b32 {v(r)}, 0'))
    A._emit(Ins(f'buffer_atomic_add {v(r)}, {v(V_POLL)}, {WS}, 0 offen sc0'))


def poll_start(k):
    lab = f'L_ps{k}'
    I(f's_cmp_lg_u32 s{S_W}, 0')
    I(f's_cbranch_scc1 {lab}')
    I('s_mov_b64 exec, 0xff')
    _poll(V_PA)
    I('s_mov_b64 exec, -1')
    A.label(lab)
    A.vm.append(dict(defs=set(), tag=None, cond=True))


def global_wait(k, started=False, gap=False):
    lab = f'L_wait{k}'
    I(f's_cmp_lg_u32 s{S_W}, 0')
    I(f's_cbranch_scc0 {lab}_w0')
    A.raw(f'#touch s{k}')
    I(f's_branch {lab}')
    A.label(lab + '_w0')
    pa, pb = V_PA, V_PA + 1
    raw = lambda t: A._emit(Ins(t))
    I('s_mov_b64 exec, 0xff')
    if not started:
        _poll(pa)
    I(f's_mov_b32 s{S_SPIN}, 0x100000')
    I(f's_mov_b32 s{S_T0}, {hex(32 * k + (0x200000 if W1B and k > 1 else 0))}')
    msk = (lambda r: raw(f'v_and_b32 {v(r)}, 0xffff, {v(r)}')) if W1B and k == 1 else (lambda r: None)
    if not started or gap:
        raw(f's_sleep {POLL_GAP}')
    A.label(lab + '_poll')
    _poll(pb)
    raw('s_waitcnt vmcnt(1)')
    msk(pa)
    raw(f'v_cmp_gt_u32 vcc, s{S_T0}, {v(pa)}')
    raw(f's_cbranch_vccz {lab}_done')
    _poll(pa)
    raw(f's_sub_u32 s{S_SPIN}, s{S_SPIN}, 1')
    raw(f's_cbranch_scc1 {lab}_done')
    raw('s_waitcnt vmcnt(1)')
    msk(pb)
    raw(f'v_cmp_gt_u32 vcc, s{S_T0}, {v(pb)}')
    raw(f's_cbranch_vccnz {lab}_poll')
    A.label(lab + '_done')
    I('s_mov_b64 exec, -1')
    A.vm.append(dict(defs=set(), tag=None, cond=True))
    A.label(lab)
    A.raw(f'#seg s{k}')
    A.barrier()


WIL = '--nowil' not in sys.argv


def wloads(frags):
    out = []
    for f in frags:
        if f[0] == 'q':
            off, reg, va = WS_WT + (f[1] * 16 + f[2]) * (32768 if WIL else 1024), wq_reg(f[1], f[2]), V_WLD
        else:
            off, reg, va = WS_WTO + f[1] * (16384 if WIL else 1024), wo_reg(f[1]), V_WLD + 1
        th = []
        grp = off & ~4095
        so = S_T4 if f[:2] == ('q', 2) else S_T3
        if wloads.cur.get(so) != grp:
            if f[0] == 'o':
                assert WIL
                th.append(lambda grp=grp, so=so: I(f's_xor_b32 s{so}, s{S_W17}, {hex(grp)}'))
            else:
                th.append(lambda grp=grp, so=so: I(f's_mov_b32 s{so}, {hex(grp)}'))
            wloads.cur[so] = grp

        def ld(off=off, reg=reg, va=va, so=so):
            I(f'buffer_load_dwordx4 {reg}, {v(va)}, {WS}, s{so} offen offset:{off & 4095} sc1')
        ld.lds = True
        th.append(ld)
        out.append(th)
    return out


wloads.cur = {}


def run_all(th):
    for t in th:
        t()


def spread(fill, pieces, start, step, solo=True):
    for i, th in enumerate(pieces):
        at = start + int(i * step)
        for j, t in enumerate(th):
            f = lambda reg, t=t: t()
            f.lds = getattr(t, 'lds', False) and solo
            fill.setdefault(max(0, at - (len(th) - 1 - j)), []).append(f)


def colsums(ys):
    d = {y: V_CSQ if y == 0 else P.alloc(4, 2) for y in ys}
    for y in ys:
        for st in range(16):
            c = '0' if st == 0 else v(d[y], 4)
            if y == 0:
                I(f'v_mfma_f32_16x16x32_bf16 {v(d[y], 4)}, {wq_reg(y, st)}, {v(V_ONES, 4)}, {c}')
            else:
                I(f'v_mfma_f32_16x16x32_bf16 {v(d[y], 4)}, {v(V_ONES, 4)}, {wq_reg(y, st)}, {c}')
    for y in ys:
        if y:
            I(f'v_mov_b32 {v(V_CSKV + y - 1)}, {v(d[y])}')
            P.free(d[y], 4)


def stream(mf, loader, nslots, look, fill=None, gate=None, rate=1, burst=9, pre=None):
    fill = fill or {}
    gate = gate or {}
    first, last, order = {}, {}, []
    for m, (_, keys) in enumerate(mf):
        for k in keys:
            if k not in first:
                first[k] = m
                order.append(k)
            last[k] = m
    slots = [P.alloc(4, 2) for _ in range(nslots)]
    free = list(slots)
    reg = {}
    pend = []
    nxt = [0]

    def start_key():
        k = order[nxt[0]]
        nxt[0] += 1
        if k in gate:
            gate[k]()
        reg[k] = free.pop(0)
        pend.extend(loader(k, reg[k]))

    def issue(n, m, force=False):
        while n > 0:
            if not pend:
                if nxt[0] >= len(order) or not free:
                    return
                if first[order[nxt[0]]] > m + look:
                    return
                start_key()
            I(pend.pop(0))
            n -= 1

    issue(burst, -1)
    if pre:
        pre()
    for m, (em, keys) in enumerate(mf):
        while any(k not in reg for k in keys) or (pend and order[nxt[0] - 1] in keys):
            assert pend or free, 'no free slot'
            if not pend:
                start_key()
            I(pend.pop(0))
        em(reg)
        for k in keys:
            if last[k] == m:
                free.append(reg[k])
        fl = fill.get(m, [])
        solo = any(getattr(th, 'lds', False) for th in fl)
        if not solo:
            issue(1, m)
        for th in fl:
            th(reg)
        if rate > 1 and not solo:
            if m + 1 < len(mf):
                nk = mf[m + 1][1]
                if all(k in reg for k in nk) and not (pend and order[nxt[0] - 1] in nk):
                    A.need(', '.join(v(reg[k], 4) for k in nk))
            issue(rate - 1, m)
    for r in slots:
        P.free(r, 4)


ORDER = int(([x[8:] for x in sys.argv if x.startswith('--order=')] or ['8'])[0])


WPF = int(([x[6:] for x in sys.argv if x.startswith('--wpf=')] or ['2'])[0])


WN = [int(x) for x in ([x[5:] for x in sys.argv if x.startswith('--wn=')] or ['24,8,0,24,0,8'])[0].split(',')]
assert sum(WN[:3]) >= 32 and sum(WN[:4]) >= 48
W_C0 = 16
W_CSTEP = 112 / WN[0]
LATE_IN = '--nolatein' not in sys.argv
CS_C0 = '--nocsc0' not in sys.argv


SPEC = int(([x[7:] for x in sys.argv if x.startswith('--spec=')] or ['1'])[0])


def xt_poison(layer, t):
    out = []
    for i in range(2):
        for c in range(2):
            th = []
            if i == 0 and c == 0:
                th += [lambda j=j: I(f'v_mov_b32 {v(t + j)}, -1') for j in range(2)]
            if c == 0:
                th.append(lambda i=i: I(f's_mov_b32 s{S_T2}, {hex(WS_XT[layer] + 262144 * i)}'))

            def st(c=c):
                I(f'buffer_store_dwordx2 {v(t, 2)}, {v(V_XTST)}, {WS}, s{S_T2} offen offset:{128 * c} sc1', tag='poison')
            st.lds = True
            th.append(st)
            out.append(th)
    return out


class Capture:
    def __enter__(self):
        global I
        self.lines = []
        self.old = I
        I = lambda t, tag=None: self.lines.append(t)
        return self.lines

    def __exit__(self, *a):
        global I
        I = self.old


XPF = int(([x[6:] for x in sys.argv if x.startswith('--xpf=')] or ['0'])[0])
XPF2 = '--xpf2' in sys.argv


NTSEL = ([x[5:] for x in sys.argv if x.startswith('--nt=')] or ['abpw'])[0]
NT = lambda c: ' nt' if c in NTSEL else ''


def lane_fields():
    f = [P.alloc() for _ in range(5)]
    I(f'v_and_b32 {v(f[0])}, 15, {v(V_L)}')
    I(f'v_lshrrev_b32 {v(f[1])}, 4, {v(V_L)}')
    I(f'v_lshrrev_b32 {v(f[2])}, 5, {v(V_L)}')
    return f


def setup_conv(va_, vg, x0, x1):
    I(f'v_lshl_add_u32 {v(V_CVL)}, s{S_W}, 11, {v(V_L16)}')
    I(f'v_lshrrev_b32 {v(V_HW)}, 1, {v(V_CVL)}')
    I(f'v_add_u32 {v(V_HW)}, {L_H + 512}, {v(V_HW)}')
    I(f's_lshr_b32 s{S_T0}, s{S_W}, 1')
    I(f's_and_b32 s{S_T1}, s{S_W}, 1')
    I(f's_mul_i32 s{S_T3}, s{S_T0}, 4608')
    I(f's_lshl_b32 s{S_T4}, s{S_T1}, 8')
    I(f's_sub_u32 s{S_T3}, s{S_T3}, s{S_T4}')
    I(f's_add_u32 s{S_T3}, s{S_T3}, {L_H + 512 - 32 - 192}')
    I(f'v_lshl_add_u32 {v(V_CB)}, {v(va_)}, 5, s{S_T3}')
    I(f'v_lshl_add_u32 {v(V_CB)}, {v(vg)}, 4, {v(V_CB)}')
    I(f's_mul_i32 s{S_T3}, s{S_T0}, 8320')
    I(f's_sub_u32 s{S_T3}, s{S_T3}, s{S_T4}')
    I(f's_add_u32 s{S_T3}, s{S_T3}, {L_RK + 4160 + 4 * (1015 - 176)}')
    I(f'v_and_b32 {v(x0)}, 1, {v(va_)}')
    I(f'v_mul_u32_u24 {v(x0)}, 4160, {v(x0)}')
    I(f'v_lshrrev_b32 {v(x1)}, 1, {v(va_)}')
    I(f'v_lshl_add_u32 {v(x0)}, {v(x1)}, 2, {v(x0)}')
    I(f'v_lshl_add_u32 {v(x1)}, {v(vg)}, 4, s{S_T3}')
    I(f'v_sub_u32 {v(V_CA[0])}, {v(x1)}, {v(x0)}')
    for i in range(1, 4):
        I(f'v_subrev_u32 {v(V_CA[i])}, {1024 * i}, {v(V_CA[0])}')
    I(f's_mul_i32 s{S_T3}, s{S_W}, 10240')
    I(f's_add_u32 s{S_T3}, s{S_T3}, {L_B}')
    I(f'v_lshl_add_u32 {v(V_EXW)}, {v(vg)}, 6, s{S_T3}')
    I(f'v_add_u32 {v(V_EXW)}, {v(V_EXW)}, {v(V_L16)}')
    I(f's_mul_i32 s{S_T3}, s{S_W}, 2560')
    I(f's_add_u32 s{S_T3}, s{S_T3}, {L_B}')
    I(f'v_and_b32 {v(x0)}, 3, {v(V_L)}')
    I(f'v_mul_u32_u24 {v(V_EXR)}, 316, {v(x0)}')
    I(f'v_lshl_add_u32 {v(V_EXR)}, {v(V_L)}, 2, {v(V_EXR)}')
    I(f'v_add_u32 {v(V_EXR)}, s{S_T3}, {v(V_EXR)}')
    I(f's_lshl_b32 s{S_T3}, s{S_W}, 19')
    I(f's_lshl_b32 s{S_T4}, s2, 8')
    I(f's_add_u32 s{S_T3}, s{S_T3}, s{S_T4}')
    I(f'v_lshl_add_u32 {v(V_XTST)}, {v(vg)}, 16, s{S_T3}')
    I(f'v_lshl_add_u32 {v(V_XTST)}, {v(va_)}, 3, {v(V_XTST)}')
    I(f's_and_b32 s{S_T4}, s2, 3')
    I(f's_lshl_b32 s{S_T4}, s{S_T4}, 5')
    I(f'v_xor_b32 {v(V_XTST)}, s{S_T4}, {v(V_XTST)}')
    I(f's_lshl_b32 s{S_T3}, s{S_CG}, 2')
    I(f's_add_u32 s{S_T3}, s{S_T3}, s{S_W}')
    I(f's_mul_i32 s{S_T3}, s{S_T3}, {1024 if WIL else 49152}')
    I(f'v_add_u32 {v(V_WLD)}, s{S_T3}, {v(V_L16)}')
    I(f's_mov_b32 s{S_LN}, {f32(1 / 512)}')
    I(f's_mov_b32 s{S_LN + 1}, {f32(1e-5)}')


def setup_late(free=True):
    va_, vg, vhi, x0, x1 = f = lane_fields()
    T3, T4 = S_T0, S_T1
    for j in range(2):
        I(f's_mov_b32 s{S_MASK + j}, 0xffff0000')
        I(f's_mov_b32 s{S_M1 + j}, 0xaaaaaaaa')
        I(f's_mov_b32 s{S_M2 + j}, 0xcccccccc')
        I(f's_mov_b32 s{S_E6 + j}, {f32(1e-6)}')
    I(f's_mov_b32 s{S_EXP + 1}, {f32(-1e-6 * math.log2(math.e))}')
    I(f'v_lshrrev_b32 {v(x0)}, 2, {v(V_L)}')
    I(f'v_lshlrev_b32 {v(V_XT[0])}, 7, {v(x0)}')
    I(f'v_bfe_u32 {v(x0)}, {v(V_L)}, 3, 2')
    I(f'v_xor_b32 {v(x0)}, s{S_W}, {v(x0)}')
    I(f'v_lshl_add_u32 {v(V_XT[0])}, {v(x0)}, 5, {v(V_XT[0])}')
    I(f'v_and_b32 {v(x0)}, 3, {v(V_L)}')
    I(f'v_lshl_add_u32 {v(V_XT[0])}, {v(x0)}, 3, {v(V_XT[0])}')
    for i in range(1, 4):
        I(f'v_xor_b32 {v(V_XT[i])}, {32 * i}, {v(V_XT[0])}')
    I(f'v_and_b32 {v(V_STAT)}, 0x1fff, {v(V_X2ST)}')
    I(f'v_lshl_add_u32 {v(V_STAT)}, {v(vhi)}, 13, {v(V_STAT)}')
    I(f's_lshl_b32 s{T3}, s{S_RB}, 16')
    I(f's_lshl_b32 s{T4}, s{S_W}, 12')
    I(f's_add_u32 s{T3}, s{T3}, s{T4}')
    I(f'v_add_u32 {v(V_XTLD)}, s{T3}, {v(V_L16)}')
    I(f's_lshl_b32 s{T4}, s{S_CG}, 2')
    I(f's_add_u32 s{T4}, s{T4}, s{S_W}')
    I(f's_lshl_b32 s{T4}, s{T4}, 10')
    I(f's_lshl_b32 s{T3}, s{S_RB}, 16')
    I(f's_add_u32 s{T3}, s{T3}, s{T4}')
    I(f'v_lshl_add_u32 {v(V_PQST)}, {v(va_)}, 5, s{T3}')
    I(f'v_lshl_add_u32 {v(V_PQST)}, {v(vg)}, 3, {v(V_PQST)}')
    I(f's_lshr_b32 s{T3}, s{S_W}, 1')
    I(f'v_lshl_add_u32 {v(V_PQST)}, s{T3}, 15, {v(V_PQST)}')
    I(f's_and_b32 s{T3}, s{S_W}, 1')
    I(f'v_lshl_add_u32 {v(V_PQST)}, s{T3}, 9, {v(V_PQST)}')
    I(f's_mul_i32 s{T3}, s{T3}, 768')
    I(f's_sub_u32 s{T3}, s{T4}, s{T3}')
    I(f'v_lshl_add_u32 {v(V_KVST)}, {v(vg)}, 4, s{T3}')
    I(f'v_and_b32 {v(x0)}, 3, {v(va_)}')
    I(f'v_lshl_add_u32 {v(V_KVST)}, {v(x0)}, 2, {v(V_KVST)}')
    I(f'v_bfe_u32 {v(x0)}, {v(va_)}, 2, 1')
    I(f'v_lshl_add_u32 {v(V_KVST)}, {v(x0)}, 10, {v(V_KVST)}')
    I(f'v_lshrrev_b32 {v(x0)}, 3, {v(va_)}')
    I(f'v_lshl_add_u32 {v(V_KVST)}, {v(x0)}, 9, {v(V_KVST)}')
    I(f's_lshr_b32 s{T3}, s{T4}, 4')
    I(f'v_lshl_add_u32 {v(V_ZST)}, {v(V_L)}, 2, s{T3}')
    I(f's_lshl_b32 s{T3}, s{S_RB}, 1')
    I(f's_add_u32 s{T3}, s{T3}, s{S_TH}')
    I(f's_lshl_b32 s{T3}, s{T3}, 15')
    I(f's_lshl_b32 s{T4}, s{S_W}, 13')
    I(f's_add_u32 s{T3}, s{T3}, s{T4}')
    I(f'v_and_b32 {v(x0)}, 31, {v(V_L)}')
    I(f'v_lshl_add_u32 {v(V_PQLD)}, {v(x0)}, 5, s{T3}')
    I(f'v_lshl_add_u32 {v(V_PQLD)}, {v(vhi)}, 4, {v(V_PQLD)}')
    I(f'v_add_u32 {v(V_KVLD)}, s{T4}, {v(V_L16)}')
    I(f'v_and_b32 {v(x0)}, 3, {v(va_)}')
    I(f'v_lshrrev_b32 {v(x1)}, 3, {v(va_)}')
    I(f's_lshl_b32 s{T3}, s{S_W}, 9')
    I(f's_add_u32 s{T3}, s{T3}, 32768')
    I(f'v_lshl_add_u32 {v(V_ZLD)}, {v(x1)}, 8, s{T3}')
    I(f'v_lshl_add_u32 {v(V_ZLD)}, {v(x0)}, 6, {v(V_ZLD)}')
    I(f'v_lshl_add_u32 {v(V_ZLD)}, {v(vg)}, 4, {v(V_ZLD)}')
    I(f'v_add_u32 {v(V_OFW)}, {L_B}, {v(V_KVLD)}')
    I(f's_lshl_b32 s{T3}, s{S_NB}, 14')
    I(f's_lshl_b32 s{T4}, s{S_W}, 12')
    I(f's_add_u32 s{T3}, s{T3}, s{T4}')
    I(f's_lshl_b32 s{T4}, s{S_TH}, 6')
    I(f's_add_u32 s{T3}, s{T3}, s{T4}')
    I(f'v_lshl_add_u32 {v(V_RES[0])}, {v(vhi)}, 11, s{T3}')
    I(f'v_lshl_add_u32 {v(V_RES[0])}, {v(x0)}, 3, {v(V_RES[0])}')
    I(f'v_lshrrev_b32 {v(x0)}, 2, {v(va_)}')
    I(f'v_lshl_add_u32 {v(V_RES[0])}, {v(x0)}, 7, {v(V_RES[0])}')
    I(f'v_xor_b32 {v(x1)}, {v(x1)}, {v(vg)}')
    I(f'v_and_b32 {v(x1)}, 1, {v(x1)}')
    I(f'v_lshl_add_u32 {v(V_RES[0])}, {v(x1)}, 5, {v(V_RES[0])}')
    I(f'v_xor_b32 {v(V_RES[1])}, 64, {v(V_RES[0])}')
    I(f's_lshl_b32 s{T3}, s{S_W}, 6')
    I(f's_add_u32 s{T3}, s{T3}, {L_STAT}')
    I(f'v_lshl_add_u32 {v(V_SW)}, {v(va_)}, 2, s{T3}')
    I(f'v_lshl_add_u32 {v(V_SR4)}, {v(vg)}, 4, s{T3}')
    I(f's_lshl_b32 s{S_W17}, s{S_W}, 17')
    I(f's_lshl_b32 s{T3}, s{S_NB}, 2')
    I(f's_add_u32 s{T3}, s{T3}, s{S_W}')
    I(f'v_lshl_add_u32 {v(V_WLD + 1)}, s{T3}, {10 if WIL else 15}, {v(V_L16)}')
    if not free:
        return f
    for r in f:
        P.free(r)


TS = [18, 10, 6, 2]
TB = [0, 16 * 18, 16 * 18 + 16 * 10, 16 * 18 + 16 * 10 + 32 * 6]


def rne(o, sh):
    q, r = o >> sh, o & ((1 << sh) - 1)
    if sh == 0:
        return q
    h = 1 << (sh - 1)
    return q + (1 if (r > h or (r == h and q & 1)) else 0)


def setup_kgen(va_, vg, x0, x1):
    kg = dict(w=P.alloc(), a0=P.alloc(), a1=P.alloc(), g=P.alloc(), t1=P.alloc(), t2=P.alloc(), t3=P.alloc(), rk=P.alloc())
    I(f's_lshr_b32 s{S_T0}, s{S_W}, 1')
    I(f's_and_b32 s{S_T1}, s{S_W}, 1')
    I(f's_mul_i32 s{S_T3}, s{S_W}, {KG_W}')
    I(f's_add_u32 s{S_T3}, s{S_T3}, {L_B}')
    I(f'v_lshl_add_u32 {v(kg["w"])}, {v(V_L)}, 2, s{S_T3}')
    I(f's_mul_i32 s{S_T3}, s{S_T0}, {2 * KG_W}')
    I(f's_add_u32 s{S_T3}, s{S_T3}, {L_B}')
    I(f'v_lshl_add_u32 {v(x1)}, {v(vg)}, 4, s{S_T3}')
    I(f'v_mul_u32_u24 {v(kg["a0"])}, {KG_ROW}, {v(va_)}')
    I(f'v_add_u32 {v(kg["a0"])}, {v(kg["a0"])}, {v(x1)}')
    I(f's_mul_i32 s{S_T4}, s{S_T1}, {16 * KG_ROW}')
    I(f'v_add_u32 {v(kg["g"])}, s{S_T4}, {v(kg["a0"])}')
    I(f'v_min_u32 {v(kg["a1"])}, 4, {v(va_)}')
    I(f'v_mul_u32_u24 {v(kg["a1"])}, {KG_ROW}, {v(kg["a1"])}')
    I(f'v_add_u32 {v(kg["a1"])}, {v(kg["a1"])}, {v(x1)}')
    I(f's_mul_i32 s{S_T3}, s{S_T0}, 4608')
    I(f's_add_u32 s{S_T3}, s{S_T3}, {L_H + 512}')
    vj, vw = P.alloc(), P.alloc()
    I(f's_lshl_b32 s{S_T4}, s{S_T1}, 2')
    I(f'v_and_b32 {v(x0)}, 3, {v(va_)}')
    I(f'v_lshl_add_u32 {v(vj)}, {v(x0)}, 3, s{S_T4}')
    I(f'v_lshrrev_b32 {v(x0)}, 2, {v(va_)}')
    I(f'v_add_u32 {v(vj)}, {v(vj)}, {v(x0)}')
    I(f'v_lshl_add_u32 {v(kg["t3"])}, {v(vg)}, 7, {v(vj)}')
    I(f'v_lshl_add_u32 {v(kg["t3"])}, {v(kg["t3"])}, 2, s{S_T3}')
    I(f'v_max_u32 {v(x1)}, 1, {v(vg)}')
    I(f'v_sub_u32 {v(x1)}, 6, {v(x1)}')
    I(f'v_lshlrev_b32 {v(kg["t1"])}, {v(x1)}, {v(vj)}')
    I(f'v_lshrrev_b32 {v(vw)}, 1, {v(vj)}')
    I(f'v_lshl_add_u32 {v(kg["t1"])}, {v(vw)}, 3, {v(kg["t1"])}')
    I(f's_mov_b32 s{S_T4}, {hex(0 | (1 << 8) | ((TB[1] // 4) << 16) | ((TB[2] // 4) << 24))}')
    I(f'v_lshlrev_b32 {v(x1)}, 3, {v(vg)}')
    I(f'v_bfe_u32 {v(x1)}, s{S_T4}, {v(x1)}, 8')
    I(f'v_lshl_add_u32 {v(x1)}, {v(x1)}, 4, s{S_T3}')
    I(f'v_add_u32 {v(kg["t1"])}, {v(kg["t1"])}, {v(x1)}')
    I(f'v_cmp_eq_u32 vcc, 3, {v(vg)}')
    I(f'v_mov_b32 {v(vj)}, {16 * TS[2] * 4}')
    I(f'v_cndmask_b32 {v(x1)}, 8, {v(vj)}, vcc')
    I(f'v_add_u32 {v(kg["t2"])}, {v(kg["t1"])}, {v(x1)}')
    gi = P.alloc(18, 2)
    vn, vs = vj, vw
    I(f'v_and_b32 {v(x0)}, 127, v0')
    I(f'v_sub_u32 {v(vn)}, 127, {v(x0)}')
    I(f'v_or_b32 {v(x1)}, 8, {v(vn)}')
    I(f'v_ffbh_u32 {v(x1)}, {v(x1)}')
    I(f'v_sub_u32 {v(vs)}, 28, {v(x1)}')
    I(f'v_lshlrev_b32 {v(vs)}, 3, {v(vs)}')
    first = [0, 16, 32, 64]
    cb = [TB[q] - first[q] * TS[q] for q in range(4)]
    assert all(c % 4 == 0 and 0 <= c // 4 < 256 for c in cb)
    I(f's_mov_b32 s{S_T4}, {hex(sum(TS[q] << (8 * q) for q in range(4)))}')
    I(f'v_bfe_u32 {v(x1)}, s{S_T4}, {v(vs)}, 8')
    I(f'v_mul_u32_u24 {v(x1)}, {v(x1)}, {v(vn)}')
    I(f's_mov_b32 s{S_T4}, {hex(sum((cb[q] // 4) << (8 * q) for q in range(4)))}')
    I(f'v_bfe_u32 {v(gi + 17)}, s{S_T4}, {v(vs)}, 8')
    I(f'v_lshl_add_u32 {v(x1)}, {v(gi + 17)}, 2, {v(x1)}')
    I(f'v_lshl_add_u32 {v(gi + 15)}, {v(x1)}, 2, s{S_T3}')
    for u in range(15):
        o = 15 - u
        dl = []
        for q in range(4):
            d = rne(o, q)
            dl.append(4 * (d if d < (16 >> q) else TS[q]))
        I(f's_mov_b32 s{S_T4}, {hex(sum(dl[q] << (8 * q) for q in range(4)))}')
        I(f'v_bfe_u32 {v(x1)}, s{S_T4}, {v(vs)}, 8')
        I(f'v_add_u32 {v(gi + u)}, {v(x1)}, {v(gi + 15)}')
    I(f'v_cmp_ge_u32 vcc, 16, {v(vn)}')
    I(f'v_cndmask_b32 {v(x1)}, 0, 12, vcc')
    I(f'v_sub_u32 {v(gi + 16)}, {v(gi + 15)}, {v(x1)}')
    P.free(vj), P.free(vw)
    I(f's_mul_i32 s{S_T4}, s{S_T0}, 8320')
    I(f's_add_u32 s{S_T4}, s{S_T4}, {L_RK}')
    I(f'v_lshl_add_u32 {v(kg["rk"])}, {v(x0)}, 5, s{S_T4}')
    return kg, gi


def prologue():
    I('s_cmp_ge_u32 s2, 256')
    I('s_cbranch_scc1 L_end')
    I('s_load_dwordx16 s[4:19], s[0:1], 0')
    I('s_load_dwordx8 s[20:27], s[0:1], 64')
    I('s_load_dwordx4 s[28:31], s[0:1], 96')
    I('s_load_dwordx2 s[32:33], s[0:1], 112')
    stamp('entry')
    pf = P.alloc(4)
    I(f's_getpc_b64 s[{S_T3}:{S_T4}]')
    A.label('L_pc')
    I(f's_lshr_b32 s{S_T1}, s2, 3')
    I(f'v_lshrrev_b32 {v(pf)}, 4, v0')
    I(f'v_lshl_add_u32 {v(pf)}, {v(pf)}, 5, s{S_T1}')
    I(f'v_lshlrev_b32 {v(pf)}, 7, {v(pf)}')
    I(f'v_min_u32 {v(pf)}, L_end-L_pc, {v(pf)}')
    if '--nocpf' in sys.argv:
        I(f'v_mov_b32 {v(pf)}, 0')
    I(f'global_load_dword {v(pf)}, {v(pf)}, s[{S_T3}:{S_T4}]')
    I(f'v_lshrrev_b32 {v(pf + 1)}, 6, v0')
    I(f'v_and_b32 {v(V_L)}, 63, v0')
    I(f'v_readfirstlane_b32 s{S_W}, {v(pf + 1)}')
    I(f's_and_b32 s{S_T0}, s2, 7')
    I(f's_and_b32 s{S_T2}, s{S_T1}, 3')
    I(f's_lshl_b32 s{S_RB}, s{S_T0}, 2')
    I(f's_add_u32 s{S_RB}, s{S_RB}, s{S_T2}')
    I(f's_lshr_b32 s{S_CG}, s{S_T1}, 2')
    I(f's_lshr_b32 s{S_NB}, s{S_CG}, 1')
    I(f's_and_b32 s{S_TH}, s{S_CG}, 1')
    I(f'v_lshlrev_b32 {v(V_L16)}, 4, {v(V_L)}')
    va_, vg, vhi, x0, x1 = f = lane_fields()
    I(f's_and_b32 s{S_T3}, s{S_T1}, 7')
    I(f's_lshl_b32 s{S_T3}, s{S_T3}, 7')
    I(f'v_lshl_add_u32 {v(V_ARR)}, {v(V_L)}, 10, s{S_T3}')
    I(f's_lshl_b32 s{S_T3}, s{S_T1}, 10')
    I(f'v_lshl_add_u32 {v(V_POLL)}, {v(V_L)}, 7, s{S_T3}')
    vsr, vsa = P.alloc(), P.alloc()
    I(f's_lshl_b32 s{S_T0}, s{S_RB}, 6')
    I(f's_lshl_b32 s{S_T1}, s{S_CG}, 3')
    I(f's_add_u32 s{S_T1}, s{S_T1}, s{S_T0}')
    I(f's_lshl_b32 s{S_T3}, s{S_W}, 1')
    I(f's_add_u32 s{S_T2}, s{S_T1}, s{S_T3}')
    I(f's_lshl_b32 s{S_T1}, s{S_T2}, 10')
    I(f'v_add_u32 {v(vsr)}, s{S_T1}, {v(V_L16)}')
    I(f'v_and_b32 {v(vsa)}, 1, {v(vg)}')
    I(f'v_add_lshl_u32 {v(vsa)}, {v(vsa)}, s{S_T2}, 2')
    I(f'v_lshl_add_u32 {v(vsa)}, {v(vhi)}, 13, {v(vsa)}')
    I(f's_lshl_b32 s{S_T1}, s{S_TH}, 5')
    I(f's_add_u32 s{S_T0}, s{S_T0}, s{S_T1}')
    I(f'v_and_b32 {v(x0)}, 31, {v(V_L)}')
    I(f'v_add_u32 {v(x0)}, s{S_T0}, {v(x0)}')
    I(f's_lshl_b32 s{S_T0}, s{S_NB}, 8')
    I(f's_lshl_b32 s{S_T1}, s{S_W}, 6')
    I(f's_add_u32 s{S_T0}, s{S_T0}, s{S_T1}')
    I(f'v_lshl_add_u32 {v(V_TILE)}, {v(x0)}, 10, s{S_T0}')
    I(f'v_lshl_add_u32 {v(V_TILE)}, {v(vhi)}, 5, {v(V_TILE)}')
    I(f's_lshl_b32 s{S_T0}, s{S_T0}, 11')
    I(f'v_lshl_add_u32 {v(V_X2ST)}, {v(x0)}, 2, s{S_T0}')
    I(f'v_lshl_add_u32 {v(V_X2ST)}, {v(vhi)}, 16, {v(V_X2ST)}')
    vtd, vtr = P.alloc(), P.alloc()
    I(f'v_readfirstlane_b32 s{S_T0}, {v(V_TILE)}')
    I(f'v_lshrrev_b32 {v(x0)}, 2, {v(V_L)}')
    I(f'v_xor_b32 {v(x1)}, {v(V_L)}, {v(vg)}')
    I(f'v_and_b32 {v(x1)}, 3, {v(x1)}')
    I(f'v_lshl_add_u32 {v(vtd)}, {v(x0)}, 10, s{S_T0}')
    I(f'v_lshl_add_u32 {v(vtd)}, {v(x1)}, 4, {v(vtd)}')
    I(f'v_add_u32 {v(vtr)}, {16384 - 1024}, {v(vtd)}')
    I(f's_lshl_b32 m0, s{S_W}, 11')
    vpo = P.alloc()
    I(f's_lshl_b32 s{S_T1}, s2, 9')
    I(f'v_lshl_add_u32 {v(vpo)}, v0, 1, s{S_T1}')
    sinit = S_SPIN
    I(f's_lshl_b32 s{S_T2}, s2, 2')
    I(f's_add_u32 s{sinit}, s{S_T2}, s{S_W}')
    vws = P.alloc(2)
    SA, SB, SC = S_MASK, S_MASK + 1, S_E6
    I(f's_cmp_ge_u32 s2, 192')
    I('s_cbranch_scc1 L_wo_src')
    I(f's_bfe_u32 s{SA}, s2, 0x30003')
    I(f's_lshl_b32 s{SA}, s{SA}, 1')
    I(f's_lshr_b32 s{SB}, s{S_W}, 1')
    I(f's_add_u32 s{SA}, s{SA}, s{SB}')
    I(f's_lshr_b32 s{SB}, s2, 6')
    I(f's_lshl_b32 s{SC}, s{SB}, 4')
    I(f's_add_u32 s{SC}, s{SC}, s{SA}')
    I(f's_lshl_b32 s{SC}, s{SC}, {15 if WIL else 10}')
    I(f's_mul_i32 s{SA}, s{SA}, {32 * 3072}')
    I(f's_lshl_b32 s{SB}, s{SB}, 10')
    I(f's_add_u32 s{SA}, s{SA}, s{SB}')
    I(f's_and_b32 s{SB}, s2, 7')
    I(f's_lshl_b32 s{SB}, s{SB}, 1')
    I(f's_and_b32 s{S_T1}, s{S_W}, 1')
    I(f's_add_u32 s{SB}, s{SB}, s{S_T1}')
    I(f's_mul_i32 s{S_T1}, s{SB}, {2048 if WIL else 2 * 49152}')
    I(f's_add_u32 s{SC}, s{SC}, s{S_T1}')
    I(f's_add_u32 s{SC}, s{SC}, {hex(WS_WT)}')
    I(f's_add_u32 s{SC + 1}, s{SC}, {1024 if WIL else 49152}')
    I(f's_lshl_b32 s{SB}, s{SB}, 6')
    I(f's_add_u32 s{SA}, s{SA}, s{SB}')
    I(f's_movk_i32 s{SB}, 3072')
    I('s_branch L_w_src')
    A.label('L_wo_src')
    I(f's_bfe_u32 s{SA}, s2, 0x40002')
    I(f's_and_b32 s{SB}, s2, 3')
    I(f's_lshl_b32 s{SB}, s{SB}, 2')
    I(f's_add_u32 s{SB}, s{SB}, s{S_W}')
    if WIL:
        I(f's_lshl_b32 s{SC}, s{SA}, 5')
        I(f's_add_u32 s{SC}, s{SC}, s{SB}')
        I(f's_lshl_b32 s{SC}, s{SC}, 10')
    else:
        I(f's_lshl_b32 s{SC}, s{SB}, 4')
        I(f's_add_u32 s{SC}, s{SC}, s{SA}')
        I(f's_lshl_b32 s{SC}, s{SC}, 11')
    I(f's_add_u32 s{SC}, s{SC}, {hex(WS_WTO)}')
    I(f's_add_u32 s{SC + 1}, s{SC}, {16384 if WIL else 1024}')
    I(f's_lshl_b32 s{SA}, s{SA}, 15')
    I(f's_lshl_b32 s{SB}, s{SB}, 6')
    I(f's_add_u32 s{SA}, s{SA}, s{SB}')
    I(f's_movk_i32 s{SB}, 1024')
    A.label('L_w_src')
    I(f'v_mul_u32_u24 {v(vws)}, s{SB}, {v(x0)}')
    I(f'v_and_b32 {v(x1)}, 3, {v(V_L)}')
    I(f'v_lshl_add_u32 {v(x1)}, {v(x1)}, 4, s{SA}')
    I(f'v_add_u32 {v(vws)}, {v(vws)}, {v(x1)}')
    I(f's_lshl_b32 s{SB}, s{SB}, 4')
    I(f's_sub_u32 s{SB}, s{SB}, 1024')
    I(f'v_add_u32 {v(vws + 1)}, s{SB}, {v(vws)}')
    zero4 = P.alloc(4, 2)
    for i in range(4):
        I(f'v_mov_b32 {v(zero4 + i)}, 0')
    for r, n in ((R_WS, WS_SIZE),):
        I(f's_mov_b32 s{r + 2}, {hex(n)}')
        I(f's_mov_b32 s{r + 3}, 0x20000')
    xs = P.alloc(8, 2)
    xt = P.alloc(8, 2)
    par = P.alloc(8, 2)
    vtc = par + 7
    I(f's_cmp_eq_u32 s{S_W}, 0')
    I(f's_cselect_b32 s{S_T1}, 1, 0x100')
    I(f'v_lshlrev_b32_e64 {v(vtc)}, 7, s{S_T1}')
    TSH = int(([x[6:] for x in sys.argv if x.startswith('--tsh=')] or ['0'])[0])
    if TSH:
        I(f's_cselect_b32 s{S_T1}, 0, {(1 << (24 - TSH)) - 1}')
        I(f'v_and_b32 {v(x1)}, s{S_T1}, v0')
        I(f'v_lshl_add_u32 {v(vtc)}, {v(x1)}, {TSH}, {v(vtc)}')
    A._wait(lg=0)
    stamp('a_karg')
    I(f's_cmp_lg_u32 s{sinit}, 0')
    I('s_cbranch_scc1 L_noinit')
    I(f'v_lshlrev_b32 {v(x0)}, 9, {v(V_L)}')
    A.cond = True
    for j in range(4):
        I(f'global_store_dword {v(x0)}, {v(zero4)}, {s(S_WS, 2)} offset:{128 * j} sc1')
    A.cond = False
    A.label('L_noinit')
    nld = 0

    def ld_x(j):
        if j < 2:
            I(f'global_load_dwordx4 {v(xs + 4 * j, 4)}, {v(vsr)}, {s(S_U, 2)} offset:{1024 * j}{NT("a")}')
        else:
            I(f'global_load_lds_dwordx4 {v(vtd if j == 2 else vtr)}, {s(S_U, 2)} offset:{1024 * (j - 2)}{NT("b")}', tag='xt')

    def ld_par():
        for i, sp in enumerate((S_ARE, S_AIM, S_BRE, S_BIM, S_CRE, S_CIM)):
            I(f'global_load_ushort {v(par + i)}, {v(vpo)}, {s(sp, 2)}{NT("p")}')

    def touch():
        I(f's_cmp_eq_u32 s{S_W}, 0')
        I(f's_cselect_b64 s[{S_T3}:{S_T4}], {s(S_DBG, 2)}, {s(S_WS, 2)}')
        I(f'global_load_dword {v(pf + 3)}, {v(vtc)}, s[{S_T3}:{S_T4}]')

    I(f's_cmp_ge_u32 s2, 192')
    I(f's_cselect_b64 s[{R_WQ}:{R_WQ + 1}], {s(S_WO, 2)}, {s(S_WQKV, 2)}')

    def touch2():
        I('s_mov_b64 exec, 1')
        I(f'global_load_dword {v(pf + 1)}, {v(vsr)}, {s(S_U, 2)}')
        I(f'global_load_dword {v(pf + 2)}, {v(vws)}, s[{R_WQ}:{R_WQ + 1}]')
        I('s_mov_b64 exec, -1')

    def ld_w():
        I('s_add_u32 m0, m0, 8192')
        for j in range(2):
            I(f'global_load_lds_dwordx4 {v(vws + j)}, s[{R_WQ}:{R_WQ + 1}] offset:{1024 * j}{NT("w")}', tag='wt')
    nld = 13
    if ORDER == 1:
        ld_x(0), touch(), ld_par(), ld_x(1), ld_x(2), ld_x(3), ld_w()
    elif ORDER == 2:
        touch(), ld_x(0), ld_x(1), ld_x(2), ld_x(3), ld_w(), ld_par()
    elif ORDER == 3:
        touch(), ld_x(0), ld_x(1), ld_x(2), ld_x(3), ld_par(), ld_w()
    elif ORDER == 4:
        ld_x(0), ld_x(1), ld_x(2), ld_x(3)
        A._wait(vm=2)
        stamp('b_xs')
        A._wait(vm=0)
        stamp('b_xt')
        touch(), ld_w(), ld_par()
        A._wait(vm=8)
        stamp('b_touch')
        A._wait(vm=6)
        stamp('b_w')
        A._wait(vm=0)
        stamp('b_par')
    elif ORDER >= 10:
        grp = {'1': ('x', lambda: [ld_x(j) for j in range(4)]), '2': ('touch', touch), '3': ('w', ld_w), '4': ('par', ld_par)}
        for c in str(ORDER):
            grp[c][1]()
            A._wait(vm=0)
            stamp('b_' + grp[c][0])
            A.barrier()
            stamp('b_bar' + c)
    elif ORDER in (7, 8, 9):
        touch2(), touch(), ld_par()
        if ORDER == 8:
            A.barrier()
        ld_x(0), ld_x(1), ld_x(2), ld_x(3)
        nld = 13
        if not WLATE:
            if ORDER == 8:
                A.barrier()
            ld_w()
            nld = 15
        if ORDER == 9:
            stamp('b_iss')
            for nm, n in (('code', 15), ('tu', 14), ('tw', 13), ('touch', 12), ('par', 6), ('xs', 4), ('xt', 2), ('w', 0)):
                A._wait(vm=n)
                stamp('b_' + nm)
    elif ORDER == 5:
        touch(), ld_x(0), ld_x(1), ld_x(2), ld_x(3), ld_w(), ld_par()
        stamp('b_iss')
        for nm, n in (('code', 13), ('touch', 12), ('xs', 10), ('xt', 8), ('w', 6), ('par', 0)):
            A._wait(vm=n)
            stamp('b_' + nm)
    elif ORDER == 6:
        touch(), ld_par(), ld_x(0), ld_x(1), ld_x(2), ld_x(3), ld_w()
        stamp('b_iss')
        for nm, n in (('code', 13), ('touch', 12), ('par', 6), ('xs', 4), ('xt', 2), ('w', 0)):
            A._wait(vm=n)
            stamp('b_' + nm)
    I(f's_load_dword s{S_D}, {s(S_LDT, 2)}, s{S_T2}')
    I(f's_load_dword s{S_D + 1}, {s(S_DSK, 2)}, s{S_T2}')
    for r, p in ((R_WS, S_WS),):
        I(f's_mov_b64 s[{r}:{r + 1}], s[{p}:{p + 1}]')
    if XPF:
        I(f'v_xor_b32 {v(vsr)}, {XPF << 18}, {v(vsr)}')
        I(f'v_mul_u32_u24 {v(x0)}, 112, {v(va_)}')
        I(f'v_add_u32 {v(vsr)}, {v(vsr)}, {v(x0)}')
        I('s_mov_b64 exec, 0xffff')
        I(f'global_load_dword {v(pf + 1)}, {v(vsr)}, {s(S_U, 2)}')
        if XPF2:
            I(f'v_xor_b32 {v(vpo)}, {XPF << 9}, {v(vpo)}')
            I('s_mov_b64 exec, 1')
            for i, sp in enumerate((S_ARE, S_AIM, S_BRE, S_BIM, S_CRE, S_CIM)):
                I(f'global_load_ushort {v(V_CSQ + (i & 3) if i < 4 else V_CSKV + i - 4)}, {v(vpo)}, {s(sp, 2)}')
            nld += 6
        I('s_mov_b64 exec, -1')
        nld += 1
    stamp('a_ldiss')
    P.free(vsr), P.free(vpo), P.free(vtd)
    I(f'v_and_b32 {v(x0)}, 31, {v(V_L)}')
    I(f'v_lshlrev_b32 {v(vtr)}, 6, {v(x0)}')
    I(f'v_lshl_add_u32 {v(vtr)}, s{S_W}, 11, {v(vtr)}')
    I(f'v_bfe_u32 {v(x0)}, {v(V_L)}, 2, 2')
    I(f'v_lshlrev_b32 {v(x1)}, 1, {v(vhi)}')
    I(f'v_xor_b32 {v(x0)}, {v(x0)}, {v(x1)}')
    I(f'v_lshl_add_u32 {v(vtr)}, {v(x0)}, 4, {v(vtr)}')
    kg, gi = setup_kgen(va_, vg, x0, x1)
    I(f's_cmp_lg_u32 s{sinit}, 0')
    I('s_cbranch_scc1 L_noflag')
    I(f'v_mov_b32 {v(x1)}, 1')
    A._wait(vm=nld)
    A.cond = True
    I(f'global_store_dword {v(zero4)}, {v(x1)}, {s(S_DBG, 2)} sc1')
    A.cond = False
    A.label('L_noflag')
    I(f'v_lshl_add_u32 {v(x1)}, {v(x0)}, 2, s{S_T3}')
    I(f'v_subrev_u32 {v(x1)}, 512, {v(x1)}')
    I(f'ds_write_b32 {v(x1)}, {v(zero4)}')
    I(f's_mul_i32 s{S_T3}, s{S_W}, 4160')
    I(f's_add_u32 s{S_T3}, s{S_T3}, {L_RK + 4096}')
    I(f'v_lshl_add_u32 {v(x1)}, {v(va_)}, 2, s{S_T3}')
    I(f'ds_write_b32 {v(x1)}, {v(zero4)}')
    stamp('a_kgset')
    if '--pre0' in sys.argv:
        I(f's_mov_b32 s{S_T0}, {hex(WS_X2[0])}')
        for i in range(8):
            I(f'buffer_store_dword {v(zero4)}, {v(V_X2ST)}, {WS}, s{S_T0} offen sc1')
            I(f's_add_u32 s{S_T0}, s{S_T0}, 8192')
        for f_ in range(2):
            I(f'buffer_store_dwordx4 {v(zero4, 4)}, {v(V_L16)}, {WS}, s{SC + f_} offen sc1')
    I(f's_lshl_b32 s{S_T0}, s{sinit}, 7')
    I(f's_add_u32 s{S_T0}, s{S_T0}, {hex(WS_ZERO)}')
    I('s_mov_b64 exec, 0xff')
    I(f'buffer_store_dwordx4 {v(zero4, 4)}, {v(V_L16)}, {WS}, s{S_T0} offen sc1')
    I('s_mov_b64 exec, -1')
    setup_conv(va_, vg, x0, x1)
    vwr = P.alloc(2)
    I(f's_lshl_b32 s{S_T3}, s{S_W}, 11')
    I(f's_add_u32 s{S_T3}, s{S_T3}, 8192')
    I(f'v_and_b32 {v(x0)}, 3, {v(V_L)}')
    I(f'v_lshl_add_u32 {v(vwr)}, {v(V_L)}, 4, s{S_T3}')
    I(f'v_lshlrev_b32 {v(x0)}, 3, {v(x0)}')
    I(f'v_sub_u32 {v(vwr)}, {v(vwr)}, {v(x0)}')
    I(f'v_lshrrev_b32 {v(x0)}, 2, {v(va_)}')
    I(f'v_lshl_add_u32 {v(vwr + 1)}, {v(x0)}, 8, s{S_T3}')
    I(f'v_lshl_add_u32 {v(vwr + 1)}, {v(vhi)}, 6, {v(vwr + 1)}')
    I(f'v_and_b32 {v(x0)}, 1, {v(V_L)}')
    I(f'v_lshl_add_u32 {v(vwr + 1)}, {v(x0)}, 5, {v(vwr + 1)}')
    I(f'v_and_b32 {v(x0)}, 1, {v(vg)}')
    I(f'v_lshl_add_u32 {v(vwr + 1)}, {v(x0)}, 4, {v(vwr + 1)}')
    I(f'v_bfe_u32 {v(x0)}, {v(V_L)}, 1, 1')
    I(f'v_lshl_add_u32 {v(vwr + 1)}, {v(x0)}, 3, {v(vwr + 1)}')
    I(f's_mov_b32 s{S_ONES}, 0x3f803f80')
    I(f's_mov_b32 s{S_EXP}, {f32(math.log2(math.e))}')
    for i in range(4):
        I(f'v_mov_b32 {v(V_ONES + i)}, s{S_ONES}')
    I(f'v_xor_b32 {v(x1)}, 16, {v(vtr)}')
    if '--latepage' not in sys.argv:
        A.raw('#page')
        A.raw('#seg s0')
        A.raw('#touch s0')
    stamp('a_setup')
    st = P.alloc(4, 2)
    for i in range(4):
        for r in range(2):
            c = '0' if i == 0 else v(st + r)
            I(f'v_dot2_f32_bf16 {v(st + r)}, {v(xs + 4 * r + i)}, s{S_ONES}, {c}')
            c = '0' if i == 0 else v(st + 2 + r)
            I(f'v_dot2_f32_bf16 {v(st + 2 + r)}, {v(xs + 4 * r + i)}, {v(xs + 4 * r + i)}, {c}')
    stamp('a_xs')
    A.wait_vm('xt')
    I(f'ds_read_b128 {v(xt, 4)}, {v(vtr)}')
    I(f'ds_read_b128 {v(xt + 4, 4)}, {v(x1)}')
    I(f's_mov_b32 s{S_T0}, {hex(WS_ST[0])}')
    I(f'v_permlane32_swap_b32 {v(st)}, {v(st + 2)}')
    I(f'v_permlane32_swap_b32 {v(st + 1)}, {v(st + 3)}')
    I(f'v_add_f32 {v(st)}, {v(st)}, {v(st + 2)}')
    I(f'v_add_f32 {v(st + 1)}, {v(st + 1)}, {v(st + 3)}')
    I(f'v_permlane16_swap_b32 {v(st)}, {v(st + 1)}')
    I(f'v_add_f32 {v(st)}, {v(st)}, {v(st + 1)}')
    for sh in (8, 4, 2, 1):
        I(f'v_add_f32_dpp {v(st)}, {v(st)}, {v(st)} row_ror:{sh} row_mask:0xf bank_mask:0xf')
    I('s_mov_b32 exec_lo, 0x00010001')
    I('s_mov_b32 exec_hi, 0x00010001')
    I(f'buffer_store_dword {v(st)}, {v(vsa)}, {WS}, s{S_T0} offen sc1')
    I('s_mov_b64 exec, -1')
    x2store(0, xt)

    def wtrans():
        A.wait_vm('wt')
        A.wait_lg()
        I(f's_cmp_ge_u32 s2, 192')
        I('s_cbranch_scc1 L_wo_rd')
        for f_ in range(2):
            for z in range(2):
                A._emit(Ins(f'ds_read_b64_tr_b16 {v(xs + 4 * f_ + 2 * z, 2)}, {v(vwr)} offset:{1024 * z + 32 * f_}'))
        I('s_branch L_w_rd')
        A.label('L_wo_rd')
        for f_ in range(2):
            for z in range(2):
                I(f'ds_read_b64_tr_b16 {v(xs + 4 * f_ + 2 * z, 2)}, {v(vwr + 1)} offset:{1024 * f_ + 128 * z}')
        A.label('L_w_rd')
        for f_ in range(2):
            I(f'buffer_store_dwordx4 {v(xs + 4 * f_, 4)}, {v(V_L16)}, {WS}, s{SC + f_} offen sc1', tag='wtst')
    if not W1B:
        wtrans()
    flag = pf + 3
    I(f'global_load_dword {v(flag)}, {v(zero4)}, {s(S_DBG, 2)} sc1', tag='flag')
    if WLATE:
        ld_w()
    stamp('a_stored')
    if '--latepage' in sys.argv:
        A.raw('#page')
        A.raw('#seg s0')
        A.raw('#touch s0')

    if '--seq' in sys.argv:
        for nm, n in (('par', 13), ('wpf', 11), ('zero', 10), ('st', 9), ('x2', 1), ('flag', 0)):
            A._wait(vm=n)
            stamp('b_' + nm)

    def arrive1():
        stamp('b_pre')
        A.wait_vm('flag')
        stamp('a_drained')
        global_arrive(first=(flag, zero4))
        stamp('arr1')
    hooks = {KG_ARR: [arrive1]}
    kgen(par, kg, hooks)
    if W1B and WLATE < 2:
        wtrans()
        stamp('a_wtr')
    P.free(st, 4), P.free(xt, 8), P.free(zero4, 4), P.free(pf, 4), P.free(vws, 2), P.free(vsa), P.free(vtr)
    for r in f:
        P.free(r)
    poll_start(1)
    A.barrier()
    kgen2(kg)
    A.wait_vm('wtst')

    def fin():
        if W1B and WLATE == 2:
            wtrans()
            stamp('a_wtr')
        P.free(xs, 8), P.free(vwr, 2)
    return kg, gi, fin


def x2store(layer, d):
    I(f's_mov_b32 s{S_T0}, {hex(WS_X2[layer])}')
    for i in range(8):
        I(f'buffer_store_dword {v(d + i)}, {v(V_X2ST)}, {WS}, s{S_T0} offen sc1')
        if i < 7:
            I(f's_add_u32 s{S_T0}, s{S_T0}, 8192')


def kgen(par, kg, hooks):
    LOG2E = math.log2(math.e)
    A.wait_lg()
    I(f's_lshl_b32 s{S_T0}, s{S_D}, 16')
    I(f's_and_b32 s{S_T1}, s{S_D}, 0xffff0000')
    I(f's_lshl_b32 s{S_D}, s{S_D + 1}, 16')
    I(f's_and_b32 s{S_D + 1}, s{S_D + 1}, 0xffff0000')
    I(f's_cmp_ge_u32 s{S_W}, 2')
    I(f's_cselect_b32 s{S_T0}, s{S_T1}, s{S_T0}')
    dt = par + 6
    I(f'v_mov_b32 {v(dt)}, s{S_T0}')
    I(f'v_mul_f32 {v(dt)}, s{S_EXP}, {v(dt)}')
    I(f'v_exp_f32 {v(dt)}, {v(dt)}')
    for i in range(6):
        I(f'v_lshlrev_b32 {v(par + i)}, 16, {v(par + i)}')
    I(f'v_cvt_pk_bf16_f32 {v(dt)}, {v(dt)}, {v(dt)}')
    I(f'v_and_b32 {v(dt)}, 0xffff0000, {v(dt)}')
    z, Bc, Cc = par, par + 2, par + 4
    pk('mul', v(z, 2), (v(z, 2), 'p'), bc(dt))
    pk('mul', v(Bc, 2), (v(Bc, 2), 'p'), bc(dt))
    tmp = P.alloc(2, 2)
    CB = P.alloc(2, 2)
    cmul(CB, Cc, Bc, tmp)
    E = {}
    for rho in (1, 8, 64, 256):
        e = P.alloc(2, 2)
        E[rho] = e
        I(f'v_mul_f32 {v(tmp)}, {f32(rho * LOG2E)}, {v(z)}')
        I(f'v_mul_f32 {v(tmp + 1)}, {f32(rho / (2 * math.pi))}, {v(z + 1)}')
        I(f'v_exp_f32 {v(tmp)}, {v(tmp)}')
        I(f'v_fract_f32 {v(tmp + 1)}, {v(tmp + 1)}')
        I(f'v_cos_f32 {v(e)}, {v(tmp + 1)}')
        I(f'v_sin_f32 {v(e + 1)}, {v(tmp + 1)}')
        pk('mul', v(e, 2), (v(e, 2), 'p'), bc(tmp))
    pkr = [P.alloc() for _ in range(2)]
    cnt = [0]

    def put(r, neg):
        row = cnt[0]
        cnt[0] += 1
        if r is None:
            I(f'v_mov_b32 {v(pkr[row & 1])}, 0x3f80')
        else:
            I(f'v_cvt_pk_bf16_f32 {v(pkr[row & 1])}, {v(r)}, {"-" if neg else ""}{v(r + 1)}')
        if row & 1:
            o0 = (KG_ROW // 4) * (row & 2)
            I(f'ds_write2_b32 {v(kg["w"])}, {v(pkr[0])}, {v(pkr[1])} offset0:{o0} offset1:{o0 + KG_ROW // 4}')
            if row & 2:
                I(f'v_add_u32 {v(kg["w"])}, {4 * KG_ROW}, {v(kg["w"])}')
        elif row == 52:
            I(f'ds_write_b32 {v(kg["w"])}, {v(pkr[0])}')
        for th in hooks.pop(cnt[0], []):
            th()
    for rho, x, y in ((128, 64, 64), (192, 128, 64), (2, 1, 1), (4, 2, 2)):
        E[rho] = P.alloc(2, 2)
        cmul(E[rho], E[x], E[y], tmp)
    cur = P.alloc(2, 2)
    o = P.alloc(2, 2)
    put(None, False)
    for m in (1, 2, 3):
        put(E[64 * m], False)
    for j in range(1, 8):
        if j == 1:
            g = E[8]
        elif j == 2:
            cmul(cur, E[8], E[8], tmp)
            g = cur
        else:
            cmul(cur, cur, E[8], tmp)
        put(g, False)
        for m in (1, 2, 3):
            cmul(o, g, E[64 * m], tmp)
            put(o, False)
    put(CB, True)
    for j in range(1, 8):
        cmul(cur, CB if j == 1 else cur, E[1], tmp)
        put(cur, True)
    U = CB
    cmul(U, U, E[256], tmp)
    put(U, True)
    for j in range(1, 4):
        cmul(cur, U if j == 1 else cur, E[2], tmp)
        put(cur, True)
    for j in range(2):
        cmul(U, U, E[256], tmp)
        put(U, True)
        cmul(cur, U, E[4], tmp)
        put(cur, True)
    for j in range(5):
        cmul(U, U, E[256], tmp)
        put(U, True)
    for r in list(E.values()) + [tmp, CB, cur, o]:
        P.free(r, 2)
    P.free(pkr[0]), P.free(pkr[1])
    P.free(par, 8)
    assert not hooks
    stamp('a_kg1')


def kgen2(kg):
    d0, d1 = P.alloc(4, 2), P.alloc(4, 2)
    mf = []
    for st in range(8):
        for tl, d in ((0, d0), (1, d1)):
            def em(reg, st=st, tl=tl, d=d):
                c = '0' if st == 0 else v(d, 4)
                I(f'v_mfma_f32_16x16x32_bf16 {v(d, 4)}, {v(reg[("a", tl, st)], 4)}, {v(reg[("g", st)], 4)}, {c}')
            mf.append((em, [('a', tl, st), ('g', st)]))

    def loader(k, r):
        ko = KG_W * (k[-1] >> 2) + 64 * (k[-1] & 3)
        if k[0] == 'g':
            return [f'ds_read_b128 {v(r, 4)}, {v(kg["g"])} offset:{ko}']
        base = kg['a0'] if k[1] == 0 else kg['a1']
        return [f'ds_read_b128 {v(r, 4)}, {v(base)} offset:{(32 + 16 * k[1]) * KG_ROW + ko}']
    stream(mf, loader, 15, 12, rate=2, burst=15)
    I(f'ds_write_b64 {v(kg["t1"])}, {v(d0, 2)}')
    I(f'ds_write_b64 {v(kg["t2"])}, {v(d0 + 2, 2)}')
    I(f'v_add_u32 {v(kg["t3"])}, {4 * TB[3]}, {v(kg["t3"])}')
    I('s_mov_b32 exec_hi, 0')
    for r in (0, 2):
        I(f'ds_write2_b32 {v(kg["t3"])}, {v(d1 + r)}, {v(d1 + r + 1)} offset0:{32 * r} offset1:{32 * r + 32}')
    I('s_mov_b64 exec, -1')
    P.free(d0, 4), P.free(d1, 4)
    stamp('a_kg2')


def kgen3(kg, gi):
    for u in range(17):
        I(f'ds_read_b32 {v(gi + u)}, {v(gi + u)}')
    c = P.alloc(16, 2)
    for cp in range(2):
        for m in range(8):
            I(f'v_cvt_pk_bf16_f32 {v(c + 8 * cp + m)}, {v(gi + 2 * m + cp)}, {v(gi + 2 * m + cp + 1)}')
        for hq in range(2):
            I(f'ds_write_b128 {v(kg["rk"])}, {v(c + 8 * cp + 4 * hq, 4)} offset:{4160 * cp + 16 * hq}')
    A.barrier(lg=False)
    P.free(c, 16), P.free(gi, 18)
    for r in kg.values():
        P.free(r)
    stamp('a_kgen')


def conv(layer, kg, gi, wl):
    xd = P.alloc(8, 2)
    sm = P.alloc(8, 2)
    sq = P.alloc(8, 2)
    for i in range(2):
        I(f'buffer_load_dwordx4 {v(sm + 4 * i, 4)}, {v(V_CVL)}, {WS}, s{S_T1} offen offset:{1024 * i} sc1')
        I(f'buffer_load_dwordx4 {v(sq + 4 * i, 4)}, {v(V_CVL)}, {WS}, s{S_T2} offen offset:{1024 * i} sc1')
        I(f'buffer_load_dwordx4 {v(xd + 4 * i, 4)}, {v(V_CVL)}, {WS}, s{S_T3} offen offset:{1024 * i} sc1')
        if i == 0 and '--nocvb' not in sys.argv:
            A.barrier()
    stamp(f'conv{layer}_iss')
    if layer == 0:
        kg.pop('fin')()
        if W1B and WLATE < 2:
            arrive_1b()
        kgen3(kg, gi)
    base = P.alloc(16, 2)
    hh = P.alloc(4, 2)
    hp = P.alloc(4, 2)
    LN = s(S_LN, 2)
    for i in range(2):
        m, q, x = sm + 4 * i, sq + 4 * i, xd + 4 * i
        for j in (0, 2):
            pk('mul', v(m + j, 2), (v(m + j, 2), 'p'), (LN, 'l'))
        for j in (0, 2):
            pk('fma', v(q + j, 2), (v(q + j, 2), 'p'), (LN, 'l'), (LN, 'h'))
        for j in (0, 2):
            pk('fma', v(q + j, 2), (v(m + j, 2), 'p', 'b'), (v(m + j, 2), 'p'), (v(q + j, 2), 'p'))
        for j in range(4):
            I(f'v_max_f32 {v(q + j)}, s{S_LN + 1}, {v(q + j)}')
        for j in range(4):
            I(f'v_rsq_f32 {v(q + j)}, {v(q + j)}')
        for c in range(2):
            b = base + 8 * i + 4 * c
            for j in range(4):
                if c == 0:
                    I(f'v_lshlrev_b32 {v(b + j)}, 16, {v(x + j)}')
                else:
                    I(f'v_and_b32 {v(b + j)}, 0xffff0000, {v(x + j)}')
            for j in (0, 2):
                pk('add', v(hh + j, 2), (v(b + j, 2), 'p'), (v(m + j, 2), 'p', 'b'))
            for j in (0, 2):
                pk('mul', v(hh + j, 2), (v(hh + j, 2), 'p'), (v(q + j, 2), 'p'))
            for j in (0, 2):
                I(f'v_cvt_pk_bf16_f32 {v(hp + 2 * c + j // 2)}, {v(hh + j)}, {v(hh + j + 1)}')
            I(f'ds_write_b64 {v(V_HW)}, {v(hp + 2 * c, 2)} offset:{4608 * c + 512 * i}')
            for j in (0, 2):
                pk('fma', v(b + j, 2), (v(hh + j, 2), 'p'), (s(S_D, 2), 'h' if c else 'l'), (v(b + j, 2), 'p'))
    P.free(xd, 8), P.free(sm, 8), P.free(sq, 8), P.free(hh, 4), P.free(hp, 4)
    if layer == 0 and W1B and WLATE < 2:
        poll_start('1b')
    A.wait_vm('wtst')
    A.barrier()
    if layer == 0 and W1B and WLATE == 2:
        arrive_1b()
    stamp(f'conv{layer}_h')
    acc = P.alloc(32, 2)
    mf = []
    seen = set()
    fin = {}
    for cc in range(4):
        if cc < 3:
            seq = [(p, n) for p in range(7, -1, -1) for n in range(p, 8)]
        else:
            seq = [(p, n) for n in range(8) for p in range(n + 1)]
        for (p, n) in seq:
            def em(reg, cc=cc, p=p, n=n, fst=(n not in seen)):
                d = v(acc + 4 * n, 4)
                I(f'v_mfma_f32_16x16x32_bf16 {d}, {v(reg[("A", cc, p)], 4)}, {v(reg[("B", cc, n - p)], 4)}, {"0" if fst else d}')
            seen.add(n)
            mf.append((em, [('A', cc, p), ('B', cc, n - p)]))
            fin[n] = len(mf) - 1

    def loader(k, r):
        _, cc, x = k
        if k[0] == 'B':
            return [f'ds_read_b128 {v(r, 4)}, {v(V_CB)} offset:{512 * x + 64 * (3 - cc)}']
        o = 128 * (1 - (x & 1)) + 16 * (3 - cc)
        return [f'ds_read2_b32 {v(r, 2)}, {v(V_CA[x >> 1])} offset0:{o} offset1:{o + 1}',
                f'ds_read2_b32 {v(r + 2, 2)}, {v(V_CA[x >> 1])} offset0:{o + 2} offset1:{o + 3}']
    fill = {}
    for n in range(8):
        at = min(fin[n] + 7, len(mf) - 1)
        fill.setdefault(at, []).append(lambda reg, n=n: I(f'ds_write_b128 {v(V_EXW)}, {v(acc + 4 * n, 4)} offset:{1280 * n}'))
    if SPEC:
        pz = P.alloc(2, 2)
        spread(fill, xt_poison(layer, pz), 3, 3)

        def early(reg):
            A.wait_vm('poison')
            global_arrive(lg=False)
        if SPEC > 9:
            fill.setdefault(SPEC, []).append(early)
    if wl and W1B:
        if WLATE == 2:
            fill.setdefault(W1B_GAP - 38, []).append(lambda reg: poll_start('1b'))
        fill.setdefault(W1B_GAP, []).append(lambda reg: wait_1b(4 if SPEC and WLATE < 2 else 0))
        spread(fill, wl, W1B_GAP + 2, (126 - W1B_GAP) / len(wl))
    elif wl:
        spread(fill, wl, W_C0, W_CSTEP)
    if layer == 0 and LATE_IN:
        with Capture() as ls:
            keep = setup_late(free=False)
        free_gaps = [m for m in range(14, 140) if m not in fill]
        for i, t in enumerate(ls):
            fill.setdefault(free_gaps[(i * len(free_gaps)) // len(ls)], []).append(lambda reg, t=t: I(t))
    stream(mf, loader, 20, 40, fill=fill, burst=12)
    P.free(acc, 32)
    if SPEC:
        P.free(pz, 2)
        A.wait_vm('poison')
    if layer == 0 and LATE_IN:
        for r in keep:
            P.free(r)
    A.barrier()
    stamp(f'conv{layer}_mm')
    ex = P.alloc(32, 2)
    for i in range(2):
        for u in range(4):
            I(f'ds_read_b128 {v(ex + 16 * i + 4 * u, 4)}, {v(V_EXR)} offset:{10240 * u + 1280 * i}')
    if SPEC == 1:
        global_arrive(bar=False)
    I(f's_mov_b32 s{S_T0}, {hex(WS_XT[layer])}')
    I(f's_mov_b32 s{S_T1}, {hex(WS_XT[layer] + 262144)}')
    for i in range(2):
        for c in range(2):
            b = base + 8 * i + 4 * c
            e = ex + 16 * i + 8 * c
            for j in (0, 2):
                pk('add', v(b + j, 2), (v(b + j, 2), 'p'), (v(e + j, 2), 'p'))
            for j in (0, 2):
                pk('add', v(b + j, 2), (v(b + j, 2), 'p'), (v(e + 4 + j, 2), 'p'))
            for j in (0, 2):
                I(f'v_cvt_pk_bf16_f32 {v(e + j // 2)}, {v(b + j)}, {v(b + j + 1)}')
            I(f'buffer_store_dwordx2 {v(e, 2)}, {v(V_XTST)}, {WS}, s{S_T0 + i} offen offset:{128 * c} sc1', tag='xtst')
    P.free(ex, 32), P.free(base, 16)
    stamp(f'conv{layer}_st')


def phi(x, tmp):
    EX = s(S_EXP, 2)
    for j in (0, 2):
        pk('fma', v(tmp + j, 2), (v(x + j, 2), 'p'), (EX, 'l'), (EX, 'h'))
    for j in range(4):
        I(f'v_exp_f32_e64 {v(tmp + j)}, {v(tmp + j)} clamp')
    for j in range(4):
        I(f'v_max_f32 {v(x + j)}, s{S_E6}, {v(x + j)}')
    for j in (0, 2):
        pk('add', v(x + j, 2), (v(x + j, 2), 'p'), (v(tmp + j, 2), 'p'))


DOTSTATS = '--dot' in sys.argv


def p3(layer, wl1, wl2):
    A.label(f'L_redo{layer}')
    for ck in range(4):
        if ck == 0:
            I(f's_lshl_b32 m0, s{S_W}, 12')
        else:
            I('s_add_u32 m0, m0, 16384')
        I(f's_mov_b32 s{S_T0}, {hex(WS_XT[layer] + ck * 16384)}')
        for j in range(4):
            I(f'buffer_load_dwordx4 {v(V_XTLD)}, {WS}, s{S_T0} offen offset:{1024 * j} sc1 lds', tag=f'xt{ck}')
        if layer == 0 and CS_C0 and ck in (1, 2):
            colsums([ck])
    acc = P.alloc(32, 4)
    ss = P.alloc(8, 4)

    def loader(k, r):
        st, i = k
        return [f'ds_read_b64_tr_b16 {v(r + 2 * z, 2)}, {v(V_XT[i])} offset:{4096 * st + 2048 * z}' for z in range(2)]
    mf = []
    fill = {}
    for st in range(16):
        for i in range(4):
            for y in (1, 2):
                def em(reg, st=st, i=i, y=y):
                    d = v(acc + 16 * (y - 1) + 4 * i, 4)
                    I(f'v_mfma_f32_16x16x32_bf16 {d}, {v(reg[(st, i)], 4)}, {wq_reg(y, st)}, {"0" if st == 0 else d}')
                mf.append((em, [(st, i)]))
            if i == 0 and not DOTSTATS:
                for y in range(2):
                    def em(reg, st=st, y=y):
                        d = v(ss + 4 * y, 4)
                        x = v(reg[(st, 0)], 4)
                        I(f'v_mfma_f32_16x16x32_bf16 {d}, {v(V_ONES, 4) if y else x}, {x}, {"0" if st == 0 else d}')
                    mf.append((em, [(st, 0)]))
            if i == 0 and DOTSTATS:
                def dots(reg, st=st):
                    for j in range(8):
                        x = v(reg[(st, 0)] + j // 2)
                        d = v(ss + (j & 1))
                        c = '0' if (st == 0 and j < 2) else d
                        I(f'v_dot2_f32_bf16 {d}, {x}, {x if j & 1 else s(S_ONES)}, {c}')
                fill.setdefault(len(mf) - 2, []).append(dots)
    per = len(mf) // 16
    if wl1:
        spread(fill, wl1, 5 * per + 3, (10.5 * per) / len(wl1))

    def mkgate(ck):
        def g():
            A.wait_vm(f'xt{ck}')
            A.barrier(lg=(ck == 0))
            if ck == 0:
                stamp(f'p3_{layer}_c0')
            if ck == 1 and SPEC:
                I(f's_cmp_lg_u32 s{S_REDO}, 1')
                I(f's_cbranch_scc1 L_nofb{layer}')
                I(f's_mov_b32 s{S_T0}, {hex(WS_FB)}')
                A._emit(Ins(f'v_mov_b32 {v(V_PA)}, 1'))
                I('s_mov_b64 exec, 1')
                A.cond = True
                I(f'buffer_atomic_add {v(V_PA)}, {v(V_ARR)}, {WS}, s{S_T0} offen')
                A.cond = False
                I('s_mov_b64 exec, -1')
                A.label(f'L_nofb{layer}')
        return g
    gate = {(4 * ck, 0): mkgate(ck) for ck in range(4)}
    stream(mf, loader, 9, per + 2, fill=fill, gate=gate, burst=8)
    stamp(f'p3_{layer}_mm')
    if DOTSTATS:
        for r in (0, 1):
            I(f'v_mov_b32 {v(ss + 2 + r)}, {v(ss + r)}')
        for r in (0, 1):
            I(f'v_permlane32_swap_b32 {v(ss + r)}, {v(ss + 2 + r)}')
        pk('add', v(ss, 2), (v(ss, 2), 'p'), (v(ss + 2, 2), 'p'))
        for r in (0, 1):
            I(f'v_mov_b32 {v(ss + 2 + r)}, {v(ss + r)}')
        for r in (0, 1):
            I(f'v_permlane16_swap_b32 {v(ss + r)}, {v(ss + 2 + r)}')
        pk('add', v(ss, 2), (v(ss, 2), 'p'), (v(ss + 2, 2), 'p'))
        pk('mul', v(ss, 2), (v(ss, 2), 'p'), (s(S_LN, 2), 'l'))
        I(f'v_fma_f32 {v(ss + 1)}, -{v(ss)}, {v(ss)}, {v(ss + 1)}')
        I(f'v_max_f32 {v(ss + 1)}, 0, {v(ss + 1)}')
        I(f'v_add_f32 {v(ss + 1)}, s{S_LN + 1}, {v(ss + 1)}')
        I(f'v_rsq_f32 {v(ss + 1)}, {v(ss + 1)}')
        I(f'v_mul_f32 {v(ss)}, {v(ss)}, {v(ss + 1)}')
        I(f'ds_write2st64_b32 {v(V_SW)}, {v(ss + 1)}, {v(ss)} offset0:0 offset1:1')
    else:
        I(f'v_cndmask_b32 {v(ss)}, {v(ss)}, {v(ss + 1)}, {s(S_M1, 2)}')
        I(f'v_cndmask_b32 {v(ss + 2)}, {v(ss + 2)}, {v(ss + 3)}, {s(S_M1, 2)}')
        I(f'v_mul_f32 {v(ss + 4)}, s{S_LN}, {v(ss + 4)}')
        I(f'v_cndmask_b32 {v(ss)}, {v(ss)}, {v(ss + 2)}, {s(S_M2, 2)}')
        I(f'v_mul_f32 {v(ss + 1)}, {v(ss + 4)}, {v(ss + 4)}')
        I(f'v_fma_f32 {v(ss + 1)}, {v(ss)}, s{S_LN}, -{v(ss + 1)}')
        I(f'v_max_f32 {v(ss + 1)}, 0, {v(ss + 1)}')
        I(f'v_add_f32 {v(ss + 1)}, s{S_LN + 1}, {v(ss + 1)}')
        I(f'v_rsq_f32 {v(ss + 1)}, {v(ss + 1)}')
        I('s_mov_b32 exec_lo, 0x00f0000f')
        I('s_mov_b32 exec_hi, 0xf0000f00')
        I(f'v_mul_f32 {v(ss)}, {v(ss + 4)}, {v(ss + 1)}')
        I(f'ds_write2st64_b32 {v(V_SW)}, {v(ss + 1)}, {v(ss)} offset0:0 offset1:1')
        I('s_mov_b64 exec, -1')
    ta = P.alloc(6, 2)
    for i in range(1, 4):
        I(f'v_xor_b32 {v(ta + 2 * i - 2)}, {64 * i}, {v(V_SR4)}')
        I(f'v_xor_b32 {v(ta + 2 * i - 1)}, {64 * i}, {v(V_SR1)}')


    def csq(lo, hi):
        if layer == 0:
            for st in range(lo, hi):
                I(f'v_mfma_f32_16x16x32_bf16 {v(V_CSQ, 4)}, {wq_reg(0, st)}, {v(V_ONES, 4)}, {v(V_CSQ, 4) if st else 0}')
    csq(0, 6)
    A.barrier()
    stamp(f'p3_{layer}_st')
    P.free(ss, 8)
    r4 = P.alloc(32, 4)
    r1 = P.alloc(8, 2)
    for i in range(4):
        a4 = ta + 2 * i - 2 if i else V_SR4
        I(f'ds_read_b128 {v(r4 + 8 * i + 4, 4)}, {v(a4)} offset:256')
        I(f'ds_read_b128 {v(r4 + 8 * i, 4)}, {v(a4)}')
    for i in range(4):
        a1 = ta + 2 * i - 1 if i else V_SR1
        I(f'ds_read2st64_b32 {v(r1 + 2 * i, 2)}, {v(a1)} offset0:0 offset1:1')
    P.free(ta, 6)
    csq(6, 16)
    tmp = P.alloc(4, 2)
    fk = P.alloc(8, 4)
    fv = P.alloc(8, 4)
    dkv, dz = P.alloc(4, 4), P.alloc(4, 4)
    E6 = s(S_E6, 2)
    for i in range(4):
        r, rm = r4 + 8 * i, r4 + 8 * i + 4
        k_, v_ = acc + 4 * i, acc + 16 + 4 * i
        for j in (0, 2):
            pk('fma', v(tmp + j, 2), (v(rm + j, 2), 'p', 'b'), bc(V_CSKV), (E6, 'p'))
        for j in (0, 2):
            pk('fma', v(k_ + j, 2), (v(k_ + j, 2), 'p'), (v(r + j, 2), 'p'), (v(tmp + j, 2), 'p'))
        for j in (0, 2):
            pk('mul', v(v_ + j, 2), (v(v_ + j, 2), 'p'), (v(r + j, 2), 'p'))
        for j in (0, 2):
            pk('fma', v(v_ + j, 2), (v(rm + j, 2), 'p', 'b'), bc(V_CSKV + 1), (v(v_ + j, 2), 'p'))
        phi(k_, tmp)
        for j in (0, 2):
            I(f'v_cvt_pk_bf16_f32 {v(fv + 2 * i + j // 2)}, {v(v_ + j)}, {v(v_ + j + 1)}')
        for j in (0, 2):
            I(f'v_cvt_pk_bf16_f32 {v(fk + 2 * i + j // 2)}, {v(k_ + j)}, {v(k_ + j + 1)}')
    if SPEC:
        I(f'v_cmp_u_f32 vcc, {v(r1 + 1)}, {v(r1 + 3)}')
        I(f'v_cmp_u_f32 s[{R_WQ}:{R_WQ + 1}], {v(r1 + 5)}, {v(r1 + 7)}')
        I(f's_or_b64 vcc, vcc, s[{R_WQ}:{R_WQ + 1}]')
        I(f's_cbranch_scc1 L_slow{layer}')
        A.label(f'L_ok{layer}')
    stamp(f'p3_{layer}_kv')
    I(f's_mov_b32 s{S_T2}, {hex(WS_KV[layer])}')
    I(f's_mov_b32 s{S_T0}, {hex(WS_KV[layer] + 32768)}')
    for hf in range(2):
        I(f'v_mfma_f32_16x16x32_bf16 {v(dkv, 4)}, {v(fv + 4 * hf, 4)}, {v(fk + 4 * hf, 4)}, {v(dkv, 4) if hf else 0}')
    for hf in range(2):
        I(f'v_mfma_f32_16x16x32_bf16 {v(dz, 4)}, {v(V_ONES, 4)}, {v(fk + 4 * hf, 4)}, {v(dz, 4) if hf else 0}')
    P.free(r4, 32), P.free(fk, 8), P.free(fv, 8), P.free(acc, 32)

    def atomics():
        for r in range(4):
            I(f'buffer_atomic_add_f32 {v(dkv + r)}, {v(V_KVST)}, {WS}, s{S_T2} offen offset:{64 * r}')
        I('s_mov_b64 exec, 0xffff')
        I(f'buffer_atomic_add_f32 {v(dz)}, {v(V_ZST)}, {WS}, s{S_T0} offen')
        I('s_mov_b64 exec, -1')
        stamp(f'p3_{layer}_atom')
    acc = P.alloc(16, 4)
    mf = []
    fill = {}
    for st in range(16):
        for i in range(4):
            def em(reg, st=st, i=i):
                d = v(acc + 4 * i, 4)
                I(f'v_mfma_f32_16x16x32_bf16 {d}, {wq_reg(0, st)}, {v(reg[(st, i)], 4)}, {"0" if st == 0 else d}')
            mf.append((em, [(st, i)]))
    if layer == 0 and '--prex2' in sys.argv:
        pcs = []
        for i in range(8):
            pcs.append([lambda i=i: I(f's_mov_b32 s{S_T1}, {hex(WS_X2[1] + 8192 * i)}'),
                        lambda: I(f'buffer_store_dword {v(V_L)}, {v(V_X2ST)}, {WS}, s{S_T1} offen sc1')])
        spread(fill, pcs, 6, 4, solo=False)
    if wl2:
        spread(fill, wl2, 4, 56 / len(wl2), solo=False)
    stream(mf, loader, 8, 6, fill=fill, rate=2, burst=10, pre=atomics)
    P.free(dkv, 4), P.free(dz, 4)
    stamp(f'p3_{layer}_qmm')
    I(f's_mov_b32 s{S_T0}, {hex(WS_PQ[layer])}')
    ta = P.alloc(4)
    for i in range(1, 4):
        I(f'v_xor_b32 {v(ta + i)}, {(i >> 1) * 32768 + (i & 1) * 512}, {v(V_PQST)}')
    for i in range(4):
        q_ = acc + 4 * i
        rr = v(r1 + 2 * i, 2)
        for j in (0, 2):
            pk('fma', v(tmp + j, 2), (rr, 'h', 'b'), (v(V_CSQ + j, 2), 'p'), (E6, 'p'))
        for j in (0, 2):
            pk('fma', v(q_ + j, 2), (v(q_ + j, 2), 'p'), (rr, 'l'), (v(tmp + j, 2), 'p'))
        phi(q_, tmp)
        for j in (0, 2):
            I(f'v_cvt_pk_bf16_f32 {v(q_ + j // 2)}, {v(q_ + j)}, {v(q_ + j + 1)}')
        I(f'buffer_store_dwordx2 {v(q_, 2)}, {v(ta + i if i else V_PQST)}, {WS}, s{S_T0} offen sc1', tag='pqst')
    stamp(f'p3_{layer}_q')
    P.free(r1, 8), P.free(tmp, 4), P.free(acc, 16), P.free(ta, 4)


P4_UP = int(([x[6:] for x in sys.argv if x.startswith('--p4up')] or ['3'])[0])


P4FL = '' if '--nosc1' in sys.argv else 'sc1'


OUTFL = ([x[6:] for x in sys.argv if x.startswith('--out=')] or [''])[0].replace('+', ' ')


P4_EARLY = [int(c) for c in ([x[8:] for x in sys.argv if x.startswith('--p4ear=')] or ['9'])[0]]


def p4_res():
    res = P.alloc(8, 2)
    for j in range(4):
        I(f'ds_read_b64_tr_b16 {v(res + 2 * j, 2)}, {v(V_RES[j & 1])} offset:{512 * j}')
    return res


def p4_pre(res, layer):
    I(f's_mov_b32 s{S_T1}, {hex(WS_KV[layer])}')
    I(f's_mov_b32 s{S_T2}, {hex(WS_PQ[layer])}')
    I(f's_mov_b32 s{S_T3}, {hex(WS_KV[layer] + 4096)}')
    I(f's_mov_b32 s{S_T4}, {hex(WS_PQ[layer] + 4096)}')
    acc = P.alloc(16, 2)
    ad = [P.alloc() for _ in range(3)]
    for b in range(1, 4):
        I(f'v_xor_b32 {v(ad[b - 1])}, {8192 * b}, {v(V_OFW)}')
    for j in range(8):
        I(f'v_lshlrev_b32 {v(acc + 2 * j)}, 16, {v(res + j)}')
        I(f'v_and_b32 {v(acc + 2 * j + 1)}, 0xffff0000, {v(res + j)}')
    P.free(res, 8)
    return acc, ad


def p4(layer, acc, ad):
    zf = P.alloc(4, 2)
    kv = P.alloc(32, 2)
    pq = P.alloc(32, 2)
    D = [P.alloc(16, 2), P.alloc(16, 2)]
    frs = [P.alloc(4, 2) for _ in range(6)]
    fr = frs[0]

    def loads(pp):
        out = []
        for j in range(2):
            out.append(f'buffer_load_dwordx4 {v(kv + 8 * pp + 4 * j, 4)}, {v(V_KVLD)}, {WS}, s{S_T3 if pp >> 1 else S_T1} offen offset:{2048 * (pp & 1) + 1024 * j} sc1')
        for j in range(2):
            out.append(f'buffer_load_dwordx4 {v(pq + 8 * pp + 4 * j, 4)}, {v(V_PQLD)}, {WS}, s{S_T4 if pp >> 1 else S_T2} offen offset:{2048 * (pp & 1) + 1024 * j} sc1')
        return out
    I(f'buffer_load_dwordx4 {v(fr, 4)}, {v(V_ZLD)}, {WS}, s{S_T1} offen sc1')
    for pp in range(P4_UP):
        for i, t in enumerate(loads(pp)):
            I(t)
            if pp == 0 and i == 1:
                A.barrier()
        if pp < P4_UP - 1:
            A.barrier()
    late = [t for pp in range(P4_UP, 4) for t in loads(pp)]
    stamp(f'p4_{layer}_iss')
    for j in range(4):
        I(f'v_cvt_pk_bf16_f32 {v(zf + j)}, {v(fr + 2 * (j & 1))}, {v(fr + 1 + 2 * (j & 1))}')
    stamp(f'p4_{layer}_z')
    MK = s(S_MASK, 2)

    def prep(pp):
        x = kv + 8 * pp
        o = [f'v_cvt_pk_bf16_f32 {v(x + j)}, {v(x + 2 * j)}, {v(x + 2 * j + 1)}' for j in range(4)]
        if pp == 0:
            o += [f'v_permlane16_swap_b32 {v(zf + j)}, {v(zf + 2 + j)}' for j in range(2)]
        o += [f'v_cndmask_b32 {v(x + 4 + j)}, {v(zf + j)}, {v(x + j)}, {MK}' for j in range(4)]
        o += [f'v_cndmask_b32 {v(x + j)}, {v(x + j)}, {v(zf + j)}, {MK}' for j in range(4)]
        return o

    def mm(hh):
        I(f'v_mfma_f32_32x32x16_bf16 {v(D[hh & 1], 16)}, {v(kv + 4 * hh, 4)}, {v(pq + 4 * hh, 4)}, 0')

    def main_mm(hl, r):
        I(f'v_mfma_f32_32x32x16_bf16 {v(acc, 16)}, {wo_reg(hl)}, {v(r, 4)}, {v(acc, 16)}')

    def norm(pp):
        den = [D[o] + 8 * (1 - o) + 2 * pp + o for o in range(2)]
        out = []
        for o in range(2):
            num = D[o] + 8 * o
            of = pq + 8 * pp + 4 * o
            out.append(f'v_add_f32 {v(den[o])}, s{S_E6}, {v(den[o])}')
            out.append(f'v_rcp_f32 {v(den[o])}, {v(den[o])}')
            out += [f'v_mul_f32 {v(num + j)}, {v(den[o])}, {v(num + j)}' for j in range(8)]
            out += [f'v_cvt_pk_bf16_f32 {v(of + j)}, {v(num + 2 * j)}, {v(num + 2 * j + 1)}' for j in range(4)]
            out.append(f'ds_write_b128 {v(V_OFW)}, {v(of, 4)} offset:{2048 * pp + 1024 * o}')
        out[2:2] = [out.pop(15), out.pop(15)]
        return out

    def reads(pp):
        return [f'ds_read_b128 {v(frs[2 * (b - 1) + o], 4)}, {v(ad[b - 1])} offset:{2048 * pp + 1024 * o}' for b in range(1, 4) for o in range(2)]
    for t in prep(0):
        I(t)
    for pp in range(5):
        rd = reads(pp - 1) if pp else []
        tail = []
        if pp:
            tail = [(2 * pp - 2 + o, pq + 8 * pp - 8 + 4 * o) for o in range(2)]
            tail += [(8 * b + 2 * pp - 2 + o, frs[2 * (b - 1) + o]) for b in range(1, 4) for o in range(2)]
        if pp < 4:
            for o in range(2):
                mm(2 * pp + o)
                for t in rd[3 * o:3 * o + 3]:
                    I(t)
            while late:
                I(late.pop(0))
            stamp(f'p4_{layer}_m{pp}')
            va = norm(pp)
            nx = prep(pp + 1) if pp < 3 else []
            if pp in P4_EARLY:
                va = nx[:4] + va + nx[4:]
                cuts = (0, 6, 11, 16, 20, 21, 27, 33)
            else:
                va = va + nx
                cuts = (0, 1, 6, 11, 16, 22, 29, 34) if pp < 3 else (0, 1, 7, 12, 16, 22, 29)
            for i, t in enumerate(va):
                if i in cuts and tail:
                    if len(tail) == 6:
                        A.need(v(frs[2], 4))
                    if len(tail) == 3:
                        A.need(v(frs[5], 4))
                    main_mm(*tail.pop(0))
                I(t)
            for x in tail:
                main_mm(*x)
            A.barrier()
        else:
            for i, x in enumerate(tail):
                for t in rd[2 * i:2 * i + 2]:
                    I(t)
                main_mm(*x)
    P.free(zf, 4), P.free(kv, 32), P.free(pq, 32), P.free(D[0], 16), P.free(D[1], 16)
    for r in frs:
        P.free(r, 4)
    for r in ad:
        P.free(r)
    stamp(f'p4_{layer}_mm')
    o = P.alloc(8, 2)
    if layer == 0:
        I(f's_mov_b32 s{S_T1}, {hex(WS_ST[1])}')
    else:
        ta = P.alloc(3)
        I(f'v_and_b32 {v(ta)}, 31, {v(V_L)}')
        I(f'v_mul_u32_u24 {v(ta)}, 272, {v(ta)}')
        I(f'v_and_b32 {v(ta + 1)}, 0xff, {v(V_TILE)}')
        I(f'v_add_u32 {v(ta)}, {v(ta)}, {v(ta + 1)}')
        I(f'v_lshrrev_b32 {v(ta + 1)}, 4, v0')
        I(f'v_readfirstlane_b32 s{S_T0}, {v(V_TILE)}')
        I(f'v_and_b32 {v(ta + 2)}, 0xf0, {v(V_L16)}')
        I(f's_and_b32 s{S_T0}, s{S_T0}, 0xffffff00')
        I(f'v_mad_u32_u24 {v(o)}, {v(ta + 1)}, 17, 0')
        I(f'v_lshl_add_u32 {v(ta + 1)}, {v(ta + 1)}, 10, s{S_T0}')
        I(f'v_add_u32 {v(ta + 1)}, {v(ta + 1)}, {v(ta + 2)}')
        I(f'v_lshl_add_u32 {v(ta + 2)}, {v(o)}, 4, {v(ta + 2)}')
    for j in range(8):
        I(f'v_cvt_pk_bf16_f32 {v(o + j)}, {v(acc + 2 * j)}, {v(acc + 2 * j + 1)}')
    if layer == 0:
        ss = P.alloc(2, 2)
        for j in range(8):
            I(f'v_dot2_f32_bf16 {v(ss)}, {v(o + j)}, s{S_ONES}, {v(ss) if j else 0}')
            I(f'v_dot2_f32_bf16 {v(ss + 1)}, {v(o + j)}, {v(o + j)}, {v(ss + 1) if j else 0}')
        I(f'v_permlane32_swap_b32 {v(ss)}, {v(ss + 1)}')
        I(f'v_add_f32 {v(ss)}, {v(ss)}, {v(ss + 1)}')
        I(f'buffer_atomic_add_f32 {v(ss)}, {v(V_STAT)}, {WS}, s{S_T1} offen')
        x2store(1, o)
        P.free(ss, 2)
    elif '--dirout' in sys.argv:
        for j in range(2):
            I(f'global_store_dwordx4 {v(V_TILE)}, {v(o + 4 * j, 4)}, {s(S_OUT, 2)} offset:{16 * j} {OUTFL}')
        P.free(ta, 3)
    else:
        for j in range(2):
            I(f'ds_write_b128 {v(ta)}, {v(o + 4 * j, 4)} offset:{L_A + 16 * j}')
        I(f'v_add_u32 {v(ta)}, 16384, {v(ta + 1)}')
        A.barrier()
        for j in range(2):
            I(f'ds_read_b128 {v(o + 4 * j, 4)}, {v(ta + 2)} offset:{L_A + 16 * 272 * j}')
        for j in range(2):
            I(f'global_store_dwordx4 {v(ta + 1 - j)}, {v(o + 4 * j, 4)}, {s(S_OUT, 2)} {OUTFL}')
        P.free(ta, 3)
    P.free(o, 8), P.free(acc, 16)
    stamp(f'p4_{layer}_st')


def main():
    kg, gi, fin = prologue()
    kg['fin'] = fin
    order = [('q', y, st) for st in range(16) for y in (1, 2)] + [('q', 0, st) for st in range(16)] + [('o', h) for h in range(32)]
    wl = wloads(order)

    def take(n):
        out = wl[:n]
        del wl[:n]
        return out
    bar = 1
    for layer in range(2):
        I(f's_lshl_b32 s{S_T3}, s2, 13')
        I(f's_add_u32 s{S_T3}, s{S_T3}, {hex(WS_X2[layer])}')
        I(f's_mov_b32 s{S_T1}, {hex(WS_ST[layer])}')
        I(f's_mov_b32 s{S_T2}, {hex(WS_ST[layer] + 8192)}')
        stamp(f'pre_wait{bar}')
        global_wait(bar, started=(layer == 0))
        stamp(f'wait{bar}')
        conv(layer, kg, gi, take(WN[0]))
        if SPEC:
            poll_start(bar + 1)
        if layer == 0:
            for th in take(WN[1]):
                run_all(th)
            if not LATE_IN:
                setup_late()
        if not SPEC:
            A.wait_vm('xtst')
            global_arrive()
        bar += 1
        stamp(f'arr{bar}')
        if layer == 0:
            for th in take(WN[2]):
                run_all(th)
        if not SPEC:
            poll_start(bar)
        if layer == 0 and not CS_C0:
            colsums([1, 2])
        stamp(f'pre_wait{bar}')
        I(f's_mov_b32 s{S_REDO}, s{S_W}')
        global_wait(bar, started=True, gap=True)
        stamp(f'wait{bar}')
        p3(layer, take(WN[3]), take(WN[4]))
        for th in take(WN[5]):
            run_all(th)
        A.wait_vm('pqst')
        global_arrive()
        bar += 1
        stamp(f'arr{bar}')
        for th in take(99):
            run_all(th)
        if layer == 0:
            P.free(V_WLD, 2)
        poll_start(bar)
        acc, ad = p4_pre(p4_res(), layer)
        global_wait(bar, started=True)
        stamp(f'wait{bar}')
        p4(layer, acc, ad)
        if layer == 0:
            A.wait_vm()
            global_arrive()
            bar += 1
    if DIAG:
        A.wait_vm()
        stamp('end')
        A._wait(lg=0)
        t = P.alloc(2)
        I(f's_lshl_b32 s{S_T0}, s2, 2')
        I(f's_add_u32 s{S_T0}, s{S_T0}, s{S_W}')
        I(f's_lshl_b32 s{S_T0}, s{S_T0}, 7')
        I(f's_add_u32 s{S_T0}, s{S_T0}, {hex(WS_DIAG)}')
        I(f'v_mov_b32 {v(t + 1)}, 0')
        I('s_mov_b64 exec, 1')
        for k in range(nstamp[0]):
            I(f'v_mov_b32 {v(t)}, s{S_STAMP + 2 * k}')
            I(f'buffer_store_dword {v(t)}, {v(t + 1)}, {WS}, s{S_T0} offen offset:{4 * k}')
        pr = [x for x in sys.argv if x.startswith('--probe=')]
        if pr:
            nm = pr[0][8:]
            if ':' in nm:
                a_, b_ = [stamp_names.index(x) for x in nm.split(':')]
                I(f's_sub_u32 s{S_T1}, s{S_STAMP + 2 * b_}, s{S_STAMP + 2 * a_}')
                I(f's_mul_i32 s{S_T1}, s{S_T1}, 10')
                I(f's_cmp_eq_u32 s2, {([x[6:] for x in sys.argv if x.startswith("--pwg=")] or [100])[0]}')
                I(f's_cselect_b32 s{S_T1}, s{S_T1}, 0')
                I(f's_add_u32 s{S_T1}, s{S_T1}, s{S_STAMP}')
                I(f's_add_u32 s{S_T1}, s{S_T1}, 6000')
            else:
                k = stamp_names.index(nm)
                I(f's_add_u32 s{S_T1}, s{S_STAMP + 2 * k}, 6000')
            A.label('L_probe')
            I('s_memrealtime s[4:5]')
            A._wait(lg=0)
            I(f's_sub_u32 s{S_T0}, s4, s{S_T1}')
            I(f's_cmp_lt_i32 s{S_T0}, 0')
            I('s_cbranch_scc1 L_probe')
        I(f's_lshl_b32 s{S_T0}, s2, 2')
        I(f's_add_u32 s{S_T0}, s{S_T0}, s{S_W}')
        I(f's_cmp_lg_u32 s{S_T0}, 400')
        I('s_cbranch_scc1 L_end')
        sel = list(range(1, nstamp[0]))
        for j, k in enumerate(sel):
            I(f's_sub_u32 s{S_T0}, s{S_STAMP + 2 * k}, s{S_STAMP}')
            I(f'v_mov_b32 {v(t)}, s{S_T0}')
            I(f'global_store_dword {v(t + 1)}, {v(t)}, {s(S_DBG, 2)} offset:{4 * (j + 1)}')
        print('debug stamps:', [stamp_names[k] for k in sel], file=sys.stderr)
        P.free(t, 2)
    A.label('L_end')
    A.raw('    s_endpgm')
    A.raw('#seg -')
    for layer in range(2 if SPEC else 0):
        raw = lambda t: A._emit(Ins(t))
        A.label(f'L_slow{layer}')
        raw(f's_cmp_ge_u32 s{S_REDO}, 12')
        raw(f's_cbranch_scc1 L_ok{layer}')
        raw(f's_add_u32 s{S_REDO}, s{S_REDO}, 4')
        raw('s_waitcnt vmcnt(0) lgkmcnt(0)')
        raw(f's_cmp_lg_u32 s{S_W}, 0')
        raw(f's_cbranch_scc1 L_slowb{layer}')
        if DIAG:
            raw(f'v_mov_b32 {v(V_PA)}, 1')
            raw(f'v_mov_b32 {v(V_PA + 1)}, 0')
            raw('s_mov_b64 exec, 1')
            raw(f'global_atomic_add {v(V_PA + 1)}, {v(V_PA)}, {s(S_DBG, 2)} offset:{128 + 4 * layer}')
        raw(f's_mov_b32 s{S_SPIN}, 0x100000')
        raw(f's_mov_b32 s{S_T0}, {hex(WS_FB)}')
        raw(f's_movk_i32 s{S_T1}, {32 * (layer + 1)}')
        raw('s_mov_b64 exec, 0xff')
        raw(f'v_lshlrev_b32 {v(V_PA + 1)}, 7, {v(V_L)}')
        A.label(f'L_slowp{layer}')
        raw(f'v_mov_b32 {v(V_PA)}, 0')
        raw(f'buffer_atomic_add {v(V_PA)}, {v(V_PA + 1)}, {WS}, s{S_T0} offen sc0')
        raw(f's_sub_u32 s{S_SPIN}, s{S_SPIN}, 1')
        raw(f's_cbranch_scc1 L_slowd{layer}')
        raw('s_waitcnt vmcnt(0)')
        raw(f'v_cmp_gt_u32 vcc, s{S_T1}, {v(V_PA)}')
        raw(f's_cbranch_vccnz L_slowp{layer}')
        A.label(f'L_slowd{layer}')
        raw('s_mov_b64 exec, -1')
        raw('s_waitcnt vmcnt(0)')
        A.label(f'L_slowb{layer}')
        raw('s_barrier')
        raw(f's_branch L_redo{layer}')

    lines, info = layout(A.out, align='--noalign' not in sys.argv, touch='--notouch' not in sys.argv)
    body = '\n'.join(lines) + '\n'
    print(info, file=sys.stderr)
    ref = open(f'cdna_kernels/{NAME}.s.ref').read().splitlines()
    head = []
    for ln in ref:
        if ln.startswith('; @launch'):
            head.append(f'; @launch grid=(256,1,1) block=(256,1,1) lds={L_END}')
            break
        head.append(ln)
    txt = '\n'.join(head) + f'''
.amdgcn_target "amdgcn-amd-amdhsa--gfx950"
.text
.globl {NAME}_kernel
.p2align 12
.p2align 8
.type {NAME}_kernel,@function
{NAME}_kernel:
''' + body + f'''.section .rodata,"a"
.p2align 6
.amdhsa_kernel {NAME}_kernel
  .amdhsa_next_free_vgpr 512
  .amdhsa_next_free_sgpr 102
  .amdhsa_accum_offset 256
  .amdhsa_group_segment_fixed_size 0
  .amdhsa_kernarg_size 120
  .amdhsa_user_sgpr_count 2
  .amdhsa_user_sgpr_kernarg_segment_ptr 1
  .amdhsa_system_sgpr_workgroup_id_x 1
.end_amdhsa_kernel
'''
    out = [x for x in sys.argv[1:] if not x.startswith('--')]
    path = out[0] if out else f'cdna_kernels/{NAME}.s'
    open(path, 'w').write(txt)
    if DIAG:
        open(path + '.stamps', 'w').write('\n'.join(stamp_names))
    print(f'wrote {path}: {A.ninstr} instrs, {A.nnop} nop states, vgpr peak {P.peak}, lds {L_END}', file=sys.stderr)


main()
```

```python
import sys, struct, math
from emit import *
from layout import layout

NAME = 'interleave_layers__ssm_conv_s4__linear_attn_block__prompt'
DIAG = '--diag' in sys.argv


def f32(x):
    return '0x%08x' % struct.unpack('<I', struct.pack('<f', x))[0]


WS_CNT = 0x0
WS_ZERO = 0x10000
WS_KV = [WS_ZERO, WS_ZERO + 0xC000]
WS_ST = [0x30000, WS_ZERO + 0x18000]
WS_FB = WS_ZERO + 0x1C000
WS_DIAG = 0x40000
WS_X2 = [0x200000, 0x400000]
WS_XT = [0x600000, 0x800000]
WS_PQ = [0xA00000, 0xC00000]
WS_WT = 0xE00000
WS_WTO = WS_WT + 0x180000
WS_SIZE = 0x1000000

L_A = 0
L_B = 65536
L_RK = 131072
L_H = L_RK + 4 * 4160
L_STAT = L_H + 2 * 4608
L_END = L_STAT + 512
KG_ARR = 18
KG_POLL = 36
KG_ROW = 288
KG_W = 54 * KG_ROW

S_U, S_ARE, S_AIM, S_BRE, S_BIM, S_CRE, S_CIM, S_LDT, S_DSK = 4, 6, 8, 10, 12, 14, 16, 18, 20
S_WQKV, S_WO, S_OUT, S_DBG, S_WS = 24, 26, 28, 30, 32
R_WS, R_WQ, R_WO = 36, 40, 44
S_W, S_RB, S_CG, S_NB, S_TH = 48, 49, 50, 51, 52
S_T0, S_T1, S_T2 = 53, 54, 55
S_D = 56
S_MASK = 58
S_ONES = 60
S_SPIN = 61
S_LN = 62
S_EXP = 64
S_E6 = 66
S_T3, S_T4 = 68, 69
S_STAMP = 70
S_REDO = 47
S_W17 = 3
S_M1, S_M2 = 22, 34

A = Asm()
I = A.I
P = Pool(1, 192)
P.force4 = '--al4' in sys.argv
WS = s(R_WS, 4)
nstamp = [0]
stamp_names = []


STSEL = [x[5:].split(',') for x in sys.argv if x.startswith('--st=')]
STSEL = STSEL[0] if STSEL else None


def stamp(name, fine=False):
    if not DIAG:
        return
    if name not in ('entry', 'end'):
        if STSEL is None:
            if fine or not name.startswith(('wait', 'arr')):
                return
        elif not any(name.startswith(p) for p in STSEL):
            return
    k = nstamp[0]
    assert k < 16, 'too many stamps'
    I(f'{"s_memtime" if "--cyc" in sys.argv else "s_memrealtime"} s[{S_STAMP + 2 * k}:{S_STAMP + 2 * k + 1}]')
    stamp_names.append(name)
    nstamp[0] += 1


def pk(op, dst, *srcs):
    sel, selhi, nlo, nhi, txt = [], [], [], [], []
    for sr in srcs:
        t, m = sr[0], sr[1]
        ng = sr[2] if len(sr) > 2 else ''
        txt.append(t)
        sel.append(1 if m in 'hx' else 0)
        selhi.append(1 if m in 'ph' else 0)
        nlo.append(1 if ng in ('l', 'b') else 0)
        nhi.append(1 if ng in ('h', 'b') else 0)
    f = lambda l: '[' + ','.join(map(str, l)) + ']'
    line = f'v_pk_{op}_f32 {dst}, ' + ', '.join(txt) + f' op_sel:{f(sel)} op_sel_hi:{f(selhi)}'
    if any(nlo):
        line += f' neg_lo:{f(nlo)}'
    if any(nhi):
        line += f' neg_hi:{f(nhi)}'
    I(line)


def bc(r):
    return (v(r & ~1, 2), 'h' if r & 1 else 'l')


def cmul(d, x, y, tmp):
    pk('mul', v(tmp, 2), (v(x, 2), 'l'), (v(y, 2), 'p'))
    pk('fma', v(d, 2), (v(x, 2), 'h', 'l'), (v(y, 2), 'x'), (v(tmp, 2), 'p'))


def wq_reg(y, st):
    return a((y * 16 + st) * 4, 4)


def wo_reg(h, n=4, off=0):
    if h < 16:
        return a(192 + 4 * h + off, n)
    return v(192 + 4 * (h - 16) + off, n)


V_L = P.alloc()
V_L16 = P.alloc()
V_XT = [P.alloc() for _ in range(4)]
V_TILE = P.alloc()
V_X2ST = P.alloc()
V_STAT = P.alloc()
V_CVL = P.alloc()
V_HW = P.alloc()
V_CA = [P.alloc() for _ in range(4)]
V_CB = P.alloc()
V_EXW = P.alloc()
V_EXR = P.alloc()
V_XTST = P.alloc()
V_XTLD = P.alloc()
V_PQST = P.alloc()
V_KVST = P.alloc()
V_ZST = P.alloc()
V_PQLD = P.alloc()
V_KVLD = P.alloc()
V_ZLD = P.alloc()
V_OFW = P.alloc()
V_RES = [P.alloc(), P.alloc()]
V_SW = P.alloc()
V_SR4 = P.alloc()
V_SR1 = V_SW
V_ARR = P.alloc()
V_POLL = P.alloc()
V_PA = P.alloc(2)
V_WLD = P.alloc(2)
POLL_GAP = 4
V_CSKV = P.alloc(2)
V_CSQ = P.alloc(4)
V_ONES = P.alloc(4)


def global_arrive(first=None, bar=True, lg=True):
    if bar:
        A.barrier(lg=lg and not first)
    lab = f'L_arr{global_arrive.n}'
    global_arrive.n += 1
    I(f's_cmp_lg_u32 s{S_W}, 0')
    I(f's_cbranch_scc1 {lab}')
    t = P.alloc()
    if first:
        flag, zero = first
        I(f's_mov_b32 s{S_SPIN}, 0x200000')
        A.label(lab + '_init')
        I(f'v_readfirstlane_b32 s{S_T0}, {v(flag)}')
        I(f's_sub_u32 s{S_SPIN}, s{S_SPIN}, 1')
        I(f's_cbranch_scc1 {lab}_go')
        I(f's_cmp_lg_u32 s{S_T0}, 0')
        I(f's_cbranch_scc1 {lab}_go')
        A.cond = True
        I(f'global_load_dword {v(flag)}, {v(zero)}, {s(S_DBG, 2)} sc1')
        A.cond = False
        A._wait(vm=0)
        A.vm.pop()
        I(f's_branch {lab}_init')
        A.label(lab + '_go')
    I(f'v_mov_b32 {v(t)}, 1')
    I('s_mov_b32 exec_hi, 0')
    A.cond = True
    I(f'buffer_atomic_add {v(t)}, {v(V_ARR)}, {WS}, 0 offen')
    A.cond = False
    I('s_mov_b64 exec, -1')
    P.free(t)
    A.label(lab)


global_arrive.n = 0


WLATE = int(([x[8:] for x in sys.argv if x.startswith('--wlate=')] or ['0'])[0])
W1B = '--w1b' in sys.argv
W1B_GAP = int(([x[6:] for x in sys.argv if x.startswith('--g1b=')] or ['14'])[0])


def arrive_1b():
    I(f's_cmp_lg_u32 s{S_W}, 1')
    I('s_cbranch_scc1 L_arr1b')
    A._emit(Ins(f'v_mov_b32 {v(V_PA)}, 0x10000'))
    I('s_mov_b32 exec_hi, 0')
    A.cond = True
    I(f'buffer_atomic_add {v(V_PA)}, {v(V_ARR)}, {WS}, 0 offen')
    A.cond = False
    I('s_mov_b64 exec, -1')
    A.label('L_arr1b')


def wait_1b(nyounger):
    raw = lambda t: A._emit(Ins(t))
    I(f's_cmp_lg_u32 s{S_W}, 0')
    I('s_cbranch_scc1 L_w1b')
    I('s_mov_b64 exec, 0xff')
    I(f's_mov_b32 s{S_SPIN}, 0x200000')
    raw(f's_waitcnt vmcnt({nyounger})')
    raw(f'v_cmp_gt_u32 vcc, s{S_SPIN}, {v(V_PA)}')
    raw('s_cbranch_vccz L_w1b_done')
    I(f's_mov_b32 s{S_REDO}, 0x100000')
    A.label('L_w1b_poll')
    _poll(V_PA)
    raw(f's_sub_u32 s{S_REDO}, s{S_REDO}, 1')
    raw('s_cbranch_scc1 L_w1b_done')
    raw('s_waitcnt vmcnt(0)')
    raw(f'v_cmp_gt_u32 vcc, s{S_SPIN}, {v(V_PA)}')
    raw('s_cbranch_vccnz L_w1b_poll')
    A.label('L_w1b_done')
    I('s_mov_b64 exec, -1')
    A.label('L_w1b')
    A.barrier(lg=False)


def _poll(r):
    A._emit(Ins(f'v_mov_b32 {v(r)}, 0'))
    A._emit(Ins(f'buffer_atomic_add {v(r)}, {v(V_POLL)}, {WS}, 0 offen sc0'))


def poll_start(k):
    lab = f'L_ps{k}'
    I(f's_cmp_lg_u32 s{S_W}, 0')
    I(f's_cbranch_scc1 {lab}')
    I('s_mov_b64 exec, 0xff')
    _poll(V_PA)
    I('s_mov_b64 exec, -1')
    A.label(lab)
    A.vm.append(dict(defs=set(), tag=None, cond=True))


def global_wait(k, started=False, gap=False):
    lab = f'L_wait{k}'
    I(f's_cmp_lg_u32 s{S_W}, 0')
    I(f's_cbranch_scc0 {lab}_w0')
    A.raw(f'#touch s{k}')
    I(f's_branch {lab}')
    A.label(lab + '_w0')
    pa, pb = V_PA, V_PA + 1
    raw = lambda t: A._emit(Ins(t))
    I('s_mov_b64 exec, 0xff')
    if not started:
        _poll(pa)
    I(f's_mov_b32 s{S_SPIN}, 0x100000')
    I(f's_mov_b32 s{S_T0}, {hex(32 * k + (0x200000 if W1B and k > 1 else 0))}')
    msk = (lambda r: raw(f'v_and_b32 {v(r)}, 0xffff, {v(r)}')) if W1B and k == 1 else (lambda r: None)
    if not started or gap:
        raw(f's_sleep {POLL_GAP}')
    A.label(lab + '_poll')
    _poll(pb)
    raw('s_waitcnt vmcnt(1)')
    msk(pa)
    raw(f'v_cmp_gt_u32 vcc, s{S_T0}, {v(pa)}')
    raw(f's_cbranch_vccz {lab}_done')
    _poll(pa)
    raw(f's_sub_u32 s{S_SPIN}, s{S_SPIN}, 1')
    raw(f's_cbranch_scc1 {lab}_done')
    raw('s_waitcnt vmcnt(1)')
    msk(pb)
    raw(f'v_cmp_gt_u32 vcc, s{S_T0}, {v(pb)}')
    raw(f's_cbranch_vccnz {lab}_poll')
    A.label(lab + '_done')
    I('s_mov_b64 exec, -1')
    A.vm.append(dict(defs=set(), tag=None, cond=True))
    A.label(lab)
    A.raw(f'#seg s{k}')
    A.barrier()


WIL = '--nowil' not in sys.argv


def wloads(frags):
    out = []
    for f in frags:
        if f[0] == 'q':
            off, reg, va = WS_WT + (f[1] * 16 + f[2]) * (32768 if WIL else 1024), wq_reg(f[1], f[2]), V_WLD
        else:
            off, reg, va = WS_WTO + f[1] * (16384 if WIL else 1024), wo_reg(f[1]), V_WLD + 1
        th = []
        grp = off & ~4095
        so = S_T4 if f[:2] == ('q', 2) else S_T3
        if wloads.cur.get(so) != grp:
            if f[0] == 'o':
                assert WIL
                th.append(lambda grp=grp, so=so: I(f's_xor_b32 s{so}, s{S_W17}, {hex(grp)}'))
            else:
                th.append(lambda grp=grp, so=so: I(f's_mov_b32 s{so}, {hex(grp)}'))
            wloads.cur[so] = grp

        def ld(off=off, reg=reg, va=va, so=so):
            I(f'buffer_load_dwordx4 {reg}, {v(va)}, {WS}, s{so} offen offset:{off & 4095} sc1')
        ld.lds = True
        th.append(ld)
        out.append(th)
    return out


wloads.cur = {}


def run_all(th):
    for t in th:
        t()


def spread(fill, pieces, start, step, solo=True):
    for i, th in enumerate(pieces):
        at = start + int(i * step)
        for j, t in enumerate(th):
            f = lambda reg, t=t: t()
            f.lds = getattr(t, 'lds', False) and solo
            fill.setdefault(max(0, at - (len(th) - 1 - j)), []).append(f)


def colsums(ys):
    d = {y: V_CSQ if y == 0 else P.alloc(4, 2) for y in ys}
    for y in ys:
        for st in range(16):
            c = '0' if st == 0 else v(d[y], 4)
            if y == 0:
                I(f'v_mfma_f32_16x16x32_bf16 {v(d[y], 4)}, {wq_reg(y, st)}, {v(V_ONES, 4)}, {c}')
            else:
                I(f'v_mfma_f32_16x16x32_bf16 {v(d[y], 4)}, {v(V_ONES, 4)}, {wq_reg(y, st)}, {c}')
    for y in ys:
        if y:
            I(f'v_mov_b32 {v(V_CSKV + y - 1)}, {v(d[y])}')
            P.free(d[y], 4)


def stream(mf, loader, nslots, look, fill=None, gate=None, rate=1, burst=9, pre=None):
    fill = fill or {}
    gate = gate or {}
    first, last, order = {}, {}, []
    for m, (_, keys) in enumerate(mf):
        for k in keys:
            if k not in first:
                first[k] = m
                order.append(k)
            last[k] = m
    slots = [P.alloc(4, 2) for _ in range(nslots)]
    free = list(slots)
    reg = {}
    pend = []
    nxt = [0]

    def start_key():
        k = order[nxt[0]]
        nxt[0] += 1
        if k in gate:
            gate[k]()
        reg[k] = free.pop(0)
        pend.extend(loader(k, reg[k]))

    def issue(n, m, force=False):
        while n > 0:
            if not pend:
                if nxt[0] >= len(order) or not free:
                    return
                if first[order[nxt[0]]] > m + look:
                    return
                start_key()
            I(pend.pop(0))
            n -= 1

    issue(burst, -1)
    if pre:
        pre()
    for m, (em, keys) in enumerate(mf):
        while any(k not in reg for k in keys) or (pend and order[nxt[0] - 1] in keys):
            assert pend or free, 'no free slot'
            if not pend:
                start_key()
            I(pend.pop(0))
        em(reg)
        for k in keys:
            if last[k] == m:
                free.append(reg[k])
        fl = fill.get(m, [])
        solo = any(getattr(th, 'lds', False) for th in fl)
        if not solo:
            issue(1, m)
        for th in fl:
            th(reg)
        if rate > 1 and not solo:
            if m + 1 < len(mf):
                nk = mf[m + 1][1]
                if all(k in reg for k in nk) and not (pend and order[nxt[0] - 1] in nk):
                    A.need(', '.join(v(reg[k], 4) for k in nk))
            issue(rate - 1, m)
    for r in slots:
        P.free(r, 4)


ORDER = int(([x[8:] for x in sys.argv if x.startswith('--order=')] or ['8'])[0])


WPF = int(([x[6:] for x in sys.argv if x.startswith('--wpf=')] or ['2'])[0])


WN = [int(x) for x in ([x[5:] for x in sys.argv if x.startswith('--wn=')] or ['24,8,0,24,0,8'])[0].split(',')]
assert sum(WN[:3]) >= 32 and sum(WN[:4]) >= 48
W_C0 = 16
W_CSTEP = 112 / WN[0]
LATE_IN = '--nolatein' not in sys.argv
CS_C0 = '--nocsc0' not in sys.argv


SPEC = int(([x[7:] for x in sys.argv if x.startswith('--spec=')] or ['1'])[0])


def xt_poison(layer, t):
    out = []
    for i in range(2):
        for c in range(2):
            th = []
            if i == 0 and c == 0:
                th += [lambda j=j: I(f'v_mov_b32 {v(t + j)}, -1') for j in range(2)]
            if c == 0:
                th.append(lambda i=i: I(f's_mov_b32 s{S_T2}, {hex(WS_XT[layer] + 262144 * i)}'))

            def st(c=c):
                I(f'buffer_store_dwordx2 {v(t, 2)}, {v(V_XTST)}, {WS}, s{S_T2} offen offset:{128 * c} sc1', tag='poison')
            st.lds = True
            th.append(st)
            out.append(th)
    return out


class Capture:
    def __enter__(self):
        global I
        self.lines = []
        self.old = I
        I = lambda t, tag=None: self.lines.append(t)
        return self.lines

    def __exit__(self, *a):
        global I
        I = self.old


XPF = int(([x[6:] for x in sys.argv if x.startswith('--xpf=')] or ['0'])[0])
XPF2 = '--xpf2' in sys.argv


NTSEL = ([x[5:] for x in sys.argv if x.startswith('--nt=')] or ['abpw'])[0]
NT = lambda c: ' nt' if c in NTSEL else ''


def lane_fields():
    f = [P.alloc() for _ in range(5)]
    I(f'v_and_b32 {v(f[0])}, 15, {v(V_L)}')
    I(f'v_lshrrev_b32 {v(f[1])}, 4, {v(V_L)}')
    I(f'v_lshrrev_b32 {v(f[2])}, 5, {v(V_L)}')
    return f


def setup_conv(va_, vg, x0, x1):
    I(f'v_lshl_add_u32 {v(V_CVL)}, s{S_W}, 11, {v(V_L16)}')
    I(f'v_lshrrev_b32 {v(V_HW)}, 1, {v(V_CVL)}')
    I(f'v_add_u32 {v(V_HW)}, {L_H + 512}, {v(V_HW)}')
    I(f's_lshr_b32 s{S_T0}, s{S_W}, 1')
    I(f's_and_b32 s{S_T1}, s{S_W}, 1')
    I(f's_mul_i32 s{S_T3}, s{S_T0}, 4608')
    I(f's_lshl_b32 s{S_T4}, s{S_T1}, 8')
    I(f's_sub_u32 s{S_T3}, s{S_T3}, s{S_T4}')
    I(f's_add_u32 s{S_T3}, s{S_T3}, {L_H + 512 - 32 - 192}')
    I(f'v_lshl_add_u32 {v(V_CB)}, {v(va_)}, 5, s{S_T3}')
    I(f'v_lshl_add_u32 {v(V_CB)}, {v(vg)}, 4, {v(V_CB)}')
    I(f's_mul_i32 s{S_T3}, s{S_T0}, 8320')
    I(f's_sub_u32 s{S_T3}, s{S_T3}, s{S_T4}')
    I(f's_add_u32 s{S_T3}, s{S_T3}, {L_RK + 4160 + 4 * (1015 - 176)}')
    I(f'v_and_b32 {v(x0)}, 1, {v(va_)}')
    I(f'v_mul_u32_u24 {v(x0)}, 4160, {v(x0)}')
    I(f'v_lshrrev_b32 {v(x1)}, 1, {v(va_)}')
    I(f'v_lshl_add_u32 {v(x0)}, {v(x1)}, 2, {v(x0)}')
    I(f'v_lshl_add_u32 {v(x1)}, {v(vg)}, 4, s{S_T3}')
    I(f'v_sub_u32 {v(V_CA[0])}, {v(x1)}, {v(x0)}')
    for i in range(1, 4):
        I(f'v_subrev_u32 {v(V_CA[i])}, {1024 * i}, {v(V_CA[0])}')
    I(f's_mul_i32 s{S_T3}, s{S_W}, 10240')
    I(f's_add_u32 s{S_T3}, s{S_T3}, {L_B}')
    I(f'v_lshl_add_u32 {v(V_EXW)}, {v(vg)}, 6, s{S_T3}')
    I(f'v_add_u32 {v(V_EXW)}, {v(V_EXW)}, {v(V_L16)}')
    I(f's_mul_i32 s{S_T3}, s{S_W}, 2560')
    I(f's_add_u32 s{S_T3}, s{S_T3}, {L_B}')
    I(f'v_and_b32 {v(x0)}, 3, {v(V_L)}')
    I(f'v_mul_u32_u24 {v(V_EXR)}, 316, {v(x0)}')
    I(f'v_lshl_add_u32 {v(V_EXR)}, {v(V_L)}, 2, {v(V_EXR)}')
    I(f'v_add_u32 {v(V_EXR)}, s{S_T3}, {v(V_EXR)}')
    I(f's_lshl_b32 s{S_T3}, s{S_W}, 19')
    I(f's_lshl_b32 s{S_T4}, s2, 8')
    I(f's_add_u32 s{S_T3}, s{S_T3}, s{S_T4}')
    I(f'v_lshl_add_u32 {v(V_XTST)}, {v(vg)}, 16, s{S_T3}')
    I(f'v_lshl_add_u32 {v(V_XTST)}, {v(va_)}, 3, {v(V_XTST)}')
    I(f's_and_b32 s{S_T4}, s2, 3')
    I(f's_lshl_b32 s{S_T4}, s{S_T4}, 5')
    I(f'v_xor_b32 {v(V_XTST)}, s{S_T4}, {v(V_XTST)}')
    I(f's_lshl_b32 s{S_T3}, s{S_CG}, 2')
    I(f's_add_u32 s{S_T3}, s{S_T3}, s{S_W}')
    I(f's_mul_i32 s{S_T3}, s{S_T3}, {1024 if WIL else 49152}')
    I(f'v_add_u32 {v(V_WLD)}, s{S_T3}, {v(V_L16)}')
    I(f's_mov_b32 s{S_LN}, {f32(1 / 512)}')
    I(f's_mov_b32 s{S_LN + 1}, {f32(1e-5)}')


def setup_late(free=True):
    va_, vg, vhi, x0, x1 = f = lane_fields()
    T3, T4 = S_T0, S_T1
    for j in range(2):
        I(f's_mov_b32 s{S_MASK + j}, 0xffff0000')
        I(f's_mov_b32 s{S_M1 + j}, 0xaaaaaaaa')
        I(f's_mov_b32 s{S_M2 + j}, 0xcccccccc')
        I(f's_mov_b32 s{S_E6 + j}, {f32(1e-6)}')
    I(f's_mov_b32 s{S_EXP + 1}, {f32(-1e-6 * math.log2(math.e))}')
    I(f'v_lshrrev_b32 {v(x0)}, 2, {v(V_L)}')
    I(f'v_lshlrev_b32 {v(V_XT[0])}, 7, {v(x0)}')
    I(f'v_bfe_u32 {v(x0)}, {v(V_L)}, 3, 2')
    I(f'v_xor_b32 {v(x0)}, s{S_W}, {v(x0)}')
    I(f'v_lshl_add_u32 {v(V_XT[0])}, {v(x0)}, 5, {v(V_XT[0])}')
    I(f'v_and_b32 {v(x0)}, 3, {v(V_L)}')
    I(f'v_lshl_add_u32 {v(V_XT[0])}, {v(x0)}, 3, {v(V_XT[0])}')
    for i in range(1, 4):
        I(f'v_xor_b32 {v(V_XT[i])}, {32 * i}, {v(V_XT[0])}')
    I(f'v_and_b32 {v(V_STAT)}, 0x1fff, {v(V_X2ST)}')
    I(f'v_lshl_add_u32 {v(V_STAT)}, {v(vhi)}, 13, {v(V_STAT)}')
    I(f's_lshl_b32 s{T3}, s{S_RB}, 16')
    I(f's_lshl_b32 s{T4}, s{S_W}, 12')
    I(f's_add_u32 s{T3}, s{T3}, s{T4}')
    I(f'v_add_u32 {v(V_XTLD)}, s{T3}, {v(V_L16)}')
    I(f's_lshl_b32 s{T4}, s{S_CG}, 2')
    I(f's_add_u32 s{T4}, s{T4}, s{S_W}')
    I(f's_lshl_b32 s{T4}, s{T4}, 10')
    I(f's_lshl_b32 s{T3}, s{S_RB}, 16')
    I(f's_add_u32 s{T3}, s{T3}, s{T4}')
    I(f'v_lshl_add_u32 {v(V_PQST)}, {v(va_)}, 5, s{T3}')
    I(f'v_lshl_add_u32 {v(V_PQST)}, {v(vg)}, 3, {v(V_PQST)}')
    I(f's_lshr_b32 s{T3}, s{S_W}, 1')
    I(f'v_lshl_add_u32 {v(V_PQST)}, s{T3}, 15, {v(V_PQST)}')
    I(f's_and_b32 s{T3}, s{S_W}, 1')
    I(f'v_lshl_add_u32 {v(V_PQST)}, s{T3}, 9, {v(V_PQST)}')
    I(f's_mul_i32 s{T3}, s{T3}, 768')
    I(f's_sub_u32 s{T3}, s{T4}, s{T3}')
    I(f'v_lshl_add_u32 {v(V_KVST)}, {v(vg)}, 4, s{T3}')
    I(f'v_and_b32 {v(x0)}, 3, {v(va_)}')
    I(f'v_lshl_add_u32 {v(V_KVST)}, {v(x0)}, 2, {v(V_KVST)}')
    I(f'v_bfe_u32 {v(x0)}, {v(va_)}, 2, 1')
    I(f'v_lshl_add_u32 {v(V_KVST)}, {v(x0)}, 10, {v(V_KVST)}')
    I(f'v_lshrrev_b32 {v(x0)}, 3, {v(va_)}')
    I(f'v_lshl_add_u32 {v(V_KVST)}, {v(x0)}, 9, {v(V_KVST)}')
    I(f's_lshr_b32 s{T3}, s{T4}, 4')
    I(f'v_lshl_add_u32 {v(V_ZST)}, {v(V_L)}, 2, s{T3}')
    I(f's_lshl_b32 s{T3}, s{S_RB}, 1')
    I(f's_add_u32 s{T3}, s{T3}, s{S_TH}')
    I(f's_lshl_b32 s{T3}, s{T3}, 15')
    I(f's_lshl_b32 s{T4}, s{S_W}, 13')
    I(f's_add_u32 s{T3}, s{T3}, s{T4}')
    I(f'v_and_b32 {v(x0)}, 31, {v(V_L)}')
    I(f'v_lshl_add_u32 {v(V_PQLD)}, {v(x0)}, 5, s{T3}')
    I(f'v_lshl_add_u32 {v(V_PQLD)}, {v(vhi)}, 4, {v(V_PQLD)}')
    I(f'v_add_u32 {v(V_KVLD)}, s{T4}, {v(V_L16)}')
    I(f'v_and_b32 {v(x0)}, 3, {v(va_)}')
    I(f'v_lshrrev_b32 {v(x1)}, 3, {v(va_)}')
    I(f's_lshl_b32 s{T3}, s{S_W}, 9')
    I(f's_add_u32 s{T3}, s{T3}, 32768')
    I(f'v_lshl_add_u32 {v(V_ZLD)}, {v(x1)}, 8, s{T3}')
    I(f'v_lshl_add_u32 {v(V_ZLD)}, {v(x0)}, 6, {v(V_ZLD)}')
    I(f'v_lshl_add_u32 {v(V_ZLD)}, {v(vg)}, 4, {v(V_ZLD)}')
    I(f'v_add_u32 {v(V_OFW)}, {L_B}, {v(V_KVLD)}')
    I(f's_lshl_b32 s{T3}, s{S_NB}, 14')
    I(f's_lshl_b32 s{T4}, s{S_W}, 12')
    I(f's_add_u32 s{T3}, s{T3}, s{T4}')
    I(f's_lshl_b32 s{T4}, s{S_TH}, 6')
    I(f's_add_u32 s{T3}, s{T3}, s{T4}')
    I(f'v_lshl_add_u32 {v(V_RES[0])}, {v(vhi)}, 11, s{T3}')
    I(f'v_lshl_add_u32 {v(V_RES[0])}, {v(x0)}, 3, {v(V_RES[0])}')
    I(f'v_lshrrev_b32 {v(x0)}, 2, {v(va_)}')
    I(f'v_lshl_add_u32 {v(V_RES[0])}, {v(x0)}, 7, {v(V_RES[0])}')
    I(f'v_xor_b32 {v(x1)}, {v(x1)}, {v(vg)}')
    I(f'v_and_b32 {v(x1)}, 1, {v(x1)}')
    I(f'v_lshl_add_u32 {v(V_RES[0])}, {v(x1)}, 5, {v(V_RES[0])}')
    I(f'v_xor_b32 {v(V_RES[1])}, 64, {v(V_RES[0])}')
    I(f's_lshl_b32 s{T3}, s{S_W}, 6')
    I(f's_add_u32 s{T3}, s{T3}, {L_STAT}')
    I(f'v_lshl_add_u32 {v(V_SW)}, {v(va_)}, 2, s{T3}')
    I(f'v_lshl_add_u32 {v(V_SR4)}, {v(vg)}, 4, s{T3}')
    I(f's_lshl_b32 s{S_W17}, s{S_W}, 17')
    I(f's_lshl_b32 s{T3}, s{S_NB}, 2')
    I(f's_add_u32 s{T3}, s{T3}, s{S_W}')
    I(f'v_lshl_add_u32 {v(V_WLD + 1)}, s{T3}, {10 if WIL else 15}, {v(V_L16)}')
    if not free:
        return f
    for r in f:
        P.free(r)


TS = [18, 10, 6, 2]
TB = [0, 16 * 18, 16 * 18 + 16 * 10, 16 * 18 + 16 * 10 + 32 * 6]


def rne(o, sh):
    q, r = o >> sh, o & ((1 << sh) - 1)
    if sh == 0:
        return q
    h = 1 << (sh - 1)
    return q + (1 if (r > h or (r == h and q & 1)) else 0)


def setup_kgen(va_, vg, x0, x1):
    kg = dict(w=P.alloc(), a0=P.alloc(), a1=P.alloc(), g=P.alloc(), t1=P.alloc(), t2=P.alloc(), t3=P.alloc(), rk=P.alloc())
    I(f's_lshr_b32 s{S_T0}, s{S_W}, 1')
    I(f's_and_b32 s{S_T1}, s{S_W}, 1')
    I(f's_mul_i32 s{S_T3}, s{S_W}, {KG_W}')
    I(f's_add_u32 s{S_T3}, s{S_T3}, {L_B}')
    I(f'v_lshl_add_u32 {v(kg["w"])}, {v(V_L)}, 2, s{S_T3}')
    I(f's_mul_i32 s{S_T3}, s{S_T0}, {2 * KG_W}')
    I(f's_add_u32 s{S_T3}, s{S_T3}, {L_B}')
    I(f'v_lshl_add_u32 {v(x1)}, {v(vg)}, 4, s{S_T3}')
    I(f'v_mul_u32_u24 {v(kg["a0"])}, {KG_ROW}, {v(va_)}')
    I(f'v_add_u32 {v(kg["a0"])}, {v(kg["a0"])}, {v(x1)}')
    I(f's_mul_i32 s{S_T4}, s{S_T1}, {16 * KG_ROW}')
    I(f'v_add_u32 {v(kg["g"])}, s{S_T4}, {v(kg["a0"])}')
    I(f'v_min_u32 {v(kg["a1"])}, 4, {v(va_)}')
    I(f'v_mul_u32_u24 {v(kg["a1"])}, {KG_ROW}, {v(kg["a1"])}')
    I(f'v_add_u32 {v(kg["a1"])}, {v(kg["a1"])}, {v(x1)}')
    I(f's_mul_i32 s{S_T3}, s{S_T0}, 4608')
    I(f's_add_u32 s{S_T3}, s{S_T3}, {L_H + 512}')
    vj, vw = P.alloc(), P.alloc()
    I(f's_lshl_b32 s{S_T4}, s{S_T1}, 2')
    I(f'v_and_b32 {v(x0)}, 3, {v(va_)}')
    I(f'v_lshl_add_u32 {v(vj)}, {v(x0)}, 3, s{S_T4}')
    I(f'v_lshrrev_b32 {v(x0)}, 2, {v(va_)}')
    I(f'v_add_u32 {v(vj)}, {v(vj)}, {v(x0)}')
    I(f'v_lshl_add_u32 {v(kg["t3"])}, {v(vg)}, 7, {v(vj)}')
    I(f'v_lshl_add_u32 {v(kg["t3"])}, {v(kg["t3"])}, 2, s{S_T3}')
    I(f'v_max_u32 {v(x1)}, 1, {v(vg)}')
    I(f'v_sub_u32 {v(x1)}, 6, {v(x1)}')
    I(f'v_lshlrev_b32 {v(kg["t1"])}, {v(x1)}, {v(vj)}')
    I(f'v_lshrrev_b32 {v(vw)}, 1, {v(vj)}')
    I(f'v_lshl_add_u32 {v(kg["t1"])}, {v(vw)}, 3, {v(kg["t1"])}')
    I(f's_mov_b32 s{S_T4}, {hex(0 | (1 << 8) | ((TB[1] // 4) << 16) | ((TB[2] // 4) << 24))}')
    I(f'v_lshlrev_b32 {v(x1)}, 3, {v(vg)}')
    I(f'v_bfe_u32 {v(x1)}, s{S_T4}, {v(x1)}, 8')
    I(f'v_lshl_add_u32 {v(x1)}, {v(x1)}, 4, s{S_T3}')
    I(f'v_add_u32 {v(kg["t1"])}, {v(kg["t1"])}, {v(x1)}')
    I(f'v_cmp_eq_u32 vcc, 3, {v(vg)}')
    I(f'v_mov_b32 {v(vj)}, {16 * TS[2] * 4}')
    I(f'v_cndmask_b32 {v(x1)}, 8, {v(vj)}, vcc')
    I(f'v_add_u32 {v(kg["t2"])}, {v(kg["t1"])}, {v(x1)}')
    gi = P.alloc(18, 2)
    vn, vs = vj, vw
    I(f'v_and_b32 {v(x0)}, 127, v0')
    I(f'v_sub_u32 {v(vn)}, 127, {v(x0)}')
    I(f'v_or_b32 {v(x1)}, 8, {v(vn)}')
    I(f'v_ffbh_u32 {v(x1)}, {v(x1)}')
    I(f'v_sub_u32 {v(vs)}, 28, {v(x1)}')
    I(f'v_lshlrev_b32 {v(vs)}, 3, {v(vs)}')
    first = [0, 16, 32, 64]
    cb = [TB[q] - first[q] * TS[q] for q in range(4)]
    assert all(c % 4 == 0 and 0 <= c // 4 < 256 for c in cb)
    I(f's_mov_b32 s{S_T4}, {hex(sum(TS[q] << (8 * q) for q in range(4)))}')
    I(f'v_bfe_u32 {v(x1)}, s{S_T4}, {v(vs)}, 8')
    I(f'v_mul_u32_u24 {v(x1)}, {v(x1)}, {v(vn)}')
    I(f's_mov_b32 s{S_T4}, {hex(sum((cb[q] // 4) << (8 * q) for q in range(4)))}')
    I(f'v_bfe_u32 {v(gi + 17)}, s{S_T4}, {v(vs)}, 8')
    I(f'v_lshl_add_u32 {v(x1)}, {v(gi + 17)}, 2, {v(x1)}')
    I(f'v_lshl_add_u32 {v(gi + 15)}, {v(x1)}, 2, s{S_T3}')
    for u in range(15):
        o = 15 - u
        dl = []
        for q in range(4):
            d = rne(o, q)
            dl.append(4 * (d if d < (16 >> q) else TS[q]))
        I(f's_mov_b32 s{S_T4}, {hex(sum(dl[q] << (8 * q) for q in range(4)))}')
        I(f'v_bfe_u32 {v(x1)}, s{S_T4}, {v(vs)}, 8')
        I(f'v_add_u32 {v(gi + u)}, {v(x1)}, {v(gi + 15)}')
    I(f'v_cmp_ge_u32 vcc, 16, {v(vn)}')
    I(f'v_cndmask_b32 {v(x1)}, 0, 12, vcc')
    I(f'v_sub_u32 {v(gi + 16)}, {v(gi + 15)}, {v(x1)}')
    P.free(vj), P.free(vw)
    I(f's_mul_i32 s{S_T4}, s{S_T0}, 8320')
    I(f's_add_u32 s{S_T4}, s{S_T4}, {L_RK}')
    I(f'v_lshl_add_u32 {v(kg["rk"])}, {v(x0)}, 5, s{S_T4}')
    return kg, gi


def prologue():
    I('s_cmp_ge_u32 s2, 256')
    I('s_cbranch_scc1 L_end')
    I('s_load_dwordx16 s[4:19], s[0:1], 0')
    I('s_load_dwordx8 s[20:27], s[0:1], 64')
    I('s_load_dwordx4 s[28:31], s[0:1], 96')
    I('s_load_dwordx2 s[32:33], s[0:1], 112')
    stamp('entry')
    pf = P.alloc(4)
    I(f's_getpc_b64 s[{S_T3}:{S_T4}]')
    A.label('L_pc')
    I(f's_lshr_b32 s{S_T1}, s2, 3')
    I(f'v_lshrrev_b32 {v(pf)}, 4, v0')
    I(f'v_lshl_add_u32 {v(pf)}, {v(pf)}, 5, s{S_T1}')
    I(f'v_lshlrev_b32 {v(pf)}, 7, {v(pf)}')
    I(f'v_min_u32 {v(pf)}, L_end-L_pc, {v(pf)}')
    if '--nocpf' in sys.argv:
        I(f'v_mov_b32 {v(pf)}, 0')
    I(f'global_load_dword {v(pf)}, {v(pf)}, s[{S_T3}:{S_T4}]')
    I(f'v_lshrrev_b32 {v(pf + 1)}, 6, v0')
    I(f'v_and_b32 {v(V_L)}, 63, v0')
    I(f'v_readfirstlane_b32 s{S_W}, {v(pf + 1)}')
    I(f's_and_b32 s{S_T0}, s2, 7')
    I(f's_and_b32 s{S_T2}, s{S_T1}, 3')
    I(f's_lshl_b32 s{S_RB}, s{S_T0}, 2')
    I(f's_add_u32 s{S_RB}, s{S_RB}, s{S_T2}')
    I(f's_lshr_b32 s{S_CG}, s{S_T1}, 2')
    I(f's_lshr_b32 s{S_NB}, s{S_CG}, 1')
    I(f's_and_b32 s{S_TH}, s{S_CG}, 1')
    I(f'v_lshlrev_b32 {v(V_L16)}, 4, {v(V_L)}')
    va_, vg, vhi, x0, x1 = f = lane_fields()
    I(f's_and_b32 s{S_T3}, s{S_T1}, 7')
    I(f's_lshl_b32 s{S_T3}, s{S_T3}, 7')
    I(f'v_lshl_add_u32 {v(V_ARR)}, {v(V_L)}, 10, s{S_T3}')
    I(f's_lshl_b32 s{S_T3}, s{S_T1}, 10')
    I(f'v_lshl_add_u32 {v(V_POLL)}, {v(V_L)}, 7, s{S_T3}')
    vsr, vsa = P.alloc(), P.alloc()
    I(f's_lshl_b32 s{S_T0}, s{S_RB}, 6')
    I(f's_lshl_b32 s{S_T1}, s{S_CG}, 3')
    I(f's_add_u32 s{S_T1}, s{S_T1}, s{S_T0}')
    I(f's_lshl_b32 s{S_T3}, s{S_W}, 1')
    I(f's_add_u32 s{S_T2}, s{S_T1}, s{S_T3}')
    I(f's_lshl_b32 s{S_T1}, s{S_T2}, 10')
    I(f'v_add_u32 {v(vsr)}, s{S_T1}, {v(V_L16)}')
    I(f'v_and_b32 {v(vsa)}, 1, {v(vg)}')
    I(f'v_add_lshl_u32 {v(vsa)}, {v(vsa)}, s{S_T2}, 2')
    I(f'v_lshl_add_u32 {v(vsa)}, {v(vhi)}, 13, {v(vsa)}')
    I(f's_lshl_b32 s{S_T1}, s{S_TH}, 5')
    I(f's_add_u32 s{S_T0}, s{S_T0}, s{S_T1}')
    I(f'v_and_b32 {v(x0)}, 31, {v(V_L)}')
    I(f'v_add_u32 {v(x0)}, s{S_T0}, {v(x0)}')
    I(f's_lshl_b32 s{S_T0}, s{S_NB}, 8')
    I(f's_lshl_b32 s{S_T1}, s{S_W}, 6')
    I(f's_add_u32 s{S_T0}, s{S_T0}, s{S_T1}')
    I(f'v_lshl_add_u32 {v(V_TILE)}, {v(x0)}, 10, s{S_T0}')
    I(f'v_lshl_add_u32 {v(V_TILE)}, {v(vhi)}, 5, {v(V_TILE)}')
    I(f's_lshl_b32 s{S_T0}, s{S_T0}, 11')
    I(f'v_lshl_add_u32 {v(V_X2ST)}, {v(x0)}, 2, s{S_T0}')
    I(f'v_lshl_add_u32 {v(V_X2ST)}, {v(vhi)}, 16, {v(V_X2ST)}')
    vtd, vtr = P.alloc(), P.alloc()
    I(f'v_readfirstlane_b32 s{S_T0}, {v(V_TILE)}')
    I(f'v_lshrrev_b32 {v(x0)}, 2, {v(V_L)}')
    I(f'v_xor_b32 {v(x1)}, {v(V_L)}, {v(vg)}')
    I(f'v_and_b32 {v(x1)}, 3, {v(x1)}')
    I(f'v_lshl_add_u32 {v(vtd)}, {v(x0)}, 10, s{S_T0}')
    I(f'v_lshl_add_u32 {v(vtd)}, {v(x1)}, 4, {v(vtd)}')
    I(f'v_add_u32 {v(vtr)}, {16384 - 1024}, {v(vtd)}')
    I(f's_lshl_b32 m0, s{S_W}, 11')
    vpo = P.alloc()
    I(f's_lshl_b32 s{S_T1}, s2, 9')
    I(f'v_lshl_add_u32 {v(vpo)}, v0, 1, s{S_T1}')
    sinit = S_SPIN
    I(f's_lshl_b32 s{S_T2}, s2, 2')
    I(f's_add_u32 s{sinit}, s{S_T2}, s{S_W}')
    vws = P.alloc(2)
    SA, SB, SC = S_MASK, S_MASK + 1, S_E6
    I(f's_cmp_ge_u32 s2, 192')
    I('s_cbranch_scc1 L_wo_src')
    I(f's_bfe_u32 s{SA}, s2, 0x30003')
    I(f's_lshl_b32 s{SA}, s{SA}, 1')
    I(f's_lshr_b32 s{SB}, s{S_W}, 1')
    I(f's_add_u32 s{SA}, s{SA}, s{SB}')
    I(f's_lshr_b32 s{SB}, s2, 6')
    I(f's_lshl_b32 s{SC}, s{SB}, 4')
    I(f's_add_u32 s{SC}, s{SC}, s{SA}')
    I(f's_lshl_b32 s{SC}, s{SC}, {15 if WIL else 10}')
    I(f's_mul_i32 s{SA}, s{SA}, {32 * 3072}')
    I(f's_lshl_b32 s{SB}, s{SB}, 10')
    I(f's_add_u32 s{SA}, s{SA}, s{SB}')
    I(f's_and_b32 s{SB}, s2, 7')
    I(f's_lshl_b32 s{SB}, s{SB}, 1')
    I(f's_and_b32 s{S_T1}, s{S_W}, 1')
    I(f's_add_u32 s{SB}, s{SB}, s{S_T1}')
    I(f's_mul_i32 s{S_T1}, s{SB}, {2048 if WIL else 2 * 49152}')
    I(f's_add_u32 s{SC}, s{SC}, s{S_T1}')
    I(f's_add_u32 s{SC}, s{SC}, {hex(WS_WT)}')
    I(f's_add_u32 s{SC + 1}, s{SC}, {1024 if WIL else 49152}')
    I(f's_lshl_b32 s{SB}, s{SB}, 6')
    I(f's_add_u32 s{SA}, s{SA}, s{SB}')
    I(f's_movk_i32 s{SB}, 3072')
    I('s_branch L_w_src')
    A.label('L_wo_src')
    I(f's_bfe_u32 s{SA}, s2, 0x40002')
    I(f's_and_b32 s{SB}, s2, 3')
    I(f's_lshl_b32 s{SB}, s{SB}, 2')
    I(f's_add_u32 s{SB}, s{SB}, s{S_W}')
    if WIL:
        I(f's_lshl_b32 s{SC}, s{SA}, 5')
        I(f's_add_u32 s{SC}, s{SC}, s{SB}')
        I(f's_lshl_b32 s{SC}, s{SC}, 10')
    else:
        I(f's_lshl_b32 s{SC}, s{SB}, 4')
        I(f's_add_u32 s{SC}, s{SC}, s{SA}')
        I(f's_lshl_b32 s{SC}, s{SC}, 11')
    I(f's_add_u32 s{SC}, s{SC}, {hex(WS_WTO)}')
    I(f's_add_u32 s{SC + 1}, s{SC}, {16384 if WIL else 1024}')
    I(f's_lshl_b32 s{SA}, s{SA}, 15')
    I(f's_lshl_b32 s{SB}, s{SB}, 6')
    I(f's_add_u32 s{SA}, s{SA}, s{SB}')
    I(f's_movk_i32 s{SB}, 1024')
    A.label('L_w_src')
    I(f'v_mul_u32_u24 {v(vws)}, s{SB}, {v(x0)}')
    I(f'v_and_b32 {v(x1)}, 3, {v(V_L)}')
    I(f'v_lshl_add_u32 {v(x1)}, {v(x1)}, 4, s{SA}')
    I(f'v_add_u32 {v(vws)}, {v(vws)}, {v(x1)}')
    I(f's_lshl_b32 s{SB}, s{SB}, 4')
    I(f's_sub_u32 s{SB}, s{SB}, 1024')
    I(f'v_add_u32 {v(vws + 1)}, s{SB}, {v(vws)}')
    zero4 = P.alloc(4, 2)
    for i in range(4):
        I(f'v_mov_b32 {v(zero4 + i)}, 0')
    for r, n in ((R_WS, WS_SIZE),):
        I(f's_mov_b32 s{r + 2}, {hex(n)}')
        I(f's_mov_b32 s{r + 3}, 0x20000')
    xs = P.alloc(8, 2)
    xt = P.alloc(8, 2)
    par = P.alloc(8, 2)
    vtc = par + 7
    I(f's_cmp_eq_u32 s{S_W}, 0')
    I(f's_cselect_b32 s{S_T1}, 1, 0x100')
    I(f'v_lshlrev_b32_e64 {v(vtc)}, 7, s{S_T1}')
    TSH = int(([x[6:] for x in sys.argv if x.startswith('--tsh=')] or ['0'])[0])
    if TSH:
        I(f's_cselect_b32 s{S_T1}, 0, {(1 << (24 - TSH)) - 1}')
        I(f'v_and_b32 {v(x1)}, s{S_T1}, v0')
        I(f'v_lshl_add_u32 {v(vtc)}, {v(x1)}, {TSH}, {v(vtc)}')
    A._wait(lg=0)
    stamp('a_karg')
    WSOFF = int(([x[8:] for x in sys.argv if x.startswith('--wsoff=')] or ['0'])[0]) << 20
    if WSOFF:
        I(f's_add_u32 s{S_WS}, s{S_WS}, {hex(WSOFF)}')
        I(f's_addc_u32 s{S_WS + 1}, s{S_WS + 1}, 0')
    I(f's_cmp_lg_u32 s{sinit}, 0')
    I('s_cbranch_scc1 L_noinit')
    I(f'v_lshlrev_b32 {v(x0)}, 9, {v(V_L)}')
    A.cond = True
    for j in range(4):
        I(f'global_store_dword {v(x0)}, {v(zero4)}, {s(S_WS, 2)} offset:{128 * j} sc1')
    A.cond = False
    A.label('L_noinit')
    nld = 0

    def ld_x(j):
        if j < 2:
            I(f'global_load_dwordx4 {v(xs + 4 * j, 4)}, {v(vsr)}, {s(S_U, 2)} offset:{1024 * j}{NT("a")}')
        else:
            I(f'global_load_lds_dwordx4 {v(vtd if j == 2 else vtr)}, {s(S_U, 2)} offset:{1024 * (j - 2)}{NT("b")}', tag='xt')

    def ld_par():
        for i, sp in enumerate((S_ARE, S_AIM, S_BRE, S_BIM, S_CRE, S_CIM)):
            I(f'global_load_ushort {v(par + i)}, {v(vpo)}, {s(sp, 2)}{NT("p")}')

    def touch():
        I(f's_cmp_eq_u32 s{S_W}, 0')
        I(f's_cselect_b64 s[{S_T3}:{S_T4}], {s(S_DBG, 2)}, {s(S_WS, 2)}')
        I(f'global_load_dword {v(pf + 3)}, {v(vtc)}, s[{S_T3}:{S_T4}]')

    I(f's_cmp_ge_u32 s2, 192')
    I(f's_cselect_b64 s[{R_WQ}:{R_WQ + 1}], {s(S_WO, 2)}, {s(S_WQKV, 2)}')

    def touch2():
        I('s_mov_b64 exec, 1')
        I(f'global_load_dword {v(pf + 1)}, {v(vsr)}, {s(S_U, 2)}')
        I(f'global_load_dword {v(pf + 2)}, {v(vws)}, s[{R_WQ}:{R_WQ + 1}]')
        I('s_mov_b64 exec, -1')

    def ld_w():
        I('s_add_u32 m0, m0, 8192')
        for j in range(2):
            I(f'global_load_lds_dwordx4 {v(vws + j)}, s[{R_WQ}:{R_WQ + 1}] offset:{1024 * j}{NT("w")}', tag='wt')
    nld = 13
    if ORDER == 1:
        ld_x(0), touch(), ld_par(), ld_x(1), ld_x(2), ld_x(3), ld_w()
    elif ORDER == 2:
        touch(), ld_x(0), ld_x(1), ld_x(2), ld_x(3), ld_w(), ld_par()
    elif ORDER == 3:
        touch(), ld_x(0), ld_x(1), ld_x(2), ld_x(3), ld_par(), ld_w()
    elif ORDER == 4:
        ld_x(0), ld_x(1), ld_x(2), ld_x(3)
        A._wait(vm=2)
        stamp('b_xs')
        A._wait(vm=0)
        stamp('b_xt')
        touch(), ld_w(), ld_par()
        A._wait(vm=8)
        stamp('b_touch')
        A._wait(vm=6)
        stamp('b_w')
        A._wait(vm=0)
        stamp('b_par')
    elif ORDER >= 10:
        grp = {'1': ('x', lambda: [ld_x(j) for j in range(4)]), '2': ('touch', touch), '3': ('w', ld_w), '4': ('par', ld_par)}
        for c in str(ORDER):
            grp[c][1]()
            A._wait(vm=0)
            stamp('b_' + grp[c][0])
            A.barrier()
            stamp('b_bar' + c)
    elif ORDER in (7, 8, 9):
        touch2(), touch(), ld_par()
        if ORDER == 8:
            A.barrier()
        ld_x(0), ld_x(1), ld_x(2), ld_x(3)
        nld = 13
        if not WLATE:
            if ORDER == 8:
                A.barrier()
            ld_w()
            nld = 15
        if ORDER == 9:
            stamp('b_iss')
            for nm, n in (('code', 15), ('tu', 14), ('tw', 13), ('touch', 12), ('par', 6), ('xs', 4), ('xt', 2), ('w', 0)):
                A._wait(vm=n)
                stamp('b_' + nm)
    elif ORDER == 5:
        touch(), ld_x(0), ld_x(1), ld_x(2), ld_x(3), ld_w(), ld_par()
        stamp('b_iss')
        for nm, n in (('code', 13), ('touch', 12), ('xs', 10), ('xt', 8), ('w', 6), ('par', 0)):
            A._wait(vm=n)
            stamp('b_' + nm)
    elif ORDER == 6:
        touch(), ld_par(), ld_x(0), ld_x(1), ld_x(2), ld_x(3), ld_w()
        stamp('b_iss')
        for nm, n in (('code', 13), ('touch', 12), ('par', 6), ('xs', 4), ('xt', 2), ('w', 0)):
            A._wait(vm=n)
            stamp('b_' + nm)
    I(f's_load_dword s{S_D}, {s(S_LDT, 2)}, s{S_T2}')
    I(f's_load_dword s{S_D + 1}, {s(S_DSK, 2)}, s{S_T2}')
    for r, p in ((R_WS, S_WS),):
        I(f's_mov_b64 s[{r}:{r + 1}], s[{p}:{p + 1}]')
    if XPF:
        I(f'v_xor_b32 {v(vsr)}, {XPF << 18}, {v(vsr)}')
        I(f'v_mul_u32_u24 {v(x0)}, 112, {v(va_)}')
        I(f'v_add_u32 {v(vsr)}, {v(vsr)}, {v(x0)}')
        I('s_mov_b64 exec, 0xffff')
        I(f'global_load_dword {v(pf + 1)}, {v(vsr)}, {s(S_U, 2)}')
        if XPF2:
            I(f'v_xor_b32 {v(vpo)}, {XPF << 9}, {v(vpo)}')
            I('s_mov_b64 exec, 1')
            for i, sp in enumerate((S_ARE, S_AIM, S_BRE, S_BIM, S_CRE, S_CIM)):
                I(f'global_load_ushort {v(V_CSQ + (i & 3) if i < 4 else V_CSKV + i - 4)}, {v(vpo)}, {s(sp, 2)}')
            nld += 6
        I('s_mov_b64 exec, -1')
        nld += 1
    stamp('a_ldiss')
    P.free(vsr), P.free(vpo), P.free(vtd)
    I(f'v_and_b32 {v(x0)}, 31, {v(V_L)}')
    I(f'v_lshlrev_b32 {v(vtr)}, 6, {v(x0)}')
    I(f'v_lshl_add_u32 {v(vtr)}, s{S_W}, 11, {v(vtr)}')
    I(f'v_bfe_u32 {v(x0)}, {v(V_L)}, 2, 2')
    I(f'v_lshlrev_b32 {v(x1)}, 1, {v(vhi)}')
    I(f'v_xor_b32 {v(x0)}, {v(x0)}, {v(x1)}')
    I(f'v_lshl_add_u32 {v(vtr)}, {v(x0)}, 4, {v(vtr)}')
    kg, gi = setup_kgen(va_, vg, x0, x1)
    I(f's_cmp_lg_u32 s{sinit}, 0')
    I('s_cbranch_scc1 L_noflag')
    I(f'v_mov_b32 {v(x1)}, 1')
    A._wait(vm=nld)
    A.cond = True
    I(f'global_store_dword {v(zero4)}, {v(x1)}, {s(S_DBG, 2)} sc1')
    A.cond = False
    A.label('L_noflag')
    I(f'v_lshl_add_u32 {v(x1)}, {v(x0)}, 2, s{S_T3}')
    I(f'v_subrev_u32 {v(x1)}, 512, {v(x1)}')
    I(f'ds_write_b32 {v(x1)}, {v(zero4)}')
    I(f's_mul_i32 s{S_T3}, s{S_W}, 4160')
    I(f's_add_u32 s{S_T3}, s{S_T3}, {L_RK + 4096}')
    I(f'v_lshl_add_u32 {v(x1)}, {v(va_)}, 2, s{S_T3}')
    I(f'ds_write_b32 {v(x1)}, {v(zero4)}')
    stamp('a_kgset')
    if '--pre0' in sys.argv:
        I(f's_mov_b32 s{S_T0}, {hex(WS_X2[0])}')
        for i in range(8):
            I(f'buffer_store_dword {v(zero4)}, {v(V_X2ST)}, {WS}, s{S_T0} offen sc1')
            I(f's_add_u32 s{S_T0}, s{S_T0}, 8192')
        for f_ in range(2):
            I(f'buffer_store_dwordx4 {v(zero4, 4)}, {v(V_L16)}, {WS}, s{SC + f_} offen sc1')
    I(f's_lshl_b32 s{S_T0}, s{sinit}, 7')
    I(f's_add_u32 s{S_T0}, s{S_T0}, {hex(WS_ZERO)}')
    I('s_mov_b64 exec, 0xff')
    I(f'buffer_store_dwordx4 {v(zero4, 4)}, {v(V_L16)}, {WS}, s{S_T0} offen sc1')
    I('s_mov_b64 exec, -1')
    setup_conv(va_, vg, x0, x1)
    vwr = P.alloc(2)
    I(f's_lshl_b32 s{S_T3}, s{S_W}, 11')
    I(f's_add_u32 s{S_T3}, s{S_T3}, 8192')
    I(f'v_and_b32 {v(x0)}, 3, {v(V_L)}')
    I(f'v_lshl_add_u32 {v(vwr)}, {v(V_L)}, 4, s{S_T3}')
    I(f'v_lshlrev_b32 {v(x0)}, 3, {v(x0)}')
    I(f'v_sub_u32 {v(vwr)}, {v(vwr)}, {v(x0)}')
    I(f'v_lshrrev_b32 {v(x0)}, 2, {v(va_)}')
    I(f'v_lshl_add_u32 {v(vwr + 1)}, {v(x0)}, 8, s{S_T3}')
    I(f'v_lshl_add_u32 {v(vwr + 1)}, {v(vhi)}, 6, {v(vwr + 1)}')
    I(f'v_and_b32 {v(x0)}, 1, {v(V_L)}')
    I(f'v_lshl_add_u32 {v(vwr + 1)}, {v(x0)}, 5, {v(vwr + 1)}')
    I(f'v_and_b32 {v(x0)}, 1, {v(vg)}')
    I(f'v_lshl_add_u32 {v(vwr + 1)}, {v(x0)}, 4, {v(vwr + 1)}')
    I(f'v_bfe_u32 {v(x0)}, {v(V_L)}, 1, 1')
    I(f'v_lshl_add_u32 {v(vwr + 1)}, {v(x0)}, 3, {v(vwr + 1)}')
    I(f's_mov_b32 s{S_ONES}, 0x3f803f80')
    I(f's_mov_b32 s{S_EXP}, {f32(math.log2(math.e))}')
    for i in range(4):
        I(f'v_mov_b32 {v(V_ONES + i)}, s{S_ONES}')
    I(f'v_xor_b32 {v(x1)}, 16, {v(vtr)}')
    if '--latepage' not in sys.argv:
        A.raw('#page')
        A.raw('#seg s0')
        A.raw('#touch s0')
    stamp('a_setup')
    st = P.alloc(4, 2)
    for i in range(4):
        for r in range(2):
            c = '0' if i == 0 else v(st + r)
            I(f'v_dot2_f32_bf16 {v(st + r)}, {v(xs + 4 * r + i)}, s{S_ONES}, {c}')
            c = '0' if i == 0 else v(st + 2 + r)
            I(f'v_dot2_f32_bf16 {v(st + 2 + r)}, {v(xs + 4 * r + i)}, {v(xs + 4 * r + i)}, {c}')
    stamp('a_xs')
    A.wait_vm('xt')
    I(f'ds_read_b128 {v(xt, 4)}, {v(vtr)}')
    I(f'ds_read_b128 {v(xt + 4, 4)}, {v(x1)}')
    I(f's_mov_b32 s{S_T0}, {hex(WS_ST[0])}')
    I(f'v_permlane32_swap_b32 {v(st)}, {v(st + 2)}')
    I(f'v_permlane32_swap_b32 {v(st + 1)}, {v(st + 3)}')
    I(f'v_add_f32 {v(st)}, {v(st)}, {v(st + 2)}')
    I(f'v_add_f32 {v(st + 1)}, {v(st + 1)}, {v(st + 3)}')
    I(f'v_permlane16_swap_b32 {v(st)}, {v(st + 1)}')
    I(f'v_add_f32 {v(st)}, {v(st)}, {v(st + 1)}')
    for sh in (8, 4, 2, 1):
        I(f'v_add_f32_dpp {v(st)}, {v(st)}, {v(st)} row_ror:{sh} row_mask:0xf bank_mask:0xf')
    I('s_mov_b32 exec_lo, 0x00010001')
    I('s_mov_b32 exec_hi, 0x00010001')
    I(f'buffer_store_dword {v(st)}, {v(vsa)}, {WS}, s{S_T0} offen sc1')
    I('s_mov_b64 exec, -1')
    x2store(0, xt)

    def wtrans():
        A.wait_vm('wt')
        A.wait_lg()
        I(f's_cmp_ge_u32 s2, 192')
        I('s_cbranch_scc1 L_wo_rd')
        for f_ in range(2):
            for z in range(2):
                A._emit(Ins(f'ds_read_b64_tr_b16 {v(xs + 4 * f_ + 2 * z, 2)}, {v(vwr)} offset:{1024 * z + 32 * f_}'))
        I('s_branch L_w_rd')
        A.label('L_wo_rd')
        for f_ in range(2):
            for z in range(2):
                I(f'ds_read_b64_tr_b16 {v(xs + 4 * f_ + 2 * z, 2)}, {v(vwr + 1)} offset:{1024 * f_ + 128 * z}')
        A.label('L_w_rd')
        for f_ in range(2):
            I(f'buffer_store_dwordx4 {v(xs + 4 * f_, 4)}, {v(V_L16)}, {WS}, s{SC + f_} offen sc1', tag='wtst')
    if not W1B:
        wtrans()
    flag = pf + 3
    I(f'global_load_dword {v(flag)}, {v(zero4)}, {s(S_DBG, 2)} sc1', tag='flag')
    if WLATE:
        ld_w()
    stamp('a_stored')
    if '--latepage' in sys.argv:
        A.raw('#page')
        A.raw('#seg s0')
        A.raw('#touch s0')

    if '--seq' in sys.argv:
        for nm, n in (('par', 13), ('wpf', 11), ('zero', 10), ('st', 9), ('x2', 1), ('flag', 0)):
            A._wait(vm=n)
            stamp('b_' + nm)

    def arrive1():
        stamp('b_pre')
        A.wait_vm('flag')
        stamp('a_drained')
        global_arrive(first=(flag, zero4))
        stamp('arr1')
    hooks = {KG_ARR: [arrive1]}
    kgen(par, kg, hooks)
    if W1B and WLATE < 2:
        wtrans()
        stamp('a_wtr')
    P.free(st, 4), P.free(xt, 8), P.free(zero4, 4), P.free(pf, 4), P.free(vws, 2), P.free(vsa), P.free(vtr)
    for r in f:
        P.free(r)
    poll_start(1)
    A.barrier()
    kgen2(kg)
    A.wait_vm('wtst')

    def fin():
        if W1B and WLATE == 2:
            wtrans()
            stamp('a_wtr')
        P.free(xs, 8), P.free(vwr, 2)
    return kg, gi, fin


def x2store(layer, d):
    I(f's_mov_b32 s{S_T0}, {hex(WS_X2[layer])}')
    for i in range(8):
        I(f'buffer_store_dword {v(d + i)}, {v(V_X2ST)}, {WS}, s{S_T0} offen sc1')
        if i < 7:
            I(f's_add_u32 s{S_T0}, s{S_T0}, 8192')


def kgen(par, kg, hooks):
    LOG2E = math.log2(math.e)
    A.wait_lg()
    I(f's_lshl_b32 s{S_T0}, s{S_D}, 16')
    I(f's_and_b32 s{S_T1}, s{S_D}, 0xffff0000')
    I(f's_lshl_b32 s{S_D}, s{S_D + 1}, 16')
    I(f's_and_b32 s{S_D + 1}, s{S_D + 1}, 0xffff0000')
    I(f's_cmp_ge_u32 s{S_W}, 2')
    I(f's_cselect_b32 s{S_T0}, s{S_T1}, s{S_T0}')
    dt = par + 6
    I(f'v_mov_b32 {v(dt)}, s{S_T0}')
    I(f'v_mul_f32 {v(dt)}, s{S_EXP}, {v(dt)}')
    I(f'v_exp_f32 {v(dt)}, {v(dt)}')
    for i in range(6):
        I(f'v_lshlrev_b32 {v(par + i)}, 16, {v(par + i)}')
    I(f'v_cvt_pk_bf16_f32 {v(dt)}, {v(dt)}, {v(dt)}')
    I(f'v_and_b32 {v(dt)}, 0xffff0000, {v(dt)}')
    z, Bc, Cc = par, par + 2, par + 4
    pk('mul', v(z, 2), (v(z, 2), 'p'), bc(dt))
    pk('mul', v(Bc, 2), (v(Bc, 2), 'p'), bc(dt))
    tmp = P.alloc(2, 2)
    CB = P.alloc(2, 2)
    cmul(CB, Cc, Bc, tmp)
    E = {}
    for rho in (1, 8, 64, 256):
        e = P.alloc(2, 2)
        E[rho] = e
        I(f'v_mul_f32 {v(tmp)}, {f32(rho * LOG2E)}, {v(z)}')
        I(f'v_mul_f32 {v(tmp + 1)}, {f32(rho / (2 * math.pi))}, {v(z + 1)}')
        I(f'v_exp_f32 {v(tmp)}, {v(tmp)}')
        I(f'v_fract_f32 {v(tmp + 1)}, {v(tmp + 1)}')
        I(f'v_cos_f32 {v(e)}, {v(tmp + 1)}')
        I(f'v_sin_f32 {v(e + 1)}, {v(tmp + 1)}')
        pk('mul', v(e, 2), (v(e, 2), 'p'), bc(tmp))
    pkr = [P.alloc() for _ in range(2)]
    cnt = [0]

    def put(r, neg):
        row = cnt[0]
        cnt[0] += 1
        if r is None:
            I(f'v_mov_b32 {v(pkr[row & 1])}, 0x3f80')
        else:
            I(f'v_cvt_pk_bf16_f32 {v(pkr[row & 1])}, {v(r)}, {"-" if neg else ""}{v(r + 1)}')
        if row & 1:
            o0 = (KG_ROW // 4) * (row & 2)
            I(f'ds_write2_b32 {v(kg["w"])}, {v(pkr[0])}, {v(pkr[1])} offset0:{o0} offset1:{o0 + KG_ROW // 4}')
            if row & 2:
                I(f'v_add_u32 {v(kg["w"])}, {4 * KG_ROW}, {v(kg["w"])}')
        elif row == 52:
            I(f'ds_write_b32 {v(kg["w"])}, {v(pkr[0])}')
        for th in hooks.pop(cnt[0], []):
            th()
    for rho, x, y in ((128, 64, 64), (192, 128, 64), (2, 1, 1), (4, 2, 2)):
        E[rho] = P.alloc(2, 2)
        cmul(E[rho], E[x], E[y], tmp)
    cur = P.alloc(2, 2)
    o = P.alloc(2, 2)
    put(None, False)
    for m in (1, 2, 3):
        put(E[64 * m], False)
    for j in range(1, 8):
        if j == 1:
            g = E[8]
        elif j == 2:
            cmul(cur, E[8], E[8], tmp)
            g = cur
        else:
            cmul(cur, cur, E[8], tmp)
        put(g, False)
        for m in (1, 2, 3):
            cmul(o, g, E[64 * m], tmp)
            put(o, False)
    put(CB, True)
    for j in range(1, 8):
        cmul(cur, CB if j == 1 else cur, E[1], tmp)
        put(cur, True)
    U = CB
    cmul(U, U, E[256], tmp)
    put(U, True)
    for j in range(1, 4):
        cmul(cur, U if j == 1 else cur, E[2], tmp)
        put(cur, True)
    for j in range(2):
        cmul(U, U, E[256], tmp)
        put(U, True)
        cmul(cur, U, E[4], tmp)
        put(cur, True)
    for j in range(5):
        cmul(U, U, E[256], tmp)
        put(U, True)
    for r in list(E.values()) + [tmp, CB, cur, o]:
        P.free(r, 2)
    P.free(pkr[0]), P.free(pkr[1])
    P.free(par, 8)
    assert not hooks
    stamp('a_kg1')


def kgen2(kg):
    d0, d1 = P.alloc(4, 2), P.alloc(4, 2)
    mf = []
    for st in range(8):
        for tl, d in ((0, d0), (1, d1)):
            def em(reg, st=st, tl=tl, d=d):
                c = '0' if st == 0 else v(d, 4)
                I(f'v_mfma_f32_16x16x32_bf16 {v(d, 4)}, {v(reg[("a", tl, st)], 4)}, {v(reg[("g", st)], 4)}, {c}')
            mf.append((em, [('a', tl, st), ('g', st)]))

    def loader(k, r):
        ko = KG_W * (k[-1] >> 2) + 64 * (k[-1] & 3)
        if k[0] == 'g':
            return [f'ds_read_b128 {v(r, 4)}, {v(kg["g"])} offset:{ko}']
        base = kg['a0'] if k[1] == 0 else kg['a1']
        return [f'ds_read_b128 {v(r, 4)}, {v(base)} offset:{(32 + 16 * k[1]) * KG_ROW + ko}']
    stream(mf, loader, 15, 12, rate=2, burst=15)
    I(f'ds_write_b64 {v(kg["t1"])}, {v(d0, 2)}')
    I(f'ds_write_b64 {v(kg["t2"])}, {v(d0 + 2, 2)}')
    I(f'v_add_u32 {v(kg["t3"])}, {4 * TB[3]}, {v(kg["t3"])}')
    I('s_mov_b32 exec_hi, 0')
    for r in (0, 2):
        I(f'ds_write2_b32 {v(kg["t3"])}, {v(d1 + r)}, {v(d1 + r + 1)} offset0:{32 * r} offset1:{32 * r + 32}')
    I('s_mov_b64 exec, -1')
    P.free(d0, 4), P.free(d1, 4)
    stamp('a_kg2')


def kgen3(kg, gi):
    for u in range(17):
        I(f'ds_read_b32 {v(gi + u)}, {v(gi + u)}')
    c = P.alloc(16, 2)
    for cp in range(2):
        for m in range(8):
            I(f'v_cvt_pk_bf16_f32 {v(c + 8 * cp + m)}, {v(gi + 2 * m + cp)}, {v(gi + 2 * m + cp + 1)}')
        for hq in range(2):
            I(f'ds_write_b128 {v(kg["rk"])}, {v(c + 8 * cp + 4 * hq, 4)} offset:{4160 * cp + 16 * hq}')
    A.barrier(lg=False)
    P.free(c, 16), P.free(gi, 18)
    for r in kg.values():
        P.free(r)
    stamp('a_kgen')


def conv(layer, kg, gi, wl):
    xd = P.alloc(8, 2)
    sm = P.alloc(8, 2)
    sq = P.alloc(8, 2)
    for i in range(2):
        I(f'buffer_load_dwordx4 {v(sm + 4 * i, 4)}, {v(V_CVL)}, {WS}, s{S_T1} offen offset:{1024 * i} sc1')
        I(f'buffer_load_dwordx4 {v(sq + 4 * i, 4)}, {v(V_CVL)}, {WS}, s{S_T2} offen offset:{1024 * i} sc1')
        I(f'buffer_load_dwordx4 {v(xd + 4 * i, 4)}, {v(V_CVL)}, {WS}, s{S_T3} offen offset:{1024 * i} sc1')
        if i == 0 and '--nocvb' not in sys.argv:
            A.barrier()
    stamp(f'conv{layer}_iss')
    if layer == 0:
        kg.pop('fin')()
        if W1B and WLATE < 2:
            arrive_1b()
        kgen3(kg, gi)
    base = P.alloc(16, 2)
    hh = P.alloc(4, 2)
    hp = P.alloc(4, 2)
    LN = s(S_LN, 2)
    for i in range(2):
        m, q, x = sm + 4 * i, sq + 4 * i, xd + 4 * i
        for j in (0, 2):
            pk('mul', v(m + j, 2), (v(m + j, 2), 'p'), (LN, 'l'))
        for j in (0, 2):
            pk('fma', v(q + j, 2), (v(q + j, 2), 'p'), (LN, 'l'), (LN, 'h'))
        for j in (0, 2):
            pk('fma', v(q + j, 2), (v(m + j, 2), 'p', 'b'), (v(m + j, 2), 'p'), (v(q + j, 2), 'p'))
        for j in range(4):
            I(f'v_max_f32 {v(q + j)}, s{S_LN + 1}, {v(q + j)}')
        for j in range(4):
            I(f'v_rsq_f32 {v(q + j)}, {v(q + j)}')
        for c in range(2):
            b = base + 8 * i + 4 * c
            for j in range(4):
                if c == 0:
                    I(f'v_lshlrev_b32 {v(b + j)}, 16, {v(x + j)}')
                else:
                    I(f'v_and_b32 {v(b + j)}, 0xffff0000, {v(x + j)}')
            for j in (0, 2):
                pk('add', v(hh + j, 2), (v(b + j, 2), 'p'), (v(m + j, 2), 'p', 'b'))
            for j in (0, 2):
                pk('mul', v(hh + j, 2), (v(hh + j, 2), 'p'), (v(q + j, 2), 'p'))
            for j in (0, 2):
                I(f'v_cvt_pk_bf16_f32 {v(hp + 2 * c + j // 2)}, {v(hh + j)}, {v(hh + j + 1)}')
            I(f'ds_write_b64 {v(V_HW)}, {v(hp + 2 * c, 2)} offset:{4608 * c + 512 * i}')
            for j in (0, 2):
                pk('fma', v(b + j, 2), (v(hh + j, 2), 'p'), (s(S_D, 2), 'h' if c else 'l'), (v(b + j, 2), 'p'))
    P.free(xd, 8), P.free(sm, 8), P.free(sq, 8), P.free(hh, 4), P.free(hp, 4)
    if layer == 0 and W1B and WLATE < 2:
        poll_start('1b')
    A.wait_vm('wtst')
    A.barrier()
    if layer == 0 and W1B and WLATE == 2:
        arrive_1b()
    stamp(f'conv{layer}_h')
    acc = P.alloc(32, 2)
    mf = []
    seen = set()
    fin = {}
    for cc in range(4):
        if cc < 3:
            seq = [(p, n) for p in range(7, -1, -1) for n in range(p, 8)]
        else:
            seq = [(p, n) for n in range(8) for p in range(n + 1)]
        for (p, n) in seq:
            def em(reg, cc=cc, p=p, n=n, fst=(n not in seen)):
                d = v(acc + 4 * n, 4)
                I(f'v_mfma_f32_16x16x32_bf16 {d}, {v(reg[("A", cc, p)], 4)}, {v(reg[("B", cc, n - p)], 4)}, {"0" if fst else d}')
            seen.add(n)
            mf.append((em, [('A', cc, p), ('B', cc, n - p)]))
            fin[n] = len(mf) - 1

    def loader(k, r):
        _, cc, x = k
        if k[0] == 'B':
            return [f'ds_read_b128 {v(r, 4)}, {v(V_CB)} offset:{512 * x + 64 * (3 - cc)}']
        o = 128 * (1 - (x & 1)) + 16 * (3 - cc)
        return [f'ds_read2_b32 {v(r, 2)}, {v(V_CA[x >> 1])} offset0:{o} offset1:{o + 1}',
                f'ds_read2_b32 {v(r + 2, 2)}, {v(V_CA[x >> 1])} offset0:{o + 2} offset1:{o + 3}']
    fill = {}
    for n in range(8):
        at = min(fin[n] + 7, len(mf) - 1)
        fill.setdefault(at, []).append(lambda reg, n=n: I(f'ds_write_b128 {v(V_EXW)}, {v(acc + 4 * n, 4)} offset:{1280 * n}'))
    if SPEC:
        pz = P.alloc(2, 2)
        spread(fill, xt_poison(layer, pz), 3, 3)

        def early(reg):
            A.wait_vm('poison')
            global_arrive(lg=False)
        if SPEC > 9:
            fill.setdefault(SPEC, []).append(early)
    if wl and W1B:
        if WLATE == 2:
            fill.setdefault(W1B_GAP - 38, []).append(lambda reg: poll_start('1b'))
        fill.setdefault(W1B_GAP, []).append(lambda reg: wait_1b(4 if SPEC and WLATE < 2 else 0))
        spread(fill, wl, W1B_GAP + 2, (126 - W1B_GAP) / len(wl))
    elif wl:
        spread(fill, wl, W_C0, W_CSTEP)
    if layer == 0 and LATE_IN:
        with Capture() as ls:
            keep = setup_late(free=False)
        free_gaps = [m for m in range(14, 140) if m not in fill]
        for i, t in enumerate(ls):
            fill.setdefault(free_gaps[(i * len(free_gaps)) // len(ls)], []).append(lambda reg, t=t: I(t))
    stream(mf, loader, 20, 40, fill=fill, burst=12)
    P.free(acc, 32)
    if SPEC:
        P.free(pz, 2)
        A.wait_vm('poison')
    if layer == 0 and LATE_IN:
        for r in keep:
            P.free(r)
    A.barrier()
    stamp(f'conv{layer}_mm')
    ex = P.alloc(32, 2)
    for i in range(2):
        for u in range(4):
            I(f'ds_read_b128 {v(ex + 16 * i + 4 * u, 4)}, {v(V_EXR)} offset:{10240 * u + 1280 * i}')
    if SPEC == 1:
        global_arrive(bar=False)
    I(f's_mov_b32 s{S_T0}, {hex(WS_XT[layer])}')
    I(f's_mov_b32 s{S_T1}, {hex(WS_XT[layer] + 262144)}')
    for i in range(2):
        for c in range(2):
            b = base + 8 * i + 4 * c
            e = ex + 16 * i + 8 * c
            for j in (0, 2):
                pk('add', v(b + j, 2), (v(b + j, 2), 'p'), (v(e + j, 2), 'p'))
            for j in (0, 2):
                pk('add', v(b + j, 2), (v(b + j, 2), 'p'), (v(e + 4 + j, 2), 'p'))
            for j in (0, 2):
                I(f'v_cvt_pk_bf16_f32 {v(e + j // 2)}, {v(b + j)}, {v(b + j + 1)}')
            I(f'buffer_store_dwordx2 {v(e, 2)}, {v(V_XTST)}, {WS}, s{S_T0 + i} offen offset:{128 * c} sc1', tag='xtst')
    P.free(ex, 32), P.free(base, 16)
    stamp(f'conv{layer}_st')


def phi(x, tmp):
    EX = s(S_EXP, 2)
    for j in (0, 2):
        pk('fma', v(tmp + j, 2), (v(x + j, 2), 'p'), (EX, 'l'), (EX, 'h'))
    for j in range(4):
        I(f'v_exp_f32_e64 {v(tmp + j)}, {v(tmp + j)} clamp')
    for j in range(4):
        I(f'v_max_f32 {v(x + j)}, s{S_E6}, {v(x + j)}')
    for j in (0, 2):
        pk('add', v(x + j, 2), (v(x + j, 2), 'p'), (v(tmp + j, 2), 'p'))


DOTSTATS = '--dot' in sys.argv


def p3(layer, wl1, wl2):
    A.label(f'L_redo{layer}')
    for ck in range(4):
        if ck == 0:
            I(f's_lshl_b32 m0, s{S_W}, 12')
        else:
            I('s_add_u32 m0, m0, 16384')
        I(f's_mov_b32 s{S_T0}, {hex(WS_XT[layer] + ck * 16384)}')
        for j in range(4):
            I(f'buffer_load_dwordx4 {v(V_XTLD)}, {WS}, s{S_T0} offen offset:{1024 * j} sc1 lds', tag=f'xt{ck}')
        if layer == 0 and CS_C0 and ck in (1, 2):
            colsums([ck])
    acc = P.alloc(32, 4)
    ss = P.alloc(8, 4)

    def loader(k, r):
        st, i = k
        return [f'ds_read_b64_tr_b16 {v(r + 2 * z, 2)}, {v(V_XT[i])} offset:{4096 * st + 2048 * z}' for z in range(2)]
    mf = []
    fill = {}
    for st in range(16):
        for i in range(4):
            for y in (1, 2):
                def em(reg, st=st, i=i, y=y):
                    d = v(acc + 16 * (y - 1) + 4 * i, 4)
                    I(f'v_mfma_f32_16x16x32_bf16 {d}, {v(reg[(st, i)], 4)}, {wq_reg(y, st)}, {"0" if st == 0 else d}')
                mf.append((em, [(st, i)]))
            if i == 0 and not DOTSTATS:
                for y in range(2):
                    def em(reg, st=st, y=y):
                        d = v(ss + 4 * y, 4)
                        x = v(reg[(st, 0)], 4)
                        I(f'v_mfma_f32_16x16x32_bf16 {d}, {v(V_ONES, 4) if y else x}, {x}, {"0" if st == 0 else d}')
                    mf.append((em, [(st, 0)]))
            if i == 0 and DOTSTATS:
                def dots(reg, st=st):
                    for j in range(8):
                        x = v(reg[(st, 0)] + j // 2)
                        d = v(ss + (j & 1))
                        c = '0' if (st == 0 and j < 2) else d
                        I(f'v_dot2_f32_bf16 {d}, {x}, {x if j & 1 else s(S_ONES)}, {c}')
                fill.setdefault(len(mf) - 2, []).append(dots)
    per = len(mf) // 16
    if wl1:
        spread(fill, wl1, 5 * per + 3, (10.5 * per) / len(wl1))

    def mkgate(ck):
        def g():
            A.wait_vm(f'xt{ck}')
            A.barrier(lg=(ck == 0))
            if ck == 0:
                stamp(f'p3_{layer}_c0')
            if ck == 1 and SPEC:
                I(f's_cmp_lg_u32 s{S_REDO}, 1')
                I(f's_cbranch_scc1 L_nofb{layer}')
                I(f's_mov_b32 s{S_T0}, {hex(WS_FB)}')
                A._emit(Ins(f'v_mov_b32 {v(V_PA)}, 1'))
                I('s_mov_b64 exec, 1')
                A.cond = True
                I(f'buffer_atomic_add {v(V_PA)}, {v(V_ARR)}, {WS}, s{S_T0} offen')
                A.cond = False
                I('s_mov_b64 exec, -1')
                A.label(f'L_nofb{layer}')
        return g
    gate = {(4 * ck, 0): mkgate(ck) for ck in range(4)}
    stream(mf, loader, 9, per + 2, fill=fill, gate=gate, burst=8)
    stamp(f'p3_{layer}_mm')
    if DOTSTATS:
        for r in (0, 1):
            I(f'v_mov_b32 {v(ss + 2 + r)}, {v(ss + r)}')
        for r in (0, 1):
            I(f'v_permlane32_swap_b32 {v(ss + r)}, {v(ss + 2 + r)}')
        pk('add', v(ss, 2), (v(ss, 2), 'p'), (v(ss + 2, 2), 'p'))
        for r in (0, 1):
            I(f'v_mov_b32 {v(ss + 2 + r)}, {v(ss + r)}')
        for r in (0, 1):
            I(f'v_permlane16_swap_b32 {v(ss + r)}, {v(ss + 2 + r)}')
        pk('add', v(ss, 2), (v(ss, 2), 'p'), (v(ss + 2, 2), 'p'))
        pk('mul', v(ss, 2), (v(ss, 2), 'p'), (s(S_LN, 2), 'l'))
        I(f'v_fma_f32 {v(ss + 1)}, -{v(ss)}, {v(ss)}, {v(ss + 1)}')
        I(f'v_max_f32 {v(ss + 1)}, 0, {v(ss + 1)}')
        I(f'v_add_f32 {v(ss + 1)}, s{S_LN + 1}, {v(ss + 1)}')
        I(f'v_rsq_f32 {v(ss + 1)}, {v(ss + 1)}')
        I(f'v_mul_f32 {v(ss)}, {v(ss)}, {v(ss + 1)}')
        I(f'ds_write2st64_b32 {v(V_SW)}, {v(ss + 1)}, {v(ss)} offset0:0 offset1:1')
    else:
        I(f'v_cndmask_b32 {v(ss)}, {v(ss)}, {v(ss + 1)}, {s(S_M1, 2)}')
        I(f'v_cndmask_b32 {v(ss + 2)}, {v(ss + 2)}, {v(ss + 3)}, {s(S_M1, 2)}')
        I(f'v_mul_f32 {v(ss + 4)}, s{S_LN}, {v(ss + 4)}')
        I(f'v_cndmask_b32 {v(ss)}, {v(ss)}, {v(ss + 2)}, {s(S_M2, 2)}')
        I(f'v_mul_f32 {v(ss + 1)}, {v(ss + 4)}, {v(ss + 4)}')
        I(f'v_fma_f32 {v(ss + 1)}, {v(ss)}, s{S_LN}, -{v(ss + 1)}')
        I(f'v_max_f32 {v(ss + 1)}, 0, {v(ss + 1)}')
        I(f'v_add_f32 {v(ss + 1)}, s{S_LN + 1}, {v(ss + 1)}')
        I(f'v_rsq_f32 {v(ss + 1)}, {v(ss + 1)}')
        I('s_mov_b32 exec_lo, 0x00f0000f')
        I('s_mov_b32 exec_hi, 0xf0000f00')
        I(f'v_mul_f32 {v(ss)}, {v(ss + 4)}, {v(ss + 1)}')
        I(f'ds_write2st64_b32 {v(V_SW)}, {v(ss + 1)}, {v(ss)} offset0:0 offset1:1')
        I('s_mov_b64 exec, -1')
    ta = P.alloc(6, 2)
    for i in range(1, 4):
        I(f'v_xor_b32 {v(ta + 2 * i - 2)}, {64 * i}, {v(V_SR4)}')
        I(f'v_xor_b32 {v(ta + 2 * i - 1)}, {64 * i}, {v(V_SR1)}')


    def csq(lo, hi):
        if layer == 0:
            for st in range(lo, hi):
                I(f'v_mfma_f32_16x16x32_bf16 {v(V_CSQ, 4)}, {wq_reg(0, st)}, {v(V_ONES, 4)}, {v(V_CSQ, 4) if st else 0}')
    csq(0, 6)
    A.barrier()
    stamp(f'p3_{layer}_st')
    P.free(ss, 8)
    r4 = P.alloc(32, 4)
    r1 = P.alloc(8, 2)
    for i in range(4):
        a4 = ta + 2 * i - 2 if i else V_SR4
        I(f'ds_read_b128 {v(r4 + 8 * i + 4, 4)}, {v(a4)} offset:256')
        I(f'ds_read_b128 {v(r4 + 8 * i, 4)}, {v(a4)}')
    for i in range(4):
        a1 = ta + 2 * i - 1 if i else V_SR1
        I(f'ds_read2st64_b32 {v(r1 + 2 * i, 2)}, {v(a1)} offset0:0 offset1:1')
    P.free(ta, 6)
    csq(6, 16)
    tmp = P.alloc(4, 2)
    fk = P.alloc(8, 4)
    fv = P.alloc(8, 4)
    dkv, dz = P.alloc(4, 4), P.alloc(4, 4)
    E6 = s(S_E6, 2)
    for i in range(4):
        r, rm = r4 + 8 * i, r4 + 8 * i + 4
        k_, v_ = acc + 4 * i, acc + 16 + 4 * i
        for j in (0, 2):
            pk('fma', v(tmp + j, 2), (v(rm + j, 2), 'p', 'b'), bc(V_CSKV), (E6, 'p'))
        for j in (0, 2):
            pk('fma', v(k_ + j, 2), (v(k_ + j, 2), 'p'), (v(r + j, 2), 'p'), (v(tmp + j, 2), 'p'))
        for j in (0, 2):
            pk('mul', v(v_ + j, 2), (v(v_ + j, 2), 'p'), (v(r + j, 2), 'p'))
        for j in (0, 2):
            pk('fma', v(v_ + j, 2), (v(rm + j, 2), 'p', 'b'), bc(V_CSKV + 1), (v(v_ + j, 2), 'p'))
        phi(k_, tmp)
        for j in (0, 2):
            I(f'v_cvt_pk_bf16_f32 {v(fv + 2 * i + j // 2)}, {v(v_ + j)}, {v(v_ + j + 1)}')
        for j in (0, 2):
            I(f'v_cvt_pk_bf16_f32 {v(fk + 2 * i + j // 2)}, {v(k_ + j)}, {v(k_ + j + 1)}')
    if SPEC:
        I(f'v_cmp_u_f32 vcc, {v(r1 + 1)}, {v(r1 + 3)}')
        I(f'v_cmp_u_f32 s[{R_WQ}:{R_WQ + 1}], {v(r1 + 5)}, {v(r1 + 7)}')
        I(f's_or_b64 vcc, vcc, s[{R_WQ}:{R_WQ + 1}]')
        I(f's_cbranch_scc1 L_slow{layer}')
        A.label(f'L_ok{layer}')
    stamp(f'p3_{layer}_kv')
    I(f's_mov_b32 s{S_T2}, {hex(WS_KV[layer])}')
    I(f's_mov_b32 s{S_T0}, {hex(WS_KV[layer] + 32768)}')
    for hf in range(2):
        I(f'v_mfma_f32_16x16x32_bf16 {v(dkv, 4)}, {v(fv + 4 * hf, 4)}, {v(fk + 4 * hf, 4)}, {v(dkv, 4) if hf else 0}')
    for hf in range(2):
        I(f'v_mfma_f32_16x16x32_bf16 {v(dz, 4)}, {v(V_ONES, 4)}, {v(fk + 4 * hf, 4)}, {v(dz, 4) if hf else 0}')
    P.free(r4, 32), P.free(fk, 8), P.free(fv, 8), P.free(acc, 32)

    def atomics():
        for r in range(4):
            I(f'buffer_atomic_add_f32 {v(dkv + r)}, {v(V_KVST)}, {WS}, s{S_T2} offen offset:{64 * r}')
        I('s_mov_b64 exec, 0xffff')
        I(f'buffer_atomic_add_f32 {v(dz)}, {v(V_ZST)}, {WS}, s{S_T0} offen')
        I('s_mov_b64 exec, -1')
        stamp(f'p3_{layer}_atom')
    acc = P.alloc(16, 4)
    mf = []
    fill = {}
    for st in range(16):
        for i in range(4):
            def em(reg, st=st, i=i):
                d = v(acc + 4 * i, 4)
                I(f'v_mfma_f32_16x16x32_bf16 {d}, {wq_reg(0, st)}, {v(reg[(st, i)], 4)}, {"0" if st == 0 else d}')
            mf.append((em, [(st, i)]))
    if layer == 0 and '--prex2' in sys.argv:
        pcs = []
        for i in range(8):
            pcs.append([lambda i=i: I(f's_mov_b32 s{S_T1}, {hex(WS_X2[1] + 8192 * i)}'),
                        lambda: I(f'buffer_store_dword {v(V_L)}, {v(V_X2ST)}, {WS}, s{S_T1} offen sc1')])
        spread(fill, pcs, 6, 4, solo=False)
    if wl2:
        spread(fill, wl2, 4, 56 / len(wl2), solo=False)
    stream(mf, loader, 8, 6, fill=fill, rate=2, burst=10, pre=atomics)
    P.free(dkv, 4), P.free(dz, 4)
    stamp(f'p3_{layer}_qmm')
    I(f's_mov_b32 s{S_T0}, {hex(WS_PQ[layer])}')
    ta = P.alloc(4)
    for i in range(1, 4):
        I(f'v_xor_b32 {v(ta + i)}, {(i >> 1) * 32768 + (i & 1) * 512}, {v(V_PQST)}')
    for i in range(4):
        q_ = acc + 4 * i
        rr = v(r1 + 2 * i, 2)
        for j in (0, 2):
            pk('fma', v(tmp + j, 2), (rr, 'h', 'b'), (v(V_CSQ + j, 2), 'p'), (E6, 'p'))
        for j in (0, 2):
            pk('fma', v(q_ + j, 2), (v(q_ + j, 2), 'p'), (rr, 'l'), (v(tmp + j, 2), 'p'))
        phi(q_, tmp)
        for j in (0, 2):
            I(f'v_cvt_pk_bf16_f32 {v(q_ + j // 2)}, {v(q_ + j)}, {v(q_ + j + 1)}')
        I(f'buffer_store_dwordx2 {v(q_, 2)}, {v(ta + i if i else V_PQST)}, {WS}, s{S_T0} offen sc1', tag='pqst')
    stamp(f'p3_{layer}_q')
    P.free(r1, 8), P.free(tmp, 4), P.free(acc, 16), P.free(ta, 4)


P4_UP = int(([x[6:] for x in sys.argv if x.startswith('--p4up')] or ['3'])[0])


P4FL = '' if '--nosc1' in sys.argv else 'sc1'


OUTFL = ([x[6:] for x in sys.argv if x.startswith('--out=')] or [''])[0].replace('+', ' ')


P4_EARLY = [int(c) for c in ([x[8:] for x in sys.argv if x.startswith('--p4ear=')] or ['9'])[0]]


def p4_res():
    res = P.alloc(8, 2)
    for j in range(4):
        I(f'ds_read_b64_tr_b16 {v(res + 2 * j, 2)}, {v(V_RES[j & 1])} offset:{512 * j}')
    return res


def p4_pre(res, layer):
    I(f's_mov_b32 s{S_T1}, {hex(WS_KV[layer])}')
    I(f's_mov_b32 s{S_T2}, {hex(WS_PQ[layer])}')
    I(f's_mov_b32 s{S_T3}, {hex(WS_KV[layer] + 4096)}')
    I(f's_mov_b32 s{S_T4}, {hex(WS_PQ[layer] + 4096)}')
    acc = P.alloc(16, 2)
    ad = [P.alloc() for _ in range(3)]
    for b in range(1, 4):
        I(f'v_xor_b32 {v(ad[b - 1])}, {8192 * b}, {v(V_OFW)}')
    for j in range(8):
        I(f'v_lshlrev_b32 {v(acc + 2 * j)}, 16, {v(res + j)}')
        I(f'v_and_b32 {v(acc + 2 * j + 1)}, 0xffff0000, {v(res + j)}')
    P.free(res, 8)
    return acc, ad


def p4(layer, acc, ad):
    zf = P.alloc(4, 2)
    kv = P.alloc(32, 2)
    pq = P.alloc(32, 2)
    D = [P.alloc(16, 2), P.alloc(16, 2)]
    frs = [P.alloc(4, 2) for _ in range(6)]
    fr = frs[0]

    def loads(pp):
        out = []
        for j in range(2):
            out.append(f'buffer_load_dwordx4 {v(kv + 8 * pp + 4 * j, 4)}, {v(V_KVLD)}, {WS}, s{S_T3 if pp >> 1 else S_T1} offen offset:{2048 * (pp & 1) + 1024 * j} sc1')
        for j in range(2):
            out.append(f'buffer_load_dwordx4 {v(pq + 8 * pp + 4 * j, 4)}, {v(V_PQLD)}, {WS}, s{S_T4 if pp >> 1 else S_T2} offen offset:{2048 * (pp & 1) + 1024 * j} sc1')
        return out
    I(f'buffer_load_dwordx4 {v(fr, 4)}, {v(V_ZLD)}, {WS}, s{S_T1} offen sc1')
    for pp in range(P4_UP):
        for i, t in enumerate(loads(pp)):
            I(t)
            if pp == 0 and i == 1:
                A.barrier()
        if pp < P4_UP - 1:
            A.barrier()
    late = [t for pp in range(P4_UP, 4) for t in loads(pp)]
    stamp(f'p4_{layer}_iss')
    for j in range(4):
        I(f'v_cvt_pk_bf16_f32 {v(zf + j)}, {v(fr + 2 * (j & 1))}, {v(fr + 1 + 2 * (j & 1))}')
    stamp(f'p4_{layer}_z')
    MK = s(S_MASK, 2)

    def prep(pp):
        x = kv + 8 * pp
        o = [f'v_cvt_pk_bf16_f32 {v(x + j)}, {v(x + 2 * j)}, {v(x + 2 * j + 1)}' for j in range(4)]
        if pp == 0:
            o += [f'v_permlane16_swap_b32 {v(zf + j)}, {v(zf + 2 + j)}' for j in range(2)]
        o += [f'v_cndmask_b32 {v(x + 4 + j)}, {v(zf + j)}, {v(x + j)}, {MK}' for j in range(4)]
        o += [f'v_cndmask_b32 {v(x + j)}, {v(x + j)}, {v(zf + j)}, {MK}' for j in range(4)]
        return o

    def mm(hh):
        I(f'v_mfma_f32_32x32x16_bf16 {v(D[hh & 1], 16)}, {v(kv + 4 * hh, 4)}, {v(pq + 4 * hh, 4)}, 0')

    def main_mm(hl, r):
        I(f'v_mfma_f32_32x32x16_bf16 {v(acc, 16)}, {wo_reg(hl)}, {v(r, 4)}, {v(acc, 16)}')

    def norm(pp):
        den = [D[o] + 8 * (1 - o) + 2 * pp + o for o in range(2)]
        out = []
        for o in range(2):
            num = D[o] + 8 * o
            of = pq + 8 * pp + 4 * o
            out.append(f'v_add_f32 {v(den[o])}, s{S_E6}, {v(den[o])}')
            out.append(f'v_rcp_f32 {v(den[o])}, {v(den[o])}')
            out += [f'v_mul_f32 {v(num + j)}, {v(den[o])}, {v(num + j)}' for j in range(8)]
            out += [f'v_cvt_pk_bf16_f32 {v(of + j)}, {v(num + 2 * j)}, {v(num + 2 * j + 1)}' for j in range(4)]
            out.append(f'ds_write_b128 {v(V_OFW)}, {v(of, 4)} offset:{2048 * pp + 1024 * o}')
        out[2:2] = [out.pop(15), out.pop(15)]
        return out

    def reads(pp):
        return [f'ds_read_b128 {v(frs[2 * (b - 1) + o], 4)}, {v(ad[b - 1])} offset:{2048 * pp + 1024 * o}' for b in range(1, 4) for o in range(2)]
    for t in prep(0):
        I(t)
    for pp in range(5):
        rd = reads(pp - 1) if pp else []
        tail = []
        if pp:
            tail = [(2 * pp - 2 + o, pq + 8 * pp - 8 + 4 * o) for o in range(2)]
            tail += [(8 * b + 2 * pp - 2 + o, frs[2 * (b - 1) + o]) for b in range(1, 4) for o in range(2)]
        if pp < 4:
            for o in range(2):
                mm(2 * pp + o)
                for t in rd[3 * o:3 * o + 3]:
                    I(t)
            while late:
                I(late.pop(0))
            stamp(f'p4_{layer}_m{pp}')
            va = norm(pp)
            nx = prep(pp + 1) if pp < 3 else []
            if pp in P4_EARLY:
                va = nx[:4] + va + nx[4:]
                cuts = (0, 6, 11, 16, 20, 21, 27, 33)
            else:
                va = va + nx
                cuts = (0, 1, 6, 11, 16, 22, 29, 34) if pp < 3 else (0, 1, 7, 12, 16, 22, 29)
            for i, t in enumerate(va):
                if i in cuts and tail:
                    if len(tail) == 6:
                        A.need(v(frs[2], 4))
                    if len(tail) == 3:
                        A.need(v(frs[5], 4))
                    main_mm(*tail.pop(0))
                I(t)
            for x in tail:
                main_mm(*x)
            A.barrier()
        else:
            for i, x in enumerate(tail):
                for t in rd[2 * i:2 * i + 2]:
                    I(t)
                main_mm(*x)
    P.free(zf, 4), P.free(kv, 32), P.free(pq, 32), P.free(D[0], 16), P.free(D[1], 16)
    for r in frs:
        P.free(r, 4)
    for r in ad:
        P.free(r)
    stamp(f'p4_{layer}_mm')
    o = P.alloc(8, 2)
    if layer == 0:
        I(f's_mov_b32 s{S_T1}, {hex(WS_ST[1])}')
    else:
        ta = P.alloc(3)
        I(f'v_and_b32 {v(ta)}, 31, {v(V_L)}')
        I(f'v_mul_u32_u24 {v(ta)}, 272, {v(ta)}')
        I(f'v_and_b32 {v(ta + 1)}, 0xff, {v(V_TILE)}')
        I(f'v_add_u32 {v(ta)}, {v(ta)}, {v(ta + 1)}')
        I(f'v_lshrrev_b32 {v(ta + 1)}, 4, v0')
        I(f'v_readfirstlane_b32 s{S_T0}, {v(V_TILE)}')
        I(f'v_and_b32 {v(ta + 2)}, 0xf0, {v(V_L16)}')
        I(f's_and_b32 s{S_T0}, s{S_T0}, 0xffffff00')
        I(f'v_mad_u32_u24 {v(o)}, {v(ta + 1)}, 17, 0')
        I(f'v_lshl_add_u32 {v(ta + 1)}, {v(ta + 1)}, 10, s{S_T0}')
        I(f'v_add_u32 {v(ta + 1)}, {v(ta + 1)}, {v(ta + 2)}')
        I(f'v_lshl_add_u32 {v(ta + 2)}, {v(o)}, 4, {v(ta + 2)}')
    for j in range(8):
        I(f'v_cvt_pk_bf16_f32 {v(o + j)}, {v(acc + 2 * j)}, {v(acc + 2 * j + 1)}')
    if layer == 0:
        ss = P.alloc(2, 2)
        for j in range(8):
            I(f'v_dot2_f32_bf16 {v(ss)}, {v(o + j)}, s{S_ONES}, {v(ss) if j else 0}')
            I(f'v_dot2_f32_bf16 {v(ss + 1)}, {v(o + j)}, {v(o + j)}, {v(ss + 1) if j else 0}')
        I(f'v_permlane32_swap_b32 {v(ss)}, {v(ss + 1)}')
        I(f'v_add_f32 {v(ss)}, {v(ss)}, {v(ss + 1)}')
        I(f'buffer_atomic_add_f32 {v(ss)}, {v(V_STAT)}, {WS}, s{S_T1} offen')
        x2store(1, o)
        P.free(ss, 2)
    elif '--dirout' in sys.argv:
        for j in range(2):
            I(f'global_store_dwordx4 {v(V_TILE)}, {v(o + 4 * j, 4)}, {s(S_OUT, 2)} offset:{16 * j} {OUTFL}')
        P.free(ta, 3)
    else:
        for j in range(2):
            I(f'ds_write_b128 {v(ta)}, {v(o + 4 * j, 4)} offset:{L_A + 16 * j}')
        I(f'v_add_u32 {v(ta)}, 16384, {v(ta + 1)}')
        A.barrier()
        for j in range(2):
            I(f'ds_read_b128 {v(o + 4 * j, 4)}, {v(ta + 2)} offset:{L_A + 16 * 272 * j}')
        for j in range(2):
            I(f'global_store_dwordx4 {v(ta + 1 - j)}, {v(o + 4 * j, 4)}, {s(S_OUT, 2)} {OUTFL}')
        P.free(ta, 3)
    P.free(o, 8), P.free(acc, 16)
    stamp(f'p4_{layer}_st')


def main():
    kg, gi, fin = prologue()
    kg['fin'] = fin
    order = [('q', y, st) for st in range(16) for y in (1, 2)] + [('q', 0, st) for st in range(16)] + [('o', h) for h in range(32)]
    wl = wloads(order)

    def take(n):
        out = wl[:n]
        del wl[:n]
        return out
    bar = 1
    for layer in range(2):
        I(f's_lshl_b32 s{S_T3}, s2, 13')
        I(f's_add_u32 s{S_T3}, s{S_T3}, {hex(WS_X2[layer])}')
        I(f's_mov_b32 s{S_T1}, {hex(WS_ST[layer])}')
        I(f's_mov_b32 s{S_T2}, {hex(WS_ST[layer] + 8192)}')
        stamp(f'pre_wait{bar}')
        global_wait(bar, started=(layer == 0))
        stamp(f'wait{bar}')
        conv(layer, kg, gi, take(WN[0]))
        if SPEC:
            poll_start(bar + 1)
        if layer == 0:
            for th in take(WN[1]):
                run_all(th)
            if not LATE_IN:
                setup_late()
        if not SPEC:
            A.wait_vm('xtst')
            global_arrive()
        bar += 1
        stamp(f'arr{bar}')
        if layer == 0:
            for th in take(WN[2]):
                run_all(th)
        if not SPEC:
            poll_start(bar)
        if layer == 0 and not CS_C0:
            colsums([1, 2])
        stamp(f'pre_wait{bar}')
        I(f's_mov_b32 s{S_REDO}, s{S_W}')
        global_wait(bar, started=True, gap=True)
        stamp(f'wait{bar}')
        p3(layer, take(WN[3]), take(WN[4]))
        for th in take(WN[5]):
            run_all(th)
        A.wait_vm('pqst')
        global_arrive()
        bar += 1
        stamp(f'arr{bar}')
        for th in take(99):
            run_all(th)
        if layer == 0:
            P.free(V_WLD, 2)
        poll_start(bar)
        acc, ad = p4_pre(p4_res(), layer)
        global_wait(bar, started=True)
        stamp(f'wait{bar}')
        p4(layer, acc, ad)
        if layer == 0:
            A.wait_vm()
            global_arrive()
            bar += 1
    if DIAG:
        A.wait_vm()
        stamp('end')
        A._wait(lg=0)
        t = P.alloc(2)
        I(f's_lshl_b32 s{S_T0}, s2, 2')
        I(f's_add_u32 s{S_T0}, s{S_T0}, s{S_W}')
        I(f's_lshl_b32 s{S_T0}, s{S_T0}, 7')
        I(f's_add_u32 s{S_T0}, s{S_T0}, {hex(WS_DIAG)}')
        I(f'v_mov_b32 {v(t + 1)}, 0')
        I('s_mov_b64 exec, 1')
        for k in range(nstamp[0]):
            I(f'v_mov_b32 {v(t)}, s{S_STAMP + 2 * k}')
            I(f'buffer_store_dword {v(t)}, {v(t + 1)}, {WS}, s{S_T0} offen offset:{4 * k}')
        pr = [x for x in sys.argv if x.startswith('--probe=')]
        if pr:
            nm = pr[0][8:]
            if ':' in nm:
                a_, b_ = [stamp_names.index(x) for x in nm.split(':')]
                I(f's_sub_u32 s{S_T1}, s{S_STAMP + 2 * b_}, s{S_STAMP + 2 * a_}')
                I(f's_mul_i32 s{S_T1}, s{S_T1}, 10')
                I(f's_cmp_eq_u32 s2, {([x[6:] for x in sys.argv if x.startswith("--pwg=")] or [100])[0]}')
                I(f's_cselect_b32 s{S_T1}, s{S_T1}, 0')
                I(f's_add_u32 s{S_T1}, s{S_T1}, s{S_STAMP}')
                I(f's_add_u32 s{S_T1}, s{S_T1}, 6000')
            else:
                k = stamp_names.index(nm)
                I(f's_add_u32 s{S_T1}, s{S_STAMP + 2 * k}, 6000')
            A.label('L_probe')
            I('s_memrealtime s[4:5]')
            A._wait(lg=0)
            I(f's_sub_u32 s{S_T0}, s4, s{S_T1}')
            I(f's_cmp_lt_i32 s{S_T0}, 0')
            I('s_cbranch_scc1 L_probe')
        I(f's_lshl_b32 s{S_T0}, s2, 2')
        I(f's_add_u32 s{S_T0}, s{S_T0}, s{S_W}')
        I(f's_cmp_lg_u32 s{S_T0}, 400')
        I('s_cbranch_scc1 L_end')
        sel = list(range(1, nstamp[0]))
        for j, k in enumerate(sel):
            I(f's_sub_u32 s{S_T0}, s{S_STAMP + 2 * k}, s{S_STAMP}')
            I(f'v_mov_b32 {v(t)}, s{S_T0}')
            I(f'global_store_dword {v(t + 1)}, {v(t)}, {s(S_DBG, 2)} offset:{4 * (j + 1)}')
        print('debug stamps:', [stamp_names[k] for k in sel], file=sys.stderr)
        P.free(t, 2)
    A.label('L_end')
    A.raw('    s_endpgm')
    A.raw('#seg -')
    for layer in range(2 if SPEC else 0):
        raw = lambda t: A._emit(Ins(t))
        A.label(f'L_slow{layer}')
        raw(f's_cmp_ge_u32 s{S_REDO}, 12')
        raw(f's_cbranch_scc1 L_ok{layer}')
        raw(f's_add_u32 s{S_REDO}, s{S_REDO}, 4')
        raw('s_waitcnt vmcnt(0) lgkmcnt(0)')
        raw(f's_cmp_lg_u32 s{S_W}, 0')
        raw(f's_cbranch_scc1 L_slowb{layer}')
        if DIAG:
            raw(f'v_mov_b32 {v(V_PA)}, 1')
            raw(f'v_mov_b32 {v(V_PA + 1)}, 0')
            raw('s_mov_b64 exec, 1')
            raw(f'global_atomic_add {v(V_PA + 1)}, {v(V_PA)}, {s(S_DBG, 2)} offset:{128 + 4 * layer}')
        raw(f's_mov_b32 s{S_SPIN}, 0x100000')
        raw(f's_mov_b32 s{S_T0}, {hex(WS_FB)}')
        raw(f's_movk_i32 s{S_T1}, {32 * (layer + 1)}')
        raw('s_mov_b64 exec, 0xff')
        raw(f'v_lshlrev_b32 {v(V_PA + 1)}, 7, {v(V_L)}')
        A.label(f'L_slowp{layer}')
        raw(f'v_mov_b32 {v(V_PA)}, 0')
        raw(f'buffer_atomic_add {v(V_PA)}, {v(V_PA + 1)}, {WS}, s{S_T0} offen sc0')
        raw(f's_sub_u32 s{S_SPIN}, s{S_SPIN}, 1')
        raw(f's_cbranch_scc1 L_slowd{layer}')
        raw('s_waitcnt vmcnt(0)')
        raw(f'v_cmp_gt_u32 vcc, s{S_T1}, {v(V_PA)}')
        raw(f's_cbranch_vccnz L_slowp{layer}')
        A.label(f'L_slowd{layer}')
        raw('s_mov_b64 exec, -1')
        raw('s_waitcnt vmcnt(0)')
        A.label(f'L_slowb{layer}')
        raw('s_barrier')
        raw(f's_branch L_redo{layer}')

    lines, info = layout(A.out, align='--noalign' not in sys.argv, touch='--notouch' not in sys.argv)
    body = '\n'.join(lines) + '\n'
    print(info, file=sys.stderr)
    ref = open(f'cdna_kernels/{NAME}.s.ref').read().splitlines()
    head = []
    for ln in ref:
        if ln.startswith('; @launch'):
            head.append(f'; @launch grid=(256,1,1) block=(256,1,1) lds={L_END}')
            break
        head.append(ln)
    txt = '\n'.join(head) + f'''
.amdgcn_target "amdgcn-amd-amdhsa--gfx950"
.text
.globl {NAME}_kernel
.p2align 12
.p2align 8
.type {NAME}_kernel,@function
{NAME}_kernel:
''' + body + f'''.section .rodata,"a"
.p2align 6
.amdhsa_kernel {NAME}_kernel
  .amdhsa_next_free_vgpr 512
  .amdhsa_next_free_sgpr 102
  .amdhsa_accum_offset 256
  .amdhsa_group_segment_fixed_size 0
  .amdhsa_kernarg_size 120
  .amdhsa_user_sgpr_count 2
  .amdhsa_user_sgpr_kernarg_segment_ptr 1
  .amdhsa_system_sgpr_workgroup_id_x 1
.end_amdhsa_kernel
'''
    out = [x for x in sys.argv[1:] if not x.startswith('--')]
    path = out[0] if out else f'cdna_kernels/{NAME}.s'
    open(path, 'w').write(txt)
    if DIAG:
        open(path + '.stamps', 'w').write('\n'.join(stamp_names))
    print(f'wrote {path}: {A.ninstr} instrs, {A.nnop} nop states, vgpr peak {P.peak}, lds {L_END}', file=sys.stderr)


main()
```

```python
import sys, struct, math
from emit import *
from layout import layout

NAME = 'interleave_layers__ssm_conv_s4__linear_attn_block__prompt'
DIAG = '--diag' in sys.argv


def f32(x):
    return '0x%08x' % struct.unpack('<I', struct.pack('<f', x))[0]


WS_CNT = 0x0
WS_ZERO = 0x10000
WS_KV = [WS_ZERO, WS_ZERO + 0xC000]
WS_ST = [0x30000, WS_ZERO + 0x18000]
WS_FB = WS_ZERO + 0x1C000
WS_DIAG = 0x40000
WS_X2 = [0x200000, 0x400000]
WS_XT = [0x600000, 0x800000]
WS_PQ = [0xA00000, 0xC00000]
WS_SIZE = 0xE00000

L_A = 0
L_B = 65536
L_RK = 131072
L_H = L_RK + 4 * 4160
L_STAT = L_H + 2 * 4608
L_END = L_STAT + 512
KG_ARR = int(([x[5:] for x in sys.argv if x.startswith('--ka=')] or [18])[0])
KG_POLL = 36
KG_ROW = 288
KG_W = 54 * KG_ROW

S_U, S_ARE, S_AIM, S_BRE, S_BIM, S_CRE, S_CIM, S_LDT, S_DSK = 4, 6, 8, 10, 12, 14, 16, 18, 20
S_WQKV, S_WO, S_OUT, S_DBG, S_WS = 24, 26, 28, 30, 32
R_WS, R_WQ, R_WO = 36, 40, 44
S_W, S_RB, S_CG, S_NB, S_TH = 48, 49, 50, 51, 52
S_T0, S_T1, S_T2 = 53, 54, 55
S_D = 56
S_MASK = 58
S_ONES = 60
S_SPIN = 61
S_LN = 62
S_EXP = 64
S_E6 = 66
S_T3, S_T4 = 68, 69
S_STAMP = 70
S_REDO = 67
S_XU, S_XM = 0, 1
S_DO = 3
S_M1, S_M2 = 22, 34

A = Asm()
I = A.I
P = Pool(1, 192)
P.force4 = '--al4' in sys.argv
WS = s(R_WS, 4)
nstamp = [0]
stamp_names = []


STSEL = [x[5:].split(',') for x in sys.argv if x.startswith('--st=')]
STSEL = STSEL[0] if STSEL else None


def stamp(name, fine=False):
    if not DIAG:
        return
    if name not in ('entry', 'end'):
        if STSEL is None:
            if fine or not name.startswith(('wait', 'arr')):
                return
        elif not any(name.startswith(p) for p in STSEL):
            return
    k = nstamp[0]
    assert k < 16, 'too many stamps'
    I(f'{"s_memtime" if "--cyc" in sys.argv else "s_memrealtime"} s[{S_STAMP + 2 * k}:{S_STAMP + 2 * k + 1}]')
    stamp_names.append(name)
    nstamp[0] += 1


def pk(op, dst, *srcs):
    sel, selhi, nlo, nhi, txt = [], [], [], [], []
    for sr in srcs:
        t, m = sr[0], sr[1]
        ng = sr[2] if len(sr) > 2 else ''
        txt.append(t)
        sel.append(1 if m in 'hx' else 0)
        selhi.append(1 if m in 'ph' else 0)
        nlo.append(1 if ng in ('l', 'b') else 0)
        nhi.append(1 if ng in ('h', 'b') else 0)
    f = lambda l: '[' + ','.join(map(str, l)) + ']'
    line = f'v_pk_{op}_f32 {dst}, ' + ', '.join(txt) + f' op_sel:{f(sel)} op_sel_hi:{f(selhi)}'
    if any(nlo):
        line += f' neg_lo:{f(nlo)}'
    if any(nhi):
        line += f' neg_hi:{f(nhi)}'
    I(line)


def bc(r):
    return (v(r & ~1, 2), 'h' if r & 1 else 'l')


def cmul(d, x, y, tmp):
    pk('mul', v(tmp, 2), (v(x, 2), 'l'), (v(y, 2), 'p'))
    pk('fma', v(d, 2), (v(x, 2), 'h', 'l'), (v(y, 2), 'x'), (v(tmp, 2), 'p'))


def wq_reg(y, st):
    return a((y * 16 + st) * 4, 4)


def wo_reg(h, n=4, off=0):
    if h < 16:
        return a(192 + 4 * h + off, n)
    return v(192 + 4 * (h - 16) + off, n)


V_L = P.alloc()
V_L16 = P.alloc()
V_XT = [P.alloc() for _ in range(4)]
V_TILE = P.alloc()
V_X2ST = P.alloc()
V_STAT = P.alloc()
V_CVL = P.alloc()
V_HW = P.alloc()
V_CA = [P.alloc() for _ in range(4)]
V_CB = P.alloc()
V_EXW = P.alloc()
V_EXR = P.alloc()
V_XTST = P.alloc()
V_XTLD = P.alloc()
V_PQST = P.alloc()
V_KVST = P.alloc()
V_ZST = P.alloc()
V_PQLD = P.alloc()
V_KVLD = P.alloc()
V_ZLD = P.alloc()
V_OFW = P.alloc()
V_RES = [P.alloc(), P.alloc()]
V_SW = P.alloc()
V_SR4 = P.alloc()
V_SR1 = V_SW
V_ARR = P.alloc()
V_POLL = P.alloc()
V_PA = P.alloc(2)
V_WD = P.alloc()
V_WOD = P.alloc()
V_WR = P.alloc(2)
POLL_GAP = 4
V_CSKV = P.alloc(2)
V_CSQ = P.alloc(4)
V_ONES = P.alloc(4)


def global_arrive(first=None, bar=True, lg=True):
    if bar:
        A.barrier(lg=lg and not first)
    lab = f'L_arr{global_arrive.n}'
    global_arrive.n += 1
    I(f's_cmp_lg_u32 s{S_W}, 0')
    I(f's_cbranch_scc1 {lab}')
    t = P.alloc()
    if first:
        flag, zero = first
        I(f's_mov_b32 s{S_SPIN}, 0x200000')
        k = max(i for i, e in enumerate(A.vm) if ('v', flag) in e['defs'])
        A._wait(vm=A._count_after(A.vm, k))
        A.vm[k]['defs'] = set()
        A.label(lab + '_init')
        I(f'v_readfirstlane_b32 s{S_T0}, {v(flag)}')
        I(f's_sub_u32 s{S_SPIN}, s{S_SPIN}, 1')
        I(f's_cbranch_scc1 {lab}_go')
        I(f's_cmp_ge_u32 s{S_T0}, 8')
        I(f's_cbranch_scc1 {lab}_go')
        A._emit(Ins(f'global_load_dword {v(flag)}, {v(zero)}, {s(S_DBG, 2)} sc1'))
        A._wait(vm=0)
        I(f's_branch {lab}_init')
        A.label(lab + '_go')
    I(f'v_mov_b32 {v(t)}, 1')
    I('s_mov_b32 exec_hi, 0')
    A.cond = True
    I(f'buffer_atomic_add {v(t)}, {v(V_ARR)}, {WS}, 0 offen')
    A.cond = False
    I('s_mov_b64 exec, -1')
    P.free(t)
    A.label(lab)


global_arrive.n = 0


def _poll(r):
    A._emit(Ins(f'v_mov_b32 {v(r)}, 0'))
    A._emit(Ins(f'buffer_atomic_add {v(r)}, {v(V_POLL)}, {WS}, 0 offen sc0'))


def poll_start(k):
    lab = f'L_ps{k}'
    I(f's_cmp_lg_u32 s{S_W}, 0')
    I(f's_cbranch_scc1 {lab}')
    I('s_mov_b64 exec, 0xff')
    _poll(V_PA)
    I('s_mov_b64 exec, -1')
    A.label(lab)
    A.vm.append(dict(defs=set(), tag=None, cond=True))


def global_wait(k, started=False, gap=False):
    lab = f'L_wait{k}'
    I(f's_cmp_lg_u32 s{S_W}, 0')
    I(f's_cbranch_scc0 {lab}_w0')
    A.raw(f'#touch s{k}')
    I(f's_branch {lab}')
    A.label(lab + '_w0')
    pa, pb = V_PA, V_PA + 1
    raw = lambda t: A._emit(Ins(t))
    I('s_mov_b64 exec, 0xff')
    if not started:
        _poll(pa)
    I(f's_mov_b32 s{S_SPIN}, 0x100000')
    I(f's_movk_i32 s{S_T0}, {32 * k}')
    if not started or gap:
        raw(f's_sleep {POLL_GAP}')
    A.label(lab + '_poll')
    _poll(pb)
    raw('s_waitcnt vmcnt(1)')
    raw(f'v_cmp_gt_u32 vcc, s{S_T0}, {v(pa)}')
    raw(f's_cbranch_vccz {lab}_done')
    _poll(pa)
    raw(f's_sub_u32 s{S_SPIN}, s{S_SPIN}, 1')
    raw(f's_cbranch_scc1 {lab}_done')
    raw('s_waitcnt vmcnt(1)')
    raw(f'v_cmp_gt_u32 vcc, s{S_T0}, {v(pb)}')
    raw(f's_cbranch_vccnz {lab}_poll')
    A.label(lab + '_done')
    I('s_mov_b64 exec, -1')
    A.vm.append(dict(defs=set(), tag=None, cond=True))
    A.label(lab)
    A.raw(f'#seg s{k}')
    A.barrier()


def dma_pieces(srd, vaddr, region, base, step, gstep, tag):
    out = []
    for i in range(16):
        th = []
        if i % 4 == 0:
            g = i // 4
            th.append(lambda g=g: I(f's_xor_b32 m0, s{S_XM}, {hex(region + 4096 * g)}'))
            if g:
                th.append(lambda g=g: I(f's_xor_b32 s{S_DO}, s{S_XU}, {g}'))
            th.append(lambda g=g: I(f's_mul_i32 s{S_DO}, s{S_DO if g else S_XU}, {gstep}'))
            if base:
                th.append(lambda: I(f's_add_u32 s{S_DO}, s{S_DO}, {base}'))
        elif step != 1024:
            th.append(lambda: I(f's_add_u32 s{S_DO}, s{S_DO}, {step - 1024}'))

        def ld(i=i):
            I(f'buffer_load_dwordx4 {v(vaddr)}, {s(srd, 4)}, s{S_DO} offen offset:{1024 * (i % 4)} lds', tag=tag)
        ld.lds = True
        th.append(ld)
        out.append(th)
    return out


def dma_w(y, region, tag):
    return dma_pieces(R_WQ, V_WD, region, y * 1024, 8 * 3072, 32 * 3072, tag)


def dma_wo(region, tag):
    return dma_pieces(R_WO, V_WOD, region, 0, 1024, 16384, tag)


def consume_w(y, vaddr):
    out = []
    for st in range(16):
        b = (y * 16 + st) * 4
        for z in range(2):
            out.append(lambda b=b, z=z, st=st: I(f'ds_read_b64_tr_b16 {a(b + 2 * z, 2)}, {v(vaddr)} offset:{4096 * st + 2048 * z}'))
    return out


def consume_wo(c):
    out = []
    for hh in range(16):
        for z in range(2):
            out.append(lambda hh=hh, z=z: I(f'ds_read_b64_tr_b16 {wo_reg(16 * c + hh, 2, 2 * z)}, {v(V_WR + (hh >> 3))} offset:{4096 * (hh & 7) + 2048 * z}'))
    return out


def run_all(th):
    for t in th:
        t()


def spread(fill, pieces, start, step, solo=True):
    for i, th in enumerate(pieces):
        at = start + int(i * step)
        for j, t in enumerate(th):
            f = lambda reg, t=t: t()
            f.lds = getattr(t, 'lds', False) and solo
            fill.setdefault(max(0, at - (len(th) - 1 - j)), []).append(f)


def colsums(ys):
    d = {y: V_CSQ if y == 0 else P.alloc(4, 2) for y in ys}
    for y in ys:
        for st in range(16):
            c = '0' if st == 0 else v(d[y], 4)
            if y == 0:
                I(f'v_mfma_f32_16x16x32_bf16 {v(d[y], 4)}, {wq_reg(y, st)}, {v(V_ONES, 4)}, {c}')
            else:
                I(f'v_mfma_f32_16x16x32_bf16 {v(d[y], 4)}, {v(V_ONES, 4)}, {wq_reg(y, st)}, {c}')
    for y in ys:
        if y:
            I(f'v_mov_b32 {v(V_CSKV + y - 1)}, {v(d[y])}')
            P.free(d[y], 4)


def stream(mf, loader, nslots, look, fill=None, gate=None, rate=1, burst=9, pre=None):
    fill = fill or {}
    gate = gate or {}
    first, last, order = {}, {}, []
    for m, (_, keys) in enumerate(mf):
        for k in keys:
            if k not in first:
                first[k] = m
                order.append(k)
            last[k] = m
    slots = [P.alloc(4, 2) for _ in range(nslots)]
    free = list(slots)
    reg = {}
    pend = []
    nxt = [0]

    def start_key():
        k = order[nxt[0]]
        nxt[0] += 1
        if k in gate:
            gate[k]()
        reg[k] = free.pop(0)
        pend.extend(loader(k, reg[k]))

    def issue(n, m, force=False):
        while n > 0:
            if not pend:
                if nxt[0] >= len(order) or not free:
                    return
                if first[order[nxt[0]]] > m + look:
                    return
                start_key()
            I(pend.pop(0))
            n -= 1

    issue(burst, -1)
    if pre:
        pre()
    for m, (em, keys) in enumerate(mf):
        while any(k not in reg for k in keys) or (pend and order[nxt[0] - 1] in keys):
            assert pend or free, 'no free slot'
            if not pend:
                start_key()
            I(pend.pop(0))
        em(reg)
        for k in keys:
            if last[k] == m:
                free.append(reg[k])
        fl = fill.get(m, [])
        solo = any(getattr(th, 'lds', False) for th in fl)
        if not solo:
            issue(1, m)
        for th in fl:
            th(reg)
        if rate > 1 and not solo:
            if m + 1 < len(mf):
                nk = mf[m + 1][1]
                if all(k in reg for k in nk) and not (pend and order[nxt[0] - 1] in nk):
                    A.need(', '.join(v(reg[k], 4) for k in nk))
            issue(rate - 1, m)
    for r in slots:
        P.free(r, 4)


def opt(name, default):
    x = [t[len(name) + 3:] for t in sys.argv if t.startswith(f'--{name}=')]
    return type(default)(x[0]) if x else default


KG_K0, NK1 = opt('k0', 2), opt('nk1', 16)
NO = opt('no', 6)
KCONS = opt('kcons', 2)
QSTEP = opt('qstep', 5.0)
FLAG_EARLY, KG_FLAG = opt('fe', 1), opt('kf', 4)
WPF = opt('wpf', 0)
PRE = opt('pre', 'b')
SPEC = int(([x[7:] for x in sys.argv if x.startswith('--spec=')] or ['1'])[0])


def xt_poison(layer, t):
    out = []
    for i in range(2):
        for c in range(2):
            th = []
            if i == 0 and c == 0:
                th += [lambda j=j: I(f'v_mov_b32 {v(t + j)}, -1') for j in range(2)]
            if c == 0:
                th.append(lambda i=i: I(f's_mov_b32 s{S_T2}, {hex(WS_XT[layer] + 262144 * i)}'))

            def st(c=c):
                I(f'buffer_store_dwordx2 {v(t, 2)}, {v(V_XTST)}, {WS}, s{S_T2} offen offset:{128 * c} sc1', tag='poison')
            st.lds = True
            th.append(st)
            out.append(th)
    return out


class Capture:
    def __enter__(self):
        global I
        self.lines = []
        self.old = I
        I = lambda t, tag=None: self.lines.append(t)
        return self.lines

    def __exit__(self, *a):
        global I
        I = self.old


def lane_fields():
    f = [P.alloc() for _ in range(5)]
    I(f'v_and_b32 {v(f[0])}, 15, {v(V_L)}')
    I(f'v_lshrrev_b32 {v(f[1])}, 4, {v(V_L)}')
    I(f'v_lshrrev_b32 {v(f[2])}, 5, {v(V_L)}')
    return f


def setup_conv(va_, vg, x0, x1):
    I(f'v_lshl_add_u32 {v(V_CVL)}, s{S_W}, 11, {v(V_L16)}')
    I(f'v_lshrrev_b32 {v(V_HW)}, 1, {v(V_CVL)}')
    I(f'v_add_u32 {v(V_HW)}, {L_H + 512}, {v(V_HW)}')
    I(f's_lshr_b32 s{S_T0}, s{S_W}, 1')
    I(f's_and_b32 s{S_T1}, s{S_W}, 1')
    I(f's_mul_i32 s{S_T3}, s{S_T0}, 4608')
    I(f's_lshl_b32 s{S_T4}, s{S_T1}, 8')
    I(f's_sub_u32 s{S_T3}, s{S_T3}, s{S_T4}')
    I(f's_add_u32 s{S_T3}, s{S_T3}, {L_H + 512 - 32 - 192}')
    I(f'v_lshl_add_u32 {v(V_CB)}, {v(va_)}, 5, s{S_T3}')
    I(f'v_lshl_add_u32 {v(V_CB)}, {v(vg)}, 4, {v(V_CB)}')
    I(f's_mul_i32 s{S_T3}, s{S_T0}, 8320')
    I(f's_sub_u32 s{S_T3}, s{S_T3}, s{S_T4}')
    I(f's_add_u32 s{S_T3}, s{S_T3}, {L_RK + 4160 + 4 * (1015 - 176)}')
    I(f'v_and_b32 {v(x0)}, 1, {v(va_)}')
    I(f'v_mul_u32_u24 {v(x0)}, 4160, {v(x0)}')
    I(f'v_lshrrev_b32 {v(x1)}, 1, {v(va_)}')
    I(f'v_lshl_add_u32 {v(x0)}, {v(x1)}, 2, {v(x0)}')
    I(f'v_lshl_add_u32 {v(x1)}, {v(vg)}, 4, s{S_T3}')
    I(f'v_sub_u32 {v(V_CA[0])}, {v(x1)}, {v(x0)}')
    for i in range(1, 4):
        I(f'v_subrev_u32 {v(V_CA[i])}, {1024 * i}, {v(V_CA[0])}')
    I(f's_mul_i32 s{S_T3}, s{S_W}, 10240')
    I(f's_add_u32 s{S_T3}, s{S_T3}, {L_B}')
    I(f'v_lshl_add_u32 {v(V_EXW)}, {v(vg)}, 6, s{S_T3}')
    I(f'v_add_u32 {v(V_EXW)}, {v(V_EXW)}, {v(V_L16)}')
    I(f's_mul_i32 s{S_T3}, s{S_W}, 2560')
    I(f's_add_u32 s{S_T3}, s{S_T3}, {L_B}')
    I(f'v_and_b32 {v(x0)}, 3, {v(V_L)}')
    I(f'v_mul_u32_u24 {v(V_EXR)}, 316, {v(x0)}')
    I(f'v_lshl_add_u32 {v(V_EXR)}, {v(V_L)}, 2, {v(V_EXR)}')
    I(f'v_add_u32 {v(V_EXR)}, s{S_T3}, {v(V_EXR)}')
    I(f's_lshl_b32 s{S_T3}, s{S_W}, 19')
    I(f's_lshl_b32 s{S_T4}, s2, 8')
    I(f's_add_u32 s{S_T3}, s{S_T3}, s{S_T4}')
    I(f'v_lshl_add_u32 {v(V_XTST)}, {v(vg)}, 16, s{S_T3}')
    I(f'v_lshl_add_u32 {v(V_XTST)}, {v(va_)}, 3, {v(V_XTST)}')
    I(f's_and_b32 s{S_T4}, s2, 3')
    I(f's_lshl_b32 s{S_T4}, s{S_T4}, 5')
    I(f'v_xor_b32 {v(V_XTST)}, s{S_T4}, {v(V_XTST)}')
    I(f'v_lshrrev_b32 {v(x0)}, 2, {v(V_L)}')
    I(f'v_lshlrev_b32 {v(V_XT[0])}, 7, {v(x0)}')
    I(f'v_bfe_u32 {v(x0)}, {v(V_L)}, 3, 2')
    I(f'v_xor_b32 {v(x0)}, s{S_W}, {v(x0)}')
    I(f'v_lshl_add_u32 {v(V_XT[0])}, {v(x0)}, 5, {v(V_XT[0])}')
    I(f'v_and_b32 {v(x0)}, 3, {v(V_L)}')
    I(f'v_lshl_add_u32 {v(V_XT[0])}, {v(x0)}, 3, {v(V_XT[0])}')
    I(f's_mov_b32 s{S_LN}, {f32(1 / 512)}')
    I(f's_mov_b32 s{S_LN + 1}, {f32(1e-5)}')


def setup_late():
    va_, vg, vhi, x0, x1 = f = lane_fields()
    T3, T4 = S_T0, S_T1
    for j in range(2):
        I(f's_mov_b32 s{S_MASK + j}, 0xffff0000')
        I(f's_mov_b32 s{S_M1 + j}, 0xaaaaaaaa')
        I(f's_mov_b32 s{S_M2 + j}, 0xcccccccc')
    I(f's_mov_b32 s{S_E6}, {f32(1e-6)}')
    I(f's_mov_b32 s{S_EXP + 1}, {f32(-1e-6 * math.log2(math.e))}')
    for i in range(1, 4):
        I(f'v_xor_b32 {v(V_XT[i])}, {32 * i}, {v(V_XT[0])}')
    I(f'v_and_b32 {v(V_STAT)}, 0x1fff, {v(V_X2ST)}')
    I(f'v_lshl_add_u32 {v(V_STAT)}, {v(vhi)}, 13, {v(V_STAT)}')
    I(f's_lshl_b32 s{T3}, s{S_RB}, 16')
    I(f's_lshl_b32 s{T4}, s{S_W}, 12')
    I(f's_add_u32 s{T3}, s{T3}, s{T4}')
    I(f'v_add_u32 {v(V_XTLD)}, s{T3}, {v(V_L16)}')
    I(f's_lshl_b32 s{T4}, s{S_CG}, 2')
    I(f's_add_u32 s{T4}, s{T4}, s{S_W}')
    I(f's_lshl_b32 s{T4}, s{T4}, 10')
    I(f's_lshl_b32 s{T3}, s{S_RB}, 16')
    I(f's_add_u32 s{T3}, s{T3}, s{T4}')
    I(f'v_lshl_add_u32 {v(V_PQST)}, {v(va_)}, 5, s{T3}')
    I(f'v_lshl_add_u32 {v(V_PQST)}, {v(vg)}, 3, {v(V_PQST)}')
    I(f's_lshr_b32 s{T3}, s{S_W}, 1')
    I(f'v_lshl_add_u32 {v(V_PQST)}, s{T3}, 15, {v(V_PQST)}')
    I(f's_and_b32 s{T3}, s{S_W}, 1')
    I(f'v_lshl_add_u32 {v(V_PQST)}, s{T3}, 9, {v(V_PQST)}')
    I(f's_mul_i32 s{T3}, s{T3}, 768')
    I(f's_sub_u32 s{T3}, s{T4}, s{T3}')
    I(f'v_lshl_add_u32 {v(V_KVST)}, {v(vg)}, 4, s{T3}')
    I(f'v_and_b32 {v(x0)}, 3, {v(va_)}')
    I(f'v_lshl_add_u32 {v(V_KVST)}, {v(x0)}, 2, {v(V_KVST)}')
    I(f'v_bfe_u32 {v(x0)}, {v(va_)}, 2, 1')
    I(f'v_lshl_add_u32 {v(V_KVST)}, {v(x0)}, 10, {v(V_KVST)}')
    I(f'v_lshrrev_b32 {v(x0)}, 3, {v(va_)}')
    I(f'v_lshl_add_u32 {v(V_KVST)}, {v(x0)}, 9, {v(V_KVST)}')
    I(f's_lshr_b32 s{T3}, s{T4}, 4')
    I(f'v_lshl_add_u32 {v(V_ZST)}, {v(V_L)}, 2, s{T3}')
    I(f's_lshl_b32 s{T3}, s{S_RB}, 1')
    I(f's_add_u32 s{T3}, s{T3}, s{S_TH}')
    I(f's_lshl_b32 s{T3}, s{T3}, 15')
    I(f's_lshl_b32 s{T4}, s{S_W}, 13')
    I(f's_add_u32 s{T3}, s{T3}, s{T4}')
    I(f'v_and_b32 {v(x0)}, 31, {v(V_L)}')
    I(f'v_lshl_add_u32 {v(V_PQLD)}, {v(x0)}, 5, s{T3}')
    I(f'v_lshl_add_u32 {v(V_PQLD)}, {v(vhi)}, 4, {v(V_PQLD)}')
    I(f'v_add_u32 {v(V_KVLD)}, s{T4}, {v(V_L16)}')
    I(f'v_and_b32 {v(x0)}, 3, {v(va_)}')
    I(f'v_lshrrev_b32 {v(x1)}, 3, {v(va_)}')
    I(f's_lshl_b32 s{T3}, s{S_W}, 9')
    I(f's_add_u32 s{T3}, s{T3}, 32768')
    I(f'v_lshl_add_u32 {v(V_ZLD)}, {v(x1)}, 8, s{T3}')
    I(f'v_lshl_add_u32 {v(V_ZLD)}, {v(x0)}, 6, {v(V_ZLD)}')
    I(f'v_lshl_add_u32 {v(V_ZLD)}, {v(vg)}, 4, {v(V_ZLD)}')
    I(f'v_add_u32 {v(V_OFW)}, {L_B}, {v(V_KVLD)}')
    I(f's_lshl_b32 s{T3}, s{S_NB}, 14')
    I(f's_lshl_b32 s{T4}, s{S_W}, 12')
    I(f's_add_u32 s{T3}, s{T3}, s{T4}')
    I(f's_lshl_b32 s{T4}, s{S_TH}, 6')
    I(f's_add_u32 s{T3}, s{T3}, s{T4}')
    I(f'v_lshl_add_u32 {v(V_RES[0])}, {v(vhi)}, 11, s{T3}')
    I(f'v_lshl_add_u32 {v(V_RES[0])}, {v(x0)}, 3, {v(V_RES[0])}')
    I(f'v_lshrrev_b32 {v(x0)}, 2, {v(va_)}')
    I(f'v_lshl_add_u32 {v(V_RES[0])}, {v(x0)}, 7, {v(V_RES[0])}')
    I(f'v_xor_b32 {v(x1)}, {v(x1)}, {v(vg)}')
    I(f'v_and_b32 {v(x1)}, 1, {v(x1)}')
    I(f'v_lshl_add_u32 {v(V_RES[0])}, {v(x1)}, 5, {v(V_RES[0])}')
    I(f'v_xor_b32 {v(V_RES[1])}, 64, {v(V_RES[0])}')
    I(f's_lshl_b32 s{T3}, s{S_W}, 6')
    I(f's_add_u32 s{T3}, s{T3}, {L_STAT}')
    I(f'v_lshl_add_u32 {v(V_SW)}, {v(va_)}, 2, s{T3}')
    I(f'v_lshl_add_u32 {v(V_SR4)}, {v(vg)}, 4, s{T3}')
    I(f's_lshl_b32 s{T3}, s{S_NB}, 8')
    I(f'v_lshl_add_u32 {v(V_WOD)}, {v(vg)}, 12, s{T3}')
    I(f'v_xor_b32 {v(x1)}, {v(x0)}, {v(vg)}')
    I(f'v_lshl_add_u32 {v(V_WOD)}, {v(x1)}, 6, {v(V_WOD)}')
    I(f'v_lshrrev_b32 {v(x1)}, 1, {v(x1)}')
    I(f'v_lshl_add_u32 {v(V_WOD)}, {v(x1)}, 18, {v(V_WOD)}')
    I(f'v_and_b32 {v(x1)}, 3, {v(V_L)}')
    I(f'v_lshl_add_u32 {v(V_WOD)}, {v(x1)}, 4, {v(V_WOD)}')
    I(f's_and_b32 s{T3}, s{S_W}, 1')
    I(f's_lshl_b32 s{T3}, s{T3}, 15')
    I(f's_add_u32 s{T3}, s{T3}, {L_B}')
    I(f'v_lshl_add_u32 {v(V_WR)}, {v(vhi)}, 10, s{T3}')
    I(f'v_lshl_add_u32 {v(V_WR)}, {v(x0)}, 8, {v(V_WR)}')
    I(f'v_xor_b32 {v(x0)}, s{S_W}, {v(x0)}')
    I(f'v_lshl_add_u32 {v(V_WR)}, {v(x0)}, 6, {v(V_WR)}')
    I(f'v_and_b32 {v(x0)}, 1, {v(V_L)}')
    I(f'v_lshl_add_u32 {v(V_WR)}, {v(x0)}, 5, {v(V_WR)}')
    I(f'v_and_b32 {v(x0)}, 1, {v(vg)}')
    I(f'v_lshl_add_u32 {v(V_WR)}, {v(x0)}, 4, {v(V_WR)}')
    I(f'v_bfe_u32 {v(x0)}, {v(V_L)}, 1, 1')
    I(f'v_lshl_add_u32 {v(V_WR)}, {v(x0)}, 3, {v(V_WR)}')
    I(f'v_xor_b32 {v(V_WR + 1)}, 32768, {v(V_WR)}')
    return f


TS = [18, 10, 6, 2]
TB = [0, 16 * 18, 16 * 18 + 16 * 10, 16 * 18 + 16 * 10 + 32 * 6]


def rne(o, sh):
    q, r = o >> sh, o & ((1 << sh) - 1)
    if sh == 0:
        return q
    h = 1 << (sh - 1)
    return q + (1 if (r > h or (r == h and q & 1)) else 0)


def setup_kgen(va_, vg, x0, x1):
    kg = dict(w=P.alloc(), a0=P.alloc(), a1=P.alloc(), g=P.alloc(), t1=P.alloc(), t2=P.alloc(), t3=P.alloc(), rk=P.alloc())
    I(f's_lshr_b32 s{S_T0}, s{S_W}, 1')
    I(f's_and_b32 s{S_T1}, s{S_W}, 1')
    I(f's_mul_i32 s{S_T3}, s{S_W}, {KG_W}')
    I(f's_add_u32 s{S_T3}, s{S_T3}, {L_B}')
    I(f'v_lshl_add_u32 {v(kg["w"])}, {v(V_L)}, 2, s{S_T3}')
    I(f's_mul_i32 s{S_T3}, s{S_T0}, {2 * KG_W}')
    I(f's_add_u32 s{S_T3}, s{S_T3}, {L_B}')
    I(f'v_lshl_add_u32 {v(x1)}, {v(vg)}, 4, s{S_T3}')
    I(f'v_mul_u32_u24 {v(kg["a0"])}, {KG_ROW}, {v(va_)}')
    I(f'v_add_u32 {v(kg["a0"])}, {v(kg["a0"])}, {v(x1)}')
    I(f's_mul_i32 s{S_T4}, s{S_T1}, {16 * KG_ROW}')
    I(f'v_add_u32 {v(kg["g"])}, s{S_T4}, {v(kg["a0"])}')
    I(f'v_min_u32 {v(kg["a1"])}, 4, {v(va_)}')
    I(f'v_mul_u32_u24 {v(kg["a1"])}, {KG_ROW}, {v(kg["a1"])}')
    I(f'v_add_u32 {v(kg["a1"])}, {v(kg["a1"])}, {v(x1)}')
    I(f's_mul_i32 s{S_T3}, s{S_T0}, 4608')
    I(f's_add_u32 s{S_T3}, s{S_T3}, {L_H + 512}')
    vj, vw = P.alloc(), P.alloc()
    I(f's_lshl_b32 s{S_T4}, s{S_T1}, 2')
    I(f'v_and_b32 {v(x0)}, 3, {v(va_)}')
    I(f'v_lshl_add_u32 {v(vj)}, {v(x0)}, 3, s{S_T4}')
    I(f'v_lshrrev_b32 {v(x0)}, 2, {v(va_)}')
    I(f'v_add_u32 {v(vj)}, {v(vj)}, {v(x0)}')
    I(f'v_lshl_add_u32 {v(kg["t3"])}, {v(vg)}, 7, {v(vj)}')
    I(f'v_lshl_add_u32 {v(kg["t3"])}, {v(kg["t3"])}, 2, s{S_T3}')
    I(f'v_max_u32 {v(x1)}, 1, {v(vg)}')
    I(f'v_sub_u32 {v(x1)}, 6, {v(x1)}')
    I(f'v_lshlrev_b32 {v(kg["t1"])}, {v(x1)}, {v(vj)}')
    I(f'v_lshrrev_b32 {v(vw)}, 1, {v(vj)}')
    I(f'v_lshl_add_u32 {v(kg["t1"])}, {v(vw)}, 3, {v(kg["t1"])}')
    I(f's_mov_b32 s{S_T4}, {hex(0 | (1 << 8) | ((TB[1] // 4) << 16) | ((TB[2] // 4) << 24))}')
    I(f'v_lshlrev_b32 {v(x1)}, 3, {v(vg)}')
    I(f'v_bfe_u32 {v(x1)}, s{S_T4}, {v(x1)}, 8')
    I(f'v_lshl_add_u32 {v(x1)}, {v(x1)}, 4, s{S_T3}')
    I(f'v_add_u32 {v(kg["t1"])}, {v(kg["t1"])}, {v(x1)}')
    I(f'v_cmp_eq_u32 vcc, 3, {v(vg)}')
    I(f'v_mov_b32 {v(vj)}, {16 * TS[2] * 4}')
    I(f'v_cndmask_b32 {v(x1)}, 8, {v(vj)}, vcc')
    I(f'v_add_u32 {v(kg["t2"])}, {v(kg["t1"])}, {v(x1)}')
    gi = P.alloc(18, 2)
    vn, vs = vj, vw
    I(f'v_and_b32 {v(x0)}, 127, v0')
    I(f'v_sub_u32 {v(vn)}, 127, {v(x0)}')
    I(f'v_or_b32 {v(x1)}, 8, {v(vn)}')
    I(f'v_ffbh_u32 {v(x1)}, {v(x1)}')
    I(f'v_sub_u32 {v(vs)}, 28, {v(x1)}')
    I(f'v_lshlrev_b32 {v(vs)}, 3, {v(vs)}')
    first = [0, 16, 32, 64]
    cb = [TB[q] - first[q] * TS[q] for q in range(4)]
    assert all(c % 4 == 0 and 0 <= c // 4 < 256 for c in cb)
    I(f's_mov_b32 s{S_T4}, {hex(sum(TS[q] << (8 * q) for q in range(4)))}')
    I(f'v_bfe_u32 {v(x1)}, s{S_T4}, {v(vs)}, 8')
    I(f'v_mul_u32_u24 {v(x1)}, {v(x1)}, {v(vn)}')
    I(f's_mov_b32 s{S_T4}, {hex(sum((cb[q] // 4) << (8 * q) for q in range(4)))}')
    I(f'v_bfe_u32 {v(gi + 17)}, s{S_T4}, {v(vs)}, 8')
    I(f'v_lshl_add_u32 {v(x1)}, {v(gi + 17)}, 2, {v(x1)}')
    I(f'v_lshl_add_u32 {v(gi + 15)}, {v(x1)}, 2, s{S_T3}')
    for u in range(15):
        o = 15 - u
        dl = []
        for q in range(4):
            d = rne(o, q)
            dl.append(4 * (d if d < (16 >> q) else TS[q]))
        I(f's_mov_b32 s{S_T4}, {hex(sum(dl[q] << (8 * q) for q in range(4)))}')
        I(f'v_bfe_u32 {v(x1)}, s{S_T4}, {v(vs)}, 8')
        I(f'v_add_u32 {v(gi + u)}, {v(x1)}, {v(gi + 15)}')
    I(f'v_cmp_ge_u32 vcc, 16, {v(vn)}')
    I(f'v_cndmask_b32 {v(x1)}, 0, 12, vcc')
    I(f'v_sub_u32 {v(gi + 16)}, {v(gi + 15)}, {v(x1)}')
    P.free(vj), P.free(vw)
    I(f's_mul_i32 s{S_T4}, s{S_T0}, 8320')
    I(f's_add_u32 s{S_T4}, s{S_T4}, {L_RK}')
    I(f'v_lshl_add_u32 {v(kg["rk"])}, {v(x0)}, 5, s{S_T4}')
    return kg, gi


def prologue():
    I('s_cmp_ge_u32 s2, 256')
    I('s_cbranch_scc1 L_end')
    I('s_load_dwordx16 s[4:19], s[0:1], 0')
    I('s_load_dwordx8 s[20:27], s[0:1], 64')
    I('s_load_dwordx4 s[28:31], s[0:1], 96')
    I('s_load_dwordx2 s[32:33], s[0:1], 112')
    stamp('entry')
    pf = P.alloc(4)
    I(f's_getpc_b64 s[{S_T3}:{S_T4}]')
    A.label('L_pc')
    I(f's_lshr_b32 s{S_T1}, s2, 3')
    I(f'v_lshrrev_b32 {v(pf)}, 4, v0')
    I(f'v_lshl_add_u32 {v(pf)}, {v(pf)}, 5, s{S_T1}')
    I(f'v_lshlrev_b32 {v(pf)}, 7, {v(pf)}')
    I(f'v_min_u32 {v(pf)}, L_end-L_pc, {v(pf)}')
    I(f'global_load_dword {v(pf)}, {v(pf)}, s[{S_T3}:{S_T4}]')
    I(f'v_lshrrev_b32 {v(pf + 1)}, 6, v0')
    I(f'v_and_b32 {v(V_L)}, 63, v0')
    I(f'v_readfirstlane_b32 s{S_W}, {v(pf + 1)}')
    I(f's_and_b32 s{S_T0}, s2, 7')
    I(f's_and_b32 s{S_T2}, s{S_T1}, 3')
    I(f's_lshl_b32 s{S_RB}, s{S_T0}, 2')
    I(f's_add_u32 s{S_RB}, s{S_RB}, s{S_T2}')
    I(f's_lshr_b32 s{S_CG}, s{S_T1}, 2')
    I(f's_lshr_b32 s{S_NB}, s{S_CG}, 1')
    I(f's_and_b32 s{S_TH}, s{S_CG}, 1')
    I(f'v_lshlrev_b32 {v(V_L16)}, 4, {v(V_L)}')
    va_, vg, vhi, x0, x1 = f = lane_fields()
    I(f's_and_b32 s{S_T3}, s{S_T1}, 7')
    I(f's_lshl_b32 s{S_T3}, s{S_T3}, 7')
    I(f'v_lshl_add_u32 {v(V_ARR)}, {v(V_L)}, 10, s{S_T3}')
    I(f's_lshl_b32 s{S_T3}, s{S_T1}, 10')
    I(f'v_lshl_add_u32 {v(V_POLL)}, {v(V_L)}, 7, s{S_T3}')
    vsr, vsa = P.alloc(), P.alloc()
    I(f's_lshl_b32 s{S_T0}, s{S_RB}, 6')
    I(f's_lshl_b32 s{S_T1}, s{S_CG}, 3')
    I(f's_add_u32 s{S_T1}, s{S_T1}, s{S_T0}')
    I(f's_lshl_b32 s{S_T3}, s{S_W}, 1')
    I(f's_add_u32 s{S_T2}, s{S_T1}, s{S_T3}')
    I(f's_lshl_b32 s{S_T1}, s{S_T2}, 10')
    I(f'v_add_u32 {v(vsr)}, s{S_T1}, {v(V_L16)}')
    I(f'v_and_b32 {v(vsa)}, 1, {v(vg)}')
    I(f'v_add_lshl_u32 {v(vsa)}, {v(vsa)}, s{S_T2}, 2')
    I(f'v_lshl_add_u32 {v(vsa)}, {v(vhi)}, 13, {v(vsa)}')
    I(f's_lshl_b32 s{S_T1}, s{S_TH}, 5')
    I(f's_add_u32 s{S_T0}, s{S_T0}, s{S_T1}')
    I(f'v_and_b32 {v(x0)}, 31, {v(V_L)}')
    I(f'v_add_u32 {v(x0)}, s{S_T0}, {v(x0)}')
    I(f's_lshl_b32 s{S_T0}, s{S_NB}, 8')
    I(f's_lshl_b32 s{S_T1}, s{S_W}, 6')
    I(f's_add_u32 s{S_T0}, s{S_T0}, s{S_T1}')
    I(f'v_lshl_add_u32 {v(V_TILE)}, {v(x0)}, 10, s{S_T0}')
    I(f'v_lshl_add_u32 {v(V_TILE)}, {v(vhi)}, 5, {v(V_TILE)}')
    I(f's_lshl_b32 s{S_T0}, s{S_T0}, 11')
    I(f'v_lshl_add_u32 {v(V_X2ST)}, {v(x0)}, 2, s{S_T0}')
    I(f'v_lshl_add_u32 {v(V_X2ST)}, {v(vhi)}, 16, {v(V_X2ST)}')
    vtd, vtr = P.alloc(), P.alloc()
    I(f'v_readfirstlane_b32 s{S_T0}, {v(V_TILE)}')
    I(f'v_lshrrev_b32 {v(x0)}, 2, {v(V_L)}')
    I(f'v_xor_b32 {v(x1)}, {v(V_L)}, {v(vg)}')
    I(f'v_and_b32 {v(x1)}, 3, {v(x1)}')
    I(f'v_lshl_add_u32 {v(vtd)}, {v(x0)}, 10, s{S_T0}')
    I(f'v_lshl_add_u32 {v(vtd)}, {v(x1)}, 4, {v(vtd)}')
    I(f'v_add_u32 {v(vtr)}, {16384 - 1024}, {v(vtd)}')
    I(f's_mul_i32 s{S_DO}, s{S_W}, 4160')
    I(f's_add_u32 s{S_DO}, s{S_DO}, {L_RK}')
    I(f's_mov_b32 m0, s{S_DO}')
    vpo = P.alloc()
    I(f's_lshl_b32 s{S_T1}, s2, 9')
    I(f'v_lshl_add_u32 {v(vpo)}, v0, 1, s{S_T1}')
    sinit = S_SPIN
    I(f's_lshl_b32 s{S_T2}, s2, 2')
    I(f's_add_u32 s{sinit}, s{S_T2}, s{S_W}')
    I(f'v_lshrrev_b32 {v(x0)}, 3, {v(V_L)}')
    I(f'v_mul_u32_u24 {v(V_WD)}, 3072, {v(x0)}')
    I(f'v_bfe_u32 {v(x0)}, {v(V_L)}, 1, 2')
    I(f'v_xor_b32 {v(x0)}, {v(x0)}, {v(vg)}')
    I(f'v_lshl_add_u32 {v(V_WD)}, {v(x0)}, 5, {v(V_WD)}')
    I(f'v_and_b32 {v(x0)}, 1, {v(V_L)}')
    I(f'v_lshl_add_u32 {v(V_WD)}, {v(x0)}, 4, {v(V_WD)}')
    I(f'v_lshl_add_u32 {v(V_WD)}, s{S_CG}, 7, {v(V_WD)}')
    zero4 = P.alloc(4, 2)
    for i in range(4):
        I(f'v_mov_b32 {v(zero4 + i)}, 0')
    for r, n in ((R_WS, WS_SIZE), (R_WQ, 512 * 3072), (R_WO, 512 * 1024)):
        I(f's_mov_b32 s{r + 2}, {hex(n)}')
        I(f's_mov_b32 s{r + 3}, 0x20000')
    xs = P.alloc(8, 2)
    xt = P.alloc(8, 2)
    par = P.alloc(8, 2)
    vkp = par + 6
    I(f's_lshr_b32 s{S_T0}, s{sinit}, 1')
    I(f's_mul_i32 s{S_T0}, s{S_T0}, 3072')
    I(f's_and_b32 s{S_T1}, s{S_W}, 1')
    I(f's_lshl_b32 s{S_T1}, s{S_T1}, 9')
    I(f's_add_u32 s{S_T0}, s{S_T0}, s{S_T1}')
    I(f'v_lshl_add_u32 {v(vkp)}, {v(V_L)}, 7, s{S_T0}')
    vtc = par + 7
    I(f's_cmp_eq_u32 s{S_W}, 0')
    I(f's_cselect_b32 s{S_T1}, 1, 0x100')
    I(f'v_lshlrev_b32_e64 {v(vtc)}, 7, s{S_T1}')
    A._wait(lg=0)
    stamp('a_karg')
    I(f's_and_b32 s{S_T0}, s{sinit}, {hex(0x3e3)}')
    I('s_cbranch_scc1 L_noinit')
    I(f'v_lshl_add_u32 {v(x0)}, s2, 12, {v(V_L16)}')
    A.cond = True
    for j in range(4):
        I(f'global_store_dwordx4 {v(x0)}, {v(zero4, 4)}, {s(S_WS, 2)} offset:{1024 * j} sc1')
    A.cond = False
    A.label('L_noinit')
    I('s_mov_b64 exec, 1')
    I(f'global_load_dword {v(pf + 1)}, {v(vsr)}, {s(S_U, 2)} nt')
    I(f's_cmp_eq_u32 s{S_W}, 0')
    I(f's_cselect_b64 s[{S_T3}:{S_T4}], {s(S_DBG, 2)}, {s(S_WS, 2)}')
    I(f'global_load_dword {v(pf + 3)}, {v(vtc)}, s[{S_T3}:{S_T4}]')
    I('s_mov_b64 exec, -1')
    for i, sp in enumerate((S_ARE, S_AIM, S_BRE, S_BIM, S_CRE, S_CIM)):
        I(f'global_load_ushort {v(par + i)}, {v(vpo)}, {s(sp, 2)} nt')
    I('s_mov_b64 exec, 15')
    I(f'global_load_dword {v(pf + 2)}, {v(vkp)}, {s(S_WQKV, 2)} offset:1024')
    I('s_mov_b64 exec, -1')
    A.barrier()
    for j in range(2):
        I(f'global_load_dwordx4 {v(xs + 4 * j, 4)}, {v(vsr)}, {s(S_U, 2)} offset:{1024 * j} nt')
    for j in range(2):
        I(f'global_load_lds_dwordx4 {v(vtr if j else vtd)}, {s(S_U, 2)} offset:{1024 * j} nt', tag='xt')
    nld = 13
    I(f's_load_dword s{S_D}, {s(S_LDT, 2)}, s{S_T2}')
    I(f's_load_dword s{S_D + 1}, {s(S_DSK, 2)}, s{S_T2}')
    for r, p in ((R_WS, S_WS), (R_WQ, S_WQKV), (R_WO, S_WO)):
        I(f's_mov_b64 s[{r}:{r + 1}], s[{p}:{p + 1}]')
    stamp('a_ldiss')
    I(f's_and_b32 s{S_XU}, s{S_RB}, {opt("rot", 0)}')
    I(f's_lshl2_add_u32 s{S_XU}, s{S_W}, s{S_XU}')
    I(f's_lshl_b32 s{S_XM}, s{S_XU}, 12')
    P.free(vsr), P.free(vpo), P.free(vtd)

    def publish():
        I(f's_and_b32 s{S_T4}, s{sinit}, {hex(0x3e3)}')
        I('s_cbranch_scc1 L_noflag')
        I(f'v_mov_b32 {v(x1)}, 1')
        I('s_mov_b64 exec, 1')
        A._wait(vm=nld)
        A.cond = True
        I(f'global_atomic_add {v(zero4)}, {v(x1)}, {s(S_DBG, 2)}')
        A.cond = False
        I('s_mov_b64 exec, -1')
        A.label('L_noflag')
    if FLAG_EARLY:
        publish()
    I(f'v_and_b32 {v(x0)}, 31, {v(V_L)}')
    I(f'v_lshl_add_u32 {v(vtr)}, {v(x0)}, 6, s{S_DO}')
    I(f'v_bfe_u32 {v(x0)}, {v(V_L)}, 2, 2')
    I(f'v_lshlrev_b32 {v(x1)}, 1, {v(vhi)}')
    I(f'v_xor_b32 {v(x0)}, {v(x0)}, {v(x1)}')
    I(f'v_lshl_add_u32 {v(vtr)}, {v(x0)}, 4, {v(vtr)}')
    kg, gi = setup_kgen(va_, vg, x0, x1)
    if not FLAG_EARLY:
        publish()
    I(f'v_lshl_add_u32 {v(x1)}, {v(x0)}, 2, s{S_T3}')
    I(f'v_subrev_u32 {v(x1)}, 512, {v(x1)}')
    I(f'ds_write_b32 {v(x1)}, {v(zero4)}')
    I(f's_mul_i32 s{S_T3}, s{S_W}, 4160')
    I(f's_add_u32 s{S_T3}, s{S_T3}, {L_RK + 4096}')
    I(f'v_lshl_add_u32 {v(x1)}, {v(va_)}, 2, s{S_T3}')
    I(f'ds_write_b32 {v(x1)}, {v(zero4)}')
    stamp('a_kgset')
    if WPF == 3:
        wprefetch()
    if 'a' in PRE:
        run_all(x2_claim(0, x1, zero4))
    I(f's_lshl_b32 s{S_T0}, s{sinit}, 7')
    I(f's_add_u32 s{S_T0}, s{S_T0}, {hex(WS_ZERO)}')
    I('s_mov_b64 exec, 0xff')
    I(f'buffer_store_dwordx4 {v(zero4, 4)}, {v(V_L16)}, {WS}, s{S_T0} offen sc1')
    I('s_mov_b64 exec, -1')
    setup_conv(va_, vg, x0, x1)
    I(f's_mov_b32 s{S_ONES}, 0x3f803f80')
    I(f's_mov_b32 s{S_EXP}, {f32(math.log2(math.e))}')
    for i in range(4):
        I(f'v_mov_b32 {v(V_ONES + i)}, s{S_ONES}')
    I(f'v_xor_b32 {v(x1)}, 16, {v(vtr)}')
    A.raw('#page')
    A.raw('#seg s0')
    A.raw('#touch s0')
    stamp('a_setup')
    st = P.alloc(4, 2)
    for i in range(4):
        for r in range(2):
            c = '0' if i == 0 else v(st + r)
            I(f'v_dot2_f32_bf16 {v(st + r)}, {v(xs + 4 * r + i)}, s{S_ONES}, {c}')
            c = '0' if i == 0 else v(st + 2 + r)
            I(f'v_dot2_f32_bf16 {v(st + 2 + r)}, {v(xs + 4 * r + i)}, {v(xs + 4 * r + i)}, {c}')
    stamp('a_xs')
    A.wait_vm('xt')
    I(f'ds_read_b128 {v(xt, 4)}, {v(vtr)}')
    I(f'ds_read_b128 {v(xt + 4, 4)}, {v(x1)}')
    I(f's_mov_b32 s{S_T0}, {hex(WS_ST[0])}')
    I(f'v_permlane32_swap_b32 {v(st)}, {v(st + 2)}')
    I(f'v_permlane32_swap_b32 {v(st + 1)}, {v(st + 3)}')
    I(f'v_add_f32 {v(st)}, {v(st)}, {v(st + 2)}')
    I(f'v_add_f32 {v(st + 1)}, {v(st + 1)}, {v(st + 3)}')
    I(f'v_permlane16_swap_b32 {v(st)}, {v(st + 1)}')
    I(f'v_add_f32 {v(st)}, {v(st)}, {v(st + 1)}')
    for sh in (8, 4, 2, 1):
        I(f'v_add_f32_dpp {v(st)}, {v(st)}, {v(st)} row_ror:{sh} row_mask:0xf bank_mask:0xf')
    I('s_mov_b32 exec_lo, 0x00010001')
    I('s_mov_b32 exec_hi, 0x00010001')
    I(f'buffer_store_dword {v(st)}, {v(vsa)}, {WS}, s{S_T0} offen sc1')
    I('s_mov_b64 exec, -1')
    x2store(0, xt)
    flag = pf + 3
    stamp('a_stored')
    if WPF == 2:
        wprefetch()

    def flagload():
        I(f's_cmp_lg_u32 s{S_W}, 0')
        I('s_cbranch_scc1 L_noflagld')
        A.cond = True
        I(f'global_load_dword {v(flag)}, {v(zero4)}, {s(S_DBG, 2)} sc1')
        A.cond = False
        A.label('L_noflagld')

    def arrive1():
        A.wait_vm('x2st')
        stamp('a_drained')
        global_arrive(first=(flag, zero4))
        stamp('arr1')
        if WPF == 0:
            wprefetch()
    hooks = {KG_ARR: [arrive1], KG_FLAG: [flagload]}
    kd = dma_w(1, L_A, 'wk')
    for i in range(NK1):
        hooks.setdefault(KG_K0 + ((53 - KG_K0) * i) // NK1, []).extend(kd.pop(0))
    kgen(par, kg, hooks)
    P.free(st, 4), P.free(xs, 8), P.free(xt, 8), P.free(zero4, 4), P.free(pf, 4), P.free(vsa), P.free(vtr)
    for r in f:
        P.free(r)
    if not kd:
        poll_start(1)
    A.barrier()
    kgen2(kg, kd)
    if kd:
        poll_start(1)
    if KCONS == 1:
        A.wait_vm('wk')
    return kg, gi


def wprefetch():
    x0 = P.alloc()
    I(f's_cmp_lg_u32 s{S_W}, 1')
    I('s_cbranch_scc1 L_nowpf')
    I(f's_lshl_b32 s{S_T0}, s2, 13')
    I(f'v_lshl_add_u32 {v(x0)}, {v(V_L)}, 7, s{S_T0}')
    A.cond = True
    I(f'buffer_load_dword {v(V_PA)}, {v(x0)}, {s(R_WQ, 4)}, 0 offen')
    I(f'v_subrev_u32 {v(x0)}, {512 * 3072}, {v(x0)}')
    I(f'buffer_load_dword {v(V_PA + 1)}, {v(x0)}, {s(R_WO, 4)}, 0 offen')
    A.cond = False
    A.label('L_nowpf')
    P.free(x0)


def x2_claim(layer, t, data):
    return [lambda: I(f'v_readfirstlane_b32 s{S_T0}, {v(V_X2ST)}'),
            lambda: I(f'v_lshlrev_b32 {v(t)}, 13, {v(V_L)}'),
            lambda: I(f's_add_u32 s{S_T0}, s{S_T0}, {hex(WS_X2[layer])}'),
            lambda: (I('s_mov_b64 exec, 0xffff'),
                     I(f'buffer_store_dword {v(data)}, {v(t)}, {WS}, s{S_T0} offen sc1', tag='claim'),
                     I('s_mov_b64 exec, -1'))]


def x2store(layer, d):
    if 'n' not in PRE:
        A.wait_vm('claim')
    I(f's_mov_b32 s{S_T0}, {hex(WS_X2[layer])}')
    for i in range(8):
        I(f'buffer_store_dword {v(d + i)}, {v(V_X2ST)}, {WS}, s{S_T0} offen sc1', tag='x2st')
        if i < 7:
            I(f's_add_u32 s{S_T0}, s{S_T0}, 8192')


def kgen(par, kg, hooks):
    LOG2E = math.log2(math.e)
    A.wait_lg()
    I(f's_lshl_b32 s{S_T0}, s{S_D}, 16')
    I(f's_and_b32 s{S_T1}, s{S_D}, 0xffff0000')
    I(f's_lshl_b32 s{S_D}, s{S_D + 1}, 16')
    I(f's_and_b32 s{S_D + 1}, s{S_D + 1}, 0xffff0000')
    I(f's_cmp_ge_u32 s{S_W}, 2')
    I(f's_cselect_b32 s{S_T0}, s{S_T1}, s{S_T0}')
    dt = par + 6
    I(f'v_mov_b32 {v(dt)}, s{S_T0}')
    I(f'v_mul_f32 {v(dt)}, s{S_EXP}, {v(dt)}')
    I(f'v_exp_f32 {v(dt)}, {v(dt)}')
    for i in range(6):
        I(f'v_lshlrev_b32 {v(par + i)}, 16, {v(par + i)}')
    I(f'v_cvt_pk_bf16_f32 {v(dt)}, {v(dt)}, {v(dt)}')
    I(f'v_and_b32 {v(dt)}, 0xffff0000, {v(dt)}')
    z, Bc, Cc = par, par + 2, par + 4
    pk('mul', v(z, 2), (v(z, 2), 'p'), bc(dt))
    pk('mul', v(Bc, 2), (v(Bc, 2), 'p'), bc(dt))
    tmp = P.alloc(2, 2)
    CB = P.alloc(2, 2)
    cmul(CB, Cc, Bc, tmp)
    E = {}
    for rho in (1, 8, 64, 256):
        e = P.alloc(2, 2)
        E[rho] = e
        I(f'v_mul_f32 {v(tmp)}, {f32(rho * LOG2E)}, {v(z)}')
        I(f'v_mul_f32 {v(tmp + 1)}, {f32(rho / (2 * math.pi))}, {v(z + 1)}')
        I(f'v_exp_f32 {v(tmp)}, {v(tmp)}')
        I(f'v_fract_f32 {v(tmp + 1)}, {v(tmp + 1)}')
        I(f'v_cos_f32 {v(e)}, {v(tmp + 1)}')
        I(f'v_sin_f32 {v(e + 1)}, {v(tmp + 1)}')
        pk('mul', v(e, 2), (v(e, 2), 'p'), bc(tmp))
    pkr = [P.alloc() for _ in range(2)]
    cnt = [0]

    def put(r, neg):
        row = cnt[0]
        cnt[0] += 1
        if r is None:
            I(f'v_mov_b32 {v(pkr[row & 1])}, 0x3f80')
        else:
            I(f'v_cvt_pk_bf16_f32 {v(pkr[row & 1])}, {v(r)}, {"-" if neg else ""}{v(r + 1)}')
        if row & 1:
            o0 = (KG_ROW // 4) * (row & 2)
            I(f'ds_write2_b32 {v(kg["w"])}, {v(pkr[0])}, {v(pkr[1])} offset0:{o0} offset1:{o0 + KG_ROW // 4}')
            if row & 2:
                I(f'v_add_u32 {v(kg["w"])}, {4 * KG_ROW}, {v(kg["w"])}')
        elif row == 52:
            I(f'ds_write_b32 {v(kg["w"])}, {v(pkr[0])}')
        for th in hooks.pop(cnt[0], []):
            th()
    for rho, x, y in ((128, 64, 64), (192, 128, 64), (2, 1, 1), (4, 2, 2)):
        E[rho] = P.alloc(2, 2)
        cmul(E[rho], E[x], E[y], tmp)
    cur = P.alloc(2, 2)
    o = P.alloc(2, 2)
    put(None, False)
    for m in (1, 2, 3):
        put(E[64 * m], False)
    for j in range(1, 8):
        if j == 1:
            g = E[8]
        elif j == 2:
            cmul(cur, E[8], E[8], tmp)
            g = cur
        else:
            cmul(cur, cur, E[8], tmp)
        put(g, False)
        for m in (1, 2, 3):
            cmul(o, g, E[64 * m], tmp)
            put(o, False)
    put(CB, True)
    for j in range(1, 8):
        cmul(cur, CB if j == 1 else cur, E[1], tmp)
        put(cur, True)
    U = CB
    cmul(U, U, E[256], tmp)
    put(U, True)
    for j in range(1, 4):
        cmul(cur, U if j == 1 else cur, E[2], tmp)
        put(cur, True)
    for j in range(2):
        cmul(U, U, E[256], tmp)
        put(U, True)
        cmul(cur, U, E[4], tmp)
        put(cur, True)
    for j in range(5):
        cmul(U, U, E[256], tmp)
        put(U, True)
    for r in list(E.values()) + [tmp, CB, cur, o]:
        P.free(r, 2)
    P.free(pkr[0]), P.free(pkr[1])
    P.free(par, 8)
    assert not hooks
    stamp('a_kg1')


def kgen2(kg, kd):
    d0, d1 = P.alloc(4, 2), P.alloc(4, 2)
    mf = []
    for st in range(8):
        for tl, d in ((0, d0), (1, d1)):
            def em(reg, st=st, tl=tl, d=d):
                c = '0' if st == 0 else v(d, 4)
                I(f'v_mfma_f32_16x16x32_bf16 {v(d, 4)}, {v(reg[("a", tl, st)], 4)}, {v(reg[("g", st)], 4)}, {c}')
            mf.append((em, [('a', tl, st), ('g', st)]))

    def loader(k, r):
        ko = KG_W * (k[-1] >> 2) + 64 * (k[-1] & 3)
        if k[0] == 'g':
            return [f'ds_read_b128 {v(r, 4)}, {v(kg["g"])} offset:{ko}']
        base = kg['a0'] if k[1] == 0 else kg['a1']
        return [f'ds_read_b128 {v(r, 4)}, {v(base)} offset:{(32 + 16 * k[1]) * KG_ROW + ko}']
    fill = {}
    if kd:
        spread(fill, kd, 2, 13 / len(kd), solo=False)
    stream(mf, loader, 15, 12, fill=fill, rate=2, burst=15)
    I(f'ds_write_b64 {v(kg["t1"])}, {v(d0, 2)}')
    I(f'ds_write_b64 {v(kg["t2"])}, {v(d0 + 2, 2)}')
    I(f'v_add_u32 {v(kg["t3"])}, {4 * TB[3]}, {v(kg["t3"])}')
    I('s_mov_b32 exec_hi, 0')
    for r in (0, 2):
        I(f'ds_write2_b32 {v(kg["t3"])}, {v(d1 + r)}, {v(d1 + r + 1)} offset0:{32 * r} offset1:{32 * r + 32}')
    I('s_mov_b64 exec, -1')
    P.free(d0, 4), P.free(d1, 4)
    stamp('a_kg2')


def kgen3(kg, gi):
    for u in range(17):
        I(f'ds_read_b32 {v(gi + u)}, {v(gi + u)}')
    ck = consume_w(1, V_XT[0]) if KCONS == 1 else []
    c = P.alloc(16, 2)
    for cp in range(2):
        for m in range(8):
            I(f'v_cvt_pk_bf16_f32 {v(c + 8 * cp + m)}, {v(gi + 2 * m + cp)}, {v(gi + 2 * m + cp + 1)}')
            if ck:
                ck.pop(0)()
        for hq in range(2):
            I(f'ds_write_b128 {v(kg["rk"])}, {v(c + 8 * cp + 4 * hq, 4)} offset:{4160 * cp + 16 * hq}')
    if KCONS == 2:
        A.wait_vm('wk')
        ck = consume_w(1, V_XT[0])
    A.barrier(lg=False)
    run_all(ck)
    P.free(c, 16), P.free(gi, 18)
    for r in kg.values():
        P.free(r)
    stamp('a_kgen')


def conv(layer, kg, gi):
    xd = P.alloc(8, 2)
    sm = P.alloc(8, 2)
    sq = P.alloc(8, 2)
    for i in range(2):
        I(f'buffer_load_dwordx4 {v(sm + 4 * i, 4)}, {v(V_CVL)}, {WS}, s{S_T1} offen offset:{1024 * i} sc1')
        I(f'buffer_load_dwordx4 {v(sq + 4 * i, 4)}, {v(V_CVL)}, {WS}, s{S_T2} offen offset:{1024 * i} sc1')
        I(f'buffer_load_dwordx4 {v(xd + 4 * i, 4)}, {v(V_CVL)}, {WS}, s{S_T3} offen offset:{1024 * i} sc1')
        if i == 0:
            A.barrier()
    stamp(f'conv{layer}_iss')
    if layer == 0:
        if WPF == 1:
            wprefetch()
        kgen3(kg, gi)
    base = P.alloc(16, 2)
    hh = P.alloc(4, 2)
    hp = P.alloc(4, 2)
    LN = s(S_LN, 2)
    for i in range(2):
        m, q, x = sm + 4 * i, sq + 4 * i, xd + 4 * i
        for j in (0, 2):
            pk('mul', v(m + j, 2), (v(m + j, 2), 'p'), (LN, 'l'))
        for j in (0, 2):
            pk('fma', v(q + j, 2), (v(q + j, 2), 'p'), (LN, 'l'), (LN, 'h'))
        for j in (0, 2):
            pk('fma', v(q + j, 2), (v(m + j, 2), 'p', 'b'), (v(m + j, 2), 'p'), (v(q + j, 2), 'p'))
        for j in range(4):
            I(f'v_max_f32 {v(q + j)}, s{S_LN + 1}, {v(q + j)}')
        for j in range(4):
            I(f'v_rsq_f32 {v(q + j)}, {v(q + j)}')
        for c in range(2):
            b = base + 8 * i + 4 * c
            for j in range(4):
                if c == 0:
                    I(f'v_lshlrev_b32 {v(b + j)}, 16, {v(x + j)}')
                else:
                    I(f'v_and_b32 {v(b + j)}, 0xffff0000, {v(x + j)}')
            for j in (0, 2):
                pk('add', v(hh + j, 2), (v(b + j, 2), 'p'), (v(m + j, 2), 'p', 'b'))
            for j in (0, 2):
                pk('mul', v(hh + j, 2), (v(hh + j, 2), 'p'), (v(q + j, 2), 'p'))
            for j in (0, 2):
                I(f'v_cvt_pk_bf16_f32 {v(hp + 2 * c + j // 2)}, {v(hh + j)}, {v(hh + j + 1)}')
            I(f'ds_write_b64 {v(V_HW)}, {v(hp + 2 * c, 2)} offset:{4608 * c + 512 * i}')
            for j in (0, 2):
                pk('fma', v(b + j, 2), (v(hh + j, 2), 'p'), (s(S_D, 2), 'h' if c else 'l'), (v(b + j, 2), 'p'))
    P.free(xd, 8), P.free(sm, 8), P.free(sq, 8), P.free(hh, 4), P.free(hp, 4)
    A.barrier()
    stamp(f'conv{layer}_h')
    acc = P.alloc(32, 2)
    mf = []
    seen = set()
    fin = {}
    for cc in range(4):
        if cc < 3:
            seq = [(p, n) for p in range(7, -1, -1) for n in range(p, 8)]
        else:
            seq = [(p, n) for n in range(8) for p in range(n + 1)]
        for (p, n) in seq:
            def em(reg, cc=cc, p=p, n=n, fst=(n not in seen)):
                d = v(acc + 4 * n, 4)
                I(f'v_mfma_f32_16x16x32_bf16 {d}, {v(reg[("A", cc, p)], 4)}, {v(reg[("B", cc, n - p)], 4)}, {"0" if fst else d}')
            seen.add(n)
            mf.append((em, [('A', cc, p), ('B', cc, n - p)]))
            fin[n] = len(mf) - 1

    def loader(k, r):
        _, cc, x = k
        if k[0] == 'B':
            return [f'ds_read_b128 {v(r, 4)}, {v(V_CB)} offset:{512 * x + 64 * (3 - cc)}']
        o = 128 * (1 - (x & 1)) + 16 * (3 - cc)
        return [f'ds_read2_b32 {v(r, 2)}, {v(V_CA[x >> 1])} offset0:{o} offset1:{o + 1}',
                f'ds_read2_b32 {v(r + 2, 2)}, {v(V_CA[x >> 1])} offset0:{o + 2} offset1:{o + 3}']
    fill = {}
    for n in range(8):
        at = min(fin[n] + 7, len(mf) - 1)
        fill.setdefault(at, []).append(lambda reg, n=n: I(f'ds_write_b128 {v(V_EXW)}, {v(acc + 4 * n, 4)} offset:{1280 * n}'))
    if SPEC:
        pz = P.alloc(2, 2)
        spread(fill, xt_poison(layer, pz), 3, 3)

        def early(reg):
            A.wait_vm('poison')
            global_arrive(lg=False)
        if SPEC > 9:
            fill.setdefault(SPEC, []).append(early)
    if layer == 0:
        spread(fill, dma_w(2, L_A, 'wv'), opt('v0', 18), opt('vs', 6.5))
        with Capture() as ls:
            keep = setup_late()
        free_gaps = [m for m in range(14, 140) if m not in fill]
        for i, t in enumerate(ls):
            fill.setdefault(free_gaps[(i * len(free_gaps)) // len(ls)], []).append(lambda reg, t=t: I(t))
    stream(mf, loader, 20, 40, fill=fill, burst=12)
    P.free(acc, 32)
    if SPEC:
        P.free(pz, 2)
        A.wait_vm('poison')
    if layer == 0:
        for r in keep:
            P.free(r)
    A.barrier()
    stamp(f'conv{layer}_mm')
    ex = P.alloc(32, 2)
    for i in range(2):
        for u in range(4):
            I(f'ds_read_b128 {v(ex + 16 * i + 4 * u, 4)}, {v(V_EXR)} offset:{10240 * u + 1280 * i}')
    if SPEC == 1:
        global_arrive(bar=False)
    I(f's_mov_b32 s{S_T0}, {hex(WS_XT[layer])}')
    I(f's_mov_b32 s{S_T1}, {hex(WS_XT[layer] + 262144)}')
    for i in range(2):
        for c in range(2):
            b = base + 8 * i + 4 * c
            e = ex + 16 * i + 8 * c
            for j in (0, 2):
                pk('add', v(b + j, 2), (v(b + j, 2), 'p'), (v(e + j, 2), 'p'))
            for j in (0, 2):
                pk('add', v(b + j, 2), (v(b + j, 2), 'p'), (v(e + 4 + j, 2), 'p'))
            for j in (0, 2):
                I(f'v_cvt_pk_bf16_f32 {v(e + j // 2)}, {v(b + j)}, {v(b + j + 1)}')
            I(f'buffer_store_dwordx2 {v(e, 2)}, {v(V_XTST)}, {WS}, s{S_T0 + i} offen offset:{128 * c} sc1', tag='xtst')
    P.free(ex, 32), P.free(base, 16)
    stamp(f'conv{layer}_st')


def phi(x, tmp):
    EX = s(S_EXP, 2)
    for j in (0, 2):
        pk('fma', v(tmp + j, 2), (v(x + j, 2), 'p'), (EX, 'l'), (EX, 'h'))
    for j in range(4):
        I(f'v_exp_f32_e64 {v(tmp + j)}, {v(tmp + j)} clamp')
    for j in range(4):
        I(f'v_max_f32 {v(x + j)}, s{S_E6}, {v(x + j)}')
    for j in (0, 2):
        pk('add', v(x + j, 2), (v(x + j, 2), 'p'), (v(tmp + j, 2), 'p'))


DOTSTATS = '--dot' in sys.argv


def p3(layer):
    A.label(f'L_redo{layer}')
    for ck in range(4):
        if ck == 0:
            I(f's_lshl_b32 m0, s{S_W}, 12')
        else:
            I('s_add_u32 m0, m0, 16384')
        I(f's_mov_b32 s{S_T0}, {hex(WS_XT[layer] + ck * 16384)}')
        for j in range(4):
            I(f'buffer_load_dwordx4 {v(V_XTLD)}, {WS}, s{S_T0} offen offset:{1024 * j} sc1 lds', tag=f'xt{ck}')
        if layer == 0 and ck == 1:
            colsums([2])
    acc = P.alloc(32, 4)
    ss = P.alloc(8, 4)

    def loader(k, r):
        st, i = k
        return [f'ds_read_b64_tr_b16 {v(r + 2 * z, 2)}, {v(V_XT[i])} offset:{4096 * st + 2048 * z}' for z in range(2)]
    mf = []
    fill = {}
    for st in range(16):
        for i in range(4):
            for y in (1, 2):
                def em(reg, st=st, i=i, y=y):
                    d = v(acc + 16 * (y - 1) + 4 * i, 4)
                    I(f'v_mfma_f32_16x16x32_bf16 {d}, {v(reg[(st, i)], 4)}, {wq_reg(y, st)}, {"0" if st == 0 else d}')
                mf.append((em, [(st, i)]))
            if i == 0 and not DOTSTATS:
                for y in range(2):
                    def em(reg, st=st, y=y):
                        d = v(ss + 4 * y, 4)
                        x = v(reg[(st, 0)], 4)
                        I(f'v_mfma_f32_16x16x32_bf16 {d}, {v(V_ONES, 4) if y else x}, {x}, {"0" if st == 0 else d}')
                    mf.append((em, [(st, 0)]))
            if i == 0 and DOTSTATS:
                def dots(reg, st=st):
                    for j in range(8):
                        x = v(reg[(st, 0)] + j // 2)
                        d = v(ss + (j & 1))
                        c = '0' if (st == 0 and j < 2) else d
                        I(f'v_dot2_f32_bf16 {d}, {x}, {x if j & 1 else s(S_ONES)}, {c}')
                fill.setdefault(len(mf) - 2, []).append(dots)
    per = len(mf) // 16
    if layer == 0:
        spread(fill, dma_w(0, L_B, 'wq'), opt('q0', 53), opt('qs', 5.5))
    if layer == 0 and 'b' in PRE:
        tcl = P.alloc()
        spread(fill, [x2_claim(1, tcl, V_L)], 14, 1)

    def mkgate(ck):
        def g():
            A.wait_vm(f'xt{ck}')
            A.barrier(lg=(ck == 0))
            if ck == 0:
                stamp(f'p3_{layer}_c0')
            if ck == 1 and SPEC:
                I(f's_cmp_lg_u32 s{S_REDO}, 1')
                I(f's_cbranch_scc1 L_nofb{layer}')
                I(f's_mov_b32 s{S_T0}, {hex(WS_FB)}')
                A._emit(Ins(f'v_mov_b32 {v(V_PA)}, 1'))
                I('s_mov_b64 exec, 1')
                A.cond = True
                I(f'buffer_atomic_add {v(V_PA)}, {v(V_ARR)}, {WS}, s{S_T0} offen')
                A.cond = False
                I('s_mov_b64 exec, -1')
                A.label(f'L_nofb{layer}')
        return g
    gate = {(4 * ck, 0): mkgate(ck) for ck in range(4)}
    stream(mf, loader, 9, per + 2, fill=fill, gate=gate, burst=8)
    stamp(f'p3_{layer}_mm')
    if layer == 0 and 'b' in PRE:
        P.free(tcl)
    if DOTSTATS:
        for r in (0, 1):
            I(f'v_mov_b32 {v(ss + 2 + r)}, {v(ss + r)}')
        for r in (0, 1):
            I(f'v_permlane32_swap_b32 {v(ss + r)}, {v(ss + 2 + r)}')
        pk('add', v(ss, 2), (v(ss, 2), 'p'), (v(ss + 2, 2), 'p'))
        for r in (0, 1):
            I(f'v_mov_b32 {v(ss + 2 + r)}, {v(ss + r)}')
        for r in (0, 1):
            I(f'v_permlane16_swap_b32 {v(ss + r)}, {v(ss + 2 + r)}')
        pk('add', v(ss, 2), (v(ss, 2), 'p'), (v(ss + 2, 2), 'p'))
        pk('mul', v(ss, 2), (v(ss, 2), 'p'), (s(S_LN, 2), 'l'))
        I(f'v_fma_f32 {v(ss + 1)}, -{v(ss)}, {v(ss)}, {v(ss + 1)}')
        I(f'v_max_f32 {v(ss + 1)}, 0, {v(ss + 1)}')
        I(f'v_add_f32 {v(ss + 1)}, s{S_LN + 1}, {v(ss + 1)}')
        I(f'v_rsq_f32 {v(ss + 1)}, {v(ss + 1)}')
        I(f'v_mul_f32 {v(ss)}, {v(ss)}, {v(ss + 1)}')
        I(f'ds_write2st64_b32 {v(V_SW)}, {v(ss + 1)}, {v(ss)} offset0:0 offset1:1')
    else:
        I(f'v_cndmask_b32 {v(ss)}, {v(ss)}, {v(ss + 1)}, {s(S_M1, 2)}')
        I(f'v_cndmask_b32 {v(ss + 2)}, {v(ss + 2)}, {v(ss + 3)}, {s(S_M1, 2)}')
        I(f'v_mul_f32 {v(ss + 4)}, s{S_LN}, {v(ss + 4)}')
        I(f'v_cndmask_b32 {v(ss)}, {v(ss)}, {v(ss + 2)}, {s(S_M2, 2)}')
        I(f'v_mul_f32 {v(ss + 1)}, {v(ss + 4)}, {v(ss + 4)}')
        I(f'v_fma_f32 {v(ss + 1)}, {v(ss)}, s{S_LN}, -{v(ss + 1)}')
        I(f'v_max_f32 {v(ss + 1)}, 0, {v(ss + 1)}')
        I(f'v_add_f32 {v(ss + 1)}, s{S_LN + 1}, {v(ss + 1)}')
        I(f'v_rsq_f32 {v(ss + 1)}, {v(ss + 1)}')
        I('s_mov_b32 exec_lo, 0x00f0000f')
        I('s_mov_b32 exec_hi, 0xf0000f00')
        I(f'v_mul_f32 {v(ss)}, {v(ss + 4)}, {v(ss + 1)}')
        I(f'ds_write2st64_b32 {v(V_SW)}, {v(ss + 1)}, {v(ss)} offset0:0 offset1:1')
        I('s_mov_b64 exec, -1')
    ta = P.alloc(6, 2)
    for i in range(1, 4):
        I(f'v_xor_b32 {v(ta + 2 * i - 2)}, {64 * i}, {v(V_SR4)}')
        I(f'v_xor_b32 {v(ta + 2 * i - 1)}, {64 * i}, {v(V_SR1)}')

    qc = []
    if layer == 0:
        vqr = P.alloc()
        I(f'v_add_u32 {v(vqr)}, {L_B}, {v(V_XT[0])}')
        A.wait_vm('wq')
        qc = consume_w(0, vqr)
    A.barrier()
    stamp(f'p3_{layer}_st')
    P.free(ss, 8)
    r4 = P.alloc(32, 4)
    r1 = P.alloc(8, 2)
    for i in range(4):
        a4 = ta + 2 * i - 2 if i else V_SR4
        I(f'ds_read_b128 {v(r4 + 8 * i + 4, 4)}, {v(a4)} offset:256')
        I(f'ds_read_b128 {v(r4 + 8 * i, 4)}, {v(a4)}')
    for i in range(4):
        a1 = ta + 2 * i - 1 if i else V_SR1
        I(f'ds_read2st64_b32 {v(r1 + 2 * i, 2)}, {v(a1)} offset0:0 offset1:1')
    P.free(ta, 6)
    tmp = P.alloc(4, 2)
    fk = P.alloc(8, 4)
    fv = P.alloc(8, 4)
    dkv, dz = P.alloc(4, 4), P.alloc(4, 4)
    E6 = s(S_E6, 2)
    with Capture() as ls:
        for i in range(4):
            r, rm = r4 + 8 * i, r4 + 8 * i + 4
            k_, v_ = acc + 4 * i, acc + 16 + 4 * i
            for j in (0, 2):
                pk('fma', v(tmp + j, 2), (v(rm + j, 2), 'p', 'b'), bc(V_CSKV), (E6, 'l'))
            for j in (0, 2):
                pk('fma', v(k_ + j, 2), (v(k_ + j, 2), 'p'), (v(r + j, 2), 'p'), (v(tmp + j, 2), 'p'))
            for j in (0, 2):
                pk('mul', v(v_ + j, 2), (v(v_ + j, 2), 'p'), (v(r + j, 2), 'p'))
            for j in (0, 2):
                pk('fma', v(v_ + j, 2), (v(rm + j, 2), 'p', 'b'), bc(V_CSKV + 1), (v(v_ + j, 2), 'p'))
            phi(k_, tmp)
            for j in (0, 2):
                I(f'v_cvt_pk_bf16_f32 {v(fv + 2 * i + j // 2)}, {v(v_ + j)}, {v(v_ + j + 1)}')
            for j in (0, 2):
                I(f'v_cvt_pk_bf16_f32 {v(fk + 2 * i + j // 2)}, {v(k_ + j)}, {v(k_ + j + 1)}')
    for i, t in enumerate(ls):
        I(t)
        if i % 3 == 2 and qc:
            qc.pop(0)()
    assert not qc
    if layer == 0:
        P.free(vqr)
    if SPEC:
        I(f'v_cmp_u_f32 vcc, {v(r1 + 1)}, {v(r1 + 3)}')
        I(f'v_cmp_u_f32 s[{S_T3}:{S_T4}], {v(r1 + 5)}, {v(r1 + 7)}')
        I(f's_or_b64 vcc, vcc, s[{S_T3}:{S_T4}]')
        I(f's_cbranch_scc1 L_slow{layer}')
        A.label(f'L_ok{layer}')
    stamp(f'p3_{layer}_kv')
    I(f's_mov_b32 s{S_T2}, {hex(WS_KV[layer])}')
    I(f's_mov_b32 s{S_T0}, {hex(WS_KV[layer] + 32768)}')
    for hf in range(2):
        I(f'v_mfma_f32_16x16x32_bf16 {v(dkv, 4)}, {v(fv + 4 * hf, 4)}, {v(fk + 4 * hf, 4)}, {v(dkv, 4) if hf else 0}')
    for hf in range(2):
        I(f'v_mfma_f32_16x16x32_bf16 {v(dz, 4)}, {v(V_ONES, 4)}, {v(fk + 4 * hf, 4)}, {v(dz, 4) if hf else 0}')
    P.free(r4, 32), P.free(fk, 8), P.free(fv, 8), P.free(acc, 32)

    def atomics():
        for r in range(4):
            I(f'buffer_atomic_add_f32 {v(dkv + r)}, {v(V_KVST)}, {WS}, s{S_T2} offen offset:{64 * r}')
        I('s_mov_b64 exec, 0xffff')
        I(f'buffer_atomic_add_f32 {v(dz)}, {v(V_ZST)}, {WS}, s{S_T0} offen')
        I('s_mov_b64 exec, -1')
        stamp(f'p3_{layer}_atom')
    acc = P.alloc(16, 4)
    mf = []
    fill = {}
    for st in range(16):
        for i in range(4):
            def em(reg, st=st, i=i):
                d = v(acc + 4 * i, 4)
                I(f'v_mfma_f32_16x16x32_bf16 {d}, {wq_reg(0, st)}, {v(reg[(st, i)], 4)}, {"0" if st == 0 else d}')
            mf.append((em, [(st, i)]))
        if layer == 0:
            def em(reg, st=st):
                d = v(V_CSQ, 4)
                I(f'v_mfma_f32_16x16x32_bf16 {d}, {wq_reg(0, st)}, {v(V_ONES, 4)}, {"0" if st == 0 else d}')
            mf.append((em, []))
    if layer == 0:
        fill[0] = [lambda reg: A.barrier(lg=False)]
        spread(fill, dma_wo(L_B, 'wo0'), opt('o0', 4), QSTEP, solo=False)
    stream(mf, loader, 8, 6 + 2 * (layer == 0), fill=fill, rate=2, burst=10, pre=atomics)
    P.free(dkv, 4), P.free(dz, 4)
    stamp(f'p3_{layer}_qmm')
    res = p4_res() if layer == 0 else None
    I(f's_mov_b32 s{S_T0}, {hex(WS_PQ[layer])}')
    ta = P.alloc(4)
    for i in range(1, 4):
        I(f'v_xor_b32 {v(ta + i)}, {(i >> 1) * 32768 + (i & 1) * 512}, {v(V_PQST)}')
    for i in range(4):
        q_ = acc + 4 * i
        rr = v(r1 + 2 * i, 2)
        for j in (0, 2):
            pk('fma', v(tmp + j, 2), (rr, 'h', 'b'), (v(V_CSQ + j, 2), 'p'), (E6, 'l'))
        for j in (0, 2):
            pk('fma', v(q_ + j, 2), (v(q_ + j, 2), 'p'), (rr, 'l'), (v(tmp + j, 2), 'p'))
        phi(q_, tmp)
        for j in (0, 2):
            I(f'v_cvt_pk_bf16_f32 {v(q_ + j // 2)}, {v(q_ + j)}, {v(q_ + j + 1)}')
        I(f'buffer_store_dwordx2 {v(q_, 2)}, {v(ta + i if i else V_PQST)}, {WS}, s{S_T0} offen sc1', tag='pqst')
    stamp(f'p3_{layer}_q')
    P.free(r1, 8), P.free(tmp, 4), P.free(acc, 16), P.free(ta, 4)
    return res


P4_UP = int(([x[6:] for x in sys.argv if x.startswith('--p4up')] or ['3'])[0])


P4FL = '' if '--nosc1' in sys.argv else 'sc1'


OUTFL = ([x[6:] for x in sys.argv if x.startswith('--out=')] or [''])[0].replace('+', ' ')


P4_EARLY = [int(c) for c in ([x[8:] for x in sys.argv if x.startswith('--p4ear=')] or ['9'])[0]]


def p4_res():
    res = P.alloc(8, 2)
    for j in range(4):
        I(f'ds_read_b64_tr_b16 {v(res + 2 * j, 2)}, {v(V_RES[j & 1])} offset:{512 * j}')
    return res


def p4_pre(res, layer):
    I(f's_mov_b32 s{S_T1}, {hex(WS_KV[layer])}')
    I(f's_mov_b32 s{S_T2}, {hex(WS_PQ[layer])}')
    I(f's_mov_b32 s{S_T3}, {hex(WS_KV[layer] + 4096)}')
    I(f's_mov_b32 s{S_T4}, {hex(WS_PQ[layer] + 4096)}')
    acc = P.alloc(16, 2)
    ad = [P.alloc() for _ in range(3)]
    for b in range(1, 4):
        I(f'v_xor_b32 {v(ad[b - 1])}, {8192 * b}, {v(V_OFW)}')
    for j in range(8):
        I(f'v_lshlrev_b32 {v(acc + 2 * j)}, 16, {v(res + j)}')
        I(f'v_and_b32 {v(acc + 2 * j + 1)}, 0xffff0000, {v(res + j)}')
    P.free(res, 8)
    return acc, ad


def p4(layer, acc, ad):
    zf = P.alloc(4, 2)
    kv = P.alloc(32, 2)
    pq = P.alloc(32, 2)
    D = [P.alloc(16, 2), P.alloc(16, 2)]
    frs = [P.alloc(4, 2) for _ in range(6)]
    fr = frs[0]

    def loads(pp):
        out = []
        for j in range(2):
            out.append(f'buffer_load_dwordx4 {v(kv + 8 * pp + 4 * j, 4)}, {v(V_KVLD)}, {WS}, s{S_T3 if pp >> 1 else S_T1} offen offset:{2048 * (pp & 1) + 1024 * j} sc1')
        for j in range(2):
            out.append(f'buffer_load_dwordx4 {v(pq + 8 * pp + 4 * j, 4)}, {v(V_PQLD)}, {WS}, s{S_T4 if pp >> 1 else S_T2} offen offset:{2048 * (pp & 1) + 1024 * j} sc1')
        return out
    I(f'buffer_load_dwordx4 {v(fr, 4)}, {v(V_ZLD)}, {WS}, s{S_T1} offen sc1')
    for pp in range(P4_UP):
        for i, t in enumerate(loads(pp)):
            I(t)
            if pp == 0 and i == 1:
                A.barrier()
        if pp < P4_UP - 1:
            A.barrier()
    late = [t for pp in range(P4_UP, 4) for t in loads(pp)]
    stamp(f'p4_{layer}_iss')
    for j in range(4):
        I(f'v_cvt_pk_bf16_f32 {v(zf + j)}, {v(fr + 2 * (j & 1))}, {v(fr + 1 + 2 * (j & 1))}')
    stamp(f'p4_{layer}_z')
    MK = s(S_MASK, 2)

    def prep(pp):
        x = kv + 8 * pp
        o = [f'v_cvt_pk_bf16_f32 {v(x + j)}, {v(x + 2 * j)}, {v(x + 2 * j + 1)}' for j in range(4)]
        if pp == 0:
            o += [f'v_permlane16_swap_b32 {v(zf + j)}, {v(zf + 2 + j)}' for j in range(2)]
        o += [f'v_cndmask_b32 {v(x + 4 + j)}, {v(zf + j)}, {v(x + j)}, {MK}' for j in range(4)]
        o += [f'v_cndmask_b32 {v(x + j)}, {v(x + j)}, {v(zf + j)}, {MK}' for j in range(4)]
        return o

    def mm(hh):
        I(f'v_mfma_f32_32x32x16_bf16 {v(D[hh & 1], 16)}, {v(kv + 4 * hh, 4)}, {v(pq + 4 * hh, 4)}, 0')

    def main_mm(hl, r):
        I(f'v_mfma_f32_32x32x16_bf16 {v(acc, 16)}, {wo_reg(hl)}, {v(r, 4)}, {v(acc, 16)}')

    def norm(pp):
        den = [D[o] + 8 * (1 - o) + 2 * pp + o for o in range(2)]
        out = []
        for o in range(2):
            num = D[o] + 8 * o
            of = pq + 8 * pp + 4 * o
            out.append(f'v_add_f32 {v(den[o])}, s{S_E6}, {v(den[o])}')
            out.append(f'v_rcp_f32 {v(den[o])}, {v(den[o])}')
            out += [f'v_mul_f32 {v(num + j)}, {v(den[o])}, {v(num + j)}' for j in range(8)]
            out += [f'v_cvt_pk_bf16_f32 {v(of + j)}, {v(num + 2 * j)}, {v(num + 2 * j + 1)}' for j in range(4)]
            out.append(f'ds_write_b128 {v(V_OFW)}, {v(of, 4)} offset:{2048 * pp + 1024 * o}')
        out[2:2] = [out.pop(15), out.pop(15)]
        return out

    def reads(pp):
        return [f'ds_read_b128 {v(frs[2 * (b - 1) + o], 4)}, {v(ad[b - 1])} offset:{2048 * pp + 1024 * o}' for b in range(1, 4) for o in range(2)]
    for t in prep(0):
        I(t)
    for pp in range(5):
        rd = reads(pp - 1) if pp else []
        tail = []
        if pp:
            tail = [(2 * pp - 2 + o, pq + 8 * pp - 8 + 4 * o) for o in range(2)]
            tail += [(8 * b + 2 * pp - 2 + o, frs[2 * (b - 1) + o]) for b in range(1, 4) for o in range(2)]
        if pp < 4:
            for o in range(2):
                mm(2 * pp + o)
                for t in rd[3 * o:3 * o + 3]:
                    I(t)
            while late:
                I(late.pop(0))
            stamp(f'p4_{layer}_m{pp}')
            va = norm(pp)
            nx = prep(pp + 1) if pp < 3 else []
            if pp in P4_EARLY:
                va = nx[:4] + va + nx[4:]
                cuts = (0, 6, 11, 16, 20, 21, 27, 33)
            else:
                va = va + nx
                cuts = (0, 1, 6, 11, 16, 22, 29, 34) if pp < 3 else (0, 1, 7, 12, 16, 22, 29)
            for i, t in enumerate(va):
                if i in cuts and tail:
                    if len(tail) == 6:
                        A.need(v(frs[2], 4))
                    if len(tail) == 3:
                        A.need(v(frs[5], 4))
                    main_mm(*tail.pop(0))
                I(t)
            for x in tail:
                main_mm(*x)
            A.barrier()
        else:
            for i, x in enumerate(tail):
                for t in rd[2 * i:2 * i + 2]:
                    I(t)
                main_mm(*x)
    P.free(zf, 4), P.free(kv, 32), P.free(pq, 32), P.free(D[0], 16), P.free(D[1], 16)
    for r in frs:
        P.free(r, 4)
    for r in ad:
        P.free(r)
    stamp(f'p4_{layer}_mm')
    o = P.alloc(8, 2)
    if layer == 0:
        I(f's_mov_b32 s{S_T1}, {hex(WS_ST[1])}')
    else:
        ta = P.alloc(3)
        I(f'v_and_b32 {v(ta)}, 31, {v(V_L)}')
        I(f'v_mul_u32_u24 {v(ta)}, 272, {v(ta)}')
        I(f'v_and_b32 {v(ta + 1)}, 0xff, {v(V_TILE)}')
        I(f'v_add_u32 {v(ta)}, {v(ta)}, {v(ta + 1)}')
        I(f'v_lshrrev_b32 {v(ta + 1)}, 4, v0')
        I(f'v_readfirstlane_b32 s{S_T0}, {v(V_TILE)}')
        I(f'v_and_b32 {v(ta + 2)}, 0xf0, {v(V_L16)}')
        I(f's_and_b32 s{S_T0}, s{S_T0}, 0xffffff00')
        I(f'v_mad_u32_u24 {v(o)}, {v(ta + 1)}, 17, 0')
        I(f'v_lshl_add_u32 {v(ta + 1)}, {v(ta + 1)}, 10, s{S_T0}')
        I(f'v_add_u32 {v(ta + 1)}, {v(ta + 1)}, {v(ta + 2)}')
        I(f'v_lshl_add_u32 {v(ta + 2)}, {v(o)}, 4, {v(ta + 2)}')
    for j in range(8):
        I(f'v_cvt_pk_bf16_f32 {v(o + j)}, {v(acc + 2 * j)}, {v(acc + 2 * j + 1)}')
    if layer == 0:
        ss = P.alloc(2, 2)
        for j in range(8):
            I(f'v_dot2_f32_bf16 {v(ss)}, {v(o + j)}, s{S_ONES}, {v(ss) if j else 0}')
            I(f'v_dot2_f32_bf16 {v(ss + 1)}, {v(o + j)}, {v(o + j)}, {v(ss + 1) if j else 0}')
        I(f'v_permlane32_swap_b32 {v(ss)}, {v(ss + 1)}')
        I(f'v_add_f32 {v(ss)}, {v(ss)}, {v(ss + 1)}')
        I(f'buffer_atomic_add_f32 {v(ss)}, {v(V_STAT)}, {WS}, s{S_T1} offen')
        x2store(1, o)
        P.free(ss, 2)
    elif '--dirout' in sys.argv:
        for j in range(2):
            I(f'global_store_dwordx4 {v(V_TILE)}, {v(o + 4 * j, 4)}, {s(S_OUT, 2)} offset:{16 * j} {OUTFL}')
        P.free(ta, 3)
    else:
        for j in range(2):
            I(f'ds_write_b128 {v(ta)}, {v(o + 4 * j, 4)} offset:{L_A + 16 * j}')
        I(f'v_add_u32 {v(ta)}, 16384, {v(ta + 1)}')
        A.barrier()
        for j in range(2):
            I(f'ds_read_b128 {v(o + 4 * j, 4)}, {v(ta + 2)} offset:{L_A + 16 * 272 * j}')
        for j in range(2):
            I(f'global_store_dwordx4 {v(ta + 1 - j)}, {v(o + 4 * j, 4)}, {s(S_OUT, 2)} {OUTFL}')
        P.free(ta, 3)
    P.free(o, 8), P.free(acc, 16)
    stamp(f'p4_{layer}_st')


def main():
    kg, gi = prologue()
    bar = 1
    for layer in range(2):
        I(f's_lshl_b32 s{S_T3}, s2, 13')
        I(f's_add_u32 s{S_T3}, s{S_T3}, {hex(WS_X2[layer])}')
        I(f's_mov_b32 s{S_T1}, {hex(WS_ST[layer])}')
        I(f's_mov_b32 s{S_T2}, {hex(WS_ST[layer] + 8192)}')
        stamp(f'pre_wait{bar}')
        global_wait(bar, started=(layer == 0))
        stamp(f'wait{bar}')
        conv(layer, kg, gi)
        if not SPEC:
            A.wait_vm('xtst')
            global_arrive()
        bar += 1
        poll_start(bar)
        if layer == 0:
            A.wait_vm('wv')
            A.barrier()
            run_all(consume_w(2, V_XT[0]))
            colsums([1])
        stamp(f'pre_wait{bar}')
        I(f's_mov_b32 s{S_REDO}, s{S_W}')
        global_wait(bar, started=True, gap=(layer == 1))
        stamp(f'wait{bar}')
        res = p3(layer)
        if layer == 0:
            A.wait_vm('wo0')
            I(f'v_xor_b32 {v(V_WOD)}, 0x40000, {v(V_WOD)}')
            A.barrier()
            od = dma_wo(L_A, 'wo1')
            for th in od[:NO]:
                run_all(th)
            run_all(consume_wo(0))
        A.wait_vm('pqst')
        global_arrive()
        bar += 1
        stamp(f'arr{bar}')
        if layer == 0:
            for th in od[NO:]:
                run_all(th)
            for j in range(2):
                I(f'v_subrev_u32 {v(V_WR + j)}, {L_B - L_A}, {v(V_WR + j)}')
            P.free(V_WD), P.free(V_WOD)
            acc, ad = p4_pre(res, layer)
            A.wait_vm()
            poll_start(bar)
            A.barrier()
            run_all(consume_wo(1))
            P.free(V_WR, 2)
        else:
            poll_start(bar)
            acc, ad = p4_pre(p4_res(), layer)
        stamp(f'pre_wait{bar}')
        global_wait(bar, started=True)
        stamp(f'wait{bar}')
        p4(layer, acc, ad)
        if layer == 0:
            A.wait_vm()
            global_arrive()
            bar += 1
    if DIAG:
        A.wait_vm()
        stamp('end')
        A._wait(lg=0)
        t = P.alloc(2)
        I(f's_lshl_b32 s{S_T0}, s2, 2')
        I(f's_add_u32 s{S_T0}, s{S_T0}, s{S_W}')
        I(f's_lshl_b32 s{S_T0}, s{S_T0}, 7')
        I(f's_add_u32 s{S_T0}, s{S_T0}, {hex(WS_DIAG)}')
        I(f'v_mov_b32 {v(t + 1)}, 0')
        I('s_mov_b64 exec, 1')
        for k in range(nstamp[0]):
            I(f'v_mov_b32 {v(t)}, s{S_STAMP + 2 * k}')
            I(f'buffer_store_dword {v(t)}, {v(t + 1)}, {WS}, s{S_T0} offen offset:{4 * k}')
        pr = [x for x in sys.argv if x.startswith('--probe=')]
        if pr:
            nm = pr[0][8:]
            if ':' in nm:
                a_, b_ = [stamp_names.index(x) for x in nm.split(':')]
                I(f's_sub_u32 s{S_T1}, s{S_STAMP + 2 * b_}, s{S_STAMP + 2 * a_}')
                I(f's_mul_i32 s{S_T1}, s{S_T1}, 10')
                I(f's_cmp_eq_u32 s2, {([x[6:] for x in sys.argv if x.startswith("--pwg=")] or [100])[0]}')
                I(f's_cselect_b32 s{S_T1}, s{S_T1}, 0')
                I(f's_add_u32 s{S_T1}, s{S_T1}, s{S_STAMP}')
                I(f's_add_u32 s{S_T1}, s{S_T1}, 6000')
            else:
                k = stamp_names.index(nm)
                I(f's_add_u32 s{S_T1}, s{S_STAMP + 2 * k}, 6000')
            A.label('L_probe')
            I('s_memrealtime s[4:5]')
            A._wait(lg=0)
            I(f's_sub_u32 s{S_T0}, s4, s{S_T1}')
            I(f's_cmp_lt_i32 s{S_T0}, 0')
            I('s_cbranch_scc1 L_probe')
        I(f's_lshl_b32 s{S_T0}, s2, 2')
        I(f's_add_u32 s{S_T0}, s{S_T0}, s{S_W}')
        I(f's_cmp_lg_u32 s{S_T0}, 400')
        I('s_cbranch_scc1 L_end')
        sel = list(range(1, nstamp[0]))
        for j, k in enumerate(sel):
            I(f's_sub_u32 s{S_T0}, s{S_STAMP + 2 * k}, s{S_STAMP}')
            I(f'v_mov_b32 {v(t)}, s{S_T0}')
            I(f'global_store_dword {v(t + 1)}, {v(t)}, {s(S_DBG, 2)} offset:{4 * (j + 1)}')
        print('debug stamps:', [stamp_names[k] for k in sel], file=sys.stderr)
        P.free(t, 2)
    A.label('L_end')
    A.raw('    s_endpgm')
    A.raw('#seg -')
    for layer in range(2 if SPEC else 0):
        raw = lambda t: A._emit(Ins(t))
        A.label(f'L_slow{layer}')
        raw(f's_cmp_ge_u32 s{S_REDO}, 12')
        raw(f's_cbranch_scc1 L_ok{layer}')
        raw(f's_add_u32 s{S_REDO}, s{S_REDO}, 4')
        raw('s_waitcnt vmcnt(0) lgkmcnt(0)')
        raw(f's_cmp_lg_u32 s{S_W}, 0')
        raw(f's_cbranch_scc1 L_slowb{layer}')
        if DIAG:
            raw(f'v_mov_b32 {v(V_PA)}, 1')
            raw(f'v_mov_b32 {v(V_PA + 1)}, 0')
            raw('s_mov_b64 exec, 1')
            raw(f'global_atomic_add {v(V_PA + 1)}, {v(V_PA)}, {s(S_DBG, 2)} offset:{128 + 4 * layer}')
        raw(f's_mov_b32 s{S_SPIN}, 0x100000')
        raw(f's_mov_b32 s{S_T0}, {hex(WS_FB)}')
        raw(f's_movk_i32 s{S_T1}, {32 * (layer + 1)}')
        raw('s_mov_b64 exec, 0xff')
        raw(f'v_lshlrev_b32 {v(V_PA + 1)}, 7, {v(V_L)}')
        A.label(f'L_slowp{layer}')
        raw(f'v_mov_b32 {v(V_PA)}, 0')
        raw(f'buffer_atomic_add {v(V_PA)}, {v(V_PA + 1)}, {WS}, s{S_T0} offen sc0')
        raw(f's_sub_u32 s{S_SPIN}, s{S_SPIN}, 1')
        raw(f's_cbranch_scc1 L_slowd{layer}')
        raw('s_waitcnt vmcnt(0)')
        raw(f'v_cmp_gt_u32 vcc, s{S_T1}, {v(V_PA)}')
        raw(f's_cbranch_vccnz L_slowp{layer}')
        A.label(f'L_slowd{layer}')
        raw('s_mov_b64 exec, -1')
        raw('s_waitcnt vmcnt(0)')
        A.label(f'L_slowb{layer}')
        raw('s_barrier')
        raw(f's_branch L_redo{layer}')

    lines, info = layout(A.out, align='--noalign' not in sys.argv, touch='--notouch' not in sys.argv)
    body = '\n'.join(lines) + '\n'
    print(info, file=sys.stderr)
    ref = open(f'cdna_kernels/{NAME}.s.ref').read().splitlines()
    head = []
    for ln in ref:
        if ln.startswith('; @launch'):
            head.append(f'; @launch grid=(256,1,1) block=(256,1,1) lds={L_END}')
            break
        head.append(ln)
    txt = '\n'.join(head) + f'''
.amdgcn_target "amdgcn-amd-amdhsa--gfx950"
.text
.globl {NAME}_kernel
.p2align 12
.p2align 8
.type {NAME}_kernel,@function
{NAME}_kernel:
''' + body + f'''.section .rodata,"a"
.p2align 6
.amdhsa_kernel {NAME}_kernel
  .amdhsa_next_free_vgpr 512
  .amdhsa_next_free_sgpr 102
  .amdhsa_accum_offset 256
  .amdhsa_group_segment_fixed_size 0
  .amdhsa_kernarg_size 120
  .amdhsa_user_sgpr_count 2
  .amdhsa_user_sgpr_kernarg_segment_ptr 1
  .amdhsa_system_sgpr_workgroup_id_x 1
.end_amdhsa_kernel
'''
    out = [x for x in sys.argv[1:] if not x.startswith('--')]
    path = out[0] if out else f'cdna_kernels/{NAME}.s'
    open(path, 'w').write(txt)
    if DIAG:
        open(path + '.stamps', 'w').write('\n'.join(stamp_names))
    print(f'wrote {path}: {A.ninstr} instrs, {A.nnop} nop states, vgpr peak {P.peak}, lds {L_END}', file=sys.stderr)


main()
```
